```python
import torch

def _softmax(x, axis=-1):
    return torch.softmax(x, dim=axis)
def _gelu(x):
    return torch.nn.functional.gelu(x, approximate="tanh")
def _silu(x):
    return torch.nn.functional.silu(x)
def _sigmoid(x):
    return torch.sigmoid(x)
def _layernorm(x, axis=-1, eps=1e-5):
    m = x.mean(dim=axis, keepdim=True)
    v = x.var(dim=axis, keepdim=True, unbiased=False)
    return (x - m) / torch.sqrt(v + eps)
def _scatter_add(tgt, idx, src, axis=0):
    return tgt.clone().index_add_(axis, idx, src)
def _segment_sum(src, seg, n):
    out = torch.zeros((n,) + src.shape[1:], dtype=src.dtype)
    return out.index_add_(0, seg, src)
def _pad(x, pw):
    flat = tuple(v for pair in reversed(pw) for v in pair)
    return torch.nn.functional.pad(x, flat)

kernel_name = 'sequential_preLN__sliding_block__geglu_ffn__prompt'

def setup_inputs():

    _w = (lambda a: (lambda t: t.to(torch.bfloat16) if t.is_floating_point() else t)(torch.as_tensor(a)))
    def _A_setup():
        B, S, D = 1, 2048, 448
        return {
            "x": _w((lambda *s: torch.randn(*s, dtype=torch.bfloat16) * 0.05)(B, S, D)),
            "wqkv": _w((lambda *s: torch.randn(*s, dtype=torch.bfloat16) * 0.05)(D, 3 * D)),
            "wo": _w((lambda *s: torch.randn(*s, dtype=torch.bfloat16) * 0.05)(D, D)),
        }
    _A_in = _A_setup()

    def _B_setup():
        B, S, D, F = 1, 2048, 448, 1792
        return {
            "x": _w((lambda *s: torch.randn(*s, dtype=torch.bfloat16) * 0.05)(B, S, D)),
            "w_gate": _w((lambda *s: torch.randn(*s, dtype=torch.bfloat16) * 0.05)(D, F)),
            "w_up": _w((lambda *s: torch.randn(*s, dtype=torch.bfloat16) * 0.05)(D, F)),
            "w_down": _w((lambda *s: torch.randn(*s, dtype=torch.bfloat16) * 0.05)(F, D)),
        }
    _B_in = _B_setup()

    return {
        "A_x": _A_in["x"],
        "A_wqkv": _A_in["wqkv"],
        "A_wo": _A_in["wo"],
        "B_x": _B_in["x"],
        "B_w_gate": _B_in["w_gate"],
        "B_w_up": _B_in["w_up"],
        "B_w_down": _B_in["w_down"],
    }

def reference(A_x, A_wqkv, A_wo, B_x, B_w_gate, B_w_up, B_w_down):
    def _A_ref(x, wqkv, wo):
        B, S, D = x.shape
        H = 16; Dh = D // H; W = 256
        qkv = (lambda x, *d: x.permute(*d))((x @ wqkv).reshape(B, S, 3, H, Dh), 2, 0, 3, 1, 4)
        q, k, v = qkv[0], qkv[1], qkv[2]
        scores = torch.einsum("bhqd,bhkd->bhqk", q, k) * (Dh ** -0.5)
        idx = torch.arange(S)
        mask = (idx[:, None] - idx[None, :] >= 0) & (idx[:, None] - idx[None, :] < W)
        scores = torch.where(mask[None, None], scores, -1e9)
        p = _softmax(scores, axis=-1)
        o = torch.einsum("bhqk,bhkd->bhqd", p, v)
        return (lambda x, *d: x.permute(*d))(o, 0, 2, 1, 3).reshape(B, S, D) @ wo

    def _B_ref(x, w_gate, w_up, w_down):
        return (_gelu(x @ w_gate) * (x @ w_up)) @ w_down

    x = A_x
    h = x + _A_ref(_layernorm(x, axis=-1), A_wqkv, A_wo)
    h2 = h + _B_ref(_layernorm(h, axis=-1), B_w_gate, B_w_up, B_w_down)
    return h2
```

```python
import re

def vr(b, n=1):
    return f"v{b}" if n == 1 else f"v[{b}:{b+n-1}]"
def sr(b, n=1):
    return f"s{b}" if n == 1 else f"s[{b}:{b+n-1}]"

class Stream:
    def __init__(self):
        self.L = []
        self.vm = []
        self.ds = []
    def __call__(self, s):
        self.L.append(s)
    def vmem(self, s, tag=None):
        self.L.append(s); self.vm.append(tag)
    def lds(self, s, tag=None):
        self.L.append(s); self.ds.append(tag)
    @staticmethod
    def _n_after(q, tag):
        idx = [i for i, t in enumerate(q) if t == tag]
        if not idx:
            return None
        return len(q) - 1 - idx[-1]
    def wait(self, vm=None, ds=None):
        parts = []
        if vm is not None:
            n = 0 if vm == "all" else self._n_after(self.vm, vm)
            if n is not None:
                n = min(n, 63)
                parts.append(f"vmcnt({n})")
                self.vm = self.vm[len(self.vm) - n:] if n else []
        if ds is not None:
            n = 0 if ds == "all" else self._n_after(self.ds, ds)
            if n is not None:
                n = min(n, 15)
                parts.append(f"lgkmcnt({n})")
                self.ds = self.ds[len(self.ds) - n:] if n else []
        if parts:
            self.L.append("s_waitcnt " + " ".join(parts))

_REG = re.compile(r"(?<![\w.])(-?\|?)([vsa])(?:(\d+)|\[(\d+):(\d+)\])(?![\w])|\b(vcc|exec|m0|scc)\b")
def regs_of(op):
    out = set()
    for m in _REG.finditer(op):
        if m.group(6):
            out.add(m.group(6))
        else:
            k = m.group(2)
            if m.group(3) is not None:
                out.add((k, int(m.group(3))))
            else:
                out.update((k, i) for i in range(int(m.group(4)), int(m.group(5)) + 1))
    return out

TRANS = ("v_exp_f32", "v_log_f32", "v_rcp_f32", "v_rsq_f32", "v_sqrt_f32", "v_sin_f32", "v_cos_f32")

class Ins:
    def __init__(self, text):
        self.text = text
        t = text.split(";")[0].strip()
        self.label = t[:-1] if t.endswith(":") else None
        self.op = t.split()[0] if t and not self.label else ""
        rest = t[len(self.op):].strip() if self.op else ""
        self.rest = rest
        ops = [o.strip() for o in re.split(r",(?![^\[]*\])", rest)] if rest else []
        self.ops = ops
        op = self.op
        self.mfma = op.startswith("v_mfma")
        self.valu = op.startswith("v_") and not self.mfma
        self.salu = op.startswith("s_")
        self.vmem = op.startswith(("buffer_", "global_"))
        self.ds = op.startswith("ds_")
        self.trans = op.replace("_e32", "").replace("_e64", "") in TRANS
        self.dot = op.startswith("v_dot")
        self.dpp = "_dpp" in op or any(k in rest for k in ("row_shr", "row_ror", "quad_perm", "row_bcast", "row_mirror", "row_half_mirror", "row_shl"))
        self.perml = op.startswith("v_permlane")
        self.rdlane = op.startswith(("v_readlane", "v_readfirstlane"))
        self.ldsdma = self.vmem and re.search(r"\blds\b", rest) is not None
        self.states = 1
        if op == "s_nop":
            self.states = int(ops[0], 0) + 1
        self.defs, self.uses = set(), set()
        self.A = self.B = self.C = set()
        self.passes = 0
        self.store_data = set()
        if self.mfma:
            self.defs = regs_of(ops[0]); self.A = regs_of(ops[1]); self.B = regs_of(ops[2]); self.C = regs_of(ops[3].split()[0])
            self.uses = self.A | self.B | self.C
            self.passes = 8 if "32x32" in op else (4 if "16x16" in op else 2)
        elif self.valu:
            self.defs = regs_of(ops[0])
            for o in ops[1:]:
                self.uses |= regs_of(o)
            if self.perml:
                self.defs |= regs_of(ops[1]); self.uses |= regs_of(ops[0])
            if op.startswith(("v_fmac", "v_dot2c", "v_writelane")) or self.dpp:
                self.uses |= regs_of(ops[0])
            if op.startswith(("v_add_co", "v_sub_co", "v_addc_co", "v_mad_u64")):
                self.defs |= regs_of(ops[1])
        elif self.ds:
            if op.startswith(("ds_read", "ds_bpermute", "ds_permute", "ds_swizzle")):
                self.defs = regs_of(ops[0])
                for o in ops[1:]:
                    self.uses |= regs_of(o)
            else:
                for o in ops:
                    self.uses |= regs_of(o)
        elif self.vmem:
            if "load" in op and not self.ldsdma:
                self.defs = regs_of(ops[0])
                for o in ops[1:]:
                    self.uses |= regs_of(o)
            else:
                for o in ops:
                    self.uses |= regs_of(o)
                if "store" in op and ("x3" in op or "x4" in op):
                    self.store_data = regs_of(ops[0] if op.startswith("buffer") else ops[1])
            if self.ldsdma:
                self.uses.add("m0")
        elif self.salu and ops and op not in ("s_waitcnt", "s_nop", "s_sleep", "s_setprio", "s_barrier") and not op.startswith(("s_cbranch", "s_branch")):
            if op.startswith("s_cmp"):
                for o in ops:
                    self.uses |= regs_of(o)
            else:
                self.defs = regs_of(ops[0])
                for o in ops[1:]:
                    self.uses |= regs_of(o)
        self.target = ops[0] if op.startswith(("s_cbranch", "s_branch")) else None

def _isv(r): return isinstance(r, tuple) and r[0] in "va"
def _iss(r): return r == "vcc" or (isinstance(r, tuple) and r[0] == "s")

def need(p, c):
    n = 0
    pv = {r for r in p.defs if _isv(r)}
    ps = {r for r in p.defs if _iss(r)}
    if p.valu:
        if c.mfma and pv & c.uses: n = max(n, 3 if p.dot else 2)
        if c.valu and (c.dpp or c.perml) and pv & c.uses: n = max(n, 2)
        if c.rdlane and pv & c.uses: n = max(n, 1)
        if p.trans and c.valu and not c.trans and pv & c.uses: n = max(n, 1)
        if p.trans and (c.vmem or c.ds) and pv & c.uses: n = max(n, 1)
        if ps:
            if c.vmem and ps & c.uses: n = max(n, 5)
            if c.valu and ps & c.uses: n = max(n, 4 if c.rdlane or c.op.startswith("v_writelane") else 2)
        if p.dot and pv & (c.uses | c.defs):
            same_acc = c.op == p.op and not (pv & set().union(*[regs_of(o) for o in c.ops[1:3]]))
            if not same_acc: n = max(n, 3)
    if p.mfma:
        k = {2: 0, 4: 1, 8: 2}[p.passes]
        if c.mfma:
            if pv & (c.A | c.B): n = max(n, (5, 8, 12)[k])
            if pv & c.C:
                if pv == c.C and p.passes == c.passes: n = max(n, (2, 0, 0)[k])
                else: n = max(n, (4, 6, 10)[k])
            elif pv & c.defs: n = max(n, (4, 6, 10)[k])
        elif (c.valu or c.vmem or c.ds) and pv & (c.uses | c.defs): n = max(n, (5, 8, 12)[k])
        if c.valu and p.C & c.defs: n = max(n, (1, 3, 7)[k])
    if p.salu and "m0" in p.defs and c.ldsdma: n = max(n, 1)
    if p.store_data and p.store_data & c.defs: n = max(n, 2 if c.valu else 1)
    return n

def pad_hazards(lines):
    out = []
    hists = [[]]
    pending = {}
    WIN = 14
    nops = 0
    def trim(h):
        tot, k = 0, len(h)
        while k > 0 and tot < WIN:
            k -= 1; tot += h[k].states
        return h[k:]
    for text in lines:
        s = text.strip()
        if not s or s.startswith((";", ".")):
            out.append(text); continue
        c = Ins(s)
        if c.label:
            hists += pending.pop(c.label, [])
            out.append(text); continue
        req = 0
        for h in hists:
            dist = 0
            for p in reversed(h):
                req = max(req, need(p, c) - dist)
                dist += p.states
        while req > 0:
            k = min(req, 16)
            nop = Ins(f"s_nop {k-1}")
            out.append(nop.text); nops += 1
            hists = [h + [nop] for h in hists]
            req -= k
        out.append(text)
        hists = [trim(h + [c]) for h in hists]
        uniq = {}
        for h in hists:
            uniq[tuple(id(x) for x in h)] = h
        hists = list(uniq.values())
        if c.target:
            pending.setdefault(c.target, []).extend([list(h) for h in hists])
            if c.op == "s_branch":
                hists = [[]]
        if c.op == "s_endpgm":
            hists = [[]]
    return out, nops
```

```python
import math, struct, sys
from asmlib import Stream, vr, sr, pad_hazards

NAME = "sequential_preLN__sliding_block__geglu_ffn__prompt_kernel"
MB = 1 << 20
WS_KV, WS_O, WS_H, WS_SS, WS_ACT = 0, 4 * MB, 6 * MB, 6 * MB + 1792 * 1024, 8 * MB
WS_F1, WS_FX, WS_STAMP, WS_SIZE = 16 * MB, 16 * MB + 32768, 17 * MB, 18 * MB
FX_F2, FX_F3, FX_F4, FX_F0 = 0, 1024, 2048, 3072
LA, LB, LC = 0, 49152, 106496
L_WQ, L_MISC = LB + 16384, LB + 45056
SLOT = [LA + 16384, LA + 32768, LA, LB, LB + 16384, LB + 32768] + [LB + 49152 + 16384 * i for i in range(4)]
SLOT += SLOT[:4]
L_PART, L_XCH5 = LB + 16384, LB + 49152
X_, WQKV, WO, WG, WU, WD, OUT, DBG, WS = (sr(b, 4) for b in (8, 12, 16, 20, 24, 28, 32, 36, 40))
sG, sJ, sW, sHEAD, sRB, sXCC, sMODE, sSPIN = 44, 45, 46, 48, 49, 50, 51, 52
sT0, sT1, sT2, sT3, sT4, sT5 = 53, 54, 55, 56, 57, 58
sHI, sM1, sM2, sM3 = 60, 62, 64, 66
sMT, sKC, sPAR, sML, sMG, sNG, sKH, sMI, sHF, sFX = 68, 69, 70, 71, 72, 73, 74, 75, 76, 77
sST = 80
vLANE, vL16 = 1, 2
vH, vACC, vRING, vTMP, vSS, vRES = 32, 144, 192, 220, 228, 240
BIG = 0xF149F2CA
ONES = 0x3F803F80
SPIN_LIMIT = 0x80000

def f32(x):
    return struct.unpack("<I", struct.pack("<f", x))[0]

class Gen:
    def __init__(self, stop=99, stamps=False, force_slow=False, **kw):
        self.stop, self.stamps, self.force_slow = stop, stamps, force_slow
        self.p = dict(wq_after=2, f1_at=14)
        self.p.update(kw)
        self.tail = []
        self.nlab = 0

    def lab(self, n):
        self.nlab += 1
        return f"L_{n}_{self.nlab}"

    def stamp(self, e, i):
        if self.stamps:
            e(f"s_memrealtime s[{sST + 18}:{sST + 19}]")
            e("s_waitcnt lgkmcnt(0)")
            e(f"s_mov_b32 s{sST + i}, s{sST + 18}")
            e.ds = []

    def finish(self, e, role):
        if self.stamps:
            self.stamp(e, 15)
            e("s_mov_b64 exec, -1")
            e(f"s_lshl_b32 s{sT0}, s2, 3"); e(f"s_add_u32 s{sT0}, s{sT0}, s{sW}"); e(f"s_add_u32 s{sT0}, s{sT0}, {4 * role}")
            e(f"s_lshl_b32 s{sT0}, s{sT0}, 6"); e(f"s_add_u32 s{sT0}, s{sT0}, {WS_STAMP}")
            e("s_waitcnt vmcnt(0)")
            for i in range(16):
                e(f"v_mov_b32 v{32 + i}, s{sST + i}")
            e("v_mov_b32 v3, 0"); e("s_mov_b64 exec, 1")
            for i in range(4):
                e(f"buffer_store_dwordx4 {vr(32 + 4 * i, 4)}, v3, {WS}, s{sT0} offen offset:{16 * i}")
        e("s_endpgm")

    def poll(self, e, vaddr, soff, cmp, vt, srd=WS):
        a, b = self.lab("poll"), self.lab("polled")
        e(f"{a}:")
        e(f"buffer_load_dword v{vt}, v{vaddr}, {srd}, {soff} offen sc1")
        e(f"s_add_u32 s{sSPIN}, s{sSPIN}, 1")
        e("s_waitcnt vmcnt(0)")
        e(cmp)
        e(f"s_cmp_gt_u32 s{sSPIN}, {SPIN_LIMIT}")
        e(f"s_cbranch_scc1 {b}")
        e(f"s_cbranch_vccnz {a}")
        e(f"{b}:")
        e.vm = []

    def publish(self, e, stores, tag="pub"):
        slow, done = self.lab("slow"), self.lab("pubd")
        e(f"s_cmp_eq_u32 s{sMODE}, 0")
        e(f"s_cbranch_scc1 {slow}")
        for s in stores:
            e.vmem(s, tag)
        e(f"{done}:")
        self.tail += [f"{slow}:"] + [s + " sc1" for s in stores] + [f"s_branch {done}"]

    def dma4(self, e, srd, vas, soff, n=4, tag=None, fl=""):
        for i in range(n):
            e.vmem(f"buffer_load_dwordx4 v{vas[i]}, {srd}, {soff} offen offset:{1024 * i} {fl} lds", tag)

    def next_kc(self, e):
        e(f"s_add_u32 s{sKC}, s{sKC}, 1"); e(f"s_cmp_eq_u32 s{sKC}, 7"); e(f"s_cselect_b32 s{sKC}, 0, s{sKC}")

    def tr_base(self, e, vd, vt, hmul, stride, nhmul):
        e(f"v_lshrrev_b32 v{vd}, 5, v{vLANE}")
        e(f"v_mul_u32_u24 v{vd}, {hmul}, v{vd}")
        e(f"v_bfe_u32 v{vt}, v{vLANE}, 2, 2")
        e(f"v_add_u32 v{vd}, v{vd}, v{vt}")
        e(f"v_mul_u32_u24 v{vd}, {stride}, v{vd}")
        e(f"v_bfe_u32 v{vt}, v{vLANE}, 4, 1")
        e(f"v_mul_u32_u24 v{vt}, {nhmul}, v{vt}")
        e(f"v_add_u32 v{vd}, v{vd}, v{vt}")
        e(f"v_and_b32 v{vt}, 3, v{vLANE}")
        e(f"v_lshl_add_u32 v{vd}, v{vt}, 3, v{vd}")

    def rows128_src(self, e, vas, vt, rowstride, partmul, rowof):
        v = vas[0]
        e(f"v_lshrrev_b32 v{v}, 3, v{vLANE}")
        e(f"v_mul_u32_u24 v{v}, {rowstride}, v{v}")
        e(f"v_lshrrev_b32 v{vt}, 2, v{vLANE}")
        e(f"v_lshrrev_b32 v{vt + 1}, 4, v{vLANE}")
        e(f"v_xor_b32 v{vt}, v{vt}, v{vt + 1}")
        e(f"v_and_b32 v{vt}, 1, v{vt}")
        e(f"v_mul_u32_u24 v{vt}, {partmul}, v{vt}")
        e(f"v_add_u32 v{v}, v{v}, v{vt}")
        e(f"v_and_b32 v{vt}, 3, v{vLANE}")
        e(f"v_lshl_add_u32 v{v}, v{vt}, 4, v{v}")
        for i in range(1, 4):
            e(f"v_add_u32 v{vas[i]}, {rowof(i) * rowstride - 1024 * i}, v{v}")

    def rows64_src(self, e, vas, vt, rowstride, gx):
        v = vas[0]
        e(f"v_lshrrev_b32 v{v}, 2, v{vLANE}")
        e(f"v_mul_u32_u24 v{v}, {rowstride}, v{v}")
        e(f"v_and_b32 v{vt}, 3, v{vLANE}")
        if gx:
            e(f"v_xor_b32 v{vt}, {gx}, v{vt}")
        e(f"v_lshl_add_u32 v{v}, v{vt}, 4, v{v}")
        for i in range(1, 4):
            e(f"v_add_u32 v{vas[i]}, {16 * i * rowstride - 1024 * i}, v{v}")

    @staticmethod
    def trd(e, dst, vaddr, off0, step, tag):
        e.lds(f"ds_read_b64_tr_b16 {vr(dst, 2)}, v{vaddr} offset:{off0}", tag)
        e.lds(f"ds_read_b64_tr_b16 {vr(dst + 2, 2)}, v{vaddr} offset:{off0 + step}", tag)

    @staticmethod
    def mf(e, d, a, b, c=None):
        e(f"v_mfma_f32_32x32x16_bf16 {vr(d, 16)}, {vr(a, 4)}, {vr(b, 4)}, {vr(d, 16) if c is None else c}")

    @staticmethod
    def mf8(e, d, a, b, c=None):
        e(f"v_mfma_f32_32x32x8_bf16 {vr(d, 16)}, {vr(a, 2)}, {vr(b, 2)}, {vr(d, 16) if c is None else c}")

    @staticmethod
    def mf4(e, d, a, b, first):
        e(f"v_mfma_f32_4x4x4_16b_bf16 {vr(d, 4)}, {vr(a, 2)}, {vr(b, 2)}, {'0' if first else vr(d, 4)}")

    def read_mode(self, e, vt):
        e(f"v_mov_b32 v{vt}, {L_MISC + 128}")
        e.lds(f"ds_read_b32 v{vt}, v{vt}", "mode")
        e.wait(ds="all")
        e(f"v_readfirstlane_b32 s{sMODE}, v{vt}")

    def prologue(self, e):
        e("s_cmp_ge_u32 s2, 256")
        e("s_cbranch_scc1 L_exit")
        e("s_load_dwordx16 s[84:99], s[0:1], 0")
        e("s_load_dwordx4 s[4:7], s[0:1], 64")
        e("v_lshrrev_b32 v3, 6, v0")
        e(f"v_and_b32 v{vLANE}, 63, v0")
        e(f"v_readfirstlane_b32 s47, v3")
        e(f"v_lshlrev_b32 v{vL16}, 4, v{vLANE}")
        e(f"s_and_b32 s{sG}, s2, 7"); e(f"s_lshr_b32 s{sJ}, s2, 3")
        e(f"s_and_b32 s{sW}, s47, 3")
        e(f"s_and_b32 s{sHEAD}, s{sJ}, 15")
        e(f"s_lshr_b32 s{sRB}, s{sJ}, 4"); e(f"s_lshl_b32 s{sT0}, s{sG}, 1"); e(f"s_add_u32 s{sRB}, s{sRB}, s{sT0}")
        e(f"s_add_u32 s{sKC}, s{sHEAD}, s{sG}")
        e(f"s_mul_i32 s{sT0}, s{sKC}, 37"); e(f"s_lshr_b32 s{sT0}, s{sT0}, 8"); e(f"s_mul_i32 s{sT0}, s{sT0}, 7")
        e(f"s_sub_u32 s{sKC}, s{sKC}, s{sT0}")
        e(f"s_mul_i32 s{sMG}, s{sJ}, 37"); e(f"s_lshr_b32 s{sMG}, s{sMG}, 8")
        e(f"s_mul_i32 s{sT0}, s{sMG}, 7"); e(f"s_sub_u32 s{sNG}, s{sJ}, s{sT0}")
        e(f"s_and_b32 s{sPAR}, s{sJ}, 1")
        e(f"s_and_b32 s{sMI}, s{sW}, 1"); e(f"s_lshr_b32 s{sKH}, s{sW}, 1"); e(f"s_lshr_b32 s{sHF}, s{sMG}, 1")
        e(f"s_lshl_b32 s{sFX}, s{sG}, 12"); e(f"s_add_u32 s{sFX}, s{sFX}, {WS_FX}")
        e(f"s_mov_b32 s{sSPIN}, 0")
        e(f"s_mov_b32 s{sHI}, 0"); e(f"s_mov_b32 s{sHI + 1}, -1")
        sizes = {8: 2048 * 896, 12: 448 * 2688, 16: 448 * 896, 20: 448 * 3584, 24: 448 * 3584, 28: 1792 * 896,
                 32: 2048 * 896, 36: 256, 40: WS_SIZE}
        for b, n in sizes.items():
            e(f"s_mov_b32 s{b + 2}, {n}"); e(f"s_mov_b32 s{b + 3}, 0x20000")

    def got_args(self, e):
        e("s_waitcnt lgkmcnt(0)")
        for b, src in ((8, 84), (12, 86), (40, 6), (36, 4), (16, 88), (20, 92), (24, 94), (28, 96), (32, 98)):
            e(f"s_mov_b64 s[{b}:{b + 1}], s[{src}:{src + 1}]")
        if self.stamps:
            for i in range(16):
                e(f"s_mov_b32 s{sST + i}, 0")

    def role_L(self):
        e = Stream()
        vXA, vXR, vWK, vWV, vWQ = [4, 5, 6, 7], [8, 9, 10, 11], 12, 13, 14
        vONE, vOH, vMU, vRS = 16, 18, 20, 21
        vNM, vCP = 22, 24
        aK, aV, aQ = vACC, vACC + 16, vACC + 32
        wf = vRING
        XS, XQ, CK, CV = 224, 228, 232, 236
        PK = 240
        t = 26
        e(f"s_lshl_b32 s{sMT}, s{sRB}, 2"); e(f"s_add_u32 s{sMT}, s{sMT}, s{sW}")
        e(f"v_lshrrev_b32 v{t}, 3, v{vLANE}")
        e(f"v_mul_u32_u24 v{t + 1}, 896, v{t}")
        e(f"v_lshrrev_b32 v{t}, 1, v{t}")
        e(f"v_and_b32 v{t + 2}, 7, v{vLANE}")
        e(f"v_xor_b32 v{t}, v{t}, v{t + 2}")
        e(f"v_lshl_add_u32 v{vXA[0]}, v{t}, 4, v{t + 1}")
        e(f"v_xor_b32 v{t}, 4, v{t}")
        e(f"v_lshl_add_u32 v{vXA[1]}, v{t}, 4, v{t + 1}")
        e(f"v_add_u32 v{vXA[2]}, {16 * 896 - 2048}, v{vXA[0]}")
        e(f"v_add_u32 v{vXA[3]}, {24 * 896 - 3072}, v{vXA[1]}")
        e(f"v_add_u32 v{vXA[1]}, {8 * 896 - 1024}, v{vXA[1]}")
        e(f"s_mul_i32 s{sT4}, s{sMT}, {32 * 896}")
        e(f"s_lshl_b32 s{sT5}, s{sW}, 12")
        self.got_args(e)
        self.stamp(e, 0)
        def xdma(ic):
            e(f"s_add_u32 m0, s{sT5}, {(ic % 4) * 16384}")
            e(f"s_lshl_b32 s{sT0}, s{sKC}, 7"); e(f"s_add_u32 s{sT0}, s{sT0}, s{sT4}")
            self.dma4(e, X_, vXA, f"s{sT0}", tag=("x", ic))
            self.next_kc(e)
        for ic in range(4):
            xdma(ic)
        e(f"v_and_b32 v{t}, 31, v{vLANE}")
        e(f"v_lshlrev_b32 v{t + 1}, 7, v{t}")
        e(f"v_add_u32 v{t + 1}, s{sT5}, v{t + 1}")
        e(f"v_bfe_u32 v{t}, v{vLANE}, 1, 3")
        e(f"v_lshrrev_b32 v{t + 2}, 5, v{vLANE}")
        e(f"v_xor_b32 v{t}, v{t}, v{t + 2}")
        for s in range(4):
            e(f"v_xor_b32 v{t + 2}, {2 * s}, v{t}")
            e(f"v_lshl_add_u32 v{vXR[s]}, v{t + 2}, 4, v{t + 1}")
        self.tr_base(e, vWK, t, 8, 128, 32)
        e(f"v_bfe_u32 v{t}, v{vLANE}, 3, 1")
        e(f"v_lshlrev_b32 v{t}, 6, v{t}")
        e(f"v_add_u32 v{vWK}, {LC}, v{vWK}")
        e(f"v_xor_b32 v{t + 1}, 64, v{t}")
        e(f"v_add_u32 v{vWV}, v{vWK}, v{t + 1}")
        e(f"v_add_u32 v{vWK}, v{vWK}, v{t}")
        self.tr_base(e, vWQ, t, 8, 64, 32)
        e(f"v_add_u32 v{vWQ}, {L_WQ}, v{vWQ}")
        e(f"v_mov_b32 v{vONE}, {ONES}"); e(f"v_mov_b32 v{vONE + 1}, {ONES}")
        e(f"v_cndmask_b32 v{vOH}, v{vONE}, 0, s[{sHI}:{sHI + 1}]"); e(f"v_mov_b32 v{vOH + 1}, 0")
        for m, val in ((sM1, 0x22222222), (sM2, 0x44444444), (sM3, 0x88888888)):
            e(f"s_mov_b32 s{m}, {val}"); e(f"s_mov_b32 s{m + 1}, {val}")
        for ic in range(7):
            e.wait(vm=("x", ic))
            e("s_barrier")
            if ic == 0: self.stamp(e, 1)
            for s in range(4):
                e.lds(f"ds_read_b128 {vr(vH + 16 * ic + 4 * s, 4)}, v{vXR[s]} offset:{(ic % 4) * 16384}", ("f", s))
                o = (64 * ic + 16 * s) * 128
                self.trd(e, wf + 8 * s, vWK, o, 512, ("f", s))
                self.trd(e, wf + 8 * s + 4, vWV, o, 512, ("f", s))
                if s == 2:
                    e.wait(ds=("f", 0))
            for s in range(4):
                e.wait(ds=("f", s))
                if s == 3 and ic + 4 < 7:
                    xdma(ic + 4)
                x, k, v = vH + 16 * ic + 4 * s, wf + 8 * s, wf + 8 * s + 4
                first = ic == 0 and s == 0
                for hh in (0, 2):
                    f = first and hh == 0
                    self.mf4(e, XS, vONE, x + hh, f); self.mf4(e, XQ, x + hh, x + hh, f)
                    self.mf4(e, CK, vONE, k + hh, f); self.mf4(e, CV, vONE, v + hh, f)
                self.mf(e, aK, k, x, "0" if first else None)
                self.mf(e, aV, x, v, "0" if first else None)
        self.stamp(e, 2)
        def split_cs(dst, c):
            e(f"v_cvt_pk_bf16_f32 v{dst + 1}, v{c}, v{c}")
            e(f"v_and_b32 v{t}, 0xffff0000, v{dst + 1}")
            e(f"v_sub_f32 v{t}, v{c}, v{t}")
            e(f"v_cvt_pk_bf16_f32 v{dst}, v{c}, v{t}")
        e(f"v_cndmask_b32 v{XQ}, v{XQ}, v{XQ + 1}, s[{sM1}:{sM1 + 1}]")
        e(f"v_cndmask_b32 v{XQ}, v{XQ}, v{XQ + 2}, s[{sM2}:{sM2 + 1}]")
        e(f"v_cndmask_b32 v{XQ}, v{XQ}, v{XQ + 3}, s[{sM3}:{sM3 + 1}]")
        split_cs(CK + 2, CK)
        e(f"v_permlane32_swap_b32 v{XS}, v{XQ}")
        e(f"v_add_f32 v{XS}, v{XS}, v{XQ}")
        e(f"v_mov_b32 v{XQ}, v{XS}")
        split_cs(CV + 2, CV)
        e(f"v_permlane32_swap_b32 v{XS}, v{XQ}")
        e(f"v_mul_f32 v{vMU}, {f32(1 / 448)}, v{XS}")
        e(f"v_mul_f32 v{XQ}, {f32(1 / 448)}, v{XQ}")
        e(f"v_cvt_pk_bf16_f32 v{vNM}, -v{vMU}, -v{vMU}")
        e(f"v_fma_f32 v{XQ}, -v{vMU}, v{vMU}, v{XQ}")
        e(f"v_and_b32 v{t}, 0xffff0000, v{vNM}")
        e(f"v_max_f32 v{XQ}, 0, v{XQ}")
        e(f"v_add_f32 v{t}, v{vMU}, v{t}")
        e(f"v_add_f32 v{XQ}, {f32(1e-5)}, v{XQ}")
        e(f"v_cvt_pk_bf16_f32 v{vNM + 1}, -v{t}, 0")
        e(f"v_rsq_f32 v{vRS}, v{XQ}")
        self.mf8(e, aK, CK + 2, vNM)
        split_cs(vCP, vRS)
        self.mf8(e, aV, vNM, CV + 2)
        self.mf8(e, aQ, vCP, vOH, "0")
        e(f"s_lshl_b32 s{sT0}, s{sHEAD}, 6"); e(f"s_add_u32 s{sT0}, s{sT0}, s{sMT}"); e(f"s_lshl_b32 s{sT0}, s{sT0}, 12")
        e(f"v_add_u32 v{t + 1}, s{sT5}, v{vL16}")
        e(f"s_mov_b32 s{sM1}, 0x10000000"); e(f"s_mov_b32 s{sM1 + 1}, 0x10000000")
        for i in range(16):
            e(f"v_mul_f32 v{aK + i}, v{vRS}, v{aK + i}")
        for i in range(8):
            e(f"v_cvt_pk_bf16_f32 v{PK + i}, v{aK + 2 * i}, v{aK + 2 * i + 1}")
        for i in range(2):
            e.vmem(f"buffer_store_dwordx4 {vr(PK + 4 * i, 4)}, v{vL16}, {WS}, s{sT0} offen offset:{1024 * i} sc1", "kv")
        for i in range(16):
            e(f"v_mul_f32 v{aV + i}, v{aQ + i}, v{aV + i}")
        for i in range(8):
            e(f"v_cvt_pk_bf16_f32 v{PK + 8 + i}, v{aV + 2 * i}, v{aV + 2 * i + 1}")
        for i in range(8):
            e(f"v_cndmask_b32 v{PK + 8 + i}, v{PK + 8 + i}, v{vONE}, s[{sM1}:{sM1 + 1}]")
        for i in range(2, 4):
            e.vmem(f"buffer_store_dwordx4 {vr(PK + 4 * i, 4)}, v{vL16}, {WS}, s{sT0} offen offset:{1024 * i} sc1", "kv")
        for i in range(4):
            e.lds(f"ds_write_b128 v{t + 1}, {vr(PK + 4 * i, 4)} offset:{32768 + 1024 * i}")
        e.wait(ds="all")
        e("s_barrier")
        self.stamp(e, 3)
        NR = 7
        def qread(s):
            self.trd(e, wf + 4 * (s % NR), vWQ, 16 * s * 64, 256, ("q", s))
        for s in range(NR - 1):
            qread(s)
        e(f"s_lshl_b32 s{sT0}, s{sRB}, 4"); e(f"s_add_u32 s{sT0}, s{sT0}, s{sHEAD}"); e(f"s_lshl_b32 s{sT0}, s{sT0}, 5")
        e(f"s_add_u32 s{sT0}, s{sT0}, s{sW}"); e(f"s_lshl_b32 s{sT0}, s{sT0}, 2"); e(f"s_add_u32 s{sT1}, s{sT0}, {WS_F1}")
        e(f"v_mov_b32 v{t}, 0"); e(f"v_mov_b32 v{t + 1}, 1")
        for s in range(28):
            if s == self.p["f1_at"]:
                e.wait(vm="all")
                e("s_mov_b64 exec, 1")
                e.vmem(f"buffer_store_dword v{t + 1}, v{t}, {WS}, s{sT1} offen sc1")
                e("s_mov_b64 exec, -1")
            e.wait(ds=("q", s))
            q = wf + 4 * (s % NR)
            self.mf4(e, CK, vONE, q, s == 0); self.mf4(e, CV, vONE, q + 2, s == 0)
            self.mf(e, aQ, q, vH + 4 * s, "0" if s == 0 else None)
            if s + NR - 1 < 28:
                qread(s + NR - 1)
        e(f"v_add_f32 v{CK}, v{CK}, v{CV}")
        split_cs(CK + 2, CK)
        self.mf8(e, aQ, CK + 2, vNM)
        vQ = vTMP
        e(f"v_mul_f32 v{vRS}, {f32(28 ** -0.5 * math.log2(math.e))}, v{vRS}")
        e(f"v_mul_f32 v{vMU}, {f32(1 / 16)}, v{vMU}")
        for i in range(16):
            e(f"v_mul_f32 v{aQ + i}, v{vRS}, v{aQ + i}")
        for i in range(8):
            e(f"v_cvt_pk_bf16_f32 v{vQ + i}, v{aQ + 2 * i}, v{aQ + 2 * i + 1}")
        for i in (6, 7):
            e(f"v_cndmask_b32 v{vQ + i}, v{vQ + i}, 0, s[{sHI}:{sHI + 1}]")
        self.stamp(e, 4)
        nopoll = self.lab("nopoll")
        e(f"s_cmp_eq_u32 s{sRB}, 0"); e(f"s_cbranch_scc1 {nopoll}")
        e(f"v_lshlrev_b32 v{t}, 11, v{vLANE}")
        e(f"s_sub_u32 s{sT1}, s{sT1}, 4096")
        e(f"s_cmp_eq_u32 s{sRB}, 1"); e("s_cselect_b64 exec, 2, 3")
        self.poll(e, t, f"s{sT1}", f"v_cmp_ne_u32 vcc, 1, v{t + 1}", t + 1)
        e("s_mov_b64 exec, -1")
        e(f"{nopoll}:")
        e.wait(vm="all")
        self.stamp(e, 5)
        e(f"s_lshl_b32 s{sT0}, s{sHEAD}, 6"); e(f"s_add_u32 s{sT0}, s{sT0}, s{sMT}"); e(f"s_lshl_b32 s{sT0}, s{sT0}, 12")
        for u in range(2):
            e(f"s_sub_u32 s{sT1}, s{sT0}, {(8 - 4 * u) * 4096}")
            e(f"s_cmp_ge_u32 s{sRB}, {2 - u}"); e(f"s_cselect_b32 s{sT1}, s{sT1}, 0x7fff0000")
            e(f"s_add_u32 m0, s{sT5}, {u * 16384}")
            self.dma4(e, WS, [vL16] * 4, f"s{sT1}", tag="kvr", fl="sc1")
        vS, aO, vRM = vH, vACC + 32, vRES
        e(f"v_and_b32 v{t}, 31, v{vLANE}")
        e(f"v_lshrrev_b32 v{t + 1}, 5, v{vLANE}")
        e(f"v_lshlrev_b32 v{t + 1}, 2, v{t + 1}")
        e(f"v_sub_u32 v{t}, v{t}, v{t + 1}")
        e(f"v_mov_b32 v{t + 2}, {BIG}")
        e(f"s_cmp_ge_u32 s{sMT}, 8"); e(f"s_cselect_b32 s{sT0}, 0, {BIG}")
        e(f"v_mov_b32 v{t + 3}, s{sT0}")
        for r in range(16):
            m = (sM1, sM2, sM3)[r % 3]
            e(f"v_cmp_le_i32 s[{m}:{m + 1}], {8 * (r >> 2) + (r & 3)}, v{t}")
            e(f"v_cndmask_b32 v{vS + 128 + r}, v{t + 2}, 0, s[{m}:{m + 1}]")
            e(f"v_cndmask_b32 v{vS + r}, v{t + 3}, v{t + 2}, s[{m}:{m + 1}]")
        e("s_barrier")
        e(f"v_lshrrev_b32 v{t}, 5, v{vLANE}")
        e(f"v_lshlrev_b32 v{t}, 4, v{t}")
        e(f"v_add_u32 v{t}, {L_MISC}, v{t}")
        for a in range(4):
            e.lds(f"ds_read_b128 {vr(vRM + 4 * a, 4)}, v{t} offset:{32 * a}")
        self.read_mode(e, t + 1)
        e("s_barrier")
        for tt in range(1, 8):
            e(f"s_cmp_ge_u32 s{sMT}, {8 - tt}"); e(f"s_cselect_b32 s{sT0}, 0, {BIG}")
            for r in range(16):
                e(f"v_mov_b32 v{vS + 16 * tt + r}, s{sT0}")
        vKA = 4
        e(f"v_add_u32 v{vKA}, s{sT5}, v{vL16}")
        e.wait(vm="all")
        e("s_barrier")
        self.stamp(e, 6)
        def frag(n):
            kv, i = divmod(n, 18)
            off = (i >> 1) * 4096 + kv * 2048 + (i & 1) * 1024
            e.lds(f"ds_read_b128 {vr(wf + 4 * (n % NR), 4)}, v{vKA} offset:{off}", ("kv", n))
        for n in range(NR - 1):
            frag(n)
        vM = 5
        def maxtile(tt, half):
            b = vS + 16 * tt + 8 * half
            for i in range(0, 8, 2):
                if tt == 0 and half == 0 and i == 0:
                    e(f"v_max_f32 v{vM}, v{b}, v{b + 1}")
                else:
                    e(f"v_max3_f32 v{vM}, v{b + i}, v{b + i + 1}, v{vM}")
        for n in range(18):
            e.wait(ds=("kv", n))
            self.mf(e, vS + 16 * (n >> 1), wf + 4 * (n % NR), vQ + 4 * (n & 1))
            frag(n + NR - 1)
            if n >= 4:
                maxtile((n - 4) >> 1, n & 1)
        for n in range(14, 18):
            maxtile(n >> 1, n & 1)
        e(f"v_mov_b32 v{vM + 1}, v{vM}")
        e(f"v_permlane32_swap_b32 v{vM}, v{vM + 1}")
        e(f"v_max_f32 v{vM + 1}, v{vM}, v{vM + 1}")
        for i in range(0, 144, 2):
            e(f"v_pk_add_f32 {vr(vS + i, 2)}, {vr(vS + i, 2)}, {vr(vM + 1, 2)} op_sel_hi:[1,0] neg_lo:[0,1] neg_hi:[0,1]")
        pend = []
        for hb in range(18):
            b = vS + 8 * hb
            for i in range(8):
                e(f"v_exp_f32 v{b + i}, v{b + i}")
                if i == 2 and pend:
                    n = pend.pop()
                    e.wait(ds=("kv", 18 + n))
                    self.mf(e, aO, wf + 4 * ((18 + n) % NR), vS + 8 * n, "0" if n == 0 else None)
                    if 18 + n + NR - 1 < 36:
                        frag(18 + n + NR - 1)
            for i in range(4):
                e(f"v_cvt_pk_bf16_f32 v{b + i}, v{b + 2 * i}, v{b + 2 * i + 1}")
            pend.append(hb)
        e.wait(ds="all")
        self.mf(e, aO, wf + 4 * (35 % NR), vS + 8 * 17)
        e(f"s_lshl_b32 s{sT0}, s{sMT}, 4"); e(f"s_add_u32 s{sT0}, s{sT0}, s{sHEAD}"); e(f"s_lshl_b32 s{sT0}, s{sT0}, 11")
        e(f"s_add_u32 s{sT0}, s{sT0}, {WS_O}")
        e(f"s_and_b32 s{sT1}, s{sMT}, 7"); e(f"s_lshl_b32 s{sT1}, s{sT1}, 5"); e(f"s_add_u32 s{sT1}, s{sT1}, s{sHEAD}")
        e(f"s_lshl_b32 s{sT1}, s{sT1}, 2"); e(f"s_add_u32 s{sT1}, s{sT1}, s{sFX}")
        e("s_barrier")
        e(f"v_mov_b32 v{t}, v{aO + 12}"); e(f"v_mov_b32 v{t + 1}, v{aO + 12}")
        e(f"v_mul_f32 v{t + 2}, v{aO}, v{vRM}")
        e(f"v_mul_f32 v{t + 3}, v{aO + 1}, v{vRM + 1}")
        e(f"v_permlane32_swap_b32 v{t}, v{t + 1}")
        e(f"v_rcp_f32 v{t + 1}, v{t + 1}")
        for i in range(2, 16):
            e(f"v_fmac_f32 v{t + 2 + (i & 1)}, v{aO + i}, v{vRM + i}")
        e(f"v_add_f32 v{t + 2}, v{t + 2}, v{t + 3}")
        e(f"v_mov_b32 v{t + 3}, v{t + 2}")
        for i in range(8):
            e(f"v_mul_f32 v{aO + i}, v{t + 1}, v{aO + i}")
        e(f"v_permlane32_swap_b32 v{t + 2}, v{t + 3}")
        for i in range(4):
            e(f"v_cvt_pk_bf16_f32 v{vQ + i}, v{aO + 2 * i}, v{aO + 2 * i + 1}")
        e(f"v_add_f32 v{t + 2}, v{t + 2}, v{t + 3}")
        e(f"v_fma_f32 v{t + 2}, v{t + 2}, v{t + 1}, v{vMU}")
        for i in range(8, 16):
            e(f"v_mul_f32 v{aO + i}, v{t + 1}, v{aO + i}")
        split_cs(vCP, t + 2)
        for i in range(4, 8):
            e(f"v_cvt_pk_bf16_f32 v{vQ + i}, v{aO + 2 * i}, v{aO + 2 * i + 1}")
        e(f"v_cndmask_b32 v{vQ + 6}, v{vQ + 6}, v{vCP}, s[{sHI}:{sHI + 1}]")
        e(f"v_cndmask_b32 v{vQ + 7}, v{vQ + 7}, 0, s[{sHI}:{sHI + 1}]")
        self.publish(e, [f"buffer_store_dwordx4 {vr(vQ + 4 * i, 4)}, v{vL16}, {WS}, s{sT0} offen offset:{1024 * i}" for i in range(2)])
        e(f"v_mov_b32 v{t}, 0"); e(f"v_mov_b32 v{t + 1}, 1")
        e.wait(vm="all")
        e("s_mov_b64 exec, 1")
        self.publish(e, [f"buffer_store_dword v{t + 1}, v{t}, {WS}, s{sT1} offen offset:{FX_F2}"])
        e("s_mov_b64 exec, -1")
        self.stamp(e, 7)
        if self.stop <= 2:
            self.finish(e, 0); return e
        self.ffn_setup(e, 0)
        e("s_barrier")
        self.wd_dma(e, [0, 1])
        e("s_barrier")
        if self.stop <= 3:
            self.finish(e, 0); return e
        self.ffn_L(e)
        return e

    vD = [4, 5, 6, 7]
    vPa, vPb, vPc, vPd, vW5 = 8, 9, 10, 11, [12, 13]
    vK1, vK2, vRI, vMU2, vW5t = 14, 15, 16, 17, [18, 19]
    sTA, sTC, sP = 78, 79, 59

    def ffn_setup(self, e, role):
        t = 26
        self.rows128_src(e, self.vD, t, 896, 64, lambda i: (i >> 1) * 112 + (i & 1) * 8)
        self.tr_base(e, self.vPa, t, 4, 64, 28672)
        e(f"v_bfe_u32 v{t}, v{vLANE}, 4, 1"); e(f"v_lshlrev_b32 v{t}, 5, v{t}")
        e(f"v_xor_b32 v{t + 1}, 32, v{t}")
        e(f"s_lshl_b32 s{sT0}, s{sPAR}, 5")
        e(f"v_xor_b32 v{t + 2}, s{sT0}, v{t}"); e(f"v_xor_b32 v{t + 3}, s{sT0}, v{t + 1}")
        e(f"s_mov_b32 s{sT0}, {LB}"); e(f"s_mov_b32 s{sT1}, {LC}")
        e(f"v_add3_u32 v{self.vPb}, v{self.vPa}, v{t + 1}, s{sT0}")
        e(f"v_add3_u32 v{self.vPc}, v{self.vPa}, v{t + 2}, s{sT1}")
        e(f"v_add3_u32 v{self.vPd}, v{self.vPa}, v{t + 3}, s{sT1}")
        e(f"v_add3_u32 v{self.vPa}, v{self.vPa}, v{t}, s{sT0}")
        self.w5_base(e)
        e(f"s_xor_b32 s{sML}, s{sPAR}, {role}"); e(f"s_lshl_b32 s{sML}, s{sML}, 2"); e(f"s_add_u32 s{sML}, s{sML}, s{sW}")
        e(f"s_lshl_b32 s{sMT}, s{sG}, 3"); e(f"s_add_u32 s{sMT}, s{sMT}, s{sML}")
        e(f"s_mul_i32 s{self.sTA}, s{sPAR}, 5"); e(f"s_lshl_b32 s{self.sTC}, s{sPAR}, 1"); e(f"s_add_u32 s{self.sTC}, s{self.sTC}, 2")
        e(f"s_lshr_b32 s{self.sP}, s{sJ}, 1")

    def w5_base(self, e):
        t = 26
        self.tr_base(e, self.vW5[0], t, 4, 128, 32)
        e(f"v_bfe_u32 v{t}, v{vLANE}, 3, 1"); e(f"v_xor_b32 v{t}, s{sKH}, v{t}"); e(f"v_lshlrev_b32 v{t}, 6, v{t}")
        e(f"v_xor_b32 v{t + 1}, 64, v{t}")
        e(f"v_add_u32 v{self.vW5[1]}, v{self.vW5[0]}, v{t + 1}")
        e(f"v_add_u32 v{self.vW5[0]}, v{self.vW5[0]}, v{t}")

    ORD = ([0, 1, 3, 5, 6, 2, 4], [5, 6, 3, 0, 1, 4, 2])

    def chunk_off(self, e, dst, q, mul):
        e(f"s_cmp_eq_u32 s{sHF}, 0")
        e(f"s_mov_b32 s{dst}, {self.ORD[1][q] * mul}")
        e(f"s_cselect_b32 s{dst}, {self.ORD[0][q] * mul}, s{dst}")

    def wd_dma(self, e, hcs):
        e(f"s_mul_i32 s{sT2}, s{sW}, {2 * 112 * 896}"); e(f"s_lshl_b32 s{sT3}, s{sNG}, 7"); e(f"s_add_u32 s{sT2}, s{sT2}, s{sT3}")
        e(f"s_cmp_lt_u32 s{sJ}, 28"); e(f"s_cselect_b32 s{sT2}, s{sT2}, 0x7f000000")
        e(f"s_lshl_b32 s{sT3}, s{sW}, 12")
        for hc in hcs:
            self.chunk_off(e, sT0, hc >> 1, 16 * 896)
            e(f"s_add_u32 s{sT0}, s{sT0}, s{sT2}")
            if hc & 1:
                e(f"s_add_u32 s{sT0}, s{sT0}, {8 * 112 * 896}")
            e(f"s_add_u32 m0, s{sT3}, {SLOT[hc]}")
            self.dma4(e, WD, self.vD, f"s{sT0}", tag=("wd", hc))

    def h_poll(self, e):
        t = 26
        e(f"v_lshlrev_b32 v{t}, 2, v{vLANE}")
        e(f"s_lshl_b32 s{sT0}, s{sML}, 7"); e(f"s_add_u32 s{sT0}, s{sT0}, s{sFX}"); e(f"s_add_u32 s{sT0}, s{sT0}, {FX_F3}")
        e(f"s_mul_i32 s{sT4}, s{sMT}, 28672"); e(f"s_add_u32 s{sT4}, s{sT4}, {WS_H}")
        e(f"s_lshl_b32 s{sT5}, s{sMT}, 11"); e(f"s_add_u32 s{sT5}, s{sT5}, {WS_SS}")
        e("s_mov_b64 exec, 0x3fff")
        self.poll(e, t, f"s{sT0}", f"v_cmp_ne_u32 vcc, 1, v{t + 1}", t + 1)
        e("s_mov_b64 exec, -1")

    def h_load(self, e, s):
        e.vmem(f"buffer_load_dwordx4 {vr(vH + 4 * s, 4)}, v{vL16}, {WS}, s{sT4} offen offset:{1024 * (s & 3)} sc1", ("h", s))
        if s & 3 == 3:
            e(f"s_add_u32 s{sT4}, s{sT4}, 4096")

    def ss_load(self, e):
        for i in range(7):
            e.vmem(f"buffer_load_dword v{vSS + i}, v26, {WS}, s{sT5} offen offset:{256 * i} sc1", "ss")

    def gu_pass(self, e, addrs, accs, hook=None, wait_h=False):
        NR, nt = 7, len(addrs)
        N = 28 * nt
        def rd(n):
            s, k = divmod(n, nt)
            self.trd(e, vRING + 4 * (n % NR), addrs[k], 16 * s * 64, 512, ("g", n))
        for n in range(NR - 1):
            rd(n)
        for n in range(N):
            s, k = divmod(n, nt)
            e.wait(vm=("h", s) if (wait_h and k == 0) else None, ds=("g", n))
            self.mf(e, accs[k], vRING + 4 * (n % NR), vH + 4 * s, "0" if s == 0 else None)
            if n + NR - 1 < N:
                rd(n + NR - 1)
            if hook:
                hook(s, k)

    def gelu_consts(self, e):
        k1 = 2 * math.sqrt(2 / math.pi) * math.log2(math.e)
        e.wait(vm="ss")
        for i in range(3):
            e(f"v_add_f32 v{vSS + i}, v{vSS + i}, v{vSS + 3 + i}")
        e(f"v_add_f32 v{vSS}, v{vSS}, v{vSS + 6}")
        e(f"v_add_f32 v{vSS + 1}, v{vSS + 1}, v{vSS + 2}")
        e(f"v_add_f32 v{vSS}, v{vSS}, v{vSS + 1}")
        e(f"v_mov_b32 v{vSS + 1}, v{vSS}")
        e(f"v_permlane32_swap_b32 v{vSS}, v{vSS + 1}")
        e(f"v_add_f32 v{vSS}, v{vSS}, v{vSS + 1}")
        e(f"v_mul_f32 v{vSS}, {f32(1 / 448)}, v{vSS}")
        e(f"v_add_f32 v{self.vRI}, {f32(1e-5)}, v{vSS}")
        e(f"v_rsq_f32 v{vSS}, v{self.vRI}")
        e(f"v_mul_f32 v{self.vK1}, {f32(-k1)}, v{vSS}")
        e(f"v_mul_f32 v{vSS}, v{vSS}, v{vSS}")
        e(f"v_mul_f32 v{vSS}, {f32(0.044715)}, v{vSS}")
        e(f"v_mul_f32 v{self.vK2}, v{vSS}, v{self.vK1}")

    def gelu_tile(self, e, a, toff):
        T = vTMP
        for i in range(8): e(f"v_mul_f32 v{T + i}, v{a + i}, v{a + i}")
        for i in range(8): e(f"v_fma_f32 v{T + i}, v{T + i}, v{self.vK2}, v{self.vK1}")
        for i in range(8): e(f"v_mul_f32 v{T + i}, v{T + i}, v{a + i}")
        for i in range(8): e(f"v_exp_f32 v{T + i}, v{T + i}")
        for i in range(8): e(f"v_mul_f32 v{a + 8 + i}, v{a + i}, v{a + 8 + i}")
        for i in range(8): e(f"v_fma_f32 v{T + i}, v{T + i}, v{self.vRI}, v{self.vRI}")
        for i in range(8): e(f"v_rcp_f32 v{T + i}, v{T + i}")
        e(f"s_mul_i32 s{sT0}, s{sMT}, 7")
        for x in toff: e(f"s_add_u32 s{sT0}, s{sT0}, {x}")
        e(f"s_lshl_b32 s{sT0}, s{sT0}, 4"); e(f"s_add_u32 s{sT0}, s{sT0}, s{self.sP}")
        e(f"s_lshl_b32 s{sT0}, s{sT0}, 10"); e(f"s_add_u32 s{sT0}, s{sT0}, {WS_ACT}")
        for i in range(8): e(f"v_mul_f32 v{T + i}, v{T + i}, v{a + 8 + i}")
        for i in range(4): e(f"v_cvt_pk_bf16_f32 v{a + i}, v{T + 2 * i}, v{T + 2 * i + 1}")
        self.publish(e, [f"buffer_store_dwordx4 {vr(a, 4)}, v{vL16}, {WS}, s{sT0} offen"], "act")

    def act_flag(self, e, stage):
        t = 26
        e(f"s_lshl_b32 s{sT0}, s{sML}, 5"); e(f"s_add_u32 s{sT0}, s{sT0}, s{sJ}"); e(f"s_lshl_b32 s{sT0}, s{sT0}, 2")
        e(f"s_add_u32 s{sT0}, s{sT0}, s{sFX}")
        e(f"v_mov_b32 v{t}, 0"); e(f"v_mov_b32 v{t + 1}, {stage}")
        e.wait(vm="act")
        e("s_mov_b64 exec, 1")
        self.publish(e, [f"buffer_store_dword v{t + 1}, v{t}, {WS}, s{sT0} offen offset:{FX_F4}"], "flag")
        e("s_mov_b64 exec, -1")

    def act_poll(self, e, other, stage):
        t = 26
        e(f"s_lshl_b32 s{sT0}, s{sMG}, 1"); e(f"s_add_u32 s{sT0}, s{sT0}, s{sMI}"); e(f"s_lshl_b32 s{sT0}, s{sT0}, 1")
        e(f"s_add_u32 s{sT0}, s{sT0}, s{sKH}"); e(f"s_lshl_b32 s{sT0}, s{sT0}, 4")
        e(f"s_xor_b32 s{sT1}, s{sHF}, {other}"); e(f"s_add_u32 s{sT0}, s{sT0}, s{sT1}"); e(f"s_lshl_b32 s{sT0}, s{sT0}, 2")
        e(f"s_add_u32 s{sT0}, s{sT0}, s{sFX}"); e(f"s_add_u32 s{sT0}, s{sT0}, {FX_F4}")
        e(f"v_lshlrev_b32 v{t}, 3, v{vLANE}")
        e("s_mov_b64 exec, 0xff")
        self.poll(e, t, f"s{sT0}", f"v_cmp_gt_u32 vcc, {stage}, v{t + 1}", t + 1)
        e("s_mov_b64 exec, -1")

    def act_load(self, e, q, regs):
        self.chunk_off(e, sT0, q, 16384)
        e(f"s_lshl_b32 s{sT1}, s{sG}, 2"); e(f"s_add_u32 s{sT1}, s{sT1}, s{sMG}"); e(f"s_lshl_b32 s{sT1}, s{sT1}, 1")
        e(f"s_add_u32 s{sT1}, s{sT1}, s{sMI}"); e(f"s_mul_i32 s{sT1}, s{sT1}, 14"); e(f"s_add_u32 s{sT1}, s{sT1}, s{sKH}")
        e(f"s_lshl_b32 s{sT1}, s{sT1}, 13"); e(f"s_add_u32 s{sT0}, s{sT0}, s{sT1}"); e(f"s_add_u32 s{sT0}, s{sT0}, {WS_ACT}")
        for s in range(8):
            e.vmem(f"buffer_load_dwordx4 {vr(regs[s], 4)}, v{vL16}, {WS}, s{sT0} offen offset:{1024 * (s & 3)} sc1", ("a", q, s))
            if s == 3:
                e(f"s_add_u32 s{sT0}, s{sT0}, 4096")

    def down_chunk(self, e, q, regs, acc, cinit, hook=None):
        NR = 7
        e(f"s_cmp_eq_u32 s{sKH}, 0"); e(f"s_mov_b32 s{sT0}, {SLOT[2 * q + 1]}"); e(f"s_cselect_b32 s{sT0}, {SLOT[2 * q]}, s{sT0}")
        for k in range(2):
            e(f"v_add_u32 v{self.vW5t[k]}, s{sT0}, v{self.vW5[k]}")
        def rd(n):
            s, k = divmod(n, 2)
            self.trd(e, vRING + 4 * (n % NR), self.vW5t[k], 2048 * s, 1024, ("d", n))
        for n in range(NR - 1):
            rd(n)
        for n in range(16):
            s, k = divmod(n, 2)
            e.wait(vm=("a", q, s) if k == 0 else None, ds=("d", n))
            self.mf(e, acc[k], vRING + 4 * (n % NR), regs[s], cinit[k] if s == 0 else None)
            if n + NR - 1 < 16:
                rd(n + NR - 1)
            if hook:
                hook(n)

    def ffn_L(self, e):
        A0, A1, A2 = vACC, vACC + 16, vACC + 32
        self.h_poll(e)
        self.stamp(e, 8)
        PRE = 10
        for s in range(PRE):
            self.h_load(e, s)
        e("s_barrier")
        e("s_setprio 2")
        nxt = [PRE]
        def hook(s, k):
            if k != 1 and nxt[0] < 28:
                self.h_load(e, nxt[0]); nxt[0] += 1
                if nxt[0] == 28:
                    self.ss_load(e)
                    e("s_barrier")
        self.gu_pass(e, [self.vPa, self.vPb, self.vPd], [A0, A1, A2], hook, wait_h=True)
        e("s_setprio 0")
        self.stamp(e, 9)
        self.gelu_consts(e)
        self.gelu_tile(e, A0, [f"s{self.sTA}"])
        self.gelu_tile(e, A1, [f"s{self.sTA}", 1])
        self.gelu_tile(e, A2, [3])
        self.act_flag(e, 1)
        e("s_barrier")
        self.stamp(e, 10)
        self.gu_pass(e, [self.vPc], [A0])
        self.gelu_tile(e, A0, [f"s{self.sTC}"])
        self.act_flag(e, 2)
        self.stamp(e, 11)
        done = self.lab("Ldone")
        e(f"s_cmp_ge_u32 s{sJ}, 28"); e(f"s_cbranch_scc1 {done}")
        if self.stop > 4:
            regs = [vH + 4 * i for i in range(28)] + [A2 + 4 * i for i in range(4)]
            self.act_poll(e, 0, 1)
            for q in range(3):
                self.act_load(e, q, regs[8 * q:8 * q + 8])
            e("s_barrier")
            self.stamp(e, 12)
            self.down_chunk(e, 0, regs[0:8], [A0, A1], ["0", "0"])
            self.down_chunk(e, 1, regs[8:16], [A0, A1], [None, None])
            e("s_barrier")
            self.act_poll(e, 1, 1)
            self.act_load(e, 3, regs[24:32])
            self.down_chunk(e, 2, regs[16:24], [A0, A1], [None, None])
            self.down_chunk(e, 3, regs[24:32], [A0, A1], [None, None])
            e("s_barrier")
            self.stamp(e, 13)
            e(f"s_lshl_b32 s{sT0}, s{sW}, 13"); e(f"s_add_u32 s{sT0}, s{sT0}, {L_PART}")
            e(f"v_add_u32 v26, s{sT0}, v{vL16}")
            for i in range(8):
                e.lds(f"ds_write_b128 v26, {vr(A0 + 4 * i, 4)} offset:{1024 * i}")
            e.wait(ds="all")
            e("s_barrier")
        e(f"{done}:")
        self.finish(e, 0)

    def role_S(self):
        e = Stream()
        vA = [4, 5, 6, 7]
        t = 26
        lq, lc, lj = self.lab("Sq"), self.lab("Sc"), self.lab("Sjoin")
        e(f"s_cmp_eq_u32 s{sW}, 2"); e(f"s_cbranch_scc1 {lq}")
        e(f"s_cmp_eq_u32 s{sW}, 3"); e(f"s_cbranch_scc1 {lc}")
        self.rows128_src(e, vA, t, 2688, 896, lambda i: 8 * i)
        e(f"s_mul_i32 s{sT4}, s{sW}, {32 * 2688}"); e(f"s_mul_i32 s{sT0}, s{sHEAD}, 56")
        e(f"s_add_u32 s{sT4}, s{sT4}, s{sT0}"); e(f"s_add_u32 s{sT4}, s{sT4}, 896")
        e(f"s_lshl_b32 s{sT5}, s{sW}, 12")
        self.got_args(e)
        for ic in range(7):
            e(f"s_add_u32 m0, s{sT5}, {LC + ic * 8192}")
            e(f"s_mul_i32 s{sT0}, s{sKC}, {64 * 2688}"); e(f"s_add_u32 s{sT0}, s{sT0}, s{sT4}")
            self.dma4(e, WQKV, vA, f"s{sT0}", tag=("w", ic))
            self.next_kc(e)
        for ic in range(7):
            e.wait(vm=("w", ic))
            e("s_barrier")
        e(f"s_branch {lj}")
        e(f"{lq}:")
        self.rows64_src(e, vA, t, 2688, 0)
        e(f"s_mul_i32 s{sT4}, s{sHEAD}, 56")
        self.got_args(e)
        for b in range(7):
            e("s_barrier")
            if b == self.p["wq_after"]:
                for ic in range(7):
                    e(f"s_mov_b32 m0, {L_WQ + ic * 4096}")
                    e(f"s_mul_i32 s{sT0}, s{sKC}, {64 * 2688}"); e(f"s_add_u32 s{sT0}, s{sT0}, s{sT4}")
                    self.dma4(e, WQKV, vA, f"s{sT0}")
                    self.next_kc(e)
        e.wait(vm="all")
        e(f"s_branch {lj}")
        e(f"{lc}:")
        e(f"s_getreg_b32 s{sXCC}, hwreg(HW_REG_XCC_ID, 0, 4)"); e(f"s_or_b32 s{sXCC}, s{sXCC}, 0x100")
        e("s_getpc_b64 s[100:101]")
        e("L_pc:")
        e(f"s_sub_u32 s100, s100, L_pc-{NAME}"); e("s_subb_u32 s101, s101, 0")
        e(f"s_lshl_b32 s{sT0}, s{sJ}, 11")
        e(f"v_lshlrev_b32 v{t}, 7, v{vLANE}"); e(f"v_add_u32 v{t}, s{sT0}, v{t}")
        e(f"v_min_u32 v{t}, L_end-{NAME}-4, v{t}")
        e("s_mov_b64 exec, 0xffff")
        e(f"global_load_dword v{t + 1}, v{t}, s[100:101]")
        e("s_mov_b64 exec, -1")
        for i in range(4): e(f"v_mov_b32 v{32 + i}, 0")
        self.got_args(e)
        nolead = self.lab("nolead")
        e(f"s_cmp_lg_u32 s{sJ}, 0"); e(f"s_cbranch_scc1 {nolead}")
        e(f"s_lshl_b32 s{sT0}, s{sG}, 12"); e(f"s_add_u32 s{sT0}, s{sT0}, {WS_F1}")
        for base in (sT0, sFX):
            for i in range(4):
                e(f"buffer_store_dwordx4 v[32:35], v{vL16}, {WS}, s{base} offen offset:{1024 * i} sc1")
        e(f"s_lshl_b32 s{sT0}, s{sG}, 2"); e("v_mov_b32 v36, 1")
        e("s_waitcnt vmcnt(0)")
        e("s_mov_b64 exec, 1")
        e(f"buffer_store_dword v36, v32, {DBG}, s{sT0} offen sc1")
        e("s_mov_b64 exec, -1")
        e(f"{nolead}:")
        for b in range(3):
            e("s_barrier")
        e(f"v_lshlrev_b32 v{t}, 2, v{vLANE}")
        e(f"s_max_u32 s{sT0}, s{sG}, 1"); e(f"s_sub_u32 s{sT0}, s{sT0}, 1"); e(f"s_lshl_b32 s{sT0}, s{sT0}, 2")
        e(f"s_cmp_eq_u32 s{sG}, 0"); e("s_cselect_b64 exec, 1, 3")
        self.poll(e, t, f"s{sT0}", f"v_cmp_ne_u32 vcc, 1, v{t + 1}", t + 1, srd=DBG)
        e("s_mov_b64 exec, 1")
        e(f"v_mov_b32 v36, s{sXCC}")
        e(f"s_lshl_b32 s{sT0}, s{sJ}, 2"); e(f"s_add_u32 s{sT0}, s{sT0}, s{sFX}")
        e(f"buffer_store_dword v36, v32, {WS}, s{sT0} offen offset:{FX_F0} sc1")
        e("s_mov_b64 exec, -1")
        for b in range(4):
            e("s_barrier")
        e(f"{lj}:")
        e.vm = []
        vRMr, aOwn, aOth, vWf, vO = 160, vRES, 224, vH, 160
        e(f"v_lshrrev_b32 v{t}, 3, v{vLANE}"); e(f"v_mul_u32_u24 v{t}, 896, v{t}")
        e(f"v_and_b32 v{t + 1}, 7, v{vLANE}"); e(f"v_lshl_add_u32 v{t}, v{t + 1}, 4, v{t}")
        e(f"s_lshl_b32 s{sT0}, s{sHEAD}, 2"); e(f"s_add_u32 s{sT0}, s{sT0}, s{sW}"); e(f"s_mul_i32 s{sT0}, s{sT0}, {7 * 896}")
        for i in range(7):
            e.vmem(f"buffer_load_dwordx4 {vr(vRMr + 4 * i, 4)}, v{t}, {WO}, s{sT0} offen offset:{128 * i}", "rm")
        e(f"s_lshl_b32 s{sML}, s{sMG}, 1"); e(f"s_add_u32 s{sML}, s{sML}, s{sMI}")
        e(f"s_lshl_b32 s{sMT}, s{sG}, 3"); e(f"s_add_u32 s{sMT}, s{sMT}, s{sML}")
        vXO = 20
        e(f"v_and_b32 v{vXO}, 31, v{vLANE}"); e(f"v_mul_u32_u24 v{vXO}, 896, v{vXO}")
        e(f"v_lshrrev_b32 v{t + 1}, 5, v{vLANE}"); e(f"v_lshl_add_u32 v{t + 2}, v{t + 1}, 3, v{vXO}")
        e(f"v_lshl_add_u32 v{vXO}, v{t + 1}, 4, v{vXO}")
        sXO = 3
        e(f"s_mul_i32 s{sXO}, s{sMT}, {32 * 896}"); e(f"s_lshl_b32 s{sT1}, s{sNG}, 1"); e(f"s_add_u32 s{sT1}, s{sT1}, s{sKH}")
        e(f"s_lshl_b32 s{sT1}, s{sT1}, 6"); e(f"s_add_u32 s{sXO}, s{sXO}, s{sT1}")
        e(f"s_cmp_lt_u32 s{sJ}, 28"); e(f"s_cselect_b32 s{sXO}, s{sXO}, 0x7f000000")
        for a in range(4):
            e.vmem(f"buffer_load_dwordx2 {vr(aOth + 2 * a, 2)}, v{t + 2}, {X_}, s{sXO} offen offset:{16 * a}", "xr")
        self.rows128_src(e, vA, t, 896, 64, lambda i: 8 * i)
        e(f"s_mul_i32 s{sT4}, s{sW}, {112 * 896}"); e(f"s_lshl_b32 s{sT0}, s{sNG}, 7"); e(f"s_add_u32 s{sT4}, s{sT4}, s{sT0}")
        e(f"s_cmp_lt_u32 s{sJ}, 28"); e(f"s_cselect_b32 s{sT4}, s{sT4}, 0x7f000000")
        e(f"s_mul_i32 s{sT5}, s{sW}, {112 * 128}")
        e("s_barrier")
        self.stamp(e, 3)
        for grp in range(4):
            e(f"s_add_u32 m0, s{sT5}, {LC + grp * 4096}")
            e(f"s_add_u32 s{sT0}, s{sT4}, {grp * 32 * 896}")
            self.dma4(e, WO, vA, f"s{sT0}", n=4 if grp < 3 else 2, tag="wo")
        e(f"v_mov_b32 v{t + 2}, {ONES}"); e(f"v_mov_b32 v{t}, 0")
        e.wait(vm="rm")
        for i in range(28):
            e(f"v_dot2c_f32_bf16 v{t}, v{vRMr + i}, v{t + 2}")
        for d in ("quad_perm:[1,0,3,2]", "quad_perm:[2,3,0,1]", "row_half_mirror"):
            e(f"v_add_f32_dpp v{t}, v{t}, v{t} {d} row_mask:0xf bank_mask:0xf")
        e(f"v_mul_f32 v{t}, {f32(1 / 448)}, v{t}")
        e(f"s_mov_b32 s{sM1}, 0"); e(f"s_mov_b32 s{sM1 + 1}, 0xff000000")
        e(f"v_cndmask_b32 v{t}, v{t}, 0, s[{sM1}:{sM1 + 1}]")
        e(f"s_mul_i32 s{sT0}, s{sW}, 7"); e(f"s_add_u32 s{sT1}, s{sW}, 28")
        e(f"v_lshrrev_b32 v{t + 1}, 3, v{vLANE}"); e(f"v_add_u32 v{t + 1}, s{sT0}, v{t + 1}")
        e(f"v_mov_b32 v{t + 2}, s{sT1}")
        e(f"v_cndmask_b32 v{t + 1}, v{t + 1}, v{t + 2}, s[{sM1}:{sM1 + 1}]")
        e(f"v_lshlrev_b32 v{t + 1}, 2, v{t + 1}"); e(f"v_add_u32 v{t + 1}, {L_MISC}, v{t + 1}")
        e.lds(f"ds_write_b32 v{t + 1}, v{t}")
        e.wait(vm="xr")
        for i in range(8):
            e(f"v_lshlrev_b32 v{aOwn + 2 * i}, 16, v{aOth + i}")
            e(f"v_and_b32 v{aOwn + 2 * i + 1}, 0xffff0000, v{aOth + i}")
        nom = self.lab("nomode")
        e(f"s_cmp_lg_u32 s{sW}, 3"); e(f"s_cbranch_scc1 {nom}")
        e(f"v_lshlrev_b32 v{t}, 2, v{vLANE}")
        e(f"s_add_u32 s{sT0}, s{sFX}, {FX_F0}")
        e("s_mov_b32 exec_hi, 0")
        self.poll(e, t, f"s{sT0}", f"v_cmp_eq_u32 vcc, 0, v{t + 1}", t + 1)
        e(f"v_cmp_ne_u32 vcc, s{sXCC}, v{t + 1}")
        e("s_mov_b64 exec, -1")
        e("s_cmp_eq_u64 vcc, 0"); e(f"s_cselect_b32 s{sT0}, {0 if self.force_slow else 1}, 0")
        e(f"v_mov_b32 v{t}, {L_MISC + 128}"); e(f"v_mov_b32 v{t + 1}, s{sT0}")
        e(f"ds_write_b32 v{t}, v{t + 1}")
        e(f"{nom}:")
        self.w5_base(e)
        e(f"s_mul_i32 s{sT0}, s{sKH}, {224 * 128}"); e(f"s_add_u32 s{sT0}, s{sT0}, {LC}")
        for k in range(2):
            e(f"v_add_u32 v{self.vW5t[k]}, s{sT0}, v{self.vW5[k]}")
        e.wait(vm="all", ds="all")
        e("s_barrier")
        self.stamp(e, 4)
        for st in range(16):
            for k in range(2):
                self.trd(e, vWf + 8 * st + 4 * k, self.vW5t[k], (28 * (st >> 1) + 16 * (st & 1)) * 128, 1024, None)
        self.read_mode(e, t)
        e("s_barrier")
        self.stamp(e, 5)
        notouch = self.lab("notouch")
        e(f"s_cmp_eq_u32 s{sMODE}, 0"); e(f"s_cbranch_scc1 {notouch}")
        e(f"v_lshlrev_b32 v{t}, 7, v{vLANE}")
        e(f"s_lshl_b32 s{sT1}, s{sG}, 5"); e(f"s_add_u32 s{sT1}, s{sT1}, s{sJ}")
        e(f"s_lshl_b32 s{sT2}, s{sT1}, 2"); e(f"s_add_u32 s{sT2}, s{sT2}, s{sW}")
        e("s_mov_b64 exec, 0xffff")
        e(f"s_lshl_b32 s{sT0}, s{sT2}, 11"); e(f"s_add_u32 s{sT0}, s{sT0}, {WS_O}")
        e(f"buffer_load_dword v{t + 1}, v{t}, {WS}, s{sT0} offen sc1")
        e("s_mov_b64 exec, 0x3fff")
        e(f"s_mul_i32 s{sT0}, s{sT2}, 1792"); e(f"s_add_u32 s{sT0}, s{sT0}, {WS_H}")
        e(f"buffer_load_dword v{t + 1}, v{t}, {WS}, s{sT0} offen sc1")
        e("s_mov_b64 exec, 1")
        e(f"s_lshl_b32 s{sT0}, s{sT2}, 7"); e(f"s_add_u32 s{sT0}, s{sT0}, {WS_SS}")
        e(f"buffer_load_dword v{t + 1}, v{t}, {WS}, s{sT0} offen sc1")
        e(f"s_lshl_b32 s{sT0}, s{sJ}, 7"); e(f"s_add_u32 s{sT0}, s{sT0}, s{sFX}")
        e(f"buffer_load_dword v{t + 1}, v{t}, {WS}, s{sT0} offen sc1")
        e("s_mov_b64 exec, -1")
        e(f"{notouch}:")
        vG, vU = [4, 5, 6, 7], [8, 9, 10, 11]
        self.rows64_src(e, vG, t, 3584, 0)
        self.rows64_src(e, vU, t, 3584, 2)
        e(f"s_lshr_b32 s{sT0}, s{sJ}, 1"); e(f"s_mul_i32 s{sT0}, s{sT0}, 224")
        e(f"s_mul_i32 s{sT1}, s{sW}, {112 * 3584}"); e(f"s_add_u32 s{sT0}, s{sT0}, s{sT1}")
        e(f"s_mul_i32 s{sT1}, s{sPAR}, 160"); e(f"s_add_u32 s{sT4}, s{sT0}, s{sT1}")
        e(f"s_lshl_b32 s{sT1}, s{sPAR}, 5"); e(f"s_add_u32 s{sT1}, s{sT1}, 64"); e(f"s_add_u32 s{sT5}, s{sT0}, s{sT1}")
        e(f"s_mul_i32 s{sT3}, s{sW}, {112 * 64}")
        for grp in range(2):
            for reg, so in ((LB, sT4), (LC, sT5)):
                for srd, va, mo in ((WG, vG, 0), (WU, vU, 28672)):
                    e(f"s_add_u32 m0, s{sT3}, {reg + mo + grp * 4096}")
                    e(f"s_add_u32 s{sT0}, s{so}, {grp * 64 * 3584}")
                    self.dma4(e, srd, va, f"s{sT0}", n=4 - grp)
        e(f"v_mov_b32 v{t}, 0xbf80bf80")
        for st in range(1, 16, 2):
            for k in range(2):
                r = vWf + 8 * st + 4 * k
                e(f"v_cndmask_b32 v{r + 2}, v{r + 2}, v{t}, s[{sHI}:{sHI + 1}]")
                e(f"v_cndmask_b32 v{r + 3}, v{r + 3}, 0, s[{sHI}:{sHI + 1}]")
        e("s_barrier")
        e("s_barrier")
        self.stamp(e, 6)
        if self.stop <= 2:
            self.finish(e, 1); return e
        nop3, p3d = self.lab("nop3"), self.lab("p3done")
        e(f"s_cmp_ge_u32 s{sJ}, 28"); e(f"s_cbranch_scc1 {nop3}")
        self.tail += [f"{nop3}:", "s_waitcnt vmcnt(0)", "s_barrier", "s_barrier", f"s_branch {p3d}"]
        e(f"v_lshlrev_b32 v{t}, 2, v{vLANE}")
        e(f"s_lshl_b32 s{sT0}, s{sML}, 2"); e(f"s_add_u32 s{sT0}, s{sT0}, s{sKH}"); e(f"s_lshl_b32 s{sT0}, s{sT0}, 5")
        e(f"s_add_u32 s{sT0}, s{sT0}, s{sFX}")
        e(f"s_lshl_b32 s{sT4}, s{sMT}, 1"); e(f"s_add_u32 s{sT4}, s{sT4}, s{sKH}"); e(f"s_lshl_b32 s{sT4}, s{sT4}, 14")
        e(f"s_add_u32 s{sT4}, s{sT4}, {WS_O}")
        e("s_mov_b64 exec, 0xff")
        self.poll(e, t, f"s{sT0}", f"v_cmp_ne_u32 vcc, 1, v{t + 1}", t + 1)
        e("s_mov_b64 exec, -1")
        self.stamp(e, 7)
        for st in range(16):
            e.vmem(f"buffer_load_dwordx4 {vr(vO + 4 * st, 4)}, v{vL16}, {WS}, s{sT4} offen offset:{1024 * (st & 3)} sc1", ("o", st))
            if st & 3 == 3: e(f"s_add_u32 s{sT4}, s{sT4}, 4096")
        e("s_barrier")
        e(f"s_lshl_b32 s{sT0}, s{sW}, 12"); e(f"v_add_u32 v{t}, s{sT0}, v{vL16}"); e(f"v_xor_b32 v{t + 1}, 8192, v{t}")
        e(f"s_lshl_b32 s{sT1}, s{sNG}, 1"); e(f"s_add_u32 s{sT1}, s{sT1}, s{sKH}")
        e(f"s_mul_i32 s{sT4}, s{sMT}, 14"); e(f"s_add_u32 s{sT4}, s{sT4}, s{sT1}"); e(f"s_lshl_b32 s{sT4}, s{sT4}, 11")
        e(f"s_add_u32 s{sT4}, s{sT4}, {WS_H}")
        e(f"s_lshl_b32 s{sT5}, s{sMT}, 4"); e(f"s_add_u32 s{sT5}, s{sT5}, s{sT1}"); e(f"s_lshl_b32 s{sT5}, s{sT5}, 7")
        e(f"s_add_u32 s{sT5}, s{sT5}, {WS_SS}")
        e(f"s_lshl_b32 s{sT3}, s{sML}, 5"); e(f"s_add_u32 s{sT3}, s{sT3}, s{sT1}"); e(f"s_lshl_b32 s{sT3}, s{sT3}, 2")
        e(f"s_add_u32 s{sT3}, s{sT3}, s{sFX}")
        for st in range(16):
            e.wait(vm=("o", st))
            self.mf(e, aOth, vWf + 8 * st + 4, vO + 4 * st, "0" if st == 0 else None)
            self.mf(e, aOwn, vWf + 8 * st, vO + 4 * st)
        for i in range(4):
            e.lds(f"ds_write_b128 v{t}, {vr(aOth + 4 * i, 4)} offset:{LA + 1024 * i}")
        e.wait(ds="all")
        e("s_barrier")
        for i in range(4):
            e.lds(f"ds_read_b128 {vr(aOth + 4 * i, 4)}, v{t + 1} offset:{LA + 1024 * i}", ("x", i))
        PK = vH
        for i in range(4):
            e.wait(ds=("x", i))
            for k in (0, 2):
                r = 4 * i + k
                e(f"v_pk_add_f32 {vr(aOwn + r, 2)}, {vr(aOwn + r, 2)}, {vr(aOth + r, 2)}")
            for k in (0, 2):
                r = 4 * i + k
                e(f"v_cvt_pk_bf16_f32 v{PK + r // 2}, v{aOwn + r}, v{aOwn + r + 1}")
        self.publish(e, [f"buffer_store_dwordx4 {vr(PK + 4 * i, 4)}, v{vL16}, {WS}, s{sT4} offen offset:{1024 * i}" for i in range(2)])
        e(f"v_pk_mul_f32 {vr(t + 2, 2)}, {vr(aOwn, 2)}, {vr(aOwn, 2)}")
        for r in range(2, 16, 2):
            e(f"v_pk_fma_f32 {vr(t + 2, 2)}, {vr(aOwn + r, 2)}, {vr(aOwn + r, 2)}, {vr(t + 2, 2)}")
        e(f"v_add_f32 v{t + 2}, v{t + 2}, v{t + 3}")
        e(f"v_mov_b32 v{t + 3}, v{t + 2}")
        e(f"v_lshlrev_b32 v{t}, 2, v{vLANE}")
        e(f"v_permlane32_swap_b32 v{t + 2}, v{t + 3}")
        e(f"v_add_f32 v{t + 2}, v{t + 2}, v{t + 3}")
        e("s_mov_b32 exec_hi, 0")
        self.publish(e, [f"buffer_store_dword v{t + 2}, v{t}, {WS}, s{sT5} offen"])
        e("s_mov_b64 exec, -1")
        e(f"v_mov_b32 v{t + 1}, 1"); e(f"v_mov_b32 v{t + 3}, {ONES}"); e(f"v_mov_b32 v{self.vMU2}, 0")
        for st in range(1, 16, 2):
            e(f"v_dot2c_f32_bf16 v{self.vMU2}, v{vO + 4 * st + 2}, v{t + 3}")
        e.wait(vm="all")
        e("s_mov_b64 exec, 1")
        self.publish(e, [f"buffer_store_dword v{t + 1}, v{t}, {WS}, s{sT3} offen offset:{FX_F3}"])
        e("s_mov_b64 exec, -1")
        e(f"v_mov_b32 v{t + 3}, v{self.vMU2}")
        e(f"v_permlane32_swap_b32 v{t + 3}, v{self.vMU2}")
        for i in range(16):
            e(f"v_add_f32 v{aOwn + i}, v{self.vMU2}, v{aOwn + i}")
        e(f"{p3d}:")
        self.stamp(e, 8)
        if self.stop <= 3:
            self.finish(e, 1); return e
        self.ffn_S(e, vXO, sXO)
        return e

    def ffn_S(self, e, vXO, sXO):
        t = 26
        A0, A1, A2 = vACC, vACC + 16, vACC + 32
        self.ffn_setup(e, 1)
        e("s_barrier")
        notouch = self.lab("notouch")
        e(f"s_cmp_eq_u32 s{sMODE}, 0"); e(f"s_cbranch_scc1 {notouch}")
        e(f"v_lshlrev_b32 v{t}, 7, v{vLANE}")
        e(f"s_lshl_b32 s{sT1}, s{sG}, 5"); e(f"s_add_u32 s{sT1}, s{sT1}, s{sJ}")
        e(f"s_lshl_b32 s{sT1}, s{sT1}, 2"); e(f"s_add_u32 s{sT1}, s{sT1}, s{sW}")
        e(f"s_mul_i32 s{sT0}, s{sT1}, 7168"); e(f"s_add_u32 s{sT0}, s{sT0}, {WS_ACT}")
        e("s_mov_b32 exec_hi, 0xffffff")
        e(f"buffer_load_dword v{t + 1}, v{t}, {WS}, s{sT0} offen sc1")
        e("s_mov_b64 exec, -1")
        e(f"{notouch}:")
        self.h_poll(e)
        e("s_barrier")
        self.stamp(e, 9)
        for s in range(28):
            self.h_load(e, s)
        self.ss_load(e)
        self.wd_dma(e, [2])
        e("s_setprio 1")
        self.gu_pass(e, [self.vPa, self.vPb], [A0, A1], None, wait_h=True)
        e("s_barrier")
        self.stamp(e, 10)
        self.wd_dma(e, [3, 4, 5])
        self.gelu_consts(e)
        self.gelu_tile(e, A0, [f"s{self.sTA}"])
        self.gelu_tile(e, A1, [f"s{self.sTA}", 1])
        self.act_flag(e, 1)
        self.gu_pass(e, [self.vPc], [A2])
        done = self.lab("Sdone")
        if self.stop > 4:
            e("s_barrier")
        self.stamp(e, 11)
        self.gelu_tile(e, A2, [f"s{self.sTC}"])
        if self.stop > 4:
            self.wd_dma(e, [6, 7, 8, 9])
        self.act_flag(e, 2)
        e(f"s_cmp_ge_u32 s{sJ}, 28"); e(f"s_cbranch_scc1 {done}")
        if self.stop > 4:
            regs = [vH + 4 * i for i in range(24)]
            self.act_poll(e, 1, 1)
            self.act_load(e, 4, regs[0:8])
            e("s_barrier")
            self.wd_dma(e, [10, 11, 12, 13])
            self.act_poll(e, 0, 2)
            self.act_load(e, 5, regs[8:16])
            self.act_poll(e, 1, 2)
            self.act_load(e, 6, regs[16:24])
            for i in range(16):
                e(f"v_mov_b32 v{A1 + i}, v{self.vMU2}")
            e("s_barrier")
            self.stamp(e, 12)
            self.down_chunk(e, 4, regs[0:8], [A0, A1], ["0", None])
            e("s_barrier")
            P0, P1 = vH, vH + 16
            e(f"s_lshl_b32 s{sT0}, s{sW}, 13"); e(f"s_add_u32 s{sT0}, s{sT0}, {L_PART}")
            e(f"v_add_u32 v{t}, s{sT0}, v{vL16}")
            e(f"s_xor_b32 s{sT0}, s{sW}, 2"); e(f"s_lshl_b32 s{sT0}, s{sT0}, 13"); e(f"s_add_u32 s{sT0}, s{sT0}, {L_PART + 4096}")
            e(f"v_add_u32 v{t + 1}, s{sT0}, v{vL16}")
            for i in range(4):
                e.lds(f"ds_read_b128 {vr(P0 + 4 * i, 4)}, v{t} offset:{1024 * i}")
                e.lds(f"ds_read_b128 {vr(P1 + 4 * i, 4)}, v{t + 1} offset:{1024 * i}")
            def hook(n):
                e(f"v_add_f32 v{vRES + n}, v{vRES + n}, v{P0 + n}")
                e(f"v_add_f32 v{vRES + n}, v{vRES + n}, v{P1 + n}")
            self.down_chunk(e, 5, regs[8:16], [A0, A1], [None, None], hook)
            e(f"s_lshl_b32 s{sT0}, s{sW}, 12"); e(f"s_add_u32 s{sT0}, s{sT0}, {L_XCH5}")
            e(f"v_add_u32 v{t}, s{sT0}, v{vL16}")
            e(f"s_xor_b32 s{sT0}, s{sW}, 2"); e(f"s_lshl_b32 s{sT0}, s{sT0}, 12"); e(f"s_add_u32 s{sT0}, s{sT0}, {L_XCH5}")
            e(f"v_add_u32 v{t + 1}, s{sT0}, v{vL16}")
            self.down_chunk(e, 6, regs[16:24], [A0, A1], [None, None])
            self.stamp(e, 13)
            for i in range(4):
                e.lds(f"ds_write_b128 v{t}, {vr(A1 + 4 * i, 4)} offset:{1024 * i}")
            for r in range(0, 16, 2):
                e(f"v_pk_add_f32 {vr(vRES + r, 2)}, {vr(vRES + r, 2)}, {vr(A0 + r, 2)}")
            e.wait(ds="all")
            e("s_barrier")
            for i in range(4):
                e.lds(f"ds_read_b128 {vr(A1 + 4 * i, 4)}, v{t + 1} offset:{1024 * i}", ("x", i))
            PK = vH
            for i in range(4):
                e.wait(ds=("x", i))
                for k in (0, 2):
                    r = 4 * i + k
                    e(f"v_pk_add_f32 {vr(vRES + r, 2)}, {vr(vRES + r, 2)}, {vr(A1 + r, 2)}")
                for k in (0, 2):
                    r = 4 * i + k
                    e(f"v_cvt_pk_bf16_f32 v{PK + r // 2}, v{vRES + r}, v{vRES + r + 1}")
                if i & 1:
                    b = PK + 2 * (i - 1)
                    e(f"v_permlane32_swap_b32 v{b}, v{b + 2}")
                    e(f"v_permlane32_swap_b32 v{b + 1}, v{b + 3}")
                    e.vmem(f"buffer_store_dwordx4 {vr(b, 4)}, v{vXO}, {OUT}, s{sXO} offen offset:{16 * (i - 1)}")
        e(f"{done}:")
        self.finish(e, 1)

    def build(self):
        e = Stream()
        self.prologue(e)
        e("s_cmp_ge_u32 s47, 4")
        e("s_cbranch_scc1 L_roleS")
        L = self.role_L()
        S = self.role_S()
        body = e.L + L.L + ["L_roleS:"] + S.L + self.tail + ["L_exit:", "s_endpgm", "L_end:"]
        body, nops = pad_hazards(body)
        head = open("sequential_preLN__sliding_block__geglu_ffn__prompt.s.ref").read().splitlines()
        cm = [l for l in head if l.startswith(";") and "@launch" not in l]
        out = cm + ["; @launch grid=(256,1,1) block=(512,1,1) lds=163840",
                    '.amdgcn_target "amdgcn-amd-amdhsa--gfx950"', ".text", f".globl {NAME}", ".p2align 8",
                    f".type {NAME},@function", f"{NAME}:"]
        out += [("" if l.endswith(":") else "    ") + l for l in body]
        out += ['.section .rodata,"a"', ".p2align 6", f".amdhsa_kernel {NAME}",
                "  .amdhsa_next_free_vgpr 256", "  .amdhsa_next_free_sgpr 102", "  .amdhsa_accum_offset 256",
                "  .amdhsa_group_segment_fixed_size 0", "  .amdhsa_kernarg_size 80", "  .amdhsa_user_sgpr_count 2",
                "  .amdhsa_user_sgpr_kernarg_segment_ptr 1", "  .amdhsa_system_sgpr_workgroup_id_x 1",
                ".end_amdhsa_kernel", ""]
        self.nops = nops
        return "\n".join(out)

if __name__ == "__main__":
    import argparse
    ap = argparse.ArgumentParser()
    ap.add_argument("-o", default="sequential_preLN__sliding_block__geglu_ffn__prompt.s")
    ap.add_argument("--stop", type=int, default=99)
    ap.add_argument("--stamps", action="store_true")
    ap.add_argument("--slow", action="store_true")
    ap.add_argument("-p", action="append", default=[])
    a = ap.parse_args()
    kw = {k: int(v) for k, v in (x.split("=") for x in a.p)}
    g = Gen(a.stop, a.stamps, a.slow, **kw)
    s = g.build()
    open(a.o, "w").write(s)
    print("lines", s.count("\n"), "nops", g.nops)
```

```python
import math, struct, sys
from asmlib import Stream, vr, sr, pad_hazards

NAME = "sequential_preLN__sliding_block__geglu_ffn__prompt_kernel"
MB = 1 << 20
WS_K, WS_V, WS_O, WS_H, WS_SS, WS_ACT = 0, 2 * MB, 4 * MB, 6 * MB, 6 * MB + 1792 * 1024, 8 * MB
WS_F1, WS_FX, WS_STAMP, WS_SIZE = 16 * MB, 16 * MB + 131072, 17 * MB, 18 * MB
FX_F2, FX_F3, FX_F4, FX_F0 = 0, 1024, 2048, 3072
LA, LB, LC = 0, 49152, 106496
L_WQ, L_MISC = LB + 16384, LB + 45056
L_GATE, L_UP, L_WO = LC, LB, LB
SLOT = [LA + 20480, LC, LC + 28672, LB, LB + 28672]
SLOT += SLOT[:3]
L_RES, L_MU, L_XCH5 = LA, LA + 16384, LB
L_CS, L_XR = L_MISC + 1024, L_MISC + 4096
CHUNK = [(0, 0), (0, 1), (0, 2), (0, 3), (1, 0), (1, 1), (1, 2), (1, 3)]
X_, WQKV, WO, WG, WU, WD, OUT, DBG, WS = (sr(b, 4) for b in (8, 12, 16, 20, 24, 28, 32, 36, 40))
sXO = 3
sG, sJ, sW, sHEAD, sRB, sXCC, sMODE, sSPIN = 44, 45, 46, 48, 49, 50, 51, 52
sT0, sT1, sT2, sT3, sT4, sT5, sA5 = 53, 54, 55, 56, 57, 58, 59
sHI, sM1, sM2, sM3 = 60, 62, 64, 66
sMT, sKC, sPAR, sML, sMG, sNG, sKH, sMI, sHF, sFX, sACT, sWD = range(68, 80)
sF4P, sF4C = sHEAD, sRB
sST = 80
vLANE, vL16 = 1, 2
vH, vACC, vRING, vTMP, vSS, vRES = 32, 144, 192, 220, 228, 240
vD, vP, vW5 = [4, 5, 6, 7], [8, 9, 10, 11], [12, 13]
vK1, vK2, vRI, vMU2, vW5t, vXO = 14, 15, 16, 17, [18, 19], 20
vPA, vPR, vSM, vFL, vGA = 21, 22, 23, 3, [30, 31]
ABUF = [vH, vH + 28, vH + 56, vH + 84, vSS]
UACC = [vACC + 32, vRES]
t = 26
NR = 7
BIG = 0xF149F2CA
ONES = 0x3F803F80
SPIN_LIMIT = 0x80000
HI = f"s[{sHI}:{sHI + 1}]"

def f32(x):
    return struct.unpack("<I", struct.pack("<f", x))[0]

class Gen:
    def __init__(self, stop=99, stamps=False, force_slow=False, **kw):
        self.stop, self.stamps, self.force_slow = stop, stamps, force_slow
        self.p = dict(f1_at=10, rot=3, sched=0, pull=2, act_wt=1, pre=12, spre=14, opre=5, hwd=0,
                      g1=3, gdep=2, m2at=14, otouch=1, upe=0, ups=3, udep=2, s2at=-14)
        self.p.update(kw)
        self.tail = []
        self.nlab = 0

    def lab(self, n):
        self.nlab += 1
        return f"L_{n}_{self.nlab}"

    PROF = {
        0: (["start", "b0", "kv", "Bkv", "q", "f1", "Batt", "att", "opub", "hpoll", "seg1", "Bb", "Bd", "X3"],
            ["start", "Bkv", "pre", "Bm", "gu", "opoll", "Bx", "hpub", "Bh", "Bb", "Bd"]),
        1: (["start", "hpoll", "seg1", "gelu1", "Bb", "seg3", "chk1", "Bd_", "Bd", "X3", "X5", "X6", "X7", "dn"],
            ["Bh_", "Bh", "hpre", "seg2", "Bb", "gelu2", "seg4", "Bd", "fl2", "X3_", "X5_", "X6_", "X7_"]),
        2: (["start", "f1", "Batt_", "Batt", "qk", "Bm", "sub", "Bm2", "pv", "att", "opub", "Bp", "Bx", "hpoll"],
            ["Bkv", "pre", "Batt", "Bm", "wo", "gu", "opoll", "omm", "Bx", "hst", "hpub", "Bh"]),
        3: (["start", "b0", "b1", "b2", "b3", "b4", "b5", "b6", "kv", "kvst", "Bkv", "fl1", "q", "f1", "Batt"],
            ["start", "b0", "b1", "b2", "b3", "b4", "b5", "b6", "wq", "Bkv", "pre", "Batt"]),
    }

    def stamp(self, e, name):
        names = self.PROF[self.p.get("prof", 0)][e.role]
        if self.stamps and (name == "end" or name in names):
            i = 15 if name == "end" else names.index(name)
            e(f"{'s_memtime' if self.p.get('cyc') else 's_memrealtime'} s[{sST + 18}:{sST + 19}]")
            e("s_waitcnt lgkmcnt(0)")
            e(f"s_mov_b32 s{sST + i}, s{sST + 18}")
            e.ds = []

    def finish(self, e, role):
        if self.stamps:
            self.stamp(e, "end")
            e("s_mov_b64 exec, -1")
            e(f"s_lshl_b32 s{sT0}, s2, 3"); e(f"s_add_u32 s{sT0}, s{sT0}, s{sW}"); e(f"s_add_u32 s{sT0}, s{sT0}, {4 * role}")
            e(f"s_lshl_b32 s{sT0}, s{sT0}, 6"); e(f"s_add_u32 s{sT0}, s{sT0}, {WS_STAMP}")
            e("s_waitcnt vmcnt(0)")
            for i in range(16):
                e(f"v_mov_b32 v{32 + i}, s{sST + i}")
            e("v_mov_b32 v3, 0"); e("s_mov_b64 exec, 1")
            for i in range(4):
                e(f"buffer_store_dwordx4 {vr(32 + 4 * i, 4)}, v3, {WS}, s{sT0} offen offset:{16 * i}")
        e("s_endpgm")

    def poll(self, e, vaddr, soff, cmp, vt, srd=WS):
        a, b = self.lab("poll"), self.lab("polled")
        e(f"{a}:")
        e(f"buffer_load_dword v{vt}, v{vaddr}, {srd}, {soff} offen sc1")
        e(f"s_add_u32 s{sSPIN}, s{sSPIN}, 1")
        e("s_waitcnt vmcnt(0)")
        e(cmp)
        e(f"s_cmp_gt_u32 s{sSPIN}, {SPIN_LIMIT}")
        e(f"s_cbranch_scc1 {b}")
        e(f"s_cbranch_vccnz {a}")
        e(f"{b}:")
        e.vm = []

    def check_or_poll(self, e, vaddr, soff, cmp, vt, srd=WS):
        late, ok = self.lab("late"), self.lab("ok")
        e(cmp)
        e(f"s_cbranch_vccnz {late}")
        e(f"{ok}:")
        tl = Stream(); tl(f"{late}:")
        self.poll(tl, vaddr, soff, cmp, vt, srd)
        tl(f"s_branch {ok}")
        self.tail += tl.L

    def publish(self, e, stores, tag="pub", wt=False):
        if wt:
            for s in stores:
                e.vmem(s + " sc1", tag)
            return
        slow, done = self.lab("slow"), self.lab("pubd")
        e(f"s_cmp_eq_u32 s{sMODE}, 0")
        e(f"s_cbranch_scc1 {slow}")
        for s in stores:
            e.vmem(s, tag)
        e(f"{done}:")
        self.tail += [f"{slow}:"] + [s + " sc1" for s in stores] + [f"s_branch {done}"]

    def mode_issue(self, e, va, vt):
        e(f"v_lshlrev_b32 v{va}, 2, v{vLANE}"); e(f"v_add_u32 v{va}, {FX_F0}, v{va}")
        e("s_mov_b32 exec_hi, 0")
        e.vmem(f"buffer_load_dword v{vt}, v{va}, {WS}, s{sFX} offen sc1", "mode")
        e("s_mov_b64 exec, -1")

    def mode_check(self, e, va, vt):
        e.wait(vm="mode")
        e("s_mov_b32 exec_hi, 0")
        self.check_or_poll(e, va, f"s{sFX}", f"v_cmp_eq_u32 vcc, 0, v{vt}", vt)
        e(f"v_cmp_ne_u32 vcc, s{sXCC}, v{vt}")
        e("s_mov_b64 exec, -1")
        e("s_cmp_eq_u64 vcc, 0"); e(f"s_cselect_b32 s{sMODE}, {0 if self.force_slow else 1}, 0")

    def touch(self, e, srd, soff, nl, va=24, vt=25):
        if nl < 64:
            m = (1 << nl) - 1
            e(f"s_mov_b32 exec_lo, {m & 0xffffffff}"); e(f"s_mov_b32 exec_hi, {m >> 32}")
        e(f"buffer_load_dword v{vt}, v{va}, {srd}, {soff} offen sc1")
        if nl < 64:
            e("s_mov_b64 exec, -1")

    def dma4(self, e, srd, vas, soff, n=4, tag=None, fl=""):
        for i in range(n):
            e.vmem(f"buffer_load_dwordx4 v{vas[i]}, {srd}, {soff} offen offset:{1024 * i} {fl} lds", tag)

    def next_kc(self, e, r=sKC):
        e(f"s_add_u32 s{r}, s{r}, 1"); e(f"s_cmp_eq_u32 s{r}, 7"); e(f"s_cselect_b32 s{r}, 0, s{r}")

    def tr_base(self, e, vd, hmul, stride, nhmul):
        e(f"v_lshrrev_b32 v{vd}, 5, v{vLANE}")
        e(f"v_mul_u32_u24 v{vd}, {hmul}, v{vd}")
        e(f"v_bfe_u32 v{t}, v{vLANE}, 2, 2")
        e(f"v_add_u32 v{vd}, v{vd}, v{t}")
        e(f"v_mul_u32_u24 v{vd}, {stride}, v{vd}")
        e(f"v_bfe_u32 v{t}, v{vLANE}, 4, 1")
        e(f"v_mul_u32_u24 v{t}, {nhmul}, v{t}")
        e(f"v_add_u32 v{vd}, v{vd}, v{t}")
        e(f"v_and_b32 v{t}, 3, v{vLANE}")
        e(f"v_lshl_add_u32 v{vd}, v{t}, 3, v{vd}")

    def rows128_src(self, e, vas, rowstride, partmul, rowof):
        v = vas[0]
        e(f"v_lshrrev_b32 v{v}, 3, v{vLANE}")
        e(f"v_mul_u32_u24 v{v}, {rowstride}, v{v}")
        e(f"v_lshrrev_b32 v{t}, 2, v{vLANE}")
        e(f"v_lshrrev_b32 v{t + 1}, 4, v{vLANE}")
        e(f"v_xor_b32 v{t}, v{t}, v{t + 1}")
        e(f"v_and_b32 v{t}, 1, v{t}")
        e(f"v_mul_u32_u24 v{t}, {partmul}, v{t}")
        e(f"v_add_u32 v{v}, v{v}, v{t}")
        e(f"v_and_b32 v{t}, 3, v{vLANE}")
        e(f"v_lshl_add_u32 v{v}, v{t}, 4, v{v}")
        for i in range(1, len(vas)):
            e(f"v_add_u32 v{vas[i]}, {rowof(i) * rowstride - 1024 * i}, v{v}")

    def rows64_src(self, e, vas, rowstride, gx):
        v = vas[0]
        e(f"v_lshrrev_b32 v{v}, 2, v{vLANE}")
        e(f"v_mul_u32_u24 v{v}, {rowstride}, v{v}")
        e(f"v_and_b32 v{t}, 3, v{vLANE}")
        if gx:
            e(f"v_xor_b32 v{t}, {gx}, v{t}")
        e(f"v_lshl_add_u32 v{v}, v{t}, 4, v{v}")
        for i in range(1, len(vas)):
            e(f"v_add_u32 v{vas[i]}, {16 * i * rowstride - 1024 * i}, v{v}")

    @staticmethod
    def trd(e, dst, vaddr, off0, step, tag):
        e.lds(f"ds_read_b64_tr_b16 {vr(dst, 2)}, v{vaddr} offset:{off0}", tag)
        e.lds(f"ds_read_b64_tr_b16 {vr(dst + 2, 2)}, v{vaddr} offset:{off0 + step}", tag)

    @staticmethod
    def mf(e, d, a, b, c=None):
        e(f"v_mfma_f32_32x32x16_bf16 {vr(d, 16)}, {vr(a, 4)}, {vr(b, 4)}, {vr(d, 16) if c is None else c}")

    @staticmethod
    def mf8(e, d, a, b, c=None):
        e(f"v_mfma_f32_32x32x8_bf16 {vr(d, 16)}, {vr(a, 2)}, {vr(b, 2)}, {vr(d, 16) if c is None else c}")

    @staticmethod
    def mf4(e, d, a, b, first):
        e(f"v_mfma_f32_4x4x4_16b_bf16 {vr(d, 4)}, {vr(a, 2)}, {vr(b, 2)}, {'0' if first else vr(d, 4)}")

    @staticmethod
    def split_hi_lo(e, dst, c):
        e(f"v_cvt_pk_bf16_f32 v{dst + 1}, v{c}, v{c}")
        e(f"v_and_b32 v{t}, 0xffff0000, v{dst + 1}")
        e(f"v_sub_f32 v{t}, v{c}, v{t}")
        e(f"v_cvt_pk_bf16_f32 v{dst}, v{c}, v{t}")

    def prologue(self, e):
        e(f"s_cmp_ge_u32 s2, {0 if self.stop == 0 else 256}")
        e("s_cbranch_scc1 L_exit")
        e("s_load_dwordx16 s[84:99], s[0:1], 0")
        e("s_load_dwordx4 s[4:7], s[0:1], 64")
        e("v_lshrrev_b32 v3, 6, v0")
        e(f"v_and_b32 v{vLANE}, 63, v0")
        e(f"v_readfirstlane_b32 s47, v3")
        e(f"v_lshlrev_b32 v{vL16}, 4, v{vLANE}")
        e(f"s_and_b32 s{sG}, s2, 7"); e(f"s_bfe_u32 s{sHEAD}, s2, 0x40003"); e(f"s_lshr_b32 s{sT1}, s2, 7")
        e(f"s_and_b32 s{sW}, s47, 3")
        e(f"s_lshl_b32 s{sT5}, s{sW}, 12")
        e(f"s_lshl_b32 s{sRB}, s{sG}, 1"); e(f"s_add_u32 s{sRB}, s{sRB}, s{sT1}")
        e(f"s_lshl_b32 s{sMT}, s{sRB}, 2"); e(f"s_add_u32 s{sMT}, s{sMT}, s{sW}")
        e(f"s_cmp_lt_u32 s{sHEAD}, 14"); e(f"s_cselect_b32 s{sT0}, 14, 2"); e(f"s_cselect_b32 s{sJ}, 0, 14")
        e(f"s_mul_i32 s{sT0}, s{sT0}, s{sT1}"); e(f"s_add_u32 s{sJ}, s{sJ}, s{sT0}"); e(f"s_add_u32 s{sJ}, s{sJ}, s{sHEAD}")
        e(f"s_mul_i32 s{sKC}, s{sT1}, {self.p['rot']}"); e(f"s_add_u32 s{sKC}, s{sKC}, s{sG}")
        e(f"s_cmp_ge_u32 s{sKC}, 7"); e(f"s_cselect_b32 s{sT0}, 7, 0"); e(f"s_sub_u32 s{sKC}, s{sKC}, s{sT0}")
        e(f"s_lshl_b32 s{sFX}, s{sG}, 12"); e(f"s_add_u32 s{sFX}, s{sFX}, {WS_FX}")
        for b, n in ((8, 2048 * 896), (12, 448 * 2688), (36, 256), (40, WS_SIZE)):
            e(f"s_mov_b32 s{b + 2}, {n}"); e(f"s_mov_b32 s{b + 3}, 0x20000")

    def got_args(self, e):
        e("s_waitcnt lgkmcnt(0)")
        for b, src in ((8, 84), (12, 86), (40, 6), (36, 4)):
            e(f"s_mov_b64 s[{b}:{b + 1}], s[{src}:{src + 1}]")

    def late_setup(self, e, last=True):
        for b, src, n in ((16, 88, 448 * 896), (20, 92, 448 * 3584), (24, 94, 448 * 3584), (28, 96, 1792 * 896), (32, 98, 2048 * 896)):
            e(f"s_mov_b64 s[{b}:{b + 1}], s[{src}:{src + 1}]")
            e(f"s_mov_b32 s{b + 2}, {n}"); e(f"s_mov_b32 s{b + 3}, 0x20000")
        e(f"s_mul_i32 s{sMG}, s{sJ}, 37"); e(f"s_lshr_b32 s{sMG}, s{sMG}, 8")
        e(f"s_mul_i32 s{sT0}, s{sMG}, 7"); e(f"s_sub_u32 s{sNG}, s{sJ}, s{sT0}")
        e(f"s_and_b32 s{sPAR}, s{sJ}, 1")
        e(f"s_and_b32 s{sMI}, s{sW}, 1"); e(f"s_lshr_b32 s{sKH}, s{sW}, 1"); e(f"s_lshr_b32 s{sHF}, s{sMG}, 1")
        e(f"s_mov_b32 s{sSPIN}, 0")
        e(f"s_mov_b32 s{sHI}, 0"); e(f"s_mov_b32 s{sHI + 1}, -1")
        e(f"s_getreg_b32 s{sXCC}, hwreg(HW_REG_XCC_ID, 0, 4)"); e(f"s_or_b32 s{sXCC}, s{sXCC}, 0x100")
        if self.stamps and last:
            for i in range(16):
                e(f"s_mov_b32 s{sST + i}, 0")

    def kv_pass(self, e, kind, R):
        wf, cf = vRING, R["PK"]
        a0, a1 = vACC, vACC + 16
        XS, XQ, C0, C1 = R["XS"], R["XQ"], R["C0"], R["C1"]
        vW0, vW1, vC0, vC1, vXR, vONE = R["vW0"], R["vW1"], R["vC0"], R["vC1"], R["vXR"], R["vONE"]
        def xrd(c):
            e("s_barrier")
            self.stamp(e, f"b{c}")
            for s in range(4):
                e.lds(f"ds_read_b128 {vr(vH + 16 * c + 4 * s, 4)}, v{vXR[s]} offset:{(c % 4) * 16384}", ("x", 4 * c + s))
        def wrd(n):
            if kind and n < 28:
                for k, va in enumerate((vW0, vW1)):
                    self.trd(e, wf + 8 * (n % 4) + 4 * k, va, 16 * n * 128, 512, ("w", n))
        def crd(c):
            for k, va in enumerate((vC0, vC1)):
                self.trd(e, cf + 8 * (c & 1) + 4 * k, va, 64 * c * 128, 512, ("c", c))
        def cmm(c):
            e.wait(ds=("c", c))
            b = cf + 8 * (c & 1)
            return [(C0, vONE, b, c == 0), (C1, vONE, b + 4, c == 0), (C0, vONE, b + 2, False), (C1, vONE, b + 6, False)]
        xrd(0)
        wrd(0); wrd(1)
        if kind: crd(0)
        for n in range(28):
            c, s = divmod(n, 4)
            if s == 3 and c < 6:
                if kind and c == 5:
                    e.lds(f"ds_write2st64_b32 v{R['vCS']}, v{C0}, v{C1} offset0:0 offset1:4")
                    e.wait(ds="all")
                xrd(c + 1)
                if kind and c == 5:
                    for k in range(2):
                        e.lds(f"ds_read_b128 {vr(cf + 4 * k, 4)}, v{R['vCR']} offset:{1024 * k}", "cs")
            if n == 21:
                e("s_mov_b64 exec, 3")
                e.vmem(f"buffer_load_dword v{R['vRDY']}, v{R['vRA']}, {DBG}, 0 offen sc1")
                e("s_mov_b64 exec, -1")
            if s & 1 == 0:
                e.wait(ds=("x", n + 1))
                small = []
                for i in range(4):
                    x = vH + 4 * n + 2 * i
                    small += [(XS + 8 * (i & 1), vONE, x, n == 0 and i < 2), (XQ + 8 * (i & 1), x, x, n == 0 and i < 2)]
                if kind and s == 2 and c < 6:
                    extra = (cmm(0) if c == 0 else []) + cmm(c + 1)
                    for i, m in enumerate(extra):
                        small.insert(min(2 * i + 1, len(small)), m)
                for m in small:
                    self.mf4(e, *m)
            if kind:
                e.wait(ds=("w", n))
                x, w0 = vH + 4 * n, wf + 8 * (n % 4)
                for k, acc in enumerate((a0, a1)):
                    A, B = (w0 + 4 * k, x) if kind == "K" else (x, w0 + 4 * k)
                    self.mf(e, acc, A, B, "0" if n == 0 else None)
                    if k == 0: wrd(n + 2)
                if s == 0 and c < 6:
                    crd(c + 1)
        self.stamp(e, "kv")
        vMU, vRS, vNM, vCP, vOH, PK = R["vMU"], R["vRS"], R["vNM"], R["vCP"], R["vOH"], R["PK"]
        if kind:
            e.wait(ds="cs")
            for k in range(2):
                e(f"v_add_f32 v{cf + 4 * k}, v{cf + 4 * k}, v{cf + 4 * k + 1}")
                e(f"v_add_f32 v{cf + 4 * k + 2}, v{cf + 4 * k + 2}, v{cf + 4 * k + 3}")
            e(f"v_add_f32 v{C0}, v{cf}, v{cf + 2}"); e(f"v_add_f32 v{C1}, v{cf + 4}, v{cf + 6}")
        e(f"v_add_f32 v{XS}, v{XS}, v{XS + 8}")
        for i in range(4):
            e(f"v_add_f32 v{XQ + i}, v{XQ + i}, v{XQ + 8 + i}")
        e(f"v_cndmask_b32 v{XQ}, v{XQ}, v{XQ + 1}, s[{sM1}:{sM1 + 1}]")
        e(f"v_cndmask_b32 v{XQ}, v{XQ}, v{XQ + 2}, s[{sM2}:{sM2 + 1}]")
        e(f"v_cndmask_b32 v{XQ}, v{XQ}, v{XQ + 3}, s[{sM3}:{sM3 + 1}]")
        if kind: self.split_hi_lo(e, C0 + 2, C0)
        e(f"v_permlane32_swap_b32 v{XS}, v{XQ}")
        e(f"v_add_f32 v{XS}, v{XS}, v{XQ}")
        e(f"v_mov_b32 v{XQ}, v{XS}")
        if kind: self.split_hi_lo(e, C1 + 2, C1)
        e(f"v_permlane32_swap_b32 v{XS}, v{XQ}")
        e(f"v_mul_f32 v{vMU}, {f32(1 / 448)}, v{XS}")
        e(f"v_mul_f32 v{XQ}, {f32(1 / 448)}, v{XQ}")
        e(f"v_cvt_pk_bf16_f32 v{vNM}, -v{vMU}, -v{vMU}")
        e(f"v_fma_f32 v{XQ}, -v{vMU}, v{vMU}, v{XQ}")
        e(f"v_and_b32 v{t}, 0xffff0000, v{vNM}")
        e(f"v_max_f32 v{XQ}, 0, v{XQ}")
        e(f"v_add_f32 v{t}, v{vMU}, v{t}")
        e(f"v_add_f32 v{XQ}, {f32(1e-5)}, v{XQ}")
        e(f"v_cvt_pk_bf16_f32 v{vNM + 1}, -v{t}, 0")
        e(f"v_rsq_f32 v{vRS}, v{XQ}")
        if kind == "K":
            self.mf8(e, a0, C0 + 2, vNM); self.mf8(e, a1, C1 + 2, vNM)
            e(f"s_mul_i32 s{sT0}, s{sMT}, 28672"); e(f"s_lshl_b32 s{sT1}, s{sHEAD}, 12"); e(f"s_add_u32 s{sT0}, s{sT0}, s{sT1}")
            e(f"v_lshlrev_b32 v{t + 1}, 3, v{vLANE}")
            for k, acc in enumerate((a0, a1)):
                for i in range(16):
                    e(f"v_mul_f32 v{acc + i}, v{vRS}, v{acc + i}")
                for i in range(8):
                    e(f"v_cvt_pk_bf16_f32 v{PK + 8 * k + i}, v{acc + 2 * i}, v{acc + 2 * i + 1}")
                    if i & 1:
                        e.vmem(f"buffer_store_dwordx2 {vr(PK + 8 * k + i - 1, 2)}, v{t + 1}, {WS}, s{sT0} offen offset:{(8 * k + i - 1) * 256} sc1")
        if kind == "V":
            aR = wf
            self.mf8(e, a0, vNM, C0 + 2)
            self.split_hi_lo(e, vCP, vRS)
            self.mf8(e, aR, vCP, vOH, "0")
            self.mf8(e, a1, vNM, C1 + 2)
            e(f"s_mul_i32 s{sT0}, s{sMT}, 28672"); e(f"s_lshl_b32 s{sT1}, s{sHEAD}, 10"); e(f"s_add_u32 s{sT0}, s{sT0}, s{sT1}")
            e(f"s_add_u32 s{sT0}, s{sT0}, {WS_V - 7 * 1024}"); e(f"s_add_u32 s{sT1}, s{sT0}, 14336")
            for k, acc in enumerate((a0, a1)):
                for i in range(16):
                    e(f"v_mul_f32 v{acc + i}, v{aR + i}, v{acc + i}")
                for i in range(8):
                    e(f"v_cvt_pk_bf16_f32 v{PK + 8 * k + i}, v{acc + 2 * i}, v{acc + 2 * i + 1}")
                    if i & 3 == 3:
                        e.vmem(f"buffer_store_dwordx4 {vr(PK + 8 * k + i - 3, 4)}, v{R['vVA']}, {WS}, s{(sT0, sT1)[i >> 2]} offen offset:{512 * k} sc1")

    def role_L(self):
        e = Stream(); e.role = 0
        vCS, vRA, vC0, vC1, vCR, vXR, vW0, vW1, vWQ, vRDY = 3, 4, 5, 6, 7, [8, 9, 10, 11], 12, 13, 14, 15
        vONE, vOH, vMU, vRS, vNM, vCP, vVA = 16, 18, 20, 21, 22, 24, 30
        aQ = vACC + 32
        wf = vRING
        XS, XQ, C0, C1, PK = aQ, aQ + 4, 232, 236, 240
        R = dict(locals())
        for i in range(4): e(f"v_mov_b32 v{32 + i}, 0")
        self.got_args(e)
        nolead, nocode = self.lab("nolead"), self.lab("nocode")
        e(f"s_lshl_b32 s{sT0}, s{sJ}, 2"); e(f"s_add_u32 s{sT0}, s{sT0}, s{sW}")
        e(f"s_cmp_lg_u32 s{sT0}, {28 * 4}"); e(f"s_cbranch_scc1 {nolead}")
        e(f"v_lshlrev_b32 v{t}, 7, v{vLANE}")
        e(f"s_lshl_b32 s{sT0}, s{sG}, 14"); e(f"s_add_u32 s{sT0}, s{sT0}, {WS_F1}"); e(f"s_add_u32 s{sT1}, s{sT0}, 8192")
        for base in (sT0, sT1):
            e(f"buffer_store_dword v32, v{t}, {WS}, s{base} offen sc1")
        for i in range(4):
            e(f"buffer_store_dwordx4 v[32:35], v{vL16}, {WS}, s{sFX} offen offset:{1024 * i} sc1")
        e(f"s_lshl_b32 s{sT0}, s{sG}, 2"); e("v_mov_b32 v36, 1")
        e("s_waitcnt vmcnt(0)")
        e("s_mov_b64 exec, 1")
        e(f"buffer_store_dword v36, v32, {DBG}, s{sT0} offen sc1")
        e("s_mov_b64 exec, -1")
        e(f"{nolead}:")
        e(f"s_cmp_lg_u32 s{sW}, 1"); e(f"s_cbranch_scc1 {nocode}")
        e("s_getpc_b64 s[100:101]")
        e("L_pc:")
        e(f"s_sub_u32 s100, s100, L_pc-{NAME}"); e("s_subb_u32 s101, s101, 0")
        e(f"s_mul_i32 s{sT0}, s{sJ}, 1536")
        e(f"v_lshlrev_b32 v{t}, 7, v{vLANE}"); e(f"v_add_u32 v{t}, s{sT0}, v{t}")
        e(f"v_min_u32 v{t}, L_end-{NAME}-4, v{t}")
        e("s_mov_b64 exec, 0xfff")
        e(f"global_load_dword v{vRDY}, v{t}, s[100:101]")
        e("s_mov_b64 exec, -1")
        e(f"{nocode}:")
        self.late_setup(e)
        self.stamp(e, "start")
        e(f"v_and_b32 v{t}, 31, v{vLANE}")
        e(f"v_lshlrev_b32 v{vVA}, 4, v{t}")
        e(f"v_lshlrev_b32 v{t + 1}, 7, v{t}")
        e(f"v_add_u32 v{t + 1}, s{sT5}, v{t + 1}")
        e(f"v_bfe_u32 v{t}, v{vLANE}, 1, 3")
        e(f"v_lshrrev_b32 v{t + 2}, 5, v{vLANE}")
        e(f"v_mul_u32_u24 v{t + 3}, 7168, v{t + 2}"); e(f"v_add_u32 v{vVA}, v{vVA}, v{t + 3}")
        e(f"v_xor_b32 v{t}, v{t}, v{t + 2}")
        for s in range(4):
            e(f"v_xor_b32 v{t + 2}, {2 * s}, v{t}")
            e(f"v_lshl_add_u32 v{vXR[s]}, v{t + 2}, 4, v{t + 1}")
        self.tr_base(e, vW0, 8, 128, 32)
        e(f"v_bfe_u32 v{t}, v{vLANE}, 3, 1")
        e(f"v_lshlrev_b32 v{t}, 6, v{t}")
        e(f"v_add_u32 v{vW0}, {LC}, v{vW0}")
        e(f"v_xor_b32 v{t + 1}, 64, v{t}")
        e(f"v_add_u32 v{vW1}, v{vW0}, v{t + 1}")
        e(f"v_add_u32 v{vW0}, v{vW0}, v{t}")
        e(f"s_lshl_b32 s{sT0}, s{sW}, 11")
        e(f"v_add_u32 v{vC0}, s{sT0}, v{vW0}"); e(f"v_add_u32 v{vC1}, s{sT0}, v{vW1}")
        e(f"v_add_u32 v{vCR}, {L_CS}, v{vL16}")
        e(f"s_lshl_b32 s{sT0}, s{sW}, 2"); e(f"v_add_u32 v{vCS}, s{sT0}, v{vCR}")
        self.tr_base(e, vWQ, 8, 64, 32)
        e(f"v_add_u32 v{vWQ}, {L_WQ}, v{vWQ}")
        e(f"v_mov_b32 v{vONE}, {ONES}"); e(f"v_mov_b32 v{vONE + 1}, {ONES}")
        e(f"v_cndmask_b32 v{vOH}, v{vONE}, 0, {HI}"); e(f"v_mov_b32 v{vOH + 1}, 0")
        for m, val in ((sM1, 0x22222222), (sM2, 0x44444444), (sM3, 0x88888888)):
            e(f"s_mov_b32 s{m}, {val}"); e(f"s_mov_b32 s{m + 1}, {val}")
        e(f"v_and_b32 v{vRA}, 1, v{vLANE}"); e(f"v_min_u32 v{vRA}, s{sG}, v{vRA}")
        e(f"v_sub_u32 v{vRA}, s{sG}, v{vRA}"); e(f"v_lshlrev_b32 v{vRA}, 2, v{vRA}")
        lv, ln, lj = self.lab("formV"), self.lab("formN"), self.lab("kvjoin")
        e(f"s_cmp_ge_u32 s{sHEAD}, 14"); e(f"s_cbranch_scc1 {ln}")
        e(f"s_cmp_ge_u32 s{sHEAD}, 7"); e(f"s_cbranch_scc1 {lv}")
        for kind, lb in (("K", None), (None, ln), ("V", lv)):
            if lb: e(f"{lb}:")
            e.vm, e.ds = [], []
            self.kv_pass(e, kind, R)
            if kind != "V": e(f"s_branch {lj}")
        e(f"{lj}:")
        e.ds = []
        self.stamp(e, "kvst")
        e(f"s_lshl_b32 s{sT4}, s{sMT}, 4"); e(f"s_add_u32 s{sT0}, s{sT4}, s{sHEAD}"); e(f"s_lshl_b32 s{sT0}, s{sT0}, 7")
        e(f"s_add_u32 s{sT2}, s{sT0}, {WS_F1}")
        e(f"v_mov_b32 v{t + 2}, 0"); e(f"v_mov_b32 v{t + 3}, 1")
        def kv_flag():
            e.wait(vm="all")
            nof0 = self.lab("nof0")
            e("s_mov_b64 exec, 3")
            self.check_or_poll(e, vRA, "0", f"v_cmp_ne_u32 vcc, 1, v{vRDY}", vRDY, srd=DBG)
            e("s_mov_b64 exec, 1")
            e.vmem(f"buffer_store_dword v{t + 3}, v{t + 2}, {WS}, s{sT2} offen sc1")
            e(f"s_cmp_lg_u32 s{sW}, 0"); e(f"s_cbranch_scc1 {nof0}")
            e(f"v_mov_b32 v{vRDY}, s{sXCC}")
            e(f"s_lshl_b32 s{sT0}, s{sJ}, 2"); e(f"s_add_u32 s{sT0}, s{sT0}, s{sFX}")
            e(f"buffer_store_dword v{vRDY}, v{t + 2}, {WS}, s{sT0} offen offset:{FX_F0} sc1")
            e(f"{nof0}:")
            e("s_mov_b64 exec, -1")
            self.stamp(e, "fl1")
        if self.p["f1_at"] < 0:
            kv_flag()
        e("s_barrier")
        self.stamp(e, "Bkv")
        def qread(s):
            self.trd(e, wf + 4 * (s % NR), vWQ, 16 * s * 64, 256, ("q", s))
        for s in range(NR - 1):
            qread(s)
        for s in range(28):
            if s == self.p["f1_at"]:
                kv_flag()
            e.wait(ds=("q", s))
            q = wf + 4 * (s % NR)
            self.mf4(e, C0, vONE, q, s == 0); self.mf4(e, C1, vONE, q + 2, s == 0)
            self.mf(e, aQ, q, vH + 4 * s, "0" if s == 0 else None)
            if s + NR - 1 < 28:
                qread(s + NR - 1)
        e(f"v_add_f32 v{C0}, v{C0}, v{C1}")
        self.split_hi_lo(e, C0 + 2, C0)
        self.mf8(e, aQ, C0 + 2, vNM)
        vKA, vKV, vV0, vV1 = 4, 8, 9, 10
        e(f"v_add_u32 v{vKV}, s{sT5}, v{vL16}")
        e(f"v_lshlrev_b32 v{vKA}, 3, v{vLANE}"); e(f"v_add_u32 v{vKA}, s{sT5}, v{vKA}")
        e(f"v_add_u32 v{vV0}, {2 * MB - 2048}, v{vVA}"); e(f"v_add_u32 v{vV1}, {2 * MB + 14336 - 3072}, v{vVA}")
        for i in range(4):
            e(f"v_mov_b32 v{vACC + i}, 0"); e(f"v_mov_b32 v{vACC + 4 + i}, v{vONE}")
        e("s_mov_b32 exec_lo, 0"); e("s_mov_b32 exec_hi, 0xffff0000")
        for u in range(3):
            e.lds(f"ds_write_b128 v{vKV}, {vr(vACC, 4)} offset:{u * 16384 + 1024}")
        e("s_mov_b32 exec_lo, 0xf0000000"); e("s_mov_b32 exec_hi, 0xf0000000")
        for u in range(3):
            for s in range(2):
                e.lds(f"ds_write_b128 v{vKV}, {vr(vACC + 4, 4)} offset:{u * 16384 + 2048 + 1024 * s}")
        e("s_mov_b64 exec, -1")
        vQ = vTMP
        e(f"v_mul_f32 v{vRS}, {f32(28 ** -0.5 * math.log2(math.e))}, v{vRS}")
        e(f"v_mul_f32 v{vMU}, {f32(1 / 16)}, v{vMU}")
        for i in range(16):
            e(f"v_mul_f32 v{aQ + i}, v{vRS}, v{aQ + i}")
        for i in range(8):
            e(f"v_cvt_pk_bf16_f32 v{vQ + i}, v{aQ + 2 * i}, v{aQ + 2 * i + 1}")
        for i in (6, 7):
            e(f"v_cndmask_b32 v{vQ + i}, v{vQ + i}, 0, {HI}")
        self.stamp(e, "q")
        e(f"s_mul_i32 s{sT0}, s{sHEAD}, 28"); e(f"s_add_u32 s{sT1}, s{sT0}, 27")
        e(f"s_lshr_b32 s{sT0}, s{sT0}, 6"); e(f"s_lshr_b32 s{sT1}, s{sT1}, 6"); e(f"s_sub_u32 s{sT1}, s{sT1}, s{sT0}")
        e(f"v_and_b32 v{t}, s{sT1}, v{vLANE}")
        e(f"v_bfe_u32 v{t + 1}, v{vLANE}, 1, 1"); e(f"v_mad_u32_u24 v{t}, v{t + 1}, 7, v{t}")
        e(f"v_lshrrev_b32 v{t + 1}, 2, v{vLANE}"); e(f"v_lshl_add_u32 v{t}, v{t + 1}, 6, v{t}")
        e(f"v_lshlrev_b32 v{t}, 7, v{t}")
        e(f"s_add_u32 s{sT0}, s{sT0}, s{sT4}"); e(f"s_lshl_b32 s{sT0}, s{sT0}, 7"); e(f"s_add_u32 s{sT0}, s{sT0}, {WS_F1 - 16384}")
        e(f"s_min_u32 s{sT1}, s{sRB}, 2"); e(f"s_lshl_b32 s{sT1}, s{sT1}, 2")
        e(f"s_lshr_b32 s{sT1}, 0xfff00, s{sT1}"); e(f"s_and_b32 exec_lo, s{sT1}, 0xfff"); e("s_mov_b32 exec_hi, 0")
        e(f"s_mul_i32 s{sT2}, s{sMT}, 28672"); e(f"s_mul_i32 s{sT3}, s{sHEAD}, 448"); e(f"s_add_u32 s{sT3}, s{sT3}, s{sT2}")
        e(f"s_mul_i32 s{sT1}, s{sHEAD}, 1792"); e(f"s_add_u32 s{sT2}, s{sT2}, s{sT1}")
        self.poll(e, t, f"s{sT0}", f"v_cmp_ne_u32 vcc, 1, v{t + 1}", t + 1)
        self.stamp(e, "f1")
        for part in range(2):
            for u in range(3):
                e(f"s_sub_u32 s{sT1}, s{(sT2, sT3)[part]}, {(8 - 4 * u) * 28672}")
                if u < 2:
                    e(f"s_cmp_ge_u32 s{sRB}, {2 - u}"); e(f"s_cselect_b32 s{sT1}, s{sT1}, 0x7f000000")
                e(f"s_add_u32 m0, s{sT5}, {u * 16384}")
                if part == 0:
                    e("s_mov_b64 exec, -1")
                    e.vmem(f"buffer_load_dwordx4 v{vL16}, {WS}, s{sT1} offen sc1 lds")
                    e("s_mov_b32 exec_hi, 0xffff")
                    e.vmem(f"buffer_load_dwordx4 v{vL16}, {WS}, s{sT1} offen offset:1024 sc1 lds")
                else:
                    if u == 0:
                        e("s_mov_b32 exec_lo, 0x0fffffff"); e("s_mov_b32 exec_hi, 0x0fffffff")
                    e.vmem(f"buffer_load_dwordx4 v{vV0}, {WS}, s{sT1} offen offset:2048 sc1 lds")
                    e.vmem(f"buffer_load_dwordx4 v{vV1}, {WS}, s{sT1} offen offset:3072 sc1 lds")
        e("s_mov_b64 exec, -1")
        e.wait(ds="all")
        vS, aO, vRM, vM = vH, vACC + 32, vRES, 5
        e(f"v_and_b32 v{t}, 31, v{vLANE}")
        e(f"v_lshrrev_b32 v{t + 1}, 5, v{vLANE}")
        e(f"v_lshlrev_b32 v{t + 1}, 2, v{t + 1}")
        e(f"v_sub_u32 v{t}, v{t}, v{t + 1}")
        e(f"v_mov_b32 v{t + 2}, {BIG}")
        e(f"s_cmp_ge_u32 s{sMT}, 8"); e(f"s_cselect_b32 s{sT0}, 0, {BIG}")
        e(f"v_mov_b32 v{t + 3}, s{sT0}")
        for r in range(16):
            m = (sM1, sM2, sM3)[r % 3]
            e(f"v_cmp_le_i32 s[{m}:{m + 1}], {8 * (r >> 2) + (r & 3)}, v{t}")
            e(f"v_cndmask_b32 v{vS + 128 + r}, v{t + 2}, 0, s[{m}:{m + 1}]")
            e(f"v_cndmask_b32 v{vS + r}, v{t + 3}, v{t + 2}, s[{m}:{m + 1}]")
        for tt in range(1, 8):
            e(f"s_cmp_ge_u32 s{sMT}, {8 - tt}"); e(f"s_cselect_b32 s{sT0}, 0, {BIG}")
            for r in range(16):
                e(f"v_mov_b32 v{vS + 16 * tt + r}, s{sT0}")
        e(f"v_lshlrev_b32 v{t}, 2, v{t + 1}")
        e(f"v_add_u32 v{t}, {L_MISC}, v{t}")
        e.wait(vm="all", ds="all")
        self.stamp(e, "Batt_")
        e("s_barrier")
        self.stamp(e, "Batt")
        def frag(n):
            kv, i = divmod(n, 18)
            if kv:
                e.lds(f"ds_read_b128 {vr(wf + 4 * (n % NR), 4)}, v{vKV} offset:{(i >> 1) * 4096 + 2048 + (i & 1) * 1024}", ("kv", n))
            else:
                o = 8 * (i >> 1) + 2 * (i & 1)
                e.lds(f"ds_read2st64_b64 {vr(wf + 4 * (n % NR), 4)}, v{vKA} offset0:{o} offset1:{o + 1}", ("kv", n))
        for n in range(NR - 1):
            frag(n)
        def maxtile(tt, half):
            b = vS + 16 * tt + 8 * half
            for i in range(0, 8, 2):
                if tt == 0 and half == 0 and i == 0:
                    e(f"v_max_f32 v{vM}, v{b}, v{b + 1}")
                else:
                    e(f"v_max3_f32 v{vM}, v{b + i}, v{b + i + 1}, v{vM}")
        for n in range(18):
            e.wait(ds=("kv", n))
            self.mf(e, vS + 16 * (n >> 1), wf + 4 * (n % NR), vQ + 4 * (n & 1))
            frag(n + NR - 1)
            if n < 4:
                e.lds(f"ds_read_b128 {vr(vRM + 4 * n, 4)}, v{t} offset:{32 * n}", "rm")
            else:
                maxtile((n - 4) >> 1, n & 1)
        e.wait(ds="rm")
        self.mode_issue(e, 3, vRDY)
        self.stamp(e, "qk")
        e("s_barrier")
        self.stamp(e, "Bm")
        for n in range(14, 18):
            maxtile(n >> 1, n & 1)
        e(f"v_mov_b32 v{vM + 1}, v{vM}")
        e(f"v_permlane32_swap_b32 v{vM}, v{vM + 1}")
        e(f"v_max_f32 v{vM + 1}, v{vM}, v{vM + 1}")
        for i in range(0, 144, 2):
            e(f"v_pk_add_f32 {vr(vS + i, 2)}, {vr(vS + i, 2)}, {vr(vM + 1, 2)} op_sel_hi:[1,0] neg_lo:[0,1] neg_hi:[0,1]")
        self.stamp(e, "sub")
        pend = []
        for hb in range(18):
            b = vS + 8 * hb
            for i in range(8):
                e(f"v_exp_f32 v{b + i}, v{b + i}")
                if i == 2 and pend:
                    n = pend.pop()
                    e.wait(ds=("kv", 18 + n))
                    self.mf(e, aO, wf + 4 * ((18 + n) % NR), vS + 8 * n, "0" if n == 0 else None)
                    if 18 + n + NR - 1 < 36:
                        frag(18 + n + NR - 1)
            for i in range(4):
                e(f"v_cvt_pk_bf16_f32 v{b + i}, v{b + 2 * i}, v{b + 2 * i + 1}")
            pend.append(hb)
            if hb == self.p["m2at"]:
                e("s_barrier")
                self.stamp(e, "Bm2")
        e.wait(ds="all")
        self.mf(e, aO, wf + 4 * (35 % NR), vS + 8 * 17)
        e(f"s_lshl_b32 s{sT0}, s{sMT}, 4"); e(f"s_add_u32 s{sT0}, s{sT0}, s{sHEAD}"); e(f"s_lshl_b32 s{sT0}, s{sT0}, 11")
        e(f"s_add_u32 s{sT0}, s{sT0}, {WS_O}")
        e(f"s_and_b32 s{sT1}, s{sMT}, 7"); e(f"s_lshl_b32 s{sT1}, s{sT1}, 5"); e(f"s_add_u32 s{sT1}, s{sT1}, s{sHEAD}")
        e(f"s_lshl_b32 s{sT1}, s{sT1}, 2"); e(f"s_add_u32 s{sT1}, s{sT1}, s{sFX}")
        self.stamp(e, "pv")
        self.mode_check(e, 3, vRDY)
        e(f"v_mov_b32 v{t}, v{aO + 12}"); e(f"v_mov_b32 v{t + 1}, v{aO + 12}")
        e(f"v_mul_f32 v{t + 2}, v{aO}, v{vRM}")
        e(f"v_mul_f32 v{t + 3}, v{aO + 1}, v{vRM + 1}")
        e(f"v_permlane32_swap_b32 v{t}, v{t + 1}")
        e(f"v_rcp_f32 v{t + 1}, v{t + 1}")
        for i in range(2, 16):
            e(f"v_fmac_f32 v{t + 2 + (i & 1)}, v{aO + i}, v{vRM + i}")
        e(f"v_add_f32 v{t + 2}, v{t + 2}, v{t + 3}")
        e(f"v_mov_b32 v{t + 3}, v{t + 2}")
        for i in range(8):
            e(f"v_mul_f32 v{aO + i}, v{t + 1}, v{aO + i}")
        e(f"v_permlane32_swap_b32 v{t + 2}, v{t + 3}")
        for i in range(4):
            e(f"v_cvt_pk_bf16_f32 v{vQ + i}, v{aO + 2 * i}, v{aO + 2 * i + 1}")
        e(f"v_add_f32 v{t + 2}, v{t + 2}, v{t + 3}")
        e(f"v_fma_f32 v{t + 2}, v{t + 2}, v{t + 1}, v{vMU}")
        for i in range(8, 16):
            e(f"v_mul_f32 v{aO + i}, v{t + 1}, v{aO + i}")
        self.split_hi_lo(e, vCP, t + 2)
        for i in range(4, 8):
            e(f"v_cvt_pk_bf16_f32 v{vQ + i}, v{aO + 2 * i}, v{aO + 2 * i + 1}")
        e(f"v_cndmask_b32 v{vQ + 6}, v{vQ + 6}, v{vCP}, {HI}")
        e(f"v_cndmask_b32 v{vQ + 7}, v{vQ + 7}, 0, {HI}")
        self.stamp(e, "att")
        self.publish(e, [f"buffer_store_dwordx4 {vr(vQ + 4 * i, 4)}, v{vL16}, {WS}, s{sT0} offen offset:{1024 * i}" for i in range(2)])
        e(f"v_mov_b32 v{t}, 0"); e(f"v_mov_b32 v{t + 1}, 1")
        e.wait(vm="all")
        e("s_mov_b64 exec, 1")
        self.publish(e, [f"buffer_store_dword v{t + 1}, v{t}, {WS}, s{sT1} offen offset:{FX_F2}"])
        e("s_mov_b64 exec, -1")
        self.stamp(e, "opub")
        if self.stop > 2:
            e(f"s_cmp_ge_u32 s{sJ}, 28"); e("s_cbranch_scc1 L_Ldone")
            self.ffn_setup(e, 0)
            self.out_addr(e)
            e("s_barrier")
            self.stamp(e, "Bp")
            for op in self.gu_ops(e, WU, L_UP, range(self.p["upe"]), "up"): op()
            e("s_barrier")
            self.stamp(e, "Bx")
        if self.stop > 3:
            self.ffn_L(e)
        e("L_Ldone:")
        self.finish(e, 0)
        return e

    def ffn_setup(self, e, role):
        self.rows128_src(e, vD, 896, 64, lambda i: 128 * i)
        self.tr_base(e, vP[0], 4, 128, 32)
        e(f"v_bfe_u32 v{t}, v{vLANE}, 3, 1"); e(f"v_lshlrev_b32 v{t}, 6, v{t}")
        e(f"v_xor_b32 v{t + 1}, 64, v{t}")
        e(f"s_mov_b32 s{sT0}, {L_GATE}"); e(f"s_mov_b32 s{sT1}, {L_UP}")
        e(f"v_add3_u32 v{vP[1]}, v{vP[0]}, v{t + 1}, s{sT0}")
        e(f"v_add3_u32 v{vP[2]}, v{vP[0]}, v{t}, s{sT1}")
        e(f"v_add3_u32 v{vP[3]}, v{vP[0]}, v{t + 1}, s{sT1}")
        e(f"v_add3_u32 v{vP[0]}, v{vP[0]}, v{t}, s{sT0}")
        if role == 0:
            self.rows128_src(e, vGA, 3584, 64, lambda i: 8 * i)
        self.w5_base(e)
        e(f"s_mul_i32 s{sT0}, s{sKH}, 14336")
        for k in range(2):
            e(f"v_add_u32 v{vW5[k]}, s{sT0}, v{vW5[k]}")
        e(f"s_lshl_b32 s{sT1}, s{sG}, 2"); e(f"s_add_u32 s{sT1}, s{sT1}, s{sMG}"); e(f"s_lshl_b32 s{sT1}, s{sT1}, 1")
        e(f"s_add_u32 s{sT1}, s{sT1}, s{sMI}"); e(f"s_lshl_b32 s{sT1}, s{sT1}, 4"); e(f"s_add_u32 s{sT1}, s{sT1}, s{sKH}")
        e(f"s_mul_i32 s{sT1}, s{sT1}, 7168"); e(f"s_add_u32 s{sA5}, s{sT1}, {WS_ACT}")
        e(f"s_mul_i32 s{sWD}, s{sKH}, {896 * 896}"); e(f"s_mul_i32 s{sT0}, s{sMI}, {8 * 896}")
        e(f"s_add_u32 s{sWD}, s{sWD}, s{sT0}"); e(f"s_lshl_b32 s{sT0}, s{sNG}, 7"); e(f"s_add_u32 s{sWD}, s{sWD}, s{sT0}")
        e(f"s_xor_b32 s{sML}, s{sPAR}, {role}"); e(f"s_lshl_b32 s{sML}, s{sML}, 2"); e(f"s_add_u32 s{sML}, s{sML}, s{sW}")
        e(f"s_lshl_b32 s{sMT}, s{sG}, 3"); e(f"s_add_u32 s{sMT}, s{sMT}, s{sML}")
        e(f"s_lshl_b32 s{sT0}, s{sMT}, 1"); e(f"s_add_u32 s{sT0}, s{sT0}, s{sPAR}"); e(f"s_mul_i32 s{sT0}, s{sT0}, 56")
        e(f"s_lshr_b32 s{sT1}, s{sJ}, 1"); e(f"s_add_u32 s{sT0}, s{sT0}, s{sT1}"); e(f"s_lshl_b32 s{sT0}, s{sT0}, 10")
        e(f"s_add_u32 s{sACT}, s{sT0}, {WS_ACT}")
        e(f"s_lshl_b32 s{sT0}, s{sML}, 5"); e(f"s_add_u32 s{sT0}, s{sT0}, s{sJ}"); e(f"s_lshl_b32 s{sT0}, s{sT0}, 2")
        e(f"s_add_u32 s{sT0}, s{sT0}, s{sFX}"); e(f"s_add_u32 s{sF4P}, s{sT0}, {FX_F4}")
        e(f"s_lshl_b32 s{sT0}, s{sMG}, 1"); e(f"s_add_u32 s{sT0}, s{sT0}, s{sMI}"); e(f"s_lshl_b32 s{sT0}, s{sT0}, 7")
        e(f"s_mul_i32 s{sT1}, s{sKH}, 56"); e(f"s_add_u32 s{sT0}, s{sT0}, s{sT1}")
        e(f"s_add_u32 s{sT0}, s{sT0}, s{sFX}"); e(f"s_add_u32 s{sF4C}, s{sT0}, {FX_F4}")
        e(f"v_lshlrev_b32 v{vPA}, 2, v{vLANE}")
        e(f"v_and_b32 v{vPR}, 1, v{vLANE}"); e(f"v_xor_b32 v{vPR}, s{sHF}, v{vPR}")

    def w5_base(self, e):
        self.tr_base(e, vW5[0], 4, 128, 32)
        e(f"v_bfe_u32 v{t}, v{vLANE}, 3, 1"); e(f"v_xor_b32 v{t}, s{sKH}, v{t}"); e(f"v_lshlrev_b32 v{t}, 6, v{t}")
        e(f"v_xor_b32 v{t + 1}, 64, v{t}")
        e(f"v_add_u32 v{vW5[1]}, v{vW5[0]}, v{t + 1}")
        e(f"v_add_u32 v{vW5[0]}, v{vW5[0]}, v{t}")

    def gu_ops(self, e, srd, base, cs, tag):
        ops = []
        for c in cs:
            for i in range(2):
                def op(c=c, i=i):
                    if i == 0:
                        e(f"s_add_u32 s{sT2}, s{sG}, {c}"); e(f"s_cmp_ge_u32 s{sT2}, 7"); e(f"s_cselect_b32 s{sT3}, 7, 0")
                        e(f"s_sub_u32 s{sT2}, s{sT2}, s{sT3}"); e(f"s_lshl_b32 s{sT2}, s{sT2}, 2"); e(f"s_add_u32 s{sT2}, s{sT2}, s{sW}")
                        e(f"s_lshl_b32 s{sT3}, s{sT2}, 11"); e(f"s_add_u32 m0, s{sT3}, {base}")
                        e(f"s_mul_i32 s{sT2}, s{sT2}, {16 * 3584}"); e(f"s_lshl_b32 s{sT3}, s{sJ}, 7"); e(f"s_add_u32 s{sT2}, s{sT2}, s{sT3}")
                    e.vmem(f"buffer_load_dwordx4 v{vGA[i]}, {srd}, s{sT2} offen offset:{1024 * i} lds", tag)
                ops.append(op)
        return ops

    def paced(self, e, ops, depth):
        for i, op in enumerate(ops):
            if i > depth:
                e(f"s_waitcnt vmcnt({depth})")
            op()

    def wd_ops(self, e, qs):
        ops = []
        for q in qs:
            role, tile = CHUNK[q]
            for grp in range(2):
                for i in range(4 - grp):
                    def op(q=q, role=role, tile=tile, grp=grp, i=i):
                        if i == 0:
                            e(f"s_xor_b32 s{sT2}, s{sHF}, {role}"); e(f"s_mul_i32 s{sT2}, s{sT2}, {64 * 896}")
                            e(f"s_add_u32 s{sT2}, s{sT2}, s{sWD}")
                            e(f"s_add_u32 s{sT2}, s{sT2}, {(16 * tile + 512 * grp) * 896}")
                            e(f"s_mul_i32 s{sT3}, s{sW}, 7168"); e(f"s_add_u32 m0, s{sT3}, {SLOT[q] + 4096 * grp}")
                        e.vmem(f"buffer_load_dwordx4 v{vD[i]}, {WD}, s{sT2} offen offset:{1024 * i} lds", ("wd", q))
                    ops.append(op)
        return ops

    def wd_dma(self, e, qs):
        for op in self.wd_ops(e, qs):
            op()

    def h_poll(self, e, between=None):
        e(f"s_lshl_b32 s{sT0}, s{sML}, 7"); e(f"s_add_u32 s{sT0}, s{sT0}, s{sFX}"); e(f"s_add_u32 s{sT0}, s{sT0}, {FX_F3}")
        e(f"s_mul_i32 s{sT4}, s{sMT}, 28672"); e(f"s_add_u32 s{sT4}, s{sT4}, {WS_H}")
        e(f"s_lshl_b32 s{sT5}, s{sMT}, 11"); e(f"s_add_u32 s{sT5}, s{sT5}, {WS_SS}")
        e("s_mov_b64 exec, 0x3fff")
        self.poll(e, vPA, f"s{sT0}", f"v_cmp_ne_u32 vcc, 1, v{vSM}", vSM)
        e("s_mov_b64 exec, -1")

    def h_load(self, e, s):
        e.vmem(f"buffer_load_dwordx4 {vr(vH + 4 * s, 4)}, v{vL16}, {WS}, s{sT4} offen offset:{1024 * (s & 3)} sc1", ("h", s))
        if s & 3 == 3:
            e(f"s_add_u32 s{sT4}, s{sT4}, 4096")

    def ss_load(self, e, i):
        e.vmem(f"buffer_load_dword v{vSS + i}, v{vPA}, {WS}, s{sT5} offen offset:{256 * i} sc1", "ss")

    KMAJ = [(s, k) for s in range(28) for k in range(2)]
    TMAJ = [(s, k) for k in range(2) for s in range(28)]

    def gu_rd(self, e, mat, order, n):
        s, k = order[n]
        self.trd(e, vRING + 4 * (n % NR), vP[2 * mat + k], 16 * s * 128, 1024, ("g", n))

    def gu_pre(self, e, mat, order):
        for n in range(NR - 1):
            self.gu_rd(e, mat, order, n)

    def gu_pass(self, e, mat, order, accs, hook=None, wait_h=False):
        for n, (s, k) in enumerate(order):
            e.wait(vm=("h", s) if (wait_h and k == 0) else None, ds=("g", n))
            self.mf(e, accs[k], vRING + 4 * (n % NR), vH + 4 * s, "0" if s == 0 else None)
            if n + NR - 1 < 56:
                self.gu_rd(e, mat, order, n + NR - 1)
            if hook:
                hook(n)

    def gelu_consts(self, e):
        k1 = 2 * math.sqrt(2 / math.pi) * math.log2(math.e)
        e.wait(vm="ss")
        for i in range(3):
            e(f"v_add_f32 v{vSS + i}, v{vSS + i}, v{vSS + 3 + i}")
        e(f"v_add_f32 v{vSS}, v{vSS}, v{vSS + 6}")
        e(f"v_add_f32 v{vSS + 1}, v{vSS + 1}, v{vSS + 2}")
        e(f"v_add_f32 v{vSS}, v{vSS}, v{vSS + 1}")
        e(f"v_mov_b32 v{vSS + 1}, v{vSS}")
        e(f"v_permlane32_swap_b32 v{vSS}, v{vSS + 1}")
        e(f"v_add_f32 v{vSS}, v{vSS}, v{vSS + 1}")
        e(f"v_mul_f32 v{vSS}, {f32(1 / 448)}, v{vSS}")
        e(f"v_add_f32 v{vRI}, {f32(1e-5)}, v{vSS}")
        e(f"v_rsq_f32 v{vSS}, v{vRI}")
        e(f"v_mul_f32 v{vK1}, {f32(-k1)}, v{vSS}")
        e(f"v_mul_f32 v{vSS}, v{vSS}, v{vSS}")
        e(f"v_mul_f32 v{vSS}, {f32(0.044715)}, v{vSS}")
        e(f"v_mul_f32 v{vK2}, v{vSS}, v{vK1}")

    def gelu_gate(self, e, ops=()):
        T = vTMP
        ops = list(ops)
        per = -(-len(ops) // 12)
        def side():
            for i in range(per):
                if ops: ops.pop(0)()
        for a in range(vACC, vACC + 32, 8):
            side()
            for i in range(8): e(f"v_mul_f32 v{T + i}, v{a + i}, v{a + i}")
            for i in range(8): e(f"v_fma_f32 v{T + i}, v{T + i}, v{vK2}, v{vK1}")
            for i in range(8): e(f"v_mul_f32 v{T + i}, v{T + i}, v{a + i}")
            side()
            for i in range(8): e(f"v_exp_f32 v{T + i}, v{T + i}")
            for i in range(8): e(f"v_fma_f32 v{T + i}, v{T + i}, v{vRI}, v{vRI}")
            side()
            for i in range(8): e(f"v_rcp_f32 v{T + i}, v{T + i}")
            for i in range(8): e(f"v_mul_f32 v{a + i}, v{T + i}, v{a + i}")
        assert not ops

    def prod_ops(self, e, k):
        g, u = vACC + 16 * k, UACC[k]
        ops = []
        for hf in range(2):
            b = 8 * hf
            for i in range(0, 8, 2):
                ops.append(lambda b=b, i=i: [e(f"v_mul_f32 v{u + b + j}, v{g + b + j}, v{u + b + j}") for j in (i, i + 1)])
            for i in range(0, 4, 2):
                ops.append(lambda b=b, i=i: [e(f"v_cvt_pk_bf16_f32 v{u + b + j}, v{u + b + 2 * j}, v{u + b + 2 * j + 1}") for j in (i, i + 1)])
            def st(b=b, tile=2 * k + hf):
                e(f"s_add_u32 s{sT0}, s{sACT}, {tile * 14336}")
                self.publish(e, [f"buffer_store_dwordx4 {vr(u + b, 4)}, v{vL16}, {WS}, s{sT0} offen"], ("act", tile), wt=self.p["act_wt"])
                self.last_act = ("act", tile)
            ops.append(st)
        return ops

    def up_pass(self, e, extra=None):
        ops = self.prod_ops(e, 0)
        def hook(n):
            if n >= 31 and ops: ops.pop(0)()
            if n == 55: self.act_flag(e, 1)
            if extra: extra(n)
        self.gu_pass(e, 1, self.TMAJ, UACC, hook)
        assert not ops

    def act_flag(self, e, stage):
        e(f"v_mov_b32 v{vFL}, {stage}")
        e.wait(vm=self.last_act)
        e("s_mov_b64 exec, 1")
        self.publish(e, [f"buffer_store_dword v{vFL}, v{vPA}, {WS}, s{sF4P} offen"], "flag")
        e("s_mov_b64 exec, -1")

    def act_sample(self, e):
        e("s_mov_b64 exec, 0x3fff")
        e.vmem(f"buffer_load_dword v{vSM}, v{vPA}, {WS}, s{sF4C} offen sc1", "sample")
        e("s_mov_b64 exec, -1")

    def act_check(self, e, st0, st1):
        e(f"v_mad_i32_i24 v{t}, v{vPR}, {st1 - st0}, {st0}")
        e.wait(vm="sample")
        e("s_mov_b64 exec, 0x3fff")
        self.check_or_poll(e, vPA, f"s{sF4C}", f"v_cmp_gt_u32 vcc, v{t}, v{vSM}", vSM)
        e("s_mov_b64 exec, -1")

    def act_ops(self, e, q):
        role, tile = CHUNK[q]
        ops = []
        for s in range(7):
            def op(s=s):
                if s == 0:
                    e(f"s_xor_b32 s{sT1}, s{sHF}, {role}"); e(f"s_mul_i32 s{sT1}, s{sT1}, 57344")
                    e(f"s_add_u32 s{sT1}, s{sT1}, s{sA5}"); e(f"s_add_u32 s{sT1}, s{sT1}, {tile * 14336}")
                e.vmem(f"buffer_load_dwordx4 {vr(ABUF[q % 5] + 4 * s, 4)}, v{vL16}, {WS}, s{sT1} offen offset:{1024 * (s & 3)} sc1", ("a", q, s))
                if s == 3:
                    e(f"s_add_u32 s{sT1}, s{sT1}, 4096")
            ops.append(op)
        return ops

    def act_load(self, e, q):
        for op in self.act_ops(e, q):
            op()

    def down_rd(self, e, qs, n):
        c, r = divmod(n, 14)
        s, k = divmod(r, 2)
        if r == 0:
            if qs[c] in (3, 5, 6, 7):
                e("s_barrier")
                self.stamp(e, f"X{qs[c]}")
            for kk in range(2):
                e(f"v_add_u32 v{vW5t[kk]}, {SLOT[qs[c]]}, v{vW5[kk]}")
        self.trd(e, vRING + 4 * (n % NR), vW5t[k], 1024 * s, 7168, ("d", n))

    def down_pre(self, e, qs):
        for n in range(NR - 1):
            self.down_rd(e, qs, n)

    def down_chunks(self, e, qs, acc, cinit, hook=None):
        N = 14 * len(qs)
        for n in range(N):
            c, r = divmod(n, 14)
            s, k = divmod(r, 2)
            q = qs[c]
            e.wait(vm=("a", q, s) if k == 0 else None, ds=("d", n))
            self.mf(e, acc[k], vRING + 4 * (n % NR), ABUF[q % 5] + 4 * s, cinit[k] if n < 2 else None)
            if n + NR - 1 < N:
                self.down_rd(e, qs, n + NR - 1)
            if hook:
                hook(q, r)

    def out_addr(self, e):
        e(f"v_and_b32 v{vXO}, 31, v{vLANE}"); e(f"v_mul_u32_u24 v{vXO}, 896, v{vXO}")
        e(f"v_lshrrev_b32 v{t + 1}, 5, v{vLANE}")
        e(f"v_lshl_add_u32 v{vXO}, v{t + 1}, 4, v{vXO}")
        e(f"s_lshl_b32 s{sT0}, s{sG}, 2"); e(f"s_add_u32 s{sT0}, s{sT0}, s{sMG}"); e(f"s_lshl_b32 s{sT0}, s{sT0}, 1")
        e(f"s_add_u32 s{sT0}, s{sT0}, s{sMI}")
        e(f"s_mul_i32 s{sXO}, s{sT0}, {32 * 896}"); e(f"s_lshl_b32 s{sT1}, s{sNG}, 1"); e(f"s_add_u32 s{sT1}, s{sT1}, s{sKH}")
        e(f"s_lshl_b32 s{sT1}, s{sT1}, 6"); e(f"s_add_u32 s{sXO}, s{sXO}, s{sT1}")

    def first_pass(self, e, pre, extra):
        for s in range(pre):
            self.h_load(e, s)
        self.stamp(e, "hpre")
        ops = [lambda s=s: self.h_load(e, s) for s in range(pre, 28)]
        ops += [lambda: [self.ss_load(e, i) for i in range(7)]] + extra
        def hook(n):
            if n & 1 == 0 and ops: ops.pop(0)()
        self.gu_pass(e, 0, self.KMAJ, [vACC, vACC + 16], hook, wait_h=True)
        assert not ops

    def ffn_L(self, e):
        A0, A1 = vACC, vACC + 16
        p = self.p
        full = self.stop > 4
        self.gu_pre(e, 0, self.KMAJ)
        self.h_poll(e)
        self.stamp(e, "hpoll")
        e("s_setprio 2")
        self.first_pass(e, p["pre"], [lambda: e("s_barrier")])
        self.stamp(e, "seg1")
        self.gelu_consts(e)
        self.gelu_gate(e, self.gu_ops(e, WU, L_UP, range(p["upe"] + p["ups"], 7), "up"))
        e.wait(vm="up")
        self.stamp(e, "gelu1")
        e("s_barrier")
        self.stamp(e, "Bb")
        self.gu_pre(e, 1, self.TMAJ)
        self.up_pass(e)
        self.stamp(e, "seg3")
        for op in self.prod_ops(e, 1): op()
        if not full:
            self.act_flag(e, 2)
            return
        self.act_sample(e)
        e(f"s_lshl_b32 s{sT0}, s{sW}, 12"); e(f"v_add_u32 v{t + 1}, s{sT0}, v{vL16}"); e(f"v_xor_b32 v{t + 2}, 8192, v{t + 1}")
        e(f"s_xor_b32 s{sT0}, s{sW}, 2"); e(f"s_lshl_b32 s{sT0}, s{sT0}, 8"); e(f"v_add_u32 v{t + 3}, s{sT0}, v{vPA}")
        for i in range(4):
            e.lds(f"ds_read_b128 {vr(A0 + 4 * i, 4)}, v{t + 2} offset:{L_RES + 1024 * i}")
        e.lds(f"ds_read_b32 v{vMU2}, v{t + 3} offset:{L_MU}")
        e(f"v_add_u32 v{t + 1}, {L_XCH5}, v{t + 1}"); e(f"v_add_u32 v{t + 2}, {L_XCH5}, v{t + 2}")
        e.wait(ds="all")
        for i in range(16):
            e(f"v_add_f32 v{A0 + i}, v{vMU2}, v{A0 + i}")
        self.act_flag(e, 2)
        self.act_check(e, 1, 0)
        self.stamp(e, "chk1")
        self.act_load(e, 0)
        self.act_sample(e)
        self.act_load(e, 1)
        self.act_check(e, 2, 0)
        self.act_load(e, 2)
        qs = list(range(8))
        self.stamp(e, "Bd_")
        e("s_barrier")
        self.stamp(e, "Bd")
        self.down_pre(e, qs)
        early, mid, late = self.act_ops(e, 3), self.act_ops(e, 4) + self.act_ops(e, 5), self.act_ops(e, 6) + self.act_ops(e, 7)
        s2 = 56 + p["s2at"]
        def hook(q, r):
            n = 14 * q + r
            if n in (0, s2 - 9): self.act_sample(e)
            if n & 1 == 0 and early: early.pop(0)()
            if n == 13: self.act_check(e, 2, 1)
            if n > 13 and n & 1 == 0 and mid: mid.pop(0)()
            if n == s2: self.act_check(e, 2, 2)
            if n > s2 and n & 1 == 0 and late: late.pop(0)()
        self.down_chunks(e, qs, [A0, A1], [None, "0"], hook)
        self.stamp(e, "dn")
        for i in range(4):
            e.lds(f"ds_write_b128 v{t + 1}, {vr(A1 + 4 * i, 4)} offset:{1024 * i}")
        e.wait(ds="all")
        e("s_barrier")
        for i in range(4):
            e.lds(f"ds_read_b128 {vr(A1 + 4 * i, 4)}, v{t + 2} offset:{1024 * i}", ("x", i))
        PK = vH
        for i in range(4):
            e.wait(ds=("x", i))
            for k in (0, 2):
                r = 4 * i + k
                e(f"v_pk_add_f32 {vr(A0 + r, 2)}, {vr(A0 + r, 2)}, {vr(A1 + r, 2)}")
            for k in (0, 2):
                r = 4 * i + k
                e(f"v_cvt_pk_bf16_f32 v{PK + r // 2}, v{A0 + r}, v{A0 + r + 1}")
            if i & 1:
                b = PK + 2 * (i - 1)
                e(f"v_permlane32_swap_b32 v{b}, v{b + 2}")
                e(f"v_permlane32_swap_b32 v{b + 1}, v{b + 3}")
                e.vmem(f"buffer_store_dwordx4 {vr(b, 4)}, v{vXO}, {OUT}, s{sXO} offen offset:{16 * (i - 1)}")

    SCHED = ["WXT|WX|WXWX|WX|X QQ|QQQ|QQ|RRRRRRRr",
             "WXT|WX|WXWX|WXQ|XQQ|QQRR|QQRR|RRRr",
             "WX|TWXWX|WX|WX|XQQ|QQQ|QQRRR|RRRRr",
             "T|WXWX|WXWX|WX|XQQ|QQQ|QQRRR|RRRRr"]

    def role_S(self):
        e = Stream(); e.role = 1
        p = self.p
        vXA, vWA, vQA = [4, 5, 6, 7], [8, 9], 10
        e(f"v_lshrrev_b32 v{t}, 3, v{vLANE}")
        e(f"v_mul_u32_u24 v{t + 1}, 896, v{t}")
        e(f"v_lshrrev_b32 v{t}, 1, v{t}")
        e(f"v_and_b32 v{t + 2}, 7, v{vLANE}")
        e(f"v_xor_b32 v{t}, v{t}, v{t + 2}")
        e(f"v_lshl_add_u32 v{vXA[0]}, v{t}, 4, v{t + 1}")
        e(f"v_xor_b32 v{t}, 4, v{t}")
        e(f"v_lshl_add_u32 v{vXA[1]}, v{t}, 4, v{t + 1}")
        e(f"v_add_u32 v{vXA[2]}, {16 * 896 - 2048}, v{vXA[0]}")
        e(f"v_add_u32 v{vXA[3]}, {24 * 896 - 3072}, v{vXA[1]}")
        e(f"v_add_u32 v{vXA[1]}, {8 * 896 - 1024}, v{vXA[1]}")
        self.rows128_src(e, vWA, 2688, 64, lambda i: 8 * i)
        e(f"v_lshlrev_b32 v24, 7, v{vLANE}")
        sKX, sWB = sA5, sACT
        e(f"s_mov_b32 s{sKX}, s{sKC}")
        e(f"s_mul_i32 s{sT4}, s{sMT}, {32 * 896}")
        e(f"s_mul_i32 s{sT3}, s{sW}, {16 * 2688}"); e(f"s_lshl_b32 s{sT0}, s{sHEAD}, 7"); e(f"s_add_u32 s{sWB}, s{sT3}, s{sT0}")
        e(f"s_add_u32 s{sWB}, s{sWB}, 896"); e(f"s_cmp_lt_u32 s{sHEAD}, 14"); e(f"s_cselect_b32 s{sWB}, s{sWB}, 0x7f000000")
        e(f"s_mul_i32 s{sT0}, s{sHEAD}, 56"); e(f"s_add_u32 s{sT3}, s{sT3}, s{sT0}")
        e(f"s_lshl_b32 s{sT2}, s{sW}, 11")
        sXT, vXT = sWD, 23
        e(f"s_lshl_b32 s{sXT}, s{sRB}, 4"); e(f"s_add_u32 s{sXT}, s{sXT}, s{sHEAD}"); e(f"s_lshl_b32 s{sXT}, s{sXT}, 2")
        e(f"s_add_u32 s{sXT}, s{sXT}, s{sW}"); e(f"s_mul_i32 s{sXT}, s{sXT}, 1792")
        e(f"v_lshrrev_b32 v{vXT}, 1, v{vLANE}"); e(f"v_add_u32 v{vXT}, s{sKC}, v{vXT}")
        e(f"v_subrev_u32 v{t}, 7, v{vXT}"); e(f"v_min_u32 v{vXT}, v{vXT}, v{t}")
        e(f"v_and_b32 v{t}, 1, v{vLANE}"); e(f"v_mul_u32_u24 v{t}, 896, v{t}"); e(f"v_lshl_add_u32 v{vXT}, v{vXT}, 7, v{t}")
        def xtouch(mask):
            e(f"s_mov_b64 exec, {mask}")
            e.vmem(f"buffer_load_dword v25, v{vXT}, {X_}, s{sXT} offen")
            e("s_mov_b64 exec, -1")
        self.got_args(e)
        xtouch(0x3c)
        def wkv(ic):
            e(f"s_add_u32 m0, s{sT2}, {LC + ic * 8192}")
            e(f"s_mul_i32 s{sT0}, s{sKC}, {64 * 2688}"); e(f"s_add_u32 s{sT0}, s{sT0}, s{sWB}")
            self.dma4(e, WQKV, vWA, f"s{sT0}", n=2)
            self.next_kc(e)
        def xch(ic):
            e(f"s_add_u32 m0, s{sT5}, {(ic % 4) * 16384}")
            e(f"s_lshl_b32 s{sT0}, s{sKX}, 7"); e(f"s_add_u32 s{sT0}, s{sT0}, s{sT4}")
            self.dma4(e, X_, vXA, f"s{sT0}", tag=("c", ic))
            self.next_kc(e, sKX)
        def wq(ic):
            e(f"s_lshr_b32 s{sT1}, s{sT2}, 1"); e(f"s_add_u32 m0, s{sT1}, {L_WQ + ic * 4096}")
            e(f"s_mul_i32 s{sT0}, s{sKC}, {64 * 2688}"); e(f"s_add_u32 s{sT0}, s{sT0}, s{sT3}")
            self.dma4(e, WQKV, [vQA], f"s{sT0}", n=1, tag="wq")
            self.next_kc(e)
        if p["pull"]:
            e(f"s_cmp_ge_u32 s{sJ}, 28"); e("s_cbranch_scc1 L_pull")
            e("L_pulled:")
            self.pull(vXT, sXT)
        wkv(0); wkv(1); xch(0)
        self.late_setup(e)
        self.stamp(e, "start")
        self.rows64_src(e, [vQA], 2688, 0)
        vA, vRA, vRMr = [12, 13, 14, 15], 11, 160
        self.rows128_src(e, vA, 896, 64, lambda i: 8 * i)
        e(f"v_lshrrev_b32 v{vRA}, 3, v{vLANE}"); e(f"v_mul_u32_u24 v{vRA}, 896, v{vRA}")
        e(f"v_and_b32 v{t + 1}, 7, v{vLANE}"); e(f"v_lshl_add_u32 v{vRA}, v{t + 1}, 4, v{vRA}")
        def rm_load(r):
            e(f"s_lshl_b32 s{sT0}, s{sHEAD}, 2"); e(f"s_add_u32 s{sT0}, s{sT0}, s{sW}"); e(f"s_mul_i32 s{sT0}, s{sT0}, {7 * 896}")
            for i in r:
                e.vmem(f"buffer_load_dwordx4 {vr(vRMr + 4 * i, 4)}, v{vRA}, {WO}, s{sT0} offen offset:{128 * i}", "rm")
        def xr_load():
            e(f"s_lshl_b32 s{sT0}, s{sG}, 2"); e(f"s_add_u32 s{sT0}, s{sT0}, s{sMG}"); e(f"s_lshl_b32 s{sT0}, s{sT0}, 2")
            e(f"s_add_u32 s{sT0}, s{sT0}, s{sW}"); e(f"s_mul_i32 s{sT0}, s{sT0}, {16 * 896}")
            e(f"s_lshl_b32 s{sT1}, s{sNG}, 7"); e(f"s_add_u32 s{sT0}, s{sT0}, s{sT1}")
            e(f"s_cmp_lt_u32 s{sJ}, 28"); e(f"s_cselect_b32 s{sT0}, s{sT0}, 0x7f000000")
            e(f"s_add_u32 m0, s{sT2}, {L_XR}")
            self.dma4(e, X_, vA, f"s{sT0}", n=2, tag="rm")
        def o_touch():
            e(f"s_lshl_b32 s{sT0}, s{sG}, 5"); e(f"s_add_u32 s{sT0}, s{sT0}, s{sJ}"); e(f"s_lshl_b32 s{sT0}, s{sT0}, 2")
            e(f"s_add_u32 s{sT0}, s{sT0}, s{sW}"); e(f"s_lshl_b32 s{sT0}, s{sT0}, 11"); e(f"s_add_u32 s{sT0}, s{sT0}, {WS_O}")
            self.touch(e, WS, f"s{sT0}", 16)
        def h_touch():
            e(f"s_lshl_b32 s{sT1}, s{sG}, 5"); e(f"s_add_u32 s{sT1}, s{sT1}, s{sJ}"); e(f"s_lshl_b32 s{sT1}, s{sT1}, 2")
            e(f"s_add_u32 s{sT1}, s{sT1}, s{sW}"); e(f"s_mul_i32 s{sT0}, s{sT1}, {14 * 128}"); e(f"s_add_u32 s{sT0}, s{sT0}, {WS_H}")
            self.touch(e, WS, f"s{sT0}", 14)
            e(f"s_lshl_b32 s{sT0}, s{sT1}, 7"); e(f"s_add_u32 s{sT0}, s{sT0}, {WS_SS}")
            self.touch(e, WS, f"s{sT0}", 1)
        cnt = dict(W=2, X=1, Q=0, R=0, b=0)
        for ch in self.SCHED[p["sched"]]:
            if ch == "W": wkv(cnt[ch])
            elif ch == "X": xch(cnt[ch])
            elif ch == "Q": wq(cnt[ch])
            elif ch == "R": rm_load([cnt[ch]])
            elif ch == "T": xtouch(0x3fc0)
            elif ch == "r": xr_load()
            elif ch == "|":
                ch = "b"
                e.wait(vm=("c", cnt[ch]))
                self.stamp(e, f"b{cnt[ch]}")
                e("s_barrier")
            if ch in cnt: cnt[ch] += 1
        assert cnt == dict(W=7, X=7, Q=7, R=7, b=7), cnt
        self.rows128_src(e, vGA, 3584, 64, lambda i: 8 * i)
        aOwn, aOth, vWf, vO = vRES, 224, vH, 160
        e(f"s_lshl_b32 s{sML}, s{sMG}, 1"); e(f"s_add_u32 s{sML}, s{sML}, s{sMI}")
        e(f"s_lshl_b32 s{sMT}, s{sG}, 3"); e(f"s_add_u32 s{sMT}, s{sMT}, s{sML}")
        e(f"s_mul_i32 s{sT4}, s{sW}, {112 * 896}"); e(f"s_lshl_b32 s{sT0}, s{sNG}, 7"); e(f"s_add_u32 s{sT4}, s{sT4}, s{sT0}")
        e(f"s_cmp_lt_u32 s{sJ}, 28"); e(f"s_cselect_b32 s{sT4}, s{sT4}, 0x7f000000")
        e(f"s_mul_i32 s{sT5}, s{sW}, {112 * 128}")
        e.wait(vm="wq")
        self.stamp(e, "wq")
        e("s_barrier")
        self.stamp(e, "Bkv")
        gate = self.gu_ops(e, WG, L_GATE, range(7), "gate")
        nogate = self.lab("nogate")
        e.wait(vm="rm")
        e(f"s_cmp_ge_u32 s{sJ}, 28"); e(f"s_cbranch_scc1 {nogate}")
        self.paced(e, gate[:2 * p["g1"]], p["gdep"])
        e(f"{nogate}:")
        for i in range(28):
            acc = t + (i & 1)
            e(f"v_lshlrev_b32 v{t + 2}, 16, v{vRMr + i}"); e(f"v_and_b32 v{t + 3}, 0xffff0000, v{vRMr + i}")
            if i < 2:
                e(f"v_add_f32 v{acc}, v{t + 2}, v{t + 3}")
            else:
                e(f"v_add_f32 v{acc}, v{acc}, v{t + 2}"); e(f"v_add_f32 v{acc}, v{acc}, v{t + 3}")
        e(f"v_add_f32 v{t}, v{t}, v{t + 1}")
        for d in ("quad_perm:[1,0,3,2]", "quad_perm:[2,3,0,1]", "row_half_mirror"):
            e(f"v_add_f32_dpp v{t}, v{t}, v{t} {d} row_mask:0xf bank_mask:0xf")
        e(f"v_mul_f32 v{t}, {f32(1 / 448)}, v{t}")
        e(f"s_mov_b32 s{sM1}, 0"); e(f"s_mov_b32 s{sM1 + 1}, 0xff000000")
        e(f"v_cndmask_b32 v{t}, v{t}, 0, s[{sM1}:{sM1 + 1}]")
        e(f"s_mul_i32 s{sT0}, s{sW}, 7"); e(f"s_add_u32 s{sT1}, s{sW}, 28")
        e(f"v_lshrrev_b32 v{t + 1}, 3, v{vLANE}"); e(f"v_add_u32 v{t + 1}, s{sT0}, v{t + 1}")
        e(f"v_mov_b32 v{t + 2}, s{sT1}")
        e(f"v_cndmask_b32 v{t + 1}, v{t + 1}, v{t + 2}, s[{sM1}:{sM1 + 1}]")
        e(f"v_lshlrev_b32 v{t + 1}, 2, v{t + 1}"); e(f"v_add_u32 v{t + 1}, {L_MISC}, v{t + 1}")
        e.lds(f"ds_write_b32 v{t + 1}, v{t}")
        vXL = 21
        e(f"v_bfe_u32 v{vXL}, v{vLANE}, 1, 1"); e(f"v_xor_b32 v{vXL}, s{sKH}, v{vXL}"); e(f"v_lshlrev_b32 v{vXL}, 6, v{vXL}")
        e(f"v_and_b32 v{t + 2}, 31, v{vLANE}"); e(f"v_lshl_add_u32 v{vXL}, v{t + 2}, 7, v{vXL}")
        e(f"v_lshrrev_b32 v{t + 2}, 5, v{vLANE}"); e(f"v_lshl_add_u32 v{vXL}, v{t + 2}, 3, v{vXL}")
        e(f"s_lshl_b32 s{sT0}, s{sMI}, 12"); e(f"s_add_u32 s{sT0}, s{sT0}, {L_XR}"); e(f"v_add_u32 v{vXL}, s{sT0}, v{vXL}")
        e.wait(ds="all")
        self.stamp(e, "pre")
        e("s_barrier")
        self.stamp(e, "Batt")
        if p["otouch"] == 1:
            o_touch(); h_touch()
        e(f"s_cmp_ge_u32 s{sJ}, 28"); e("s_cbranch_scc1 L_helper")
        for a in range(4):
            e.lds(f"ds_read_b64 {vr(aOth + 2 * a, 2)}, v{vXL} offset:{16 * a}")
        e.wait(ds="all")
        e("s_barrier")
        self.stamp(e, "Bm")
        for grp in range(4):
            e(f"s_add_u32 m0, s{sT5}, {L_WO + grp * 4096}")
            e(f"s_add_u32 s{sT0}, s{sT4}, {grp * 32 * 896}")
            self.dma4(e, WO, vA, f"s{sT0}", n=4 if grp < 3 else 2, tag="wo")
        for op in gate[2 * p["g1"]:]: op()
        self.w5_base(e)
        e(f"s_mul_i32 s{sT0}, s{sKH}, {224 * 128}"); e(f"s_add_u32 s{sT0}, s{sT0}, {L_WO}")
        for k in range(2):
            e(f"v_add_u32 v{vW5t[k]}, s{sT0}, v{vW5[k]}")
        e.wait(vm="wo")
        self.stamp(e, "wo")
        e("s_barrier")
        for st in range(16):
            for k in range(2):
                self.trd(e, vWf + 8 * st + 4 * k, vW5t[k], (28 * (st >> 1) + 16 * (st & 1)) * 128, 1024, None)
        self.mode_issue(e, 3, 22)
        e(f"v_mov_b32 v{t}, 0xbf80bf80")
        e.wait(ds="all")
        for st in range(1, 16, 2):
            for k in range(2):
                r = vWf + 8 * st + 4 * k
                e(f"v_cndmask_b32 v{r + 2}, v{r + 2}, v{t}, {HI}")
                e(f"v_cndmask_b32 v{r + 3}, v{r + 3}, 0, {HI}")
        for i in range(8):
            e(f"v_lshlrev_b32 v{aOwn + 2 * i}, 16, v{aOth + i}")
            e(f"v_and_b32 v{aOwn + 2 * i + 1}, 0xffff0000, v{aOth + i}")
        self.mode_check(e, 3, 22)
        self.stamp(e, "gu")
        if self.stop > 2:
            self.out_proj(e, aOwn, aOth, vWf, vO)
        if self.stop > 3:
            self.ffn_S(e)
        self.finish(e, 1)
        self.helper(e)
        return e

    def pull(self, vXT, sXT):
        e = Stream(); e.role = 1
        e("L_pull:")
        e("s_mov_b64 exec, 0x3fc0")
        e(f"buffer_load_dword v25, v{vXT}, {X_}, s{sXT} offen")
        e("s_mov_b64 exec, -1")
        self.late_setup(e, False)
        sPI = sML
        e(f"s_lshl_b32 s{sPI}, s{sG}, 2"); e(f"s_add_u32 s{sPI}, s{sPI}, s{sJ}"); e(f"s_sub_u32 s{sPI}, s{sPI}, 28")
        e(f"s_lshl_b32 s{sPI}, s{sPI}, 2"); e(f"s_add_u32 s{sPI}, s{sPI}, s{sW}")
        e(f"v_mul_u32_u24 v{t}, 37, v{vLANE}"); e(f"v_lshrrev_b32 v{t}, 8, v{t}")
        e(f"v_mul_u32_u24 v{t}, {2688 - 896}, v{t}"); e(f"v_add_u32 v{t}, v{t}, v24")
        e(f"s_mul_i32 s{sT0}, s{sPI}, {4 * 2688}")
        self.touch(e, WQKV, f"s{sT0}", 28, va=t)
        e(f"s_mul_i32 s{sT0}, s{sPI}, {25 * 128}")
        self.touch(e, WO, f"s{sT0}", 25)
        for u in range(self.p["pull"] - 2):
            srd, half = ((WG, 0), (WG, 1), (WU, 0), (WU, 1), (WD, 0), (WD, 1))[u]
            e(f"s_mul_i32 s{sT0}, s{sPI}, {98 * 128}")
            if half: e(f"s_add_u32 s{sT0}, s{sT0}, {49 * 128}")
            self.touch(e, srd, f"s{sT0}", 49)
        e("s_branch L_pulled")
        self.tail += e.L

    def helper(self, e):
        e("L_helper:")
        e.vm, e.ds = [], []
        p = self.p
        self.touch(e, WS, f"s{sFX}", 24)
        e("s_barrier")
        e("s_barrier")
        sHI_ = sKC
        e(f"s_sub_u32 s{sHI_}, s{sJ}, 28"); e(f"s_lshl_b32 s{sHI_}, s{sHI_}, 2"); e(f"s_add_u32 s{sHI_}, s{sHI_}, s{sW}")
        e(f"s_lshl_b32 s{sT1}, s{sG}, 4"); e(f"s_add_u32 s{sT1}, s{sT1}, s{sHI_}")
        e("s_barrier")
        for srd in (WU, WD):
            e(f"s_mul_i32 s{sT0}, s{sT1}, {98 * 128}")
            self.touch(e, srd, f"s{sT0}", 49); e(f"s_add_u32 s{sT0}, s{sT0}, {49 * 128}"); self.touch(e, srd, f"s{sT0}", 49)
        def wd_touch(tile):
            for u in range(4):
                e(f"s_add_u32 s{sT2}, s{sHI_}, {16 * u}"); e(f"s_lshl_b32 s{sT0}, s{sG}, 3"); e(f"s_add_u32 s{sT2}, s{sT2}, s{sT0}")
                e(f"s_and_b32 s{sT2}, s{sT2}, 63")
                e(f"s_lshr_b32 s{sT0}, s{sT2}, 1"); e(f"s_mul_i32 s{sT0}, s{sT0}, {64 * 896}")
                e(f"s_and_b32 s{sT2}, s{sT2}, 1"); e(f"s_mul_i32 s{sT2}, s{sT2}, {8 * 896}")
                e(f"s_add_u32 s{sT0}, s{sT0}, s{sT2}"); e(f"s_add_u32 s{sT0}, s{sT0}, {16 * tile * 896}")
                self.touch(e, WD, f"s{sT0}", 56)
        if p["hwd"]:
            wd_touch(0); wd_touch(1)
        if not self.p["act_wt"]:
            e(f"s_mul_i32 s{sT0}, s{sT1}, {448 * 128}"); e(f"s_add_u32 s{sT0}, s{sT0}, {WS_ACT}")
            for i in range(7):
                self.touch(e, WS, f"s{sT0}", 64); e(f"s_add_u32 s{sT0}, s{sT0}, 8192")
        if p["hwd"]:
            wd_touch(2); wd_touch(3)
        self.finish(e, 1)

    def out_proj(self, e, aOwn, aOth, vWf, vO):
        e(f"v_lshlrev_b32 v{t}, 2, v{vLANE}")
        e(f"s_lshl_b32 s{sT0}, s{sML}, 2"); e(f"s_add_u32 s{sT0}, s{sT0}, s{sKH}"); e(f"s_lshl_b32 s{sT0}, s{sT0}, 5")
        e(f"s_add_u32 s{sT0}, s{sT0}, s{sFX}")
        e(f"s_lshl_b32 s{sT2}, s{sMT}, 1"); e(f"s_add_u32 s{sT2}, s{sT2}, s{sKH}"); e(f"s_lshl_b32 s{sT2}, s{sT2}, 14")
        e(f"s_add_u32 s{sT2}, s{sT2}, {WS_O}")
        e(f"s_lshl_b32 s{sT1}, s{sNG}, 1"); e(f"s_add_u32 s{sT1}, s{sT1}, s{sKH}")
        e(f"s_mul_i32 s{sT4}, s{sMT}, 14"); e(f"s_add_u32 s{sT4}, s{sT4}, s{sT1}"); e(f"s_lshl_b32 s{sT4}, s{sT4}, 11")
        e(f"s_add_u32 s{sT4}, s{sT4}, {WS_H}")
        e(f"s_lshl_b32 s{sT5}, s{sMT}, 4"); e(f"s_add_u32 s{sT5}, s{sT5}, s{sT1}"); e(f"s_lshl_b32 s{sT5}, s{sT5}, 7")
        e(f"s_add_u32 s{sT5}, s{sT5}, {WS_SS}")
        e(f"s_lshl_b32 s{sT3}, s{sML}, 5"); e(f"s_add_u32 s{sT3}, s{sT3}, s{sT1}"); e(f"s_lshl_b32 s{sT3}, s{sT3}, 2")
        e(f"s_add_u32 s{sT3}, s{sT3}, s{sFX}")
        e("s_mov_b64 exec, 0xff")
        self.poll(e, t, f"s{sT0}", f"v_cmp_ne_u32 vcc, 1, v{t + 1}", t + 1)
        e("s_mov_b64 exec, -1")
        self.stamp(e, "opoll")
        def oload(st):
            e.vmem(f"buffer_load_dwordx4 {vr(vO + 4 * st, 4)}, v{vL16}, {WS}, s{sT2} offen offset:{1024 * (st & 3)} sc1", ("o", st))
            if st & 3 == 3: e(f"s_add_u32 s{sT2}, s{sT2}, 4096")
            if st == 15: e("s_barrier")
        PRE = self.p["opre"]
        for st in range(PRE):
            oload(st)
        e(f"s_lshl_b32 s{sT0}, s{sW}, 12"); e(f"v_add_u32 v{t}, s{sT0}, v{vL16}"); e(f"v_xor_b32 v{t + 1}, 8192, v{t}")
        for st in range(16):
            e.wait(vm=("o", st))
            self.mf(e, aOth, vWf + 8 * st + 4, vO + 4 * st, "0" if st == 0 else None)
            if st + PRE < 16: oload(st + PRE)
            self.mf(e, aOwn, vWf + 8 * st, vO + 4 * st)
        self.stamp(e, "omm")
        for i in range(4):
            e.lds(f"ds_write_b128 v{t}, {vr(aOth + 4 * i, 4)} offset:{LA + 1024 * i}")
        e.wait(ds="all")
        e("s_barrier")
        self.stamp(e, "Bx")
        for i in range(4):
            e.lds(f"ds_read_b128 {vr(aOth + 4 * i, 4)}, v{t + 1} offset:{LA + 1024 * i}", ("x", i))
        PK = vH
        for i in range(4):
            e.wait(ds=("x", i))
            for k in (0, 2):
                r = 4 * i + k
                e(f"v_pk_add_f32 {vr(aOwn + r, 2)}, {vr(aOwn + r, 2)}, {vr(aOth + r, 2)}")
            for k in (0, 2):
                r = 4 * i + k
                e(f"v_cvt_pk_bf16_f32 v{PK + r // 2}, v{aOwn + r}, v{aOwn + r + 1}")
        self.publish(e, [f"buffer_store_dwordx4 {vr(PK + 4 * i, 4)}, v{vL16}, {WS}, s{sT4} offen offset:{1024 * i}" for i in range(2)])
        self.stamp(e, "hst")
        e(f"v_pk_mul_f32 {vr(t + 2, 2)}, {vr(aOwn, 2)}, {vr(aOwn, 2)}")
        for r in range(2, 16, 2):
            e(f"v_pk_fma_f32 {vr(t + 2, 2)}, {vr(aOwn + r, 2)}, {vr(aOwn + r, 2)}, {vr(t + 2, 2)}")
        e(f"v_add_f32 v{t + 2}, v{t + 2}, v{t + 3}")
        e(f"v_mov_b32 v{t + 3}, v{t + 2}")
        e(f"v_lshlrev_b32 v{t}, 2, v{vLANE}")
        e(f"v_permlane32_swap_b32 v{t + 2}, v{t + 3}")
        e(f"v_add_f32 v{t + 2}, v{t + 2}, v{t + 3}")
        e("s_mov_b32 exec_hi, 0")
        self.publish(e, [f"buffer_store_dword v{t + 2}, v{t}, {WS}, s{sT5} offen"])
        e("s_mov_b64 exec, -1")
        e(f"v_mov_b32 v{t + 1}, 1"); e(f"v_mov_b32 v{t + 3}, {ONES}"); e(f"v_mov_b32 v{vMU2}, 0")
        for st in range(1, 16, 2):
            e(f"v_dot2c_f32_bf16 v{vMU2}, v{vO + 4 * st + 2}, v{t + 3}")
        e.wait(vm="all")
        e("s_mov_b64 exec, 1")
        self.publish(e, [f"buffer_store_dword v{t + 1}, v{t}, {WS}, s{sT3} offen offset:{FX_F3}"])
        e("s_mov_b64 exec, -1")
        self.stamp(e, "hpub")
        e(f"v_mov_b32 v{t + 3}, v{vMU2}")
        e(f"v_permlane32_swap_b32 v{t + 3}, v{vMU2}")
        for i in range(16):
            e(f"v_add_f32 v{aOwn + i}, v{vMU2}, v{aOwn + i}")
        e(f"s_xor_b32 s{sT0}, s{sW}, 2"); e(f"s_lshl_b32 s{sT0}, s{sT0}, 12"); e(f"v_add_u32 v{t + 1}, s{sT0}, v{vL16}")
        e(f"s_lshl_b32 s{sT0}, s{sW}, 8"); e(f"v_add_u32 v{t}, s{sT0}, v{t}")
        for i in range(4):
            e.lds(f"ds_write_b128 v{t + 1}, {vr(aOwn + 4 * i, 4)} offset:{L_RES + 1024 * i}")
        e.lds(f"ds_write_b32 v{t}, v{vMU2} offset:{L_MU}")

    def ffn_S(self, e):
        p = self.p
        full = self.stop > 4
        self.ffn_setup(e, 1)
        self.gu_pre(e, 0, self.KMAJ)
        self.h_poll(e)
        self.paced(e, self.gu_ops(e, WU, L_UP, range(p["upe"], p["upe"] + p["ups"]), "up"), p["udep"])
        self.stamp(e, "Bh_")
        e("s_barrier")
        self.stamp(e, "Bh")
        e("s_setprio 1")
        def bb():
            e.wait(ds="all")
            self.stamp(e, "seg2")
            e("s_barrier")
        self.first_pass(e, p["spre"], [lambda: None] * (p["spre"] - 3) + [bb])
        self.stamp(e, "Bb")
        self.gelu_consts(e)
        self.gelu_gate(e, self.wd_ops(e, [0, 1, 2]) if full else [])
        self.gu_pre(e, 1, self.TMAJ)
        self.stamp(e, "gelu2")
        def extra(n):
            if n == 52 and full:
                e.wait(vm=("wd", 2), ds="all")
                self.stamp(e, "seg4")
                e("s_barrier")
        self.up_pass(e, extra)
        self.stamp(e, "Bd")
        for op in self.prod_ops(e, 1): op()
        if not full:
            self.act_flag(e, 2)
            return
        self.wd_dma(e, [3])
        self.act_flag(e, 2)
        self.stamp(e, "fl2")
        self.wd_dma(e, [4])
        e.wait(vm=("wd", 4))
        self.stamp(e, "X3_")
        e("s_barrier")
        self.wd_dma(e, [5, 6])
        for q in range(5, 8):
            e.wait(vm=("wd", q))
            self.stamp(e, f"X{q}_")
            e("s_barrier")
            if q == 5:
                self.wd_dma(e, [7])

    def build(self):
        e = Stream()
        self.prologue(e)
        e("s_cmp_lt_u32 s47, 4")
        e("s_cbranch_scc1 L_roleL")
        S = self.role_S()
        L = self.role_L()
        body = e.L + S.L + ["L_roleL:"] + L.L + self.tail + ["L_exit:", "s_endpgm", "L_end:"]
        body, nops = pad_hazards(body)
        head = open("sequential_preLN__sliding_block__geglu_ffn__prompt.s.ref").read().splitlines()
        cm = [l for l in head if l.startswith(";") and "@launch" not in l]
        out = cm + ["; @launch grid=(256,1,1) block=(512,1,1) lds=163840",
                    '.amdgcn_target "amdgcn-amd-amdhsa--gfx950"', ".text", f".globl {NAME}", ".p2align 8",
                    f".type {NAME},@function", f"{NAME}:"]
        out += [("" if l.endswith(":") else "    ") + l for l in body]
        out += ['.section .rodata,"a"', ".p2align 6", f".amdhsa_kernel {NAME}",
                "  .amdhsa_next_free_vgpr 256", "  .amdhsa_next_free_sgpr 102", "  .amdhsa_accum_offset 256",
                "  .amdhsa_group_segment_fixed_size 0", "  .amdhsa_kernarg_size 80", "  .amdhsa_user_sgpr_count 2",
                "  .amdhsa_user_sgpr_kernarg_segment_ptr 1", "  .amdhsa_system_sgpr_workgroup_id_x 1",
                ".end_amdhsa_kernel", ""]
        self.nops = nops
        return "\n".join(out)

if __name__ == "__main__":
    import argparse
    ap = argparse.ArgumentParser()
    ap.add_argument("-o", default="sequential_preLN__sliding_block__geglu_ffn__prompt.s")
    ap.add_argument("--stop", type=int, default=99)
    ap.add_argument("--stamps", action="store_true")
    ap.add_argument("--slow", action="store_true")
    ap.add_argument("-p", action="append", default=[])
    a = ap.parse_args()
    kw = {k: int(v) for k, v in (x.split("=") for x in a.p)}
    g = Gen(a.stop, a.stamps, a.slow, **kw)
    s = g.build()
    open(a.o, "w").write(s)
    print("lines", s.count("\n"), "nops", g.nops)
```

```python
import math, struct, sys
from asmlib import Stream, vr, sr, pad_hazards

NAME = "sequential_preLN__sliding_block__geglu_ffn__prompt_kernel"
MB = 1 << 20
WS_K, WS_V, WS_O, WS_H, WS_SS, WS_ACT = 0, 2 * MB, 4 * MB, 6 * MB, 6 * MB + 1792 * 1024, 8 * MB
WS_F1, WS_FX, WS_STAMP, WS_SIZE = 16 * MB, 16 * MB + 131072, 17 * MB, 18 * MB
FX_F2, FX_F3, FX_F4, FX_F0 = 0, 1024, 2048, 3072
LA, LB, LC = 0, 49152, 106496
L_WQ, L_MISC = LB + 16384, LB + 45056
L_GATE, L_UP, L_WO = LC, LB, LB
SLOT = [LA + 20480, LC, LC + 28672, LB, LB + 28672]
SLOT += SLOT[:3]
L_RES, L_MU, L_XCH5 = LA, LA + 16384, LB
L_CS, L_XR = L_MISC + 1024, L_MISC + 4096
CHUNK = [(0, 0), (0, 1), (0, 2), (0, 3), (1, 0), (1, 1), (1, 2), (1, 3)]
X_, WQKV, WO, WG, WU, WD, OUT, DBG, WS = (sr(b, 4) for b in (8, 12, 16, 20, 24, 28, 32, 36, 40))
sXO = 3
sG, sJ, sW, sHEAD, sRB, sXCC, sMODE, sSPIN = 44, 45, 46, 48, 49, 50, 51, 52
sT0, sT1, sT2, sT3, sT4, sT5, sA5 = 53, 54, 55, 56, 57, 58, 59
sHI, sM1, sM2, sM3 = 60, 62, 64, 66
sMT, sKC, sPAR, sML, sMG, sNG, sKH, sMI, sHF, sFX, sACT, sWD = range(68, 80)
sF4P, sF4C = sHEAD, sRB
sST = 80
vLANE, vL16 = 1, 2
vH, vACC, vRING, vTMP, vSS, vRES = 32, 144, 192, 220, 228, 240
vD, vP, vW5 = [4, 5, 6, 7], [8, 9, 10, 11], [12, 13]
vK1, vK2, vRI, vMU2, vW5t, vXO = 14, 15, 16, 17, [18, 19], 20
vPA, vPR, vSM, vFL, vGA = 21, 22, 23, 3, [30, 31]
ABUF = [vH, vH + 28, vH + 56, vH + 84, vSS]
UACC = [vACC + 32, vRES]
t = 26
NR = 7
BIG = 0xF149F2CA
ONES = 0x3F803F80
SPIN_LIMIT = 0x80000
HI = f"s[{sHI}:{sHI + 1}]"

def f32(x):
    return struct.unpack("<I", struct.pack("<f", x))[0]

class Gen:
    def __init__(self, stop=99, stamps=False, force_slow=False, **kw):
        self.stop, self.stamps, self.force_slow = stop, stamps, force_slow
        self.p = dict(f1_at=10, rot=3, sched=0, pull=2, act_wt=1, pre=12, spre=14, opre=5, hwd=0,
                      g1=3, gdep=2, m2at=14, otouch=1, upe=0, ups=3, udep=2, s2at=-14)
        self.p.update(kw)
        self.tail = []
        self.nlab = 0

    def lab(self, n):
        self.nlab += 1
        return f"L_{n}_{self.nlab}"

    PROF = {
        0: (["start", "b0", "kv", "Bkv", "q", "f1", "Batt", "att", "opub", "hpoll", "seg1", "Bb", "Bd", "X3"],
            ["start", "Bkv", "pre", "Bm", "gu", "opoll", "Bx", "hpub", "Bh", "Bb", "Bd"]),
        1: (["start", "hpoll", "seg1", "gelu1", "Bb", "seg3", "chk1", "Bd_", "Bd", "X3", "X5", "X6", "X7", "dn"],
            ["Bh_", "Bh", "hpre", "seg2", "Bb", "gelu2", "seg4", "Bd", "fl2", "X3_", "X5_", "X6_", "X7_"]),
        2: (["start", "f1", "Batt_", "Batt", "qk", "Bm", "sub", "Bm2", "pv", "att", "opub", "Bp", "Bx", "hpoll"],
            ["Bkv", "pre", "Batt", "Bm", "wo", "gu", "opoll", "omm", "Bx", "hst", "hpub", "Bh"]),
        3: (["start", "b0", "b1", "b2", "b3", "b4", "b5", "b6", "kv", "kvst", "Bkv", "fl1", "q", "f1", "Batt"],
            ["start", "b0", "b1", "b2", "b3", "b4", "b5", "b6", "wq", "Bkv", "pre", "Batt"]),
    }

    LEAK = [None, "end", "start", "b0", "Bkv", "Batt", "opub", "hpoll", "Bb", "Bd", "f1", "kv"]

    def stamp(self, e, name):
        if e.role == 0 and name == self.LEAK[self.p.get("leak", 0)]:
            e("s_memrealtime s[82:83]")
        names = self.PROF[self.p.get("prof", 0)][e.role]
        if self.stamps and (name == "end" or name in names):
            i = 15 if name == "end" else names.index(name)
            e(f"{'s_memtime' if self.p.get('cyc') else 's_memrealtime'} s[{sST + 18}:{sST + 19}]")
            e("s_waitcnt lgkmcnt(0)")
            e(f"s_mov_b32 s{sST + i}, s{sST + 18}")
            e.ds = []

    def finish(self, e, role):
        if self.p.get("leak") and role == 0:
            self.stamp(e, "end")
            lp, sk = self.lab("leak"), self.lab("noleak")
            e(f"s_cmp_ge_u32 s{sJ}, 28"); e(f"s_cbranch_scc1 {sk}")
            e("s_memrealtime s[84:85]"); e("s_waitcnt lgkmcnt(0)")
            e("s_sub_u32 s82, s82, s80")
            e(f"{lp}:")
            e("s_memrealtime s[86:87]"); e("s_waitcnt lgkmcnt(0)")
            e("s_sub_u32 s86, s86, s84"); e("s_cmp_lt_u32 s86, s82"); e(f"s_cbranch_scc1 {lp}")
            e(f"{sk}:")
        if self.stamps:
            self.stamp(e, "end")
            e("s_mov_b64 exec, -1")
            e(f"s_lshl_b32 s{sT0}, s2, 3"); e(f"s_add_u32 s{sT0}, s{sT0}, s{sW}"); e(f"s_add_u32 s{sT0}, s{sT0}, {4 * role}")
            e(f"s_lshl_b32 s{sT0}, s{sT0}, 6"); e(f"s_add_u32 s{sT0}, s{sT0}, {WS_STAMP}")
            e("s_waitcnt vmcnt(0)")
            for i in range(16):
                e(f"v_mov_b32 v{32 + i}, s{sST + i}")
            e("v_mov_b32 v3, 0"); e("s_mov_b64 exec, 1")
            for i in range(4):
                e(f"buffer_store_dwordx4 {vr(32 + 4 * i, 4)}, v3, {WS}, s{sT0} offen offset:{16 * i}")
        e("s_endpgm")

    def poll(self, e, vaddr, soff, cmp, vt, srd=WS):
        a, b = self.lab("poll"), self.lab("polled")
        e(f"{a}:")
        e(f"buffer_load_dword v{vt}, v{vaddr}, {srd}, {soff} offen sc1")
        e(f"s_add_u32 s{sSPIN}, s{sSPIN}, 1")
        e("s_waitcnt vmcnt(0)")
        e(cmp)
        e(f"s_cmp_gt_u32 s{sSPIN}, {SPIN_LIMIT}")
        e(f"s_cbranch_scc1 {b}")
        e(f"s_cbranch_vccnz {a}")
        e(f"{b}:")
        e.vm = []

    def check_or_poll(self, e, vaddr, soff, cmp, vt, srd=WS):
        late, ok = self.lab("late"), self.lab("ok")
        e(cmp)
        e(f"s_cbranch_vccnz {late}")
        e(f"{ok}:")
        tl = Stream(); tl(f"{late}:")
        self.poll(tl, vaddr, soff, cmp, vt, srd)
        tl(f"s_branch {ok}")
        self.tail += tl.L

    def publish(self, e, stores, tag="pub", wt=False):
        if wt:
            for s in stores:
                e.vmem(s + " sc1", tag)
            return
        slow, done = self.lab("slow"), self.lab("pubd")
        e(f"s_cmp_eq_u32 s{sMODE}, 0")
        e(f"s_cbranch_scc1 {slow}")
        for s in stores:
            e.vmem(s, tag)
        e(f"{done}:")
        self.tail += [f"{slow}:"] + [s + " sc1" for s in stores] + [f"s_branch {done}"]

    def mode_issue(self, e, va, vt):
        e(f"v_lshlrev_b32 v{va}, 2, v{vLANE}"); e(f"v_add_u32 v{va}, {FX_F0}, v{va}")
        e("s_mov_b32 exec_hi, 0")
        e.vmem(f"buffer_load_dword v{vt}, v{va}, {WS}, s{sFX} offen sc1", "mode")
        e("s_mov_b64 exec, -1")

    def mode_check(self, e, va, vt):
        e.wait(vm="mode")
        e("s_mov_b32 exec_hi, 0")
        self.check_or_poll(e, va, f"s{sFX}", f"v_cmp_eq_u32 vcc, 0, v{vt}", vt)
        e(f"v_cmp_ne_u32 vcc, s{sXCC}, v{vt}")
        e("s_mov_b64 exec, -1")
        e("s_cmp_eq_u64 vcc, 0"); e(f"s_cselect_b32 s{sMODE}, {0 if self.force_slow else 1}, 0")

    def touch(self, e, srd, soff, nl, va=24, vt=25):
        if nl < 64:
            m = (1 << nl) - 1
            e(f"s_mov_b32 exec_lo, {m & 0xffffffff}"); e(f"s_mov_b32 exec_hi, {m >> 32}")
        e(f"buffer_load_dword v{vt}, v{va}, {srd}, {soff} offen sc1")
        if nl < 64:
            e("s_mov_b64 exec, -1")

    def dma4(self, e, srd, vas, soff, n=4, tag=None, fl=""):
        for i in range(n):
            e.vmem(f"buffer_load_dwordx4 v{vas[i]}, {srd}, {soff} offen offset:{1024 * i} {fl} lds", tag)

    def next_kc(self, e, r=sKC):
        e(f"s_add_u32 s{r}, s{r}, 1"); e(f"s_cmp_eq_u32 s{r}, 7"); e(f"s_cselect_b32 s{r}, 0, s{r}")

    def tr_base(self, e, vd, hmul, stride, nhmul):
        e(f"v_lshrrev_b32 v{vd}, 5, v{vLANE}")
        e(f"v_mul_u32_u24 v{vd}, {hmul}, v{vd}")
        e(f"v_bfe_u32 v{t}, v{vLANE}, 2, 2")
        e(f"v_add_u32 v{vd}, v{vd}, v{t}")
        e(f"v_mul_u32_u24 v{vd}, {stride}, v{vd}")
        e(f"v_bfe_u32 v{t}, v{vLANE}, 4, 1")
        e(f"v_mul_u32_u24 v{t}, {nhmul}, v{t}")
        e(f"v_add_u32 v{vd}, v{vd}, v{t}")
        e(f"v_and_b32 v{t}, 3, v{vLANE}")
        e(f"v_lshl_add_u32 v{vd}, v{t}, 3, v{vd}")

    def rows128_src(self, e, vas, rowstride, partmul, rowof):
        v = vas[0]
        e(f"v_lshrrev_b32 v{v}, 3, v{vLANE}")
        e(f"v_mul_u32_u24 v{v}, {rowstride}, v{v}")
        e(f"v_lshrrev_b32 v{t}, 2, v{vLANE}")
        e(f"v_lshrrev_b32 v{t + 1}, 4, v{vLANE}")
        e(f"v_xor_b32 v{t}, v{t}, v{t + 1}")
        e(f"v_and_b32 v{t}, 1, v{t}")
        e(f"v_mul_u32_u24 v{t}, {partmul}, v{t}")
        e(f"v_add_u32 v{v}, v{v}, v{t}")
        e(f"v_and_b32 v{t}, 3, v{vLANE}")
        e(f"v_lshl_add_u32 v{v}, v{t}, 4, v{v}")
        for i in range(1, len(vas)):
            e(f"v_add_u32 v{vas[i]}, {rowof(i) * rowstride - 1024 * i}, v{v}")

    def rows64_src(self, e, vas, rowstride, gx):
        v = vas[0]
        e(f"v_lshrrev_b32 v{v}, 2, v{vLANE}")
        e(f"v_mul_u32_u24 v{v}, {rowstride}, v{v}")
        e(f"v_and_b32 v{t}, 3, v{vLANE}")
        if gx:
            e(f"v_xor_b32 v{t}, {gx}, v{t}")
        e(f"v_lshl_add_u32 v{v}, v{t}, 4, v{v}")
        for i in range(1, len(vas)):
            e(f"v_add_u32 v{vas[i]}, {16 * i * rowstride - 1024 * i}, v{v}")

    @staticmethod
    def trd(e, dst, vaddr, off0, step, tag):
        e.lds(f"ds_read_b64_tr_b16 {vr(dst, 2)}, v{vaddr} offset:{off0}", tag)
        e.lds(f"ds_read_b64_tr_b16 {vr(dst + 2, 2)}, v{vaddr} offset:{off0 + step}", tag)

    @staticmethod
    def mf(e, d, a, b, c=None):
        e(f"v_mfma_f32_32x32x16_bf16 {vr(d, 16)}, {vr(a, 4)}, {vr(b, 4)}, {vr(d, 16) if c is None else c}")

    @staticmethod
    def mf8(e, d, a, b, c=None):
        e(f"v_mfma_f32_32x32x8_bf16 {vr(d, 16)}, {vr(a, 2)}, {vr(b, 2)}, {vr(d, 16) if c is None else c}")

    @staticmethod
    def mf4(e, d, a, b, first):
        e(f"v_mfma_f32_4x4x4_16b_bf16 {vr(d, 4)}, {vr(a, 2)}, {vr(b, 2)}, {'0' if first else vr(d, 4)}")

    @staticmethod
    def split_hi_lo(e, dst, c):
        e(f"v_cvt_pk_bf16_f32 v{dst + 1}, v{c}, v{c}")
        e(f"v_and_b32 v{t}, 0xffff0000, v{dst + 1}")
        e(f"v_sub_f32 v{t}, v{c}, v{t}")
        e(f"v_cvt_pk_bf16_f32 v{dst}, v{c}, v{t}")

    def prologue(self, e):
        e(f"s_cmp_ge_u32 s2, {0 if self.stop == 0 else 256}")
        e("s_cbranch_scc1 L_exit")
        if self.p.get("leak"): e("s_memrealtime s[80:81]")
        e("s_load_dwordx16 s[84:99], s[0:1], 0")
        e("s_load_dwordx4 s[4:7], s[0:1], 64")
        e("v_lshrrev_b32 v3, 6, v0")
        e(f"v_and_b32 v{vLANE}, 63, v0")
        e(f"v_readfirstlane_b32 s47, v3")
        e(f"v_lshlrev_b32 v{vL16}, 4, v{vLANE}")
        e(f"s_and_b32 s{sG}, s2, 7"); e(f"s_bfe_u32 s{sHEAD}, s2, 0x40003"); e(f"s_lshr_b32 s{sT1}, s2, 7")
        e(f"s_and_b32 s{sW}, s47, 3")
        e(f"s_lshl_b32 s{sT5}, s{sW}, 12")
        e(f"s_lshl_b32 s{sRB}, s{sG}, 1"); e(f"s_add_u32 s{sRB}, s{sRB}, s{sT1}")
        e(f"s_lshl_b32 s{sMT}, s{sRB}, 2"); e(f"s_add_u32 s{sMT}, s{sMT}, s{sW}")
        e(f"s_cmp_lt_u32 s{sHEAD}, 14"); e(f"s_cselect_b32 s{sT0}, 14, 2"); e(f"s_cselect_b32 s{sJ}, 0, 14")
        e(f"s_mul_i32 s{sT0}, s{sT0}, s{sT1}"); e(f"s_add_u32 s{sJ}, s{sJ}, s{sT0}"); e(f"s_add_u32 s{sJ}, s{sJ}, s{sHEAD}")
        e(f"s_mul_i32 s{sKC}, s{sT1}, {self.p['rot']}"); e(f"s_add_u32 s{sKC}, s{sKC}, s{sG}")
        e(f"s_cmp_ge_u32 s{sKC}, 7"); e(f"s_cselect_b32 s{sT0}, 7, 0"); e(f"s_sub_u32 s{sKC}, s{sKC}, s{sT0}")
        e(f"s_lshl_b32 s{sFX}, s{sG}, 12"); e(f"s_add_u32 s{sFX}, s{sFX}, {WS_FX}")
        for b, n in ((8, 2048 * 896), (12, 448 * 2688), (36, 256), (40, WS_SIZE)):
            e(f"s_mov_b32 s{b + 2}, {n}"); e(f"s_mov_b32 s{b + 3}, 0x20000")

    def got_args(self, e):
        e("s_waitcnt lgkmcnt(0)")
        for b, src in ((8, 84), (12, 86), (40, 6), (36, 4)):
            e(f"s_mov_b64 s[{b}:{b + 1}], s[{src}:{src + 1}]")

    def late_setup(self, e, last=True):
        for b, src, n in ((16, 88, 448 * 896), (20, 92, 448 * 3584), (24, 94, 448 * 3584), (28, 96, 1792 * 896), (32, 98, 2048 * 896)):
            e(f"s_mov_b64 s[{b}:{b + 1}], s[{src}:{src + 1}]")
            e(f"s_mov_b32 s{b + 2}, {n}"); e(f"s_mov_b32 s{b + 3}, 0x20000")
        e(f"s_mul_i32 s{sMG}, s{sJ}, 37"); e(f"s_lshr_b32 s{sMG}, s{sMG}, 8")
        e(f"s_mul_i32 s{sT0}, s{sMG}, 7"); e(f"s_sub_u32 s{sNG}, s{sJ}, s{sT0}")
        e(f"s_and_b32 s{sPAR}, s{sJ}, 1")
        e(f"s_and_b32 s{sMI}, s{sW}, 1"); e(f"s_lshr_b32 s{sKH}, s{sW}, 1"); e(f"s_lshr_b32 s{sHF}, s{sMG}, 1")
        e(f"s_mov_b32 s{sSPIN}, 0")
        e(f"s_mov_b32 s{sHI}, 0"); e(f"s_mov_b32 s{sHI + 1}, -1")
        e(f"s_getreg_b32 s{sXCC}, hwreg(HW_REG_XCC_ID, 0, 4)"); e(f"s_or_b32 s{sXCC}, s{sXCC}, 0x100")
        if self.stamps and last:
            for i in range(16):
                e(f"s_mov_b32 s{sST + i}, 0")

    def kv_pass(self, e, kind, R):
        wf, cf = vRING, R["PK"]
        a0, a1 = vACC, vACC + 16
        XS, XQ, C0, C1 = R["XS"], R["XQ"], R["C0"], R["C1"]
        vW0, vW1, vC0, vC1, vXR, vONE = R["vW0"], R["vW1"], R["vC0"], R["vC1"], R["vXR"], R["vONE"]
        def xrd(c):
            e("s_barrier")
            self.stamp(e, f"b{c}")
            for s in range(4):
                e.lds(f"ds_read_b128 {vr(vH + 16 * c + 4 * s, 4)}, v{vXR[s]} offset:{(c % 4) * 16384}", ("x", 4 * c + s))
        def wrd(n):
            if kind and n < 28:
                for k, va in enumerate((vW0, vW1)):
                    self.trd(e, wf + 8 * (n % 4) + 4 * k, va, 16 * n * 128, 512, ("w", n))
        def crd(c):
            for k, va in enumerate((vC0, vC1)):
                self.trd(e, cf + 8 * (c & 1) + 4 * k, va, 64 * c * 128, 512, ("c", c))
        def cmm(c):
            e.wait(ds=("c", c))
            b = cf + 8 * (c & 1)
            return [(C0, vONE, b, c == 0), (C1, vONE, b + 4, c == 0), (C0, vONE, b + 2, False), (C1, vONE, b + 6, False)]
        xrd(0)
        wrd(0); wrd(1)
        if kind: crd(0)
        for n in range(28):
            c, s = divmod(n, 4)
            if s == 3 and c < 6:
                if kind and c == 5:
                    e.lds(f"ds_write2st64_b32 v{R['vCS']}, v{C0}, v{C1} offset0:0 offset1:4")
                    e.wait(ds="all")
                xrd(c + 1)
                if kind and c == 5:
                    for k in range(2):
                        e.lds(f"ds_read_b128 {vr(cf + 4 * k, 4)}, v{R['vCR']} offset:{1024 * k}", "cs")
            if n == 21:
                e("s_mov_b64 exec, 3")
                e.vmem(f"buffer_load_dword v{R['vRDY']}, v{R['vRA']}, {DBG}, 0 offen sc1")
                e("s_mov_b64 exec, -1")
            if s & 1 == 0:
                e.wait(ds=("x", n + 1))
                small = []
                for i in range(4):
                    x = vH + 4 * n + 2 * i
                    small += [(XS + 8 * (i & 1), vONE, x, n == 0 and i < 2), (XQ + 8 * (i & 1), x, x, n == 0 and i < 2)]
                if kind and s == 2 and c < 6:
                    extra = (cmm(0) if c == 0 else []) + cmm(c + 1)
                    for i, m in enumerate(extra):
                        small.insert(min(2 * i + 1, len(small)), m)
                for m in small:
                    self.mf4(e, *m)
            if kind:
                e.wait(ds=("w", n))
                x, w0 = vH + 4 * n, wf + 8 * (n % 4)
                for k, acc in enumerate((a0, a1)):
                    A, B = (w0 + 4 * k, x) if kind == "K" else (x, w0 + 4 * k)
                    self.mf(e, acc, A, B, "0" if n == 0 else None)
                    if k == 0: wrd(n + 2)
                if s == 0 and c < 6:
                    crd(c + 1)
        self.stamp(e, "kv")
        vMU, vRS, vNM, vCP, vOH, PK = R["vMU"], R["vRS"], R["vNM"], R["vCP"], R["vOH"], R["PK"]
        if kind:
            e.wait(ds="cs")
            for k in range(2):
                e(f"v_add_f32 v{cf + 4 * k}, v{cf + 4 * k}, v{cf + 4 * k + 1}")
                e(f"v_add_f32 v{cf + 4 * k + 2}, v{cf + 4 * k + 2}, v{cf + 4 * k + 3}")
            e(f"v_add_f32 v{C0}, v{cf}, v{cf + 2}"); e(f"v_add_f32 v{C1}, v{cf + 4}, v{cf + 6}")
        e(f"v_add_f32 v{XS}, v{XS}, v{XS + 8}")
        for i in range(4):
            e(f"v_add_f32 v{XQ + i}, v{XQ + i}, v{XQ + 8 + i}")
        e(f"v_cndmask_b32 v{XQ}, v{XQ}, v{XQ + 1}, s[{sM1}:{sM1 + 1}]")
        e(f"v_cndmask_b32 v{XQ}, v{XQ}, v{XQ + 2}, s[{sM2}:{sM2 + 1}]")
        e(f"v_cndmask_b32 v{XQ}, v{XQ}, v{XQ + 3}, s[{sM3}:{sM3 + 1}]")
        if kind: self.split_hi_lo(e, C0 + 2, C0)
        e(f"v_permlane32_swap_b32 v{XS}, v{XQ}")
        e(f"v_add_f32 v{XS}, v{XS}, v{XQ}")
        e(f"v_mov_b32 v{XQ}, v{XS}")
        if kind: self.split_hi_lo(e, C1 + 2, C1)
        e(f"v_permlane32_swap_b32 v{XS}, v{XQ}")
        e(f"v_mul_f32 v{vMU}, {f32(1 / 448)}, v{XS}")
        e(f"v_mul_f32 v{XQ}, {f32(1 / 448)}, v{XQ}")
        e(f"v_cvt_pk_bf16_f32 v{vNM}, -v{vMU}, -v{vMU}")
        e(f"v_fma_f32 v{XQ}, -v{vMU}, v{vMU}, v{XQ}")
        e(f"v_and_b32 v{t}, 0xffff0000, v{vNM}")
        e(f"v_max_f32 v{XQ}, 0, v{XQ}")
        e(f"v_add_f32 v{t}, v{vMU}, v{t}")
        e(f"v_add_f32 v{XQ}, {f32(1e-5)}, v{XQ}")
        e(f"v_cvt_pk_bf16_f32 v{vNM + 1}, -v{t}, 0")
        e(f"v_rsq_f32 v{vRS}, v{XQ}")
        if kind == "K":
            self.mf8(e, a0, C0 + 2, vNM); self.mf8(e, a1, C1 + 2, vNM)
            e(f"s_mul_i32 s{sT0}, s{sMT}, 28672"); e(f"s_lshl_b32 s{sT1}, s{sHEAD}, 12"); e(f"s_add_u32 s{sT0}, s{sT0}, s{sT1}")
            e(f"v_lshlrev_b32 v{t + 1}, 3, v{vLANE}")
            for k, acc in enumerate((a0, a1)):
                for i in range(16):
                    e(f"v_mul_f32 v{acc + i}, v{vRS}, v{acc + i}")
                for i in range(8):
                    e(f"v_cvt_pk_bf16_f32 v{PK + 8 * k + i}, v{acc + 2 * i}, v{acc + 2 * i + 1}")
                    if i & 1:
                        e.vmem(f"buffer_store_dwordx2 {vr(PK + 8 * k + i - 1, 2)}, v{t + 1}, {WS}, s{sT0} offen offset:{(8 * k + i - 1) * 256} sc1")
        if kind == "V":
            aR = wf
            self.mf8(e, a0, vNM, C0 + 2)
            self.split_hi_lo(e, vCP, vRS)
            self.mf8(e, aR, vCP, vOH, "0")
            self.mf8(e, a1, vNM, C1 + 2)
            e(f"s_mul_i32 s{sT0}, s{sMT}, 28672"); e(f"s_lshl_b32 s{sT1}, s{sHEAD}, 10"); e(f"s_add_u32 s{sT0}, s{sT0}, s{sT1}")
            e(f"s_add_u32 s{sT0}, s{sT0}, {WS_V - 7 * 1024}"); e(f"s_add_u32 s{sT1}, s{sT0}, 14336")
            for k, acc in enumerate((a0, a1)):
                for i in range(16):
                    e(f"v_mul_f32 v{acc + i}, v{aR + i}, v{acc + i}")
                for i in range(8):
                    e(f"v_cvt_pk_bf16_f32 v{PK + 8 * k + i}, v{acc + 2 * i}, v{acc + 2 * i + 1}")
                    if i & 3 == 3:
                        e.vmem(f"buffer_store_dwordx4 {vr(PK + 8 * k + i - 3, 4)}, v{R['vVA']}, {WS}, s{(sT0, sT1)[i >> 2]} offen offset:{512 * k} sc1")

    def role_L(self):
        e = Stream(); e.role = 0
        vCS, vRA, vC0, vC1, vCR, vXR, vW0, vW1, vWQ, vRDY = 3, 4, 5, 6, 7, [8, 9, 10, 11], 12, 13, 14, 15
        vONE, vOH, vMU, vRS, vNM, vCP, vVA = 16, 18, 20, 21, 22, 24, 30
        aQ = vACC + 32
        wf = vRING
        XS, XQ, C0, C1, PK = aQ, aQ + 4, 232, 236, 240
        R = dict(locals())
        for i in range(4): e(f"v_mov_b32 v{32 + i}, 0")
        self.got_args(e)
        nolead, nocode = self.lab("nolead"), self.lab("nocode")
        e(f"s_lshl_b32 s{sT0}, s{sJ}, 2"); e(f"s_add_u32 s{sT0}, s{sT0}, s{sW}")
        e(f"s_cmp_lg_u32 s{sT0}, {28 * 4}"); e(f"s_cbranch_scc1 {nolead}")
        e(f"v_lshlrev_b32 v{t}, 7, v{vLANE}")
        e(f"s_lshl_b32 s{sT0}, s{sG}, 14"); e(f"s_add_u32 s{sT0}, s{sT0}, {WS_F1}"); e(f"s_add_u32 s{sT1}, s{sT0}, 8192")
        for base in (sT0, sT1):
            e(f"buffer_store_dword v32, v{t}, {WS}, s{base} offen sc1")
        for i in range(4):
            e(f"buffer_store_dwordx4 v[32:35], v{vL16}, {WS}, s{sFX} offen offset:{1024 * i} sc1")
        e(f"s_lshl_b32 s{sT0}, s{sG}, 2"); e("v_mov_b32 v36, 1")
        e("s_waitcnt vmcnt(0)")
        e("s_mov_b64 exec, 1")
        e(f"buffer_store_dword v36, v32, {DBG}, s{sT0} offen sc1")
        e("s_mov_b64 exec, -1")
        e(f"{nolead}:")
        e(f"s_cmp_lg_u32 s{sW}, 1"); e(f"s_cbranch_scc1 {nocode}")
        e("s_getpc_b64 s[100:101]")
        e("L_pc:")
        e(f"s_sub_u32 s100, s100, L_pc-{NAME}"); e("s_subb_u32 s101, s101, 0")
        e(f"s_mul_i32 s{sT0}, s{sJ}, 1536")
        e(f"v_lshlrev_b32 v{t}, 7, v{vLANE}"); e(f"v_add_u32 v{t}, s{sT0}, v{t}")
        e(f"v_min_u32 v{t}, L_end-{NAME}-4, v{t}")
        e("s_mov_b64 exec, 0xfff")
        e(f"global_load_dword v{vRDY}, v{t}, s[100:101]")
        e("s_mov_b64 exec, -1")
        e(f"{nocode}:")
        self.late_setup(e)
        self.stamp(e, "start")
        e(f"v_and_b32 v{t}, 31, v{vLANE}")
        e(f"v_lshlrev_b32 v{vVA}, 4, v{t}")
        e(f"v_lshlrev_b32 v{t + 1}, 7, v{t}")
        e(f"v_add_u32 v{t + 1}, s{sT5}, v{t + 1}")
        e(f"v_bfe_u32 v{t}, v{vLANE}, 1, 3")
        e(f"v_lshrrev_b32 v{t + 2}, 5, v{vLANE}")
        e(f"v_mul_u32_u24 v{t + 3}, 7168, v{t + 2}"); e(f"v_add_u32 v{vVA}, v{vVA}, v{t + 3}")
        e(f"v_xor_b32 v{t}, v{t}, v{t + 2}")
        for s in range(4):
            e(f"v_xor_b32 v{t + 2}, {2 * s}, v{t}")
            e(f"v_lshl_add_u32 v{vXR[s]}, v{t + 2}, 4, v{t + 1}")
        self.tr_base(e, vW0, 8, 128, 32)
        e(f"v_bfe_u32 v{t}, v{vLANE}, 3, 1")
        e(f"v_lshlrev_b32 v{t}, 6, v{t}")
        e(f"v_add_u32 v{vW0}, {LC}, v{vW0}")
        e(f"v_xor_b32 v{t + 1}, 64, v{t}")
        e(f"v_add_u32 v{vW1}, v{vW0}, v{t + 1}")
        e(f"v_add_u32 v{vW0}, v{vW0}, v{t}")
        e(f"s_lshl_b32 s{sT0}, s{sW}, 11")
        e(f"v_add_u32 v{vC0}, s{sT0}, v{vW0}"); e(f"v_add_u32 v{vC1}, s{sT0}, v{vW1}")
        e(f"v_add_u32 v{vCR}, {L_CS}, v{vL16}")
        e(f"s_lshl_b32 s{sT0}, s{sW}, 2"); e(f"v_add_u32 v{vCS}, s{sT0}, v{vCR}")
        self.tr_base(e, vWQ, 8, 64, 32)
        e(f"v_add_u32 v{vWQ}, {L_WQ}, v{vWQ}")
        e(f"v_mov_b32 v{vONE}, {ONES}"); e(f"v_mov_b32 v{vONE + 1}, {ONES}")
        e(f"v_cndmask_b32 v{vOH}, v{vONE}, 0, {HI}"); e(f"v_mov_b32 v{vOH + 1}, 0")
        for m, val in ((sM1, 0x22222222), (sM2, 0x44444444), (sM3, 0x88888888)):
            e(f"s_mov_b32 s{m}, {val}"); e(f"s_mov_b32 s{m + 1}, {val}")
        e(f"v_and_b32 v{vRA}, 1, v{vLANE}"); e(f"v_min_u32 v{vRA}, s{sG}, v{vRA}")
        e(f"v_sub_u32 v{vRA}, s{sG}, v{vRA}"); e(f"v_lshlrev_b32 v{vRA}, 2, v{vRA}")
        lv, ln, lj = self.lab("formV"), self.lab("formN"), self.lab("kvjoin")
        e(f"s_cmp_ge_u32 s{sHEAD}, 14"); e(f"s_cbranch_scc1 {ln}")
        e(f"s_cmp_ge_u32 s{sHEAD}, 7"); e(f"s_cbranch_scc1 {lv}")
        for kind, lb in (("K", None), (None, ln), ("V", lv)):
            if lb: e(f"{lb}:")
            e.vm, e.ds = [], []
            self.kv_pass(e, kind, R)
            if kind != "V": e(f"s_branch {lj}")
        e(f"{lj}:")
        e.ds = []
        self.stamp(e, "kvst")
        e(f"s_lshl_b32 s{sT4}, s{sMT}, 4"); e(f"s_add_u32 s{sT0}, s{sT4}, s{sHEAD}"); e(f"s_lshl_b32 s{sT0}, s{sT0}, 7")
        e(f"s_add_u32 s{sT2}, s{sT0}, {WS_F1}")
        e(f"v_mov_b32 v{t + 2}, 0"); e(f"v_mov_b32 v{t + 3}, 1")
        def kv_flag():
            e.wait(vm="all")
            nof0 = self.lab("nof0")
            e("s_mov_b64 exec, 3")
            self.check_or_poll(e, vRA, "0", f"v_cmp_ne_u32 vcc, 1, v{vRDY}", vRDY, srd=DBG)
            e("s_mov_b64 exec, 1")
            e.vmem(f"buffer_store_dword v{t + 3}, v{t + 2}, {WS}, s{sT2} offen sc1")
            e(f"s_cmp_lg_u32 s{sW}, 0"); e(f"s_cbranch_scc1 {nof0}")
            e(f"v_mov_b32 v{vRDY}, s{sXCC}")
            e(f"s_lshl_b32 s{sT0}, s{sJ}, 2"); e(f"s_add_u32 s{sT0}, s{sT0}, s{sFX}")
            e(f"buffer_store_dword v{vRDY}, v{t + 2}, {WS}, s{sT0} offen offset:{FX_F0} sc1")
            e(f"{nof0}:")
            e("s_mov_b64 exec, -1")
            self.stamp(e, "fl1")
        if self.p["f1_at"] < 0:
            kv_flag()
        e("s_barrier")
        self.stamp(e, "Bkv")
        def qread(s):
            self.trd(e, wf + 4 * (s % NR), vWQ, 16 * s * 64, 256, ("q", s))
        for s in range(NR - 1):
            qread(s)
        for s in range(28):
            if s == self.p["f1_at"]:
                kv_flag()
            e.wait(ds=("q", s))
            q = wf + 4 * (s % NR)
            self.mf4(e, C0, vONE, q, s == 0); self.mf4(e, C1, vONE, q + 2, s == 0)
            self.mf(e, aQ, q, vH + 4 * s, "0" if s == 0 else None)
            if s + NR - 1 < 28:
                qread(s + NR - 1)
        e(f"v_add_f32 v{C0}, v{C0}, v{C1}")
        self.split_hi_lo(e, C0 + 2, C0)
        self.mf8(e, aQ, C0 + 2, vNM)
        vKA, vKV, vV0, vV1 = 4, 8, 9, 10
        e(f"v_add_u32 v{vKV}, s{sT5}, v{vL16}")
        e(f"v_lshlrev_b32 v{vKA}, 3, v{vLANE}"); e(f"v_add_u32 v{vKA}, s{sT5}, v{vKA}")
        e(f"v_add_u32 v{vV0}, {2 * MB - 2048}, v{vVA}"); e(f"v_add_u32 v{vV1}, {2 * MB + 14336 - 3072}, v{vVA}")
        for i in range(4):
            e(f"v_mov_b32 v{vACC + i}, 0"); e(f"v_mov_b32 v{vACC + 4 + i}, v{vONE}")
        e("s_mov_b32 exec_lo, 0"); e("s_mov_b32 exec_hi, 0xffff0000")
        for u in range(3):
            e.lds(f"ds_write_b128 v{vKV}, {vr(vACC, 4)} offset:{u * 16384 + 1024}")
        e("s_mov_b32 exec_lo, 0xf0000000"); e("s_mov_b32 exec_hi, 0xf0000000")
        for u in range(3):
            for s in range(2):
                e.lds(f"ds_write_b128 v{vKV}, {vr(vACC + 4, 4)} offset:{u * 16384 + 2048 + 1024 * s}")
        e("s_mov_b64 exec, -1")
        vQ = vTMP
        e(f"v_mul_f32 v{vRS}, {f32(28 ** -0.5 * math.log2(math.e))}, v{vRS}")
        e(f"v_mul_f32 v{vMU}, {f32(1 / 16)}, v{vMU}")
        for i in range(16):
            e(f"v_mul_f32 v{aQ + i}, v{vRS}, v{aQ + i}")
        for i in range(8):
            e(f"v_cvt_pk_bf16_f32 v{vQ + i}, v{aQ + 2 * i}, v{aQ + 2 * i + 1}")
        for i in (6, 7):
            e(f"v_cndmask_b32 v{vQ + i}, v{vQ + i}, 0, {HI}")
        self.stamp(e, "q")
        e(f"s_mul_i32 s{sT0}, s{sHEAD}, 28"); e(f"s_add_u32 s{sT1}, s{sT0}, 27")
        e(f"s_lshr_b32 s{sT0}, s{sT0}, 6"); e(f"s_lshr_b32 s{sT1}, s{sT1}, 6"); e(f"s_sub_u32 s{sT1}, s{sT1}, s{sT0}")
        e(f"v_and_b32 v{t}, s{sT1}, v{vLANE}")
        e(f"v_bfe_u32 v{t + 1}, v{vLANE}, 1, 1"); e(f"v_mad_u32_u24 v{t}, v{t + 1}, 7, v{t}")
        e(f"v_lshrrev_b32 v{t + 1}, 2, v{vLANE}"); e(f"v_lshl_add_u32 v{t}, v{t + 1}, 6, v{t}")
        e(f"v_lshlrev_b32 v{t}, 7, v{t}")
        e(f"s_add_u32 s{sT0}, s{sT0}, s{sT4}"); e(f"s_lshl_b32 s{sT0}, s{sT0}, 7"); e(f"s_add_u32 s{sT0}, s{sT0}, {WS_F1 - 16384}")
        e(f"s_min_u32 s{sT1}, s{sRB}, 2"); e(f"s_lshl_b32 s{sT1}, s{sT1}, 2")
        e(f"s_lshr_b32 s{sT1}, 0xfff00, s{sT1}"); e(f"s_and_b32 exec_lo, s{sT1}, 0xfff"); e("s_mov_b32 exec_hi, 0")
        e(f"s_mul_i32 s{sT2}, s{sMT}, 28672"); e(f"s_mul_i32 s{sT3}, s{sHEAD}, 448"); e(f"s_add_u32 s{sT3}, s{sT3}, s{sT2}")
        e(f"s_mul_i32 s{sT1}, s{sHEAD}, 1792"); e(f"s_add_u32 s{sT2}, s{sT2}, s{sT1}")
        self.poll(e, t, f"s{sT0}", f"v_cmp_ne_u32 vcc, 1, v{t + 1}", t + 1)
        self.stamp(e, "f1")
        for part in range(2):
            for u in range(3):
                e(f"s_sub_u32 s{sT1}, s{(sT2, sT3)[part]}, {(8 - 4 * u) * 28672}")
                if u < 2:
                    e(f"s_cmp_ge_u32 s{sRB}, {2 - u}"); e(f"s_cselect_b32 s{sT1}, s{sT1}, 0x7f000000")
                e(f"s_add_u32 m0, s{sT5}, {u * 16384}")
                if part == 0:
                    e("s_mov_b64 exec, -1")
                    e.vmem(f"buffer_load_dwordx4 v{vL16}, {WS}, s{sT1} offen sc1 lds")
                    e("s_mov_b32 exec_hi, 0xffff")
                    e.vmem(f"buffer_load_dwordx4 v{vL16}, {WS}, s{sT1} offen offset:1024 sc1 lds")
                else:
                    if u == 0:
                        e("s_mov_b32 exec_lo, 0x0fffffff"); e("s_mov_b32 exec_hi, 0x0fffffff")
                    e.vmem(f"buffer_load_dwordx4 v{vV0}, {WS}, s{sT1} offen offset:2048 sc1 lds")
                    e.vmem(f"buffer_load_dwordx4 v{vV1}, {WS}, s{sT1} offen offset:3072 sc1 lds")
        e("s_mov_b64 exec, -1")
        e.wait(ds="all")
        vS, aO, vRM, vM = vH, vACC + 32, vRES, 5
        e(f"v_and_b32 v{t}, 31, v{vLANE}")
        e(f"v_lshrrev_b32 v{t + 1}, 5, v{vLANE}")
        e(f"v_lshlrev_b32 v{t + 1}, 2, v{t + 1}")
        e(f"v_sub_u32 v{t}, v{t}, v{t + 1}")
        e(f"v_mov_b32 v{t + 2}, {BIG}")
        e(f"s_cmp_ge_u32 s{sMT}, 8"); e(f"s_cselect_b32 s{sT0}, 0, {BIG}")
        e(f"v_mov_b32 v{t + 3}, s{sT0}")
        for r in range(16):
            m = (sM1, sM2, sM3)[r % 3]
            e(f"v_cmp_le_i32 s[{m}:{m + 1}], {8 * (r >> 2) + (r & 3)}, v{t}")
            e(f"v_cndmask_b32 v{vS + 128 + r}, v{t + 2}, 0, s[{m}:{m + 1}]")
            e(f"v_cndmask_b32 v{vS + r}, v{t + 3}, v{t + 2}, s[{m}:{m + 1}]")
        for tt in range(1, 8):
            e(f"s_cmp_ge_u32 s{sMT}, {8 - tt}"); e(f"s_cselect_b32 s{sT0}, 0, {BIG}")
            for r in range(16):
                e(f"v_mov_b32 v{vS + 16 * tt + r}, s{sT0}")
        e(f"v_lshlrev_b32 v{t}, 2, v{t + 1}")
        e(f"v_add_u32 v{t}, {L_MISC}, v{t}")
        e.wait(vm="all", ds="all")
        self.stamp(e, "Batt_")
        e("s_barrier")
        self.stamp(e, "Batt")
        def frag(n):
            kv, i = divmod(n, 18)
            if kv:
                e.lds(f"ds_read_b128 {vr(wf + 4 * (n % NR), 4)}, v{vKV} offset:{(i >> 1) * 4096 + 2048 + (i & 1) * 1024}", ("kv", n))
            else:
                o = 8 * (i >> 1) + 2 * (i & 1)
                e.lds(f"ds_read2st64_b64 {vr(wf + 4 * (n % NR), 4)}, v{vKA} offset0:{o} offset1:{o + 1}", ("kv", n))
        for n in range(NR - 1):
            frag(n)
        def maxtile(tt, half):
            b = vS + 16 * tt + 8 * half
            for i in range(0, 8, 2):
                if tt == 0 and half == 0 and i == 0:
                    e(f"v_max_f32 v{vM}, v{b}, v{b + 1}")
                else:
                    e(f"v_max3_f32 v{vM}, v{b + i}, v{b + i + 1}, v{vM}")
        for n in range(18):
            e.wait(ds=("kv", n))
            self.mf(e, vS + 16 * (n >> 1), wf + 4 * (n % NR), vQ + 4 * (n & 1))
            frag(n + NR - 1)
            if n < 4:
                e.lds(f"ds_read_b128 {vr(vRM + 4 * n, 4)}, v{t} offset:{32 * n}", "rm")
            else:
                maxtile((n - 4) >> 1, n & 1)
        e.wait(ds="rm")
        self.mode_issue(e, 3, vRDY)
        self.stamp(e, "qk")
        e("s_barrier")
        self.stamp(e, "Bm")
        for n in range(14, 18):
            maxtile(n >> 1, n & 1)
        e(f"v_mov_b32 v{vM + 1}, v{vM}")
        e(f"v_permlane32_swap_b32 v{vM}, v{vM + 1}")
        e(f"v_max_f32 v{vM + 1}, v{vM}, v{vM + 1}")
        for i in range(0, 144, 2):
            e(f"v_pk_add_f32 {vr(vS + i, 2)}, {vr(vS + i, 2)}, {vr(vM + 1, 2)} op_sel_hi:[1,0] neg_lo:[0,1] neg_hi:[0,1]")
        self.stamp(e, "sub")
        pend = []
        for hb in range(18):
            b = vS + 8 * hb
            for i in range(8):
                e(f"v_exp_f32 v{b + i}, v{b + i}")
                if i == 2 and pend:
                    n = pend.pop()
                    e.wait(ds=("kv", 18 + n))
                    self.mf(e, aO, wf + 4 * ((18 + n) % NR), vS + 8 * n, "0" if n == 0 else None)
                    if 18 + n + NR - 1 < 36:
                        frag(18 + n + NR - 1)
            for i in range(4):
                e(f"v_cvt_pk_bf16_f32 v{b + i}, v{b + 2 * i}, v{b + 2 * i + 1}")
            pend.append(hb)
            if hb == self.p["m2at"]:
                e("s_barrier")
                self.stamp(e, "Bm2")
        e.wait(ds="all")
        self.mf(e, aO, wf + 4 * (35 % NR), vS + 8 * 17)
        e(f"s_lshl_b32 s{sT0}, s{sMT}, 4"); e(f"s_add_u32 s{sT0}, s{sT0}, s{sHEAD}"); e(f"s_lshl_b32 s{sT0}, s{sT0}, 11")
        e(f"s_add_u32 s{sT0}, s{sT0}, {WS_O}")
        e(f"s_and_b32 s{sT1}, s{sMT}, 7"); e(f"s_lshl_b32 s{sT1}, s{sT1}, 5"); e(f"s_add_u32 s{sT1}, s{sT1}, s{sHEAD}")
        e(f"s_lshl_b32 s{sT1}, s{sT1}, 2"); e(f"s_add_u32 s{sT1}, s{sT1}, s{sFX}")
        self.stamp(e, "pv")
        self.mode_check(e, 3, vRDY)
        e(f"v_mov_b32 v{t}, v{aO + 12}"); e(f"v_mov_b32 v{t + 1}, v{aO + 12}")
        e(f"v_mul_f32 v{t + 2}, v{aO}, v{vRM}")
        e(f"v_mul_f32 v{t + 3}, v{aO + 1}, v{vRM + 1}")
        e(f"v_permlane32_swap_b32 v{t}, v{t + 1}")
        e(f"v_rcp_f32 v{t + 1}, v{t + 1}")
        for i in range(2, 16):
            e(f"v_fmac_f32 v{t + 2 + (i & 1)}, v{aO + i}, v{vRM + i}")
        e(f"v_add_f32 v{t + 2}, v{t + 2}, v{t + 3}")
        e(f"v_mov_b32 v{t + 3}, v{t + 2}")
        for i in range(8):
            e(f"v_mul_f32 v{aO + i}, v{t + 1}, v{aO + i}")
        e(f"v_permlane32_swap_b32 v{t + 2}, v{t + 3}")
        for i in range(4):
            e(f"v_cvt_pk_bf16_f32 v{vQ + i}, v{aO + 2 * i}, v{aO + 2 * i + 1}")
        e(f"v_add_f32 v{t + 2}, v{t + 2}, v{t + 3}")
        e(f"v_fma_f32 v{t + 2}, v{t + 2}, v{t + 1}, v{vMU}")
        for i in range(8, 16):
            e(f"v_mul_f32 v{aO + i}, v{t + 1}, v{aO + i}")
        self.split_hi_lo(e, vCP, t + 2)
        for i in range(4, 8):
            e(f"v_cvt_pk_bf16_f32 v{vQ + i}, v{aO + 2 * i}, v{aO + 2 * i + 1}")
        e(f"v_cndmask_b32 v{vQ + 6}, v{vQ + 6}, v{vCP}, {HI}")
        e(f"v_cndmask_b32 v{vQ + 7}, v{vQ + 7}, 0, {HI}")
        self.stamp(e, "att")
        self.publish(e, [f"buffer_store_dwordx4 {vr(vQ + 4 * i, 4)}, v{vL16}, {WS}, s{sT0} offen offset:{1024 * i}" for i in range(2)])
        e(f"v_mov_b32 v{t}, 0"); e(f"v_mov_b32 v{t + 1}, 1")
        e.wait(vm="all")
        e("s_mov_b64 exec, 1")
        self.publish(e, [f"buffer_store_dword v{t + 1}, v{t}, {WS}, s{sT1} offen offset:{FX_F2}"])
        e("s_mov_b64 exec, -1")
        self.stamp(e, "opub")
        if self.stop > 2:
            e(f"s_cmp_ge_u32 s{sJ}, 28"); e("s_cbranch_scc1 L_Ldone")
            self.ffn_setup(e, 0)
            self.out_addr(e)
            e("s_barrier")
            self.stamp(e, "Bp")
            for op in self.gu_ops(e, WU, L_UP, range(self.p["upe"]), "up"): op()
            e("s_barrier")
            self.stamp(e, "Bx")
        if self.stop > 3:
            self.ffn_L(e)
        e("L_Ldone:")
        self.finish(e, 0)
        return e

    def ffn_setup(self, e, role):
        self.rows128_src(e, vD, 896, 64, lambda i: 128 * i)
        self.tr_base(e, vP[0], 4, 128, 32)
        e(f"v_bfe_u32 v{t}, v{vLANE}, 3, 1"); e(f"v_lshlrev_b32 v{t}, 6, v{t}")
        e(f"v_xor_b32 v{t + 1}, 64, v{t}")
        e(f"s_mov_b32 s{sT0}, {L_GATE}"); e(f"s_mov_b32 s{sT1}, {L_UP}")
        e(f"v_add3_u32 v{vP[1]}, v{vP[0]}, v{t + 1}, s{sT0}")
        e(f"v_add3_u32 v{vP[2]}, v{vP[0]}, v{t}, s{sT1}")
        e(f"v_add3_u32 v{vP[3]}, v{vP[0]}, v{t + 1}, s{sT1}")
        e(f"v_add3_u32 v{vP[0]}, v{vP[0]}, v{t}, s{sT0}")
        if role == 0:
            self.rows128_src(e, vGA, 3584, 64, lambda i: 8 * i)
        self.w5_base(e)
        e(f"s_mul_i32 s{sT0}, s{sKH}, 14336")
        for k in range(2):
            e(f"v_add_u32 v{vW5[k]}, s{sT0}, v{vW5[k]}")
        e(f"s_lshl_b32 s{sT1}, s{sG}, 2"); e(f"s_add_u32 s{sT1}, s{sT1}, s{sMG}"); e(f"s_lshl_b32 s{sT1}, s{sT1}, 1")
        e(f"s_add_u32 s{sT1}, s{sT1}, s{sMI}"); e(f"s_lshl_b32 s{sT1}, s{sT1}, 4"); e(f"s_add_u32 s{sT1}, s{sT1}, s{sKH}")
        e(f"s_mul_i32 s{sT1}, s{sT1}, 7168"); e(f"s_add_u32 s{sA5}, s{sT1}, {WS_ACT}")
        e(f"s_mul_i32 s{sWD}, s{sKH}, {896 * 896}"); e(f"s_mul_i32 s{sT0}, s{sMI}, {8 * 896}")
        e(f"s_add_u32 s{sWD}, s{sWD}, s{sT0}"); e(f"s_lshl_b32 s{sT0}, s{sNG}, 7"); e(f"s_add_u32 s{sWD}, s{sWD}, s{sT0}")
        e(f"s_xor_b32 s{sML}, s{sPAR}, {role}"); e(f"s_lshl_b32 s{sML}, s{sML}, 2"); e(f"s_add_u32 s{sML}, s{sML}, s{sW}")
        e(f"s_lshl_b32 s{sMT}, s{sG}, 3"); e(f"s_add_u32 s{sMT}, s{sMT}, s{sML}")
        e(f"s_lshl_b32 s{sT0}, s{sMT}, 1"); e(f"s_add_u32 s{sT0}, s{sT0}, s{sPAR}"); e(f"s_mul_i32 s{sT0}, s{sT0}, 56")
        e(f"s_lshr_b32 s{sT1}, s{sJ}, 1"); e(f"s_add_u32 s{sT0}, s{sT0}, s{sT1}"); e(f"s_lshl_b32 s{sT0}, s{sT0}, 10")
        e(f"s_add_u32 s{sACT}, s{sT0}, {WS_ACT}")
        e(f"s_lshl_b32 s{sT0}, s{sML}, 5"); e(f"s_add_u32 s{sT0}, s{sT0}, s{sJ}"); e(f"s_lshl_b32 s{sT0}, s{sT0}, 2")
        e(f"s_add_u32 s{sT0}, s{sT0}, s{sFX}"); e(f"s_add_u32 s{sF4P}, s{sT0}, {FX_F4}")
        e(f"s_lshl_b32 s{sT0}, s{sMG}, 1"); e(f"s_add_u32 s{sT0}, s{sT0}, s{sMI}"); e(f"s_lshl_b32 s{sT0}, s{sT0}, 7")
        e(f"s_mul_i32 s{sT1}, s{sKH}, 56"); e(f"s_add_u32 s{sT0}, s{sT0}, s{sT1}")
        e(f"s_add_u32 s{sT0}, s{sT0}, s{sFX}"); e(f"s_add_u32 s{sF4C}, s{sT0}, {FX_F4}")
        e(f"v_lshlrev_b32 v{vPA}, 2, v{vLANE}")
        e(f"v_and_b32 v{vPR}, 1, v{vLANE}"); e(f"v_xor_b32 v{vPR}, s{sHF}, v{vPR}")

    def w5_base(self, e):
        self.tr_base(e, vW5[0], 4, 128, 32)
        e(f"v_bfe_u32 v{t}, v{vLANE}, 3, 1"); e(f"v_xor_b32 v{t}, s{sKH}, v{t}"); e(f"v_lshlrev_b32 v{t}, 6, v{t}")
        e(f"v_xor_b32 v{t + 1}, 64, v{t}")
        e(f"v_add_u32 v{vW5[1]}, v{vW5[0]}, v{t + 1}")
        e(f"v_add_u32 v{vW5[0]}, v{vW5[0]}, v{t}")

    def gu_ops(self, e, srd, base, cs, tag):
        ops = []
        for c in cs:
            for i in range(2):
                def op(c=c, i=i):
                    if i == 0:
                        e(f"s_add_u32 s{sT2}, s{sG}, {c}"); e(f"s_cmp_ge_u32 s{sT2}, 7"); e(f"s_cselect_b32 s{sT3}, 7, 0")
                        e(f"s_sub_u32 s{sT2}, s{sT2}, s{sT3}"); e(f"s_lshl_b32 s{sT2}, s{sT2}, 2"); e(f"s_add_u32 s{sT2}, s{sT2}, s{sW}")
                        e(f"s_lshl_b32 s{sT3}, s{sT2}, 11"); e(f"s_add_u32 m0, s{sT3}, {base}")
                        e(f"s_mul_i32 s{sT2}, s{sT2}, {16 * 3584}"); e(f"s_lshl_b32 s{sT3}, s{sJ}, 7"); e(f"s_add_u32 s{sT2}, s{sT2}, s{sT3}")
                    e.vmem(f"buffer_load_dwordx4 v{vGA[i]}, {srd}, s{sT2} offen offset:{1024 * i} lds", tag)
                ops.append(op)
        return ops

    def paced(self, e, ops, depth):
        for i, op in enumerate(ops):
            if i > depth:
                e(f"s_waitcnt vmcnt({depth})")
            op()

    def wd_ops(self, e, qs):
        ops = []
        for q in qs:
            role, tile = CHUNK[q]
            for grp in range(2):
                for i in range(4 - grp):
                    def op(q=q, role=role, tile=tile, grp=grp, i=i):
                        if i == 0:
                            e(f"s_xor_b32 s{sT2}, s{sHF}, {role}"); e(f"s_mul_i32 s{sT2}, s{sT2}, {64 * 896}")
                            e(f"s_add_u32 s{sT2}, s{sT2}, s{sWD}")
                            e(f"s_add_u32 s{sT2}, s{sT2}, {(16 * tile + 512 * grp) * 896}")
                            e(f"s_mul_i32 s{sT3}, s{sW}, 7168"); e(f"s_add_u32 m0, s{sT3}, {SLOT[q] + 4096 * grp}")
                        e.vmem(f"buffer_load_dwordx4 v{vD[i]}, {WD}, s{sT2} offen offset:{1024 * i} lds", ("wd", q))
                    ops.append(op)
        return ops

    def wd_dma(self, e, qs):
        for op in self.wd_ops(e, qs):
            op()

    def h_poll(self, e, between=None):
        e(f"s_lshl_b32 s{sT0}, s{sML}, 7"); e(f"s_add_u32 s{sT0}, s{sT0}, s{sFX}"); e(f"s_add_u32 s{sT0}, s{sT0}, {FX_F3}")
        e(f"s_mul_i32 s{sT4}, s{sMT}, 28672"); e(f"s_add_u32 s{sT4}, s{sT4}, {WS_H}")
        e(f"s_lshl_b32 s{sT5}, s{sMT}, 11"); e(f"s_add_u32 s{sT5}, s{sT5}, {WS_SS}")
        e("s_mov_b64 exec, 0x3fff")
        self.poll(e, vPA, f"s{sT0}", f"v_cmp_ne_u32 vcc, 1, v{vSM}", vSM)
        e("s_mov_b64 exec, -1")

    def h_load(self, e, s):
        e.vmem(f"buffer_load_dwordx4 {vr(vH + 4 * s, 4)}, v{vL16}, {WS}, s{sT4} offen offset:{1024 * (s & 3)} sc1", ("h", s))
        if s & 3 == 3:
            e(f"s_add_u32 s{sT4}, s{sT4}, 4096")

    def ss_load(self, e, i):
        e.vmem(f"buffer_load_dword v{vSS + i}, v{vPA}, {WS}, s{sT5} offen offset:{256 * i} sc1", "ss")

    KMAJ = [(s, k) for s in range(28) for k in range(2)]
    TMAJ = [(s, k) for k in range(2) for s in range(28)]

    def gu_rd(self, e, mat, order, n):
        s, k = order[n]
        self.trd(e, vRING + 4 * (n % NR), vP[2 * mat + k], 16 * s * 128, 1024, ("g", n))

    def gu_pre(self, e, mat, order):
        for n in range(NR - 1):
            self.gu_rd(e, mat, order, n)

    def gu_pass(self, e, mat, order, accs, hook=None, wait_h=False):
        for n, (s, k) in enumerate(order):
            e.wait(vm=("h", s) if (wait_h and k == 0) else None, ds=("g", n))
            self.mf(e, accs[k], vRING + 4 * (n % NR), vH + 4 * s, "0" if s == 0 else None)
            if n + NR - 1 < 56:
                self.gu_rd(e, mat, order, n + NR - 1)
            if hook:
                hook(n)

    def gelu_consts(self, e):
        k1 = 2 * math.sqrt(2 / math.pi) * math.log2(math.e)
        e.wait(vm="ss")
        for i in range(3):
            e(f"v_add_f32 v{vSS + i}, v{vSS + i}, v{vSS + 3 + i}")
        e(f"v_add_f32 v{vSS}, v{vSS}, v{vSS + 6}")
        e(f"v_add_f32 v{vSS + 1}, v{vSS + 1}, v{vSS + 2}")
        e(f"v_add_f32 v{vSS}, v{vSS}, v{vSS + 1}")
        e(f"v_mov_b32 v{vSS + 1}, v{vSS}")
        e(f"v_permlane32_swap_b32 v{vSS}, v{vSS + 1}")
        e(f"v_add_f32 v{vSS}, v{vSS}, v{vSS + 1}")
        e(f"v_mul_f32 v{vSS}, {f32(1 / 448)}, v{vSS}")
        e(f"v_add_f32 v{vRI}, {f32(1e-5)}, v{vSS}")
        e(f"v_rsq_f32 v{vSS}, v{vRI}")
        e(f"v_mul_f32 v{vK1}, {f32(-k1)}, v{vSS}")
        e(f"v_mul_f32 v{vSS}, v{vSS}, v{vSS}")
        e(f"v_mul_f32 v{vSS}, {f32(0.044715)}, v{vSS}")
        e(f"v_mul_f32 v{vK2}, v{vSS}, v{vK1}")

    def gelu_gate(self, e, ops=()):
        T = vTMP
        ops = list(ops)
        per = -(-len(ops) // 12)
        def side():
            for i in range(per):
                if ops: ops.pop(0)()
        for a in range(vACC, vACC + 32, 8):
            side()
            for i in range(8): e(f"v_mul_f32 v{T + i}, v{a + i}, v{a + i}")
            for i in range(8): e(f"v_fma_f32 v{T + i}, v{T + i}, v{vK2}, v{vK1}")
            for i in range(8): e(f"v_mul_f32 v{T + i}, v{T + i}, v{a + i}")
            side()
            for i in range(8): e(f"v_exp_f32 v{T + i}, v{T + i}")
            for i in range(8): e(f"v_fma_f32 v{T + i}, v{T + i}, v{vRI}, v{vRI}")
            side()
            for i in range(8): e(f"v_rcp_f32 v{T + i}, v{T + i}")
            for i in range(8): e(f"v_mul_f32 v{a + i}, v{T + i}, v{a + i}")
        assert not ops

    def prod_ops(self, e, k):
        g, u = vACC + 16 * k, UACC[k]
        ops = []
        for hf in range(2):
            b = 8 * hf
            for i in range(0, 8, 2):
                ops.append(lambda b=b, i=i: [e(f"v_mul_f32 v{u + b + j}, v{g + b + j}, v{u + b + j}") for j in (i, i + 1)])
            for i in range(0, 4, 2):
                ops.append(lambda b=b, i=i: [e(f"v_cvt_pk_bf16_f32 v{u + b + j}, v{u + b + 2 * j}, v{u + b + 2 * j + 1}") for j in (i, i + 1)])
            def st(b=b, tile=2 * k + hf):
                e(f"s_add_u32 s{sT0}, s{sACT}, {tile * 14336}")
                self.publish(e, [f"buffer_store_dwordx4 {vr(u + b, 4)}, v{vL16}, {WS}, s{sT0} offen"], ("act", tile), wt=self.p["act_wt"])
                self.last_act = ("act", tile)
            ops.append(st)
        return ops

    def up_pass(self, e, extra=None):
        ops = self.prod_ops(e, 0)
        def hook(n):
            if n >= 31 and ops: ops.pop(0)()
            if n == 55: self.act_flag(e, 1)
            if extra: extra(n)
        self.gu_pass(e, 1, self.TMAJ, UACC, hook)
        assert not ops

    def act_flag(self, e, stage):
        e(f"v_mov_b32 v{vFL}, {stage}")
        e.wait(vm=self.last_act)
        e("s_mov_b64 exec, 1")
        self.publish(e, [f"buffer_store_dword v{vFL}, v{vPA}, {WS}, s{sF4P} offen"], "flag")
        e("s_mov_b64 exec, -1")

    def act_sample(self, e):
        e("s_mov_b64 exec, 0x3fff")
        e.vmem(f"buffer_load_dword v{vSM}, v{vPA}, {WS}, s{sF4C} offen sc1", "sample")
        e("s_mov_b64 exec, -1")

    def act_check(self, e, st0, st1):
        e(f"v_mad_i32_i24 v{t}, v{vPR}, {st1 - st0}, {st0}")
        e.wait(vm="sample")
        e("s_mov_b64 exec, 0x3fff")
        self.check_or_poll(e, vPA, f"s{sF4C}", f"v_cmp_gt_u32 vcc, v{t}, v{vSM}", vSM)
        e("s_mov_b64 exec, -1")

    def act_ops(self, e, q):
        role, tile = CHUNK[q]
        ops = []
        for s in range(7):
            def op(s=s):
                if s == 0:
                    e(f"s_xor_b32 s{sT1}, s{sHF}, {role}"); e(f"s_mul_i32 s{sT1}, s{sT1}, 57344")
                    e(f"s_add_u32 s{sT1}, s{sT1}, s{sA5}"); e(f"s_add_u32 s{sT1}, s{sT1}, {tile * 14336}")
                e.vmem(f"buffer_load_dwordx4 {vr(ABUF[q % 5] + 4 * s, 4)}, v{vL16}, {WS}, s{sT1} offen offset:{1024 * (s & 3)} sc1", ("a", q, s))
                if s == 3:
                    e(f"s_add_u32 s{sT1}, s{sT1}, 4096")
            ops.append(op)
        return ops

    def act_load(self, e, q):
        for op in self.act_ops(e, q):
            op()

    def down_rd(self, e, qs, n):
        c, r = divmod(n, 14)
        s, k = divmod(r, 2)
        if r == 0:
            if qs[c] in (3, 5, 6, 7):
                e("s_barrier")
                self.stamp(e, f"X{qs[c]}")
            for kk in range(2):
                e(f"v_add_u32 v{vW5t[kk]}, {SLOT[qs[c]]}, v{vW5[kk]}")
        self.trd(e, vRING + 4 * (n % NR), vW5t[k], 1024 * s, 7168, ("d", n))

    def down_pre(self, e, qs):
        for n in range(NR - 1):
            self.down_rd(e, qs, n)

    def down_chunks(self, e, qs, acc, cinit, hook=None):
        N = 14 * len(qs)
        for n in range(N):
            c, r = divmod(n, 14)
            s, k = divmod(r, 2)
            q = qs[c]
            e.wait(vm=("a", q, s) if k == 0 else None, ds=("d", n))
            self.mf(e, acc[k], vRING + 4 * (n % NR), ABUF[q % 5] + 4 * s, cinit[k] if n < 2 else None)
            if n + NR - 1 < N:
                self.down_rd(e, qs, n + NR - 1)
            if hook:
                hook(q, r)

    def out_addr(self, e):
        e(f"v_and_b32 v{vXO}, 31, v{vLANE}"); e(f"v_mul_u32_u24 v{vXO}, 896, v{vXO}")
        e(f"v_lshrrev_b32 v{t + 1}, 5, v{vLANE}")
        e(f"v_lshl_add_u32 v{vXO}, v{t + 1}, 4, v{vXO}")
        e(f"s_lshl_b32 s{sT0}, s{sG}, 2"); e(f"s_add_u32 s{sT0}, s{sT0}, s{sMG}"); e(f"s_lshl_b32 s{sT0}, s{sT0}, 1")
        e(f"s_add_u32 s{sT0}, s{sT0}, s{sMI}")
        e(f"s_mul_i32 s{sXO}, s{sT0}, {32 * 896}"); e(f"s_lshl_b32 s{sT1}, s{sNG}, 1"); e(f"s_add_u32 s{sT1}, s{sT1}, s{sKH}")
        e(f"s_lshl_b32 s{sT1}, s{sT1}, 6"); e(f"s_add_u32 s{sXO}, s{sXO}, s{sT1}")

    def first_pass(self, e, pre, extra):
        for s in range(pre):
            self.h_load(e, s)
        self.stamp(e, "hpre")
        ops = [lambda s=s: self.h_load(e, s) for s in range(pre, 28)]
        ops += [lambda: [self.ss_load(e, i) for i in range(7)]] + extra
        def hook(n):
            if n & 1 == 0 and ops: ops.pop(0)()
        self.gu_pass(e, 0, self.KMAJ, [vACC, vACC + 16], hook, wait_h=True)
        assert not ops

    def ffn_L(self, e):
        A0, A1 = vACC, vACC + 16
        p = self.p
        full = self.stop > 4
        self.gu_pre(e, 0, self.KMAJ)
        self.h_poll(e)
        self.stamp(e, "hpoll")
        e("s_setprio 2")
        self.first_pass(e, p["pre"], [lambda: e("s_barrier")])
        self.stamp(e, "seg1")
        self.gelu_consts(e)
        self.gelu_gate(e, self.gu_ops(e, WU, L_UP, range(p["upe"] + p["ups"], 7), "up"))
        e.wait(vm="up")
        self.stamp(e, "gelu1")
        e("s_barrier")
        self.stamp(e, "Bb")
        self.gu_pre(e, 1, self.TMAJ)
        self.up_pass(e)
        self.stamp(e, "seg3")
        for op in self.prod_ops(e, 1): op()
        if not full:
            self.act_flag(e, 2)
            return
        self.act_sample(e)
        e(f"s_lshl_b32 s{sT0}, s{sW}, 12"); e(f"v_add_u32 v{t + 1}, s{sT0}, v{vL16}"); e(f"v_xor_b32 v{t + 2}, 8192, v{t + 1}")
        e(f"s_xor_b32 s{sT0}, s{sW}, 2"); e(f"s_lshl_b32 s{sT0}, s{sT0}, 8"); e(f"v_add_u32 v{t + 3}, s{sT0}, v{vPA}")
        for i in range(4):
            e.lds(f"ds_read_b128 {vr(A0 + 4 * i, 4)}, v{t + 2} offset:{L_RES + 1024 * i}")
        e.lds(f"ds_read_b32 v{vMU2}, v{t + 3} offset:{L_MU}")
        e(f"v_add_u32 v{t + 1}, {L_XCH5}, v{t + 1}"); e(f"v_add_u32 v{t + 2}, {L_XCH5}, v{t + 2}")
        e.wait(ds="all")
        for i in range(16):
            e(f"v_add_f32 v{A0 + i}, v{vMU2}, v{A0 + i}")
        self.act_flag(e, 2)
        self.act_check(e, 1, 0)
        self.stamp(e, "chk1")
        self.act_load(e, 0)
        self.act_sample(e)
        self.act_load(e, 1)
        self.act_check(e, 2, 0)
        self.act_load(e, 2)
        qs = list(range(8))
        self.stamp(e, "Bd_")
        e("s_barrier")
        self.stamp(e, "Bd")
        self.down_pre(e, qs)
        early, mid, late = self.act_ops(e, 3), self.act_ops(e, 4) + self.act_ops(e, 5), self.act_ops(e, 6) + self.act_ops(e, 7)
        s2 = 56 + p["s2at"]
        def hook(q, r):
            n = 14 * q + r
            if n in (0, s2 - 9): self.act_sample(e)
            if n & 1 == 0 and early: early.pop(0)()
            if n == 13: self.act_check(e, 2, 1)
            if n > 13 and n & 1 == 0 and mid: mid.pop(0)()
            if n == s2: self.act_check(e, 2, 2)
            if n > s2 and n & 1 == 0 and late: late.pop(0)()
        self.down_chunks(e, qs, [A0, A1], [None, "0"], hook)
        self.stamp(e, "dn")
        for i in range(4):
            e.lds(f"ds_write_b128 v{t + 1}, {vr(A1 + 4 * i, 4)} offset:{1024 * i}")
        e.wait(ds="all")
        e("s_barrier")
        for i in range(4):
            e.lds(f"ds_read_b128 {vr(A1 + 4 * i, 4)}, v{t + 2} offset:{1024 * i}", ("x", i))
        PK = vH
        for i in range(4):
            e.wait(ds=("x", i))
            for k in (0, 2):
                r = 4 * i + k
                e(f"v_pk_add_f32 {vr(A0 + r, 2)}, {vr(A0 + r, 2)}, {vr(A1 + r, 2)}")
            for k in (0, 2):
                r = 4 * i + k
                e(f"v_cvt_pk_bf16_f32 v{PK + r // 2}, v{A0 + r}, v{A0 + r + 1}")
            if i & 1:
                b = PK + 2 * (i - 1)
                e(f"v_permlane32_swap_b32 v{b}, v{b + 2}")
                e(f"v_permlane32_swap_b32 v{b + 1}, v{b + 3}")
                e.vmem(f"buffer_store_dwordx4 {vr(b, 4)}, v{vXO}, {OUT}, s{sXO} offen offset:{16 * (i - 1)}")

    SCHED = ["WXT|WX|WXWX|WX|X QQ|QQQ|QQ|RRRRRRRr",
             "WXT|WX|WXWX|WXQ|XQQ|QQRR|QQRR|RRRr",
             "WX|TWXWX|WX|WX|XQQ|QQQ|QQRRR|RRRRr",
             "T|WXWX|WXWX|WX|XQQ|QQQ|QQRRR|RRRRr"]

    def role_S(self):
        e = Stream(); e.role = 1
        p = self.p
        vXA, vWA, vQA = [4, 5, 6, 7], [8, 9], 10
        e(f"v_lshrrev_b32 v{t}, 3, v{vLANE}")
        e(f"v_mul_u32_u24 v{t + 1}, 896, v{t}")
        e(f"v_lshrrev_b32 v{t}, 1, v{t}")
        e(f"v_and_b32 v{t + 2}, 7, v{vLANE}")
        e(f"v_xor_b32 v{t}, v{t}, v{t + 2}")
        e(f"v_lshl_add_u32 v{vXA[0]}, v{t}, 4, v{t + 1}")
        e(f"v_xor_b32 v{t}, 4, v{t}")
        e(f"v_lshl_add_u32 v{vXA[1]}, v{t}, 4, v{t + 1}")
        e(f"v_add_u32 v{vXA[2]}, {16 * 896 - 2048}, v{vXA[0]}")
        e(f"v_add_u32 v{vXA[3]}, {24 * 896 - 3072}, v{vXA[1]}")
        e(f"v_add_u32 v{vXA[1]}, {8 * 896 - 1024}, v{vXA[1]}")
        self.rows128_src(e, vWA, 2688, 64, lambda i: 8 * i)
        e(f"v_lshlrev_b32 v24, 7, v{vLANE}")
        sKX, sWB = sA5, sACT
        e(f"s_mov_b32 s{sKX}, s{sKC}")
        e(f"s_mul_i32 s{sT4}, s{sMT}, {32 * 896}")
        e(f"s_mul_i32 s{sT3}, s{sW}, {16 * 2688}"); e(f"s_lshl_b32 s{sT0}, s{sHEAD}, 7"); e(f"s_add_u32 s{sWB}, s{sT3}, s{sT0}")
        e(f"s_add_u32 s{sWB}, s{sWB}, 896"); e(f"s_cmp_lt_u32 s{sHEAD}, 14"); e(f"s_cselect_b32 s{sWB}, s{sWB}, 0x7f000000")
        e(f"s_mul_i32 s{sT0}, s{sHEAD}, 56"); e(f"s_add_u32 s{sT3}, s{sT3}, s{sT0}")
        e(f"s_lshl_b32 s{sT2}, s{sW}, 11")
        sXT, vXT = sWD, 23
        e(f"s_lshl_b32 s{sXT}, s{sRB}, 4"); e(f"s_add_u32 s{sXT}, s{sXT}, s{sHEAD}"); e(f"s_lshl_b32 s{sXT}, s{sXT}, 2")
        e(f"s_add_u32 s{sXT}, s{sXT}, s{sW}"); e(f"s_mul_i32 s{sXT}, s{sXT}, 1792")
        e(f"v_lshrrev_b32 v{vXT}, 1, v{vLANE}"); e(f"v_add_u32 v{vXT}, s{sKC}, v{vXT}")
        e(f"v_subrev_u32 v{t}, 7, v{vXT}"); e(f"v_min_u32 v{vXT}, v{vXT}, v{t}")
        e(f"v_and_b32 v{t}, 1, v{vLANE}"); e(f"v_mul_u32_u24 v{t}, 896, v{t}"); e(f"v_lshl_add_u32 v{vXT}, v{vXT}, 7, v{t}")
        def xtouch(mask):
            e(f"s_mov_b64 exec, {mask}")
            e.vmem(f"buffer_load_dword v25, v{vXT}, {X_}, s{sXT} offen")
            e("s_mov_b64 exec, -1")
        self.got_args(e)
        xtouch(0x3c)
        def wkv(ic):
            e(f"s_add_u32 m0, s{sT2}, {LC + ic * 8192}")
            e(f"s_mul_i32 s{sT0}, s{sKC}, {64 * 2688}"); e(f"s_add_u32 s{sT0}, s{sT0}, s{sWB}")
            self.dma4(e, WQKV, vWA, f"s{sT0}", n=2)
            self.next_kc(e)
        def xch(ic):
            e(f"s_add_u32 m0, s{sT5}, {(ic % 4) * 16384}")
            e(f"s_lshl_b32 s{sT0}, s{sKX}, 7"); e(f"s_add_u32 s{sT0}, s{sT0}, s{sT4}")
            self.dma4(e, X_, vXA, f"s{sT0}", tag=("c", ic))
            self.next_kc(e, sKX)
        def wq(ic):
            e(f"s_lshr_b32 s{sT1}, s{sT2}, 1"); e(f"s_add_u32 m0, s{sT1}, {L_WQ + ic * 4096}")
            e(f"s_mul_i32 s{sT0}, s{sKC}, {64 * 2688}"); e(f"s_add_u32 s{sT0}, s{sT0}, s{sT3}")
            self.dma4(e, WQKV, [vQA], f"s{sT0}", n=1, tag="wq")
            self.next_kc(e)
        if p["pull"]:
            e(f"s_cmp_ge_u32 s{sJ}, 28"); e("s_cbranch_scc1 L_pull")
            e("L_pulled:")
            self.pull(vXT, sXT)
        wkv(0); wkv(1); xch(0)
        self.late_setup(e)
        self.stamp(e, "start")
        self.rows64_src(e, [vQA], 2688, 0)
        vA, vRA, vRMr = [12, 13, 14, 15], 11, 160
        self.rows128_src(e, vA, 896, 64, lambda i: 8 * i)
        e(f"v_lshrrev_b32 v{vRA}, 3, v{vLANE}"); e(f"v_mul_u32_u24 v{vRA}, 896, v{vRA}")
        e(f"v_and_b32 v{t + 1}, 7, v{vLANE}"); e(f"v_lshl_add_u32 v{vRA}, v{t + 1}, 4, v{vRA}")
        def rm_load(r):
            e(f"s_lshl_b32 s{sT0}, s{sHEAD}, 2"); e(f"s_add_u32 s{sT0}, s{sT0}, s{sW}"); e(f"s_mul_i32 s{sT0}, s{sT0}, {7 * 896}")
            for i in r:
                e.vmem(f"buffer_load_dwordx4 {vr(vRMr + 4 * i, 4)}, v{vRA}, {WO}, s{sT0} offen offset:{128 * i}", "rm")
        def xr_load():
            e(f"s_lshl_b32 s{sT0}, s{sG}, 2"); e(f"s_add_u32 s{sT0}, s{sT0}, s{sMG}"); e(f"s_lshl_b32 s{sT0}, s{sT0}, 2")
            e(f"s_add_u32 s{sT0}, s{sT0}, s{sW}"); e(f"s_mul_i32 s{sT0}, s{sT0}, {16 * 896}")
            e(f"s_lshl_b32 s{sT1}, s{sNG}, 7"); e(f"s_add_u32 s{sT0}, s{sT0}, s{sT1}")
            e(f"s_cmp_lt_u32 s{sJ}, 28"); e(f"s_cselect_b32 s{sT0}, s{sT0}, 0x7f000000")
            e(f"s_add_u32 m0, s{sT2}, {L_XR}")
            self.dma4(e, X_, vA, f"s{sT0}", n=2, tag="rm")
        def o_touch():
            e(f"s_lshl_b32 s{sT0}, s{sG}, 5"); e(f"s_add_u32 s{sT0}, s{sT0}, s{sJ}"); e(f"s_lshl_b32 s{sT0}, s{sT0}, 2")
            e(f"s_add_u32 s{sT0}, s{sT0}, s{sW}"); e(f"s_lshl_b32 s{sT0}, s{sT0}, 11"); e(f"s_add_u32 s{sT0}, s{sT0}, {WS_O}")
            self.touch(e, WS, f"s{sT0}", 16)
        def h_touch():
            e(f"s_lshl_b32 s{sT1}, s{sG}, 5"); e(f"s_add_u32 s{sT1}, s{sT1}, s{sJ}"); e(f"s_lshl_b32 s{sT1}, s{sT1}, 2")
            e(f"s_add_u32 s{sT1}, s{sT1}, s{sW}"); e(f"s_mul_i32 s{sT0}, s{sT1}, {14 * 128}"); e(f"s_add_u32 s{sT0}, s{sT0}, {WS_H}")
            self.touch(e, WS, f"s{sT0}", 14)
            e(f"s_lshl_b32 s{sT0}, s{sT1}, 7"); e(f"s_add_u32 s{sT0}, s{sT0}, {WS_SS}")
            self.touch(e, WS, f"s{sT0}", 1)
        cnt = dict(W=2, X=1, Q=0, R=0, b=0)
        for ch in self.SCHED[p["sched"]]:
            if ch == "W": wkv(cnt[ch])
            elif ch == "X": xch(cnt[ch])
            elif ch == "Q": wq(cnt[ch])
            elif ch == "R": rm_load([cnt[ch]])
            elif ch == "T": xtouch(0x3fc0)
            elif ch == "r": xr_load()
            elif ch == "|":
                ch = "b"
                e.wait(vm=("c", cnt[ch]))
                self.stamp(e, f"b{cnt[ch]}")
                e("s_barrier")
            if ch in cnt: cnt[ch] += 1
        assert cnt == dict(W=7, X=7, Q=7, R=7, b=7), cnt
        self.rows128_src(e, vGA, 3584, 64, lambda i: 8 * i)
        aOwn, aOth, vWf, vO = vRES, 224, vH, 160
        e(f"s_lshl_b32 s{sML}, s{sMG}, 1"); e(f"s_add_u32 s{sML}, s{sML}, s{sMI}")
        e(f"s_lshl_b32 s{sMT}, s{sG}, 3"); e(f"s_add_u32 s{sMT}, s{sMT}, s{sML}")
        e(f"s_mul_i32 s{sT4}, s{sW}, {112 * 896}"); e(f"s_lshl_b32 s{sT0}, s{sNG}, 7"); e(f"s_add_u32 s{sT4}, s{sT4}, s{sT0}")
        e(f"s_cmp_lt_u32 s{sJ}, 28"); e(f"s_cselect_b32 s{sT4}, s{sT4}, 0x7f000000")
        e(f"s_mul_i32 s{sT5}, s{sW}, {112 * 128}")
        e.wait(vm="wq")
        self.stamp(e, "wq")
        e("s_barrier")
        self.stamp(e, "Bkv")
        gate = self.gu_ops(e, WG, L_GATE, range(7), "gate")
        nogate = self.lab("nogate")
        e.wait(vm="rm")
        e(f"s_cmp_ge_u32 s{sJ}, 28"); e(f"s_cbranch_scc1 {nogate}")
        self.paced(e, gate[:2 * p["g1"]], p["gdep"])
        e(f"{nogate}:")
        for i in range(28):
            acc = t + (i & 1)
            e(f"v_lshlrev_b32 v{t + 2}, 16, v{vRMr + i}"); e(f"v_and_b32 v{t + 3}, 0xffff0000, v{vRMr + i}")
            if i < 2:
                e(f"v_add_f32 v{acc}, v{t + 2}, v{t + 3}")
            else:
                e(f"v_add_f32 v{acc}, v{acc}, v{t + 2}"); e(f"v_add_f32 v{acc}, v{acc}, v{t + 3}")
        e(f"v_add_f32 v{t}, v{t}, v{t + 1}")
        for d in ("quad_perm:[1,0,3,2]", "quad_perm:[2,3,0,1]", "row_half_mirror"):
            e(f"v_add_f32_dpp v{t}, v{t}, v{t} {d} row_mask:0xf bank_mask:0xf")
        e(f"v_mul_f32 v{t}, {f32(1 / 448)}, v{t}")
        e(f"s_mov_b32 s{sM1}, 0"); e(f"s_mov_b32 s{sM1 + 1}, 0xff000000")
        e(f"v_cndmask_b32 v{t}, v{t}, 0, s[{sM1}:{sM1 + 1}]")
        e(f"s_mul_i32 s{sT0}, s{sW}, 7"); e(f"s_add_u32 s{sT1}, s{sW}, 28")
        e(f"v_lshrrev_b32 v{t + 1}, 3, v{vLANE}"); e(f"v_add_u32 v{t + 1}, s{sT0}, v{t + 1}")
        e(f"v_mov_b32 v{t + 2}, s{sT1}")
        e(f"v_cndmask_b32 v{t + 1}, v{t + 1}, v{t + 2}, s[{sM1}:{sM1 + 1}]")
        e(f"v_lshlrev_b32 v{t + 1}, 2, v{t + 1}"); e(f"v_add_u32 v{t + 1}, {L_MISC}, v{t + 1}")
        e.lds(f"ds_write_b32 v{t + 1}, v{t}")
        vXL = 21
        e(f"v_bfe_u32 v{vXL}, v{vLANE}, 1, 1"); e(f"v_xor_b32 v{vXL}, s{sKH}, v{vXL}"); e(f"v_lshlrev_b32 v{vXL}, 6, v{vXL}")
        e(f"v_and_b32 v{t + 2}, 31, v{vLANE}"); e(f"v_lshl_add_u32 v{vXL}, v{t + 2}, 7, v{vXL}")
        e(f"v_lshrrev_b32 v{t + 2}, 5, v{vLANE}"); e(f"v_lshl_add_u32 v{vXL}, v{t + 2}, 3, v{vXL}")
        e(f"s_lshl_b32 s{sT0}, s{sMI}, 12"); e(f"s_add_u32 s{sT0}, s{sT0}, {L_XR}"); e(f"v_add_u32 v{vXL}, s{sT0}, v{vXL}")
        e.wait(ds="all")
        self.stamp(e, "pre")
        e("s_barrier")
        self.stamp(e, "Batt")
        if p["otouch"] == 1:
            o_touch(); h_touch()
        e(f"s_cmp_ge_u32 s{sJ}, 28"); e("s_cbranch_scc1 L_helper")
        for a in range(4):
            e.lds(f"ds_read_b64 {vr(aOth + 2 * a, 2)}, v{vXL} offset:{16 * a}")
        e.wait(ds="all")
        e("s_barrier")
        self.stamp(e, "Bm")
        for grp in range(4):
            e(f"s_add_u32 m0, s{sT5}, {L_WO + grp * 4096}")
            e(f"s_add_u32 s{sT0}, s{sT4}, {grp * 32 * 896}")
            self.dma4(e, WO, vA, f"s{sT0}", n=4 if grp < 3 else 2, tag="wo")
        for op in gate[2 * p["g1"]:]: op()
        self.w5_base(e)
        e(f"s_mul_i32 s{sT0}, s{sKH}, {224 * 128}"); e(f"s_add_u32 s{sT0}, s{sT0}, {L_WO}")
        for k in range(2):
            e(f"v_add_u32 v{vW5t[k]}, s{sT0}, v{vW5[k]}")
        e.wait(vm="wo")
        self.stamp(e, "wo")
        e("s_barrier")
        for st in range(16):
            for k in range(2):
                self.trd(e, vWf + 8 * st + 4 * k, vW5t[k], (28 * (st >> 1) + 16 * (st & 1)) * 128, 1024, None)
        self.mode_issue(e, 3, 22)
        e(f"v_mov_b32 v{t}, 0xbf80bf80")
        e.wait(ds="all")
        for st in range(1, 16, 2):
            for k in range(2):
                r = vWf + 8 * st + 4 * k
                e(f"v_cndmask_b32 v{r + 2}, v{r + 2}, v{t}, {HI}")
                e(f"v_cndmask_b32 v{r + 3}, v{r + 3}, 0, {HI}")
        for i in range(8):
            e(f"v_lshlrev_b32 v{aOwn + 2 * i}, 16, v{aOth + i}")
            e(f"v_and_b32 v{aOwn + 2 * i + 1}, 0xffff0000, v{aOth + i}")
        self.mode_check(e, 3, 22)
        self.stamp(e, "gu")
        if self.stop > 2:
            self.out_proj(e, aOwn, aOth, vWf, vO)
        if self.stop > 3:
            self.ffn_S(e)
        self.finish(e, 1)
        self.helper(e)
        return e

    def pull(self, vXT, sXT):
        e = Stream(); e.role = 1
        e("L_pull:")
        e("s_mov_b64 exec, 0x3fc0")
        e(f"buffer_load_dword v25, v{vXT}, {X_}, s{sXT} offen")
        e("s_mov_b64 exec, -1")
        self.late_setup(e, False)
        sPI = sML
        e(f"s_lshl_b32 s{sPI}, s{sG}, 2"); e(f"s_add_u32 s{sPI}, s{sPI}, s{sJ}"); e(f"s_sub_u32 s{sPI}, s{sPI}, 28")
        e(f"s_lshl_b32 s{sPI}, s{sPI}, 2"); e(f"s_add_u32 s{sPI}, s{sPI}, s{sW}")
        e(f"v_mul_u32_u24 v{t}, 37, v{vLANE}"); e(f"v_lshrrev_b32 v{t}, 8, v{t}")
        e(f"v_mul_u32_u24 v{t}, {2688 - 896}, v{t}"); e(f"v_add_u32 v{t}, v{t}, v24")
        e(f"s_mul_i32 s{sT0}, s{sPI}, {4 * 2688}")
        self.touch(e, WQKV, f"s{sT0}", 28, va=t)
        e(f"s_mul_i32 s{sT0}, s{sPI}, {25 * 128}")
        self.touch(e, WO, f"s{sT0}", 25)
        for u in range(self.p["pull"] - 2):
            srd, half = ((WG, 0), (WG, 1), (WU, 0), (WU, 1), (WD, 0), (WD, 1))[u]
            e(f"s_mul_i32 s{sT0}, s{sPI}, {98 * 128}")
            if half: e(f"s_add_u32 s{sT0}, s{sT0}, {49 * 128}")
            self.touch(e, srd, f"s{sT0}", 49)
        e("s_branch L_pulled")
        self.tail += e.L

    def helper(self, e):
        e("L_helper:")
        e.vm, e.ds = [], []
        p = self.p
        self.touch(e, WS, f"s{sFX}", 24)
        e("s_barrier")
        e("s_barrier")
        sHI_ = sKC
        e(f"s_sub_u32 s{sHI_}, s{sJ}, 28"); e(f"s_lshl_b32 s{sHI_}, s{sHI_}, 2"); e(f"s_add_u32 s{sHI_}, s{sHI_}, s{sW}")
        e(f"s_lshl_b32 s{sT1}, s{sG}, 4"); e(f"s_add_u32 s{sT1}, s{sT1}, s{sHI_}")
        e("s_barrier")
        for srd in (WU, WD):
            e(f"s_mul_i32 s{sT0}, s{sT1}, {98 * 128}")
            self.touch(e, srd, f"s{sT0}", 49); e(f"s_add_u32 s{sT0}, s{sT0}, {49 * 128}"); self.touch(e, srd, f"s{sT0}", 49)
        def wd_touch(tile):
            for u in range(4):
                e(f"s_add_u32 s{sT2}, s{sHI_}, {16 * u}"); e(f"s_lshl_b32 s{sT0}, s{sG}, 3"); e(f"s_add_u32 s{sT2}, s{sT2}, s{sT0}")
                e(f"s_and_b32 s{sT2}, s{sT2}, 63")
                e(f"s_lshr_b32 s{sT0}, s{sT2}, 1"); e(f"s_mul_i32 s{sT0}, s{sT0}, {64 * 896}")
                e(f"s_and_b32 s{sT2}, s{sT2}, 1"); e(f"s_mul_i32 s{sT2}, s{sT2}, {8 * 896}")
                e(f"s_add_u32 s{sT0}, s{sT0}, s{sT2}"); e(f"s_add_u32 s{sT0}, s{sT0}, {16 * tile * 896}")
                self.touch(e, WD, f"s{sT0}", 56)
        if p["hwd"]:
            wd_touch(0); wd_touch(1)
        if not self.p["act_wt"]:
            e(f"s_mul_i32 s{sT0}, s{sT1}, {448 * 128}"); e(f"s_add_u32 s{sT0}, s{sT0}, {WS_ACT}")
            for i in range(7):
                self.touch(e, WS, f"s{sT0}", 64); e(f"s_add_u32 s{sT0}, s{sT0}, 8192")
        if p["hwd"]:
            wd_touch(2); wd_touch(3)
        self.finish(e, 1)

    def out_proj(self, e, aOwn, aOth, vWf, vO):
        e(f"v_lshlrev_b32 v{t}, 2, v{vLANE}")
        e(f"s_lshl_b32 s{sT0}, s{sML}, 2"); e(f"s_add_u32 s{sT0}, s{sT0}, s{sKH}"); e(f"s_lshl_b32 s{sT0}, s{sT0}, 5")
        e(f"s_add_u32 s{sT0}, s{sT0}, s{sFX}")
        e(f"s_lshl_b32 s{sT2}, s{sMT}, 1"); e(f"s_add_u32 s{sT2}, s{sT2}, s{sKH}"); e(f"s_lshl_b32 s{sT2}, s{sT2}, 14")
        e(f"s_add_u32 s{sT2}, s{sT2}, {WS_O}")
        e(f"s_lshl_b32 s{sT1}, s{sNG}, 1"); e(f"s_add_u32 s{sT1}, s{sT1}, s{sKH}")
        e(f"s_mul_i32 s{sT4}, s{sMT}, 14"); e(f"s_add_u32 s{sT4}, s{sT4}, s{sT1}"); e(f"s_lshl_b32 s{sT4}, s{sT4}, 11")
        e(f"s_add_u32 s{sT4}, s{sT4}, {WS_H}")
        e(f"s_lshl_b32 s{sT5}, s{sMT}, 4"); e(f"s_add_u32 s{sT5}, s{sT5}, s{sT1}"); e(f"s_lshl_b32 s{sT5}, s{sT5}, 7")
        e(f"s_add_u32 s{sT5}, s{sT5}, {WS_SS}")
        e(f"s_lshl_b32 s{sT3}, s{sML}, 5"); e(f"s_add_u32 s{sT3}, s{sT3}, s{sT1}"); e(f"s_lshl_b32 s{sT3}, s{sT3}, 2")
        e(f"s_add_u32 s{sT3}, s{sT3}, s{sFX}")
        e("s_mov_b64 exec, 0xff")
        self.poll(e, t, f"s{sT0}", f"v_cmp_ne_u32 vcc, 1, v{t + 1}", t + 1)
        e("s_mov_b64 exec, -1")
        self.stamp(e, "opoll")
        def oload(st):
            e.vmem(f"buffer_load_dwordx4 {vr(vO + 4 * st, 4)}, v{vL16}, {WS}, s{sT2} offen offset:{1024 * (st & 3)} sc1", ("o", st))
            if st & 3 == 3: e(f"s_add_u32 s{sT2}, s{sT2}, 4096")
            if st == 15: e("s_barrier")
        PRE = self.p["opre"]
        for st in range(PRE):
            oload(st)
        e(f"s_lshl_b32 s{sT0}, s{sW}, 12"); e(f"v_add_u32 v{t}, s{sT0}, v{vL16}"); e(f"v_xor_b32 v{t + 1}, 8192, v{t}")
        for st in range(16):
            e.wait(vm=("o", st))
            self.mf(e, aOth, vWf + 8 * st + 4, vO + 4 * st, "0" if st == 0 else None)
            if st + PRE < 16: oload(st + PRE)
            self.mf(e, aOwn, vWf + 8 * st, vO + 4 * st)
        self.stamp(e, "omm")
        for i in range(4):
            e.lds(f"ds_write_b128 v{t}, {vr(aOth + 4 * i, 4)} offset:{LA + 1024 * i}")
        e.wait(ds="all")
        e("s_barrier")
        self.stamp(e, "Bx")
        for i in range(4):
            e.lds(f"ds_read_b128 {vr(aOth + 4 * i, 4)}, v{t + 1} offset:{LA + 1024 * i}", ("x", i))
        PK = vH
        for i in range(4):
            e.wait(ds=("x", i))
            for k in (0, 2):
                r = 4 * i + k
                e(f"v_pk_add_f32 {vr(aOwn + r, 2)}, {vr(aOwn + r, 2)}, {vr(aOth + r, 2)}")
            for k in (0, 2):
                r = 4 * i + k
                e(f"v_cvt_pk_bf16_f32 v{PK + r // 2}, v{aOwn + r}, v{aOwn + r + 1}")
        self.publish(e, [f"buffer_store_dwordx4 {vr(PK + 4 * i, 4)}, v{vL16}, {WS}, s{sT4} offen offset:{1024 * i}" for i in range(2)])
        self.stamp(e, "hst")
        e(f"v_pk_mul_f32 {vr(t + 2, 2)}, {vr(aOwn, 2)}, {vr(aOwn, 2)}")
        for r in range(2, 16, 2):
            e(f"v_pk_fma_f32 {vr(t + 2, 2)}, {vr(aOwn + r, 2)}, {vr(aOwn + r, 2)}, {vr(t + 2, 2)}")
        e(f"v_add_f32 v{t + 2}, v{t + 2}, v{t + 3}")
        e(f"v_mov_b32 v{t + 3}, v{t + 2}")
        e(f"v_lshlrev_b32 v{t}, 2, v{vLANE}")
        e(f"v_permlane32_swap_b32 v{t + 2}, v{t + 3}")
        e(f"v_add_f32 v{t + 2}, v{t + 2}, v{t + 3}")
        e("s_mov_b32 exec_hi, 0")
        self.publish(e, [f"buffer_store_dword v{t + 2}, v{t}, {WS}, s{sT5} offen"])
        e("s_mov_b64 exec, -1")
        e(f"v_mov_b32 v{t + 1}, 1"); e(f"v_mov_b32 v{t + 3}, {ONES}"); e(f"v_mov_b32 v{vMU2}, 0")
        for st in range(1, 16, 2):
            e(f"v_dot2c_f32_bf16 v{vMU2}, v{vO + 4 * st + 2}, v{t + 3}")
        e.wait(vm="all")
        e("s_mov_b64 exec, 1")
        self.publish(e, [f"buffer_store_dword v{t + 1}, v{t}, {WS}, s{sT3} offen offset:{FX_F3}"])
        e("s_mov_b64 exec, -1")
        self.stamp(e, "hpub")
        e(f"v_mov_b32 v{t + 3}, v{vMU2}")
        e(f"v_permlane32_swap_b32 v{t + 3}, v{vMU2}")
        for i in range(16):
            e(f"v_add_f32 v{aOwn + i}, v{vMU2}, v{aOwn + i}")
        e(f"s_xor_b32 s{sT0}, s{sW}, 2"); e(f"s_lshl_b32 s{sT0}, s{sT0}, 12"); e(f"v_add_u32 v{t + 1}, s{sT0}, v{vL16}")
        e(f"s_lshl_b32 s{sT0}, s{sW}, 8"); e(f"v_add_u32 v{t}, s{sT0}, v{t}")
        for i in range(4):
            e.lds(f"ds_write_b128 v{t + 1}, {vr(aOwn + 4 * i, 4)} offset:{L_RES + 1024 * i}")
        e.lds(f"ds_write_b32 v{t}, v{vMU2} offset:{L_MU}")

    def ffn_S(self, e):
        p = self.p
        full = self.stop > 4
        self.ffn_setup(e, 1)
        self.gu_pre(e, 0, self.KMAJ)
        self.h_poll(e)
        self.paced(e, self.gu_ops(e, WU, L_UP, range(p["upe"], p["upe"] + p["ups"]), "up"), p["udep"])
        self.stamp(e, "Bh_")
        e("s_barrier")
        self.stamp(e, "Bh")
        e("s_setprio 1")
        def bb():
            e.wait(ds="all")
            self.stamp(e, "seg2")
            e("s_barrier")
        self.first_pass(e, p["spre"], [lambda: None] * (p["spre"] - 3) + [bb])
        self.stamp(e, "Bb")
        self.gelu_consts(e)
        self.gelu_gate(e, self.wd_ops(e, [0, 1, 2]) if full else [])
        self.gu_pre(e, 1, self.TMAJ)
        self.stamp(e, "gelu2")
        def extra(n):
            if n == 52 and full:
                e.wait(vm=("wd", 2), ds="all")
                self.stamp(e, "seg4")
                e("s_barrier")
        self.up_pass(e, extra)
        self.stamp(e, "Bd")
        for op in self.prod_ops(e, 1): op()
        if not full:
            self.act_flag(e, 2)
            return
        self.wd_dma(e, [3])
        self.act_flag(e, 2)
        self.stamp(e, "fl2")
        self.wd_dma(e, [4])
        e.wait(vm=("wd", 4))
        self.stamp(e, "X3_")
        e("s_barrier")
        self.wd_dma(e, [5, 6])
        for q in range(5, 8):
            e.wait(vm=("wd", q))
            self.stamp(e, f"X{q}_")
            e("s_barrier")
            if q == 5:
                self.wd_dma(e, [7])

    def build(self):
        e = Stream()
        self.prologue(e)
        e("s_cmp_lt_u32 s47, 4")
        e("s_cbranch_scc1 L_roleL")
        S = self.role_S()
        L = self.role_L()
        body = e.L + S.L + ["L_roleL:"] + L.L + self.tail + ["L_exit:", "s_endpgm", "L_end:"]
        body, nops = pad_hazards(body)
        head = open("sequential_preLN__sliding_block__geglu_ffn__prompt.s.ref").read().splitlines()
        cm = [l for l in head if l.startswith(";") and "@launch" not in l]
        out = cm + ["; @launch grid=(256,1,1) block=(512,1,1) lds=163840",
                    '.amdgcn_target "amdgcn-amd-amdhsa--gfx950"', ".text", f".globl {NAME}", ".p2align 8",
                    f".type {NAME},@function", f"{NAME}:"]
        out += [("" if l.endswith(":") else "    ") + l for l in body]
        out += ['.section .rodata,"a"', ".p2align 6", f".amdhsa_kernel {NAME}",
                "  .amdhsa_next_free_vgpr 256", "  .amdhsa_next_free_sgpr 102", "  .amdhsa_accum_offset 256",
                "  .amdhsa_group_segment_fixed_size 0", "  .amdhsa_kernarg_size 80", "  .amdhsa_user_sgpr_count 2",
                "  .amdhsa_user_sgpr_kernarg_segment_ptr 1", "  .amdhsa_system_sgpr_workgroup_id_x 1",
                ".end_amdhsa_kernel", ""]
        self.nops = nops
        return "\n".join(out)

if __name__ == "__main__":
    import argparse
    ap = argparse.ArgumentParser()
    ap.add_argument("-o", default="sequential_preLN__sliding_block__geglu_ffn__prompt.s")
    ap.add_argument("--stop", type=int, default=99)
    ap.add_argument("--stamps", action="store_true")
    ap.add_argument("--slow", action="store_true")
    ap.add_argument("-p", action="append", default=[])
    a = ap.parse_args()
    kw = {k: int(v) for k, v in (x.split("=") for x in a.p)}
    g = Gen(a.stop, a.stamps, a.slow, **kw)
    s = g.build()
    open(a.o, "w").write(s)
    print("lines", s.count("\n"), "nops", g.nops)
```

```python
import re

def vr(b, n=1):
    return f"v{b}" if n == 1 else f"v[{b}:{b+n-1}]"
def sr(b, n=1):
    return f"s{b}" if n == 1 else f"s[{b}:{b+n-1}]"

class Stream:
    def __init__(self):
        self.L = []
        self.vm = []
        self.ds = []
    def __call__(self, s):
        self.L.append(s)
    def vmem(self, s, tag=None):
        self.L.append(s); self.vm.append(tag)
    def lds(self, s, tag=None):
        self.L.append(s); self.ds.append(tag)
    @staticmethod
    def _n_after(q, tag):
        idx = [i for i, t in enumerate(q) if t == tag]
        if not idx:
            return None
        return len(q) - 1 - idx[-1]
    def wait(self, vm=None, ds=None):
        parts = []
        if vm is not None:
            n = 0 if vm == "all" else self._n_after(self.vm, vm)
            if n is not None:
                n = min(n, 63)
                parts.append(f"vmcnt({n})")
                self.vm = self.vm[len(self.vm) - n:] if n else []
        if ds is not None:
            n = 0 if ds == "all" else self._n_after(self.ds, ds)
            if n is not None:
                n = min(n, 15)
                parts.append(f"lgkmcnt({n})")
                self.ds = self.ds[len(self.ds) - n:] if n else []
        if parts:
            self.L.append("s_waitcnt " + " ".join(parts))

_REG = re.compile(r"(?<![\w.])(-?\|?)([vsa])(?:(\d+)|\[(\d+):(\d+)\])(?![\w])|\b(vcc|exec|m0|scc)\b")
def regs_of(op):
    out = set()
    for m in _REG.finditer(op):
        if m.group(6):
            out.add(m.group(6))
        else:
            k = m.group(2)
            if m.group(3) is not None:
                out.add((k, int(m.group(3))))
            else:
                out.update((k, i) for i in range(int(m.group(4)), int(m.group(5)) + 1))
    return out

TRANS = ("v_exp_f32", "v_log_f32", "v_rcp_f32", "v_rsq_f32", "v_sqrt_f32", "v_sin_f32", "v_cos_f32")

class Ins:
    def __init__(self, text):
        self.text = text
        t = text.split(";")[0].strip()
        self.label = t[:-1] if t.endswith(":") else None
        self.op = t.split()[0] if t and not self.label else ""
        rest = t[len(self.op):].strip() if self.op else ""
        self.rest = rest
        ops = [o.strip() for o in re.split(r",(?![^\[]*\])", rest)] if rest else []
        self.ops = ops
        op = self.op
        self.mfma = op.startswith("v_mfma")
        self.valu = op.startswith("v_") and not self.mfma
        self.salu = op.startswith("s_")
        self.vmem = op.startswith(("buffer_", "global_"))
        self.ds = op.startswith("ds_")
        self.trans = op.replace("_e32", "").replace("_e64", "") in TRANS
        self.dot = op.startswith("v_dot")
        self.dpp = "_dpp" in op or any(k in rest for k in ("row_shr", "row_ror", "quad_perm", "row_bcast", "row_mirror", "row_half_mirror", "row_shl"))
        self.perml = op.startswith("v_permlane")
        self.rdlane = op.startswith(("v_readlane", "v_readfirstlane"))
        self.ldsdma = self.vmem and re.search(r"\blds\b", rest) is not None
        self.states = 1
        if op == "s_nop":
            self.states = int(ops[0], 0) + 1
        self.defs, self.uses = set(), set()
        self.A = self.B = self.C = set()
        self.passes = 0
        self.store_data = set()
        if self.mfma:
            self.defs = regs_of(ops[0]); self.A = regs_of(ops[1]); self.B = regs_of(ops[2]); self.C = regs_of(ops[3].split()[0])
            self.uses = self.A | self.B | self.C
            self.passes = 8 if "32x32" in op else (4 if "16x16" in op else 2)
        elif self.valu:
            self.defs = regs_of(ops[0])
            for o in ops[1:]:
                self.uses |= regs_of(o)
            if self.perml:
                self.defs |= regs_of(ops[1]); self.uses |= regs_of(ops[0])
            if op.startswith(("v_fmac", "v_dot2c", "v_writelane")) or self.dpp:
                self.uses |= regs_of(ops[0])
            if op.startswith(("v_add_co", "v_sub_co", "v_addc_co", "v_mad_u64")):
                self.defs |= regs_of(ops[1])
        elif self.ds:
            if op.startswith(("ds_read", "ds_bpermute", "ds_permute", "ds_swizzle")):
                self.defs = regs_of(ops[0])
                for o in ops[1:]:
                    self.uses |= regs_of(o)
            else:
                for o in ops:
                    self.uses |= regs_of(o)
        elif self.vmem:
            if "load" in op and not self.ldsdma:
                self.defs = regs_of(ops[0])
                for o in ops[1:]:
                    self.uses |= regs_of(o)
            else:
                for o in ops:
                    self.uses |= regs_of(o)
                if "store" in op and ("x3" in op or "x4" in op):
                    self.store_data = regs_of(ops[0] if op.startswith("buffer") else ops[1])
            if self.ldsdma:
                self.uses.add("m0")
        elif self.salu and ops and op not in ("s_waitcnt", "s_nop", "s_sleep", "s_setprio", "s_barrier") and not op.startswith(("s_cbranch", "s_branch")):
            if op.startswith("s_cmp"):
                for o in ops:
                    self.uses |= regs_of(o)
            else:
                self.defs = regs_of(ops[0])
                for o in ops[1:]:
                    self.uses |= regs_of(o)
        self.target = ops[0] if op.startswith(("s_cbranch", "s_branch")) else None

def _isv(r): return isinstance(r, tuple) and r[0] in "va"
def _iss(r): return r == "vcc" or (isinstance(r, tuple) and r[0] == "s")

def need(p, c):
    n = 0
    pv = {r for r in p.defs if _isv(r)}
    ps = {r for r in p.defs if _iss(r)}
    if p.valu:
        if c.mfma and pv & c.uses: n = max(n, 3 if p.dot else 2)
        if c.valu and (c.dpp or c.perml) and pv & c.uses: n = max(n, 2)
        if c.rdlane and pv & c.uses: n = max(n, 1)
        if p.trans and c.valu and not c.trans and pv & c.uses: n = max(n, 1)
        if p.trans and (c.vmem or c.ds) and pv & c.uses: n = max(n, 1)
        if ps:
            if c.vmem and ps & c.uses: n = max(n, 5)
            if c.valu and ps & c.uses: n = max(n, 4 if c.rdlane or c.op.startswith("v_writelane") else 2)
        if p.dot and pv & (c.uses | c.defs):
            same_acc = c.op == p.op and not (pv & set().union(*[regs_of(o) for o in c.ops[1:3]]))
            if not same_acc: n = max(n, 3)
    if p.mfma:
        k = {2: 0, 4: 1, 8: 2}[p.passes]
        if c.mfma:
            if pv & (c.A | c.B): n = max(n, (5, 8, 12)[k])
            if pv & c.C:
                if pv == c.C and p.passes == c.passes: n = max(n, (2, 0, 0)[k])
                else: n = max(n, (4, 6, 10)[k])
            elif pv & c.defs: n = max(n, (4, 6, 10)[k])
        elif (c.valu or c.vmem or c.ds) and pv & (c.uses | c.defs): n = max(n, (5, 8, 12)[k])
        if c.valu and p.C & c.defs: n = max(n, (1, 3, 7)[k])
    if p.salu and "m0" in p.defs and c.ldsdma: n = max(n, 1)
    if p.store_data and p.store_data & c.defs: n = max(n, 2 if c.valu else 1)
    return n

def pad_hazards(lines):
    out = []
    hists = [[]]
    pending = {}
    WIN = 14
    nops = 0
    def trim(h):
        tot, k = 0, len(h)
        while k > 0 and tot < WIN:
            k -= 1; tot += h[k].states
        return h[k:]
    for text in lines:
        s = text.strip()
        if not s or s.startswith((";", ".")):
            out.append(text); continue
        c = Ins(s)
        if c.label:
            hists += pending.pop(c.label, [])
            out.append(text); continue
        req = 0
        for h in hists:
            dist = 0
            for p in reversed(h):
                req = max(req, need(p, c) - dist)
                dist += p.states
        while req > 0:
            k = min(req, 16)
            nop = Ins(f"s_nop {k-1}")
            out.append(nop.text); nops += 1
            hists = [h + [nop] for h in hists]
            req -= k
        out.append(text)
        hists = [trim(h + [c]) for h in hists]
        uniq = {}
        for h in hists:
            uniq[tuple(id(x) for x in h)] = h
        hists = list(uniq.values())
        if c.target:
            pending.setdefault(c.target, []).extend([list(h) for h in hists])
            if c.op == "s_branch":
                hists = [[]]
        if c.op == "s_endpgm":
            hists = [[]]
    return out, nops

import subprocess, tempfile, os
PROMOTE = ("v_mul_f32", "v_add_f32", "v_sub_f32", "v_max_f32", "v_mov_b32", "v_exp_f32", "v_rcp_f32", "v_rsq_f32",
           "v_and_b32", "v_lshlrev_b32", "v_lshrrev_b32", "v_add_u32", "v_xor_b32", "v_fmac_f32")

def sizes(lines, name):
    src = ['.amdgcn_target "amdgcn-amd-amdhsa--gfx950"', ".text", f"{name}:"] + lines
    with tempfile.TemporaryDirectory() as d:
        open(d + "/a.s", "w").write("\n".join(src) + "\n")
        subprocess.run(["clang", "-x", "assembler", "-target", "amdgcn-amd-amdhsa", "-mcpu=gfx950",
                        "-c", d + "/a.s", "-o", d + "/a.o"], check=True)
        out = subprocess.run(["llvm-objdump", "-d", "--mcpu=gfx950", d + "/a.o"], capture_output=True, text=True).stdout
    return [4 * len(m.group(1).split()) for m in re.finditer(r"// [0-9A-F]+: ((?:[0-9A-F]{8} ?)+)", out)]

def align8(lines, name, min_run=2):
    idx = [i for i, l in enumerate(lines) if l.strip() and not l.strip().endswith(":") and not l.strip().startswith((";", "."))]
    sz = sizes(lines, name)
    assert len(sz) == len(idx), (len(sz), len(idx))
    lines = list(lines)
    off, k, n, zone = 0, 0, 0, []
    while k < len(idx):
        if sz[k] == 4:
            zone.append(k); off += 4; k += 1
            continue
        r = k
        while r < len(idx) and sz[r] != 4: r += 1
        if off % 8 == 4 and r - k >= min_run:
            for z in reversed(zone):
                t = lines[idx[z]].strip()
                if t.split()[0] in PROMOTE:
                    lines[idx[z]] = t.replace(t.split()[0], t.split()[0] + "_e64", 1)
                    off += 4; n += 1
                    break
        off += sum(sz[k:r]); k = r; zone = []
    return lines, n
```

```python
import math, struct, sys
from asmlib import Stream, vr, sr, pad_hazards, align8

NAME = "sequential_preLN__sliding_block__geglu_ffn__prompt_kernel"
MB = 1 << 20
WS_K, WS_V, WS_O, WS_H, WS_SS, WS_ACT = 0, 2 * MB, 4 * MB, 6 * MB, 6 * MB + 1792 * 1024, 8 * MB
WS_F1, WS_FX, WS_STAMP, WS_SIZE = 16 * MB, 16 * MB + 131072, 17 * MB, 18 * MB
FX_F2, FX_F3, FX_F4, FX_F0 = 0, 1024, 2048, 3072
LA, LB, LC = 0, 49152, 106496
L_WQ, L_MISC = LB + 16384, LB + 45056
L_GATE, L_UP, L_WO = LC, LB, LB
SLOT = [LA + 20480, LC, LC + 28672, LB, LB + 28672]
SLOT += SLOT[:3]
L_RES, L_MU, L_XCH5 = LA, LA + 16384, LB
L_CS, L_XR = L_MISC + 1024, L_MISC + 4096
CHUNK = [(0, 0), (0, 1), (0, 2), (0, 3), (1, 0), (1, 1), (1, 2), (1, 3)]
ACTLOC = [[(WS_O, 32768), (WS_H, 28672)], [(WS_ACT, 57344), (WS_ACT + 28672, 57344)]]
X_, WQKV, WO, WG, WU, WD, OUT, DBG, WS = (sr(b, 4) for b in (8, 12, 16, 20, 24, 28, 32, 36, 40))
sXO = 3
sG, sJ, sW, sHEAD, sRB, sXCC, sMODE, sSPIN = 44, 45, 46, 48, 49, 50, 51, 52
sT0, sT1, sT2, sT3, sT4, sT5, sA5 = 53, 54, 55, 56, 57, 58, 59
sHI, sM1, sM2, sM3 = 60, 62, 64, 66
sMT, sKC, sPAR, sML, sMG, sNG, sKH, sMI, sHF, sFX, sACT, sWD = range(68, 80)
sF4P, sF4C, sAC2 = sHEAD, sRB, sKC
sST = 80
vLANE, vL16 = 1, 2
vH, vACC, vRING, vTMP, vSS, vRES = 32, 144, 192, 220, 228, 240
vD, vP, vW5 = [4, 5, 6, 7], [8, 9, 10, 11], [12, 13]
vK1, vK2, vRI, vMU2, vW5t, vXO = 14, 15, 16, 17, [18, 19], 20
vPA, vPR, vSM, vFL, vGA = 21, 22, 23, 3, [30, 31]
ABUF = [vH, vH + 28, vH + 56, vH + 84, vSS]
UACC = [vACC + 32, vRES]
t = 26
NR = 7
BIG = 0xF149F2CA
ONES = 0x3F803F80
SPIN_LIMIT = 0x80000
HI = f"s[{sHI}:{sHI + 1}]"

def f32(x):
    return struct.unpack("<I", struct.pack("<f", x))[0]

class Gen:
    def __init__(self, stop=99, stamps=False, force_slow=False, **kw):
        self.stop, self.stamps, self.force_slow = stop, stamps, force_slow
        self.p = dict(f1_at=10, rot=3, sched=0, pull=2, act_wt=1, pre=12, spre=14, opre=5, hwd=0,
                      g1=3, gdep=2, m2at=12, otouch=2, upe=0, ups=3, udep=2, s2at=-14, hp1=0, hp2=0, hup=0, fl1=50, align=1, tlb=1, ksplit=1, ctouch=7, ohwt=2, outfl=0, wb=0)
        self.p.update(kw)
        self.tail = []
        self.nlab = 0

    def lab(self, n):
        self.nlab += 1
        return f"L_{n}_{self.nlab}"

    PROF = {
        0: (["start", "b0", "kv", "Bkv", "q", "f1", "Batt", "att", "opub", "hpoll", "seg1", "Bb", "Bd", "X3"],
            ["start", "Bkv", "pre", "Bm", "gu", "opoll", "Bx", "hpub", "Bh", "Bb", "Bd"]),
        1: (["start", "hpoll", "seg1", "gelu1", "Bb", "seg3", "chk1", "Bd_", "Bd", "X3", "X5", "X6", "X7", "dn"],
            ["Bh_", "Bh", "hpre", "seg2", "Bb", "gelu2", "seg4", "Bd", "fl2", "X3_", "X5_", "X6_", "X7_"]),
        2: (["start", "f1", "Batt_", "Batt", "qk", "sub", "Bm", "Bm2", "pv", "att", "opub", "Bp", "Bx", "hpoll"],
            ["Bkv", "pre", "Batt", "Bm", "wo", "gu", "opoll", "omm", "Bx", "hst", "hpub", "Bh"]),
        3: (["start", "b0", "b1", "b2", "b3", "b4", "b5", "b6", "kv", "kvst", "Bkv", "fl1", "q", "f1", "Batt"],
            ["start", "b0", "b1", "b2", "b3", "b4", "b5", "b6", "wq", "Bkv", "pre", "Batt"]),
    }

    LEAK = [None, "end", "start", "b0", "Bkv", "Batt", "opub", "hpoll", "Bb", "Bd", "f1", "kv"]

    def stamp(self, e, name):
        if e.role == 0 and name == self.LEAK[self.p.get("leak", 0)]:
            e("s_memrealtime s[82:83]")
        names = self.PROF[self.p.get("prof", 0)][e.role]
        if self.stamps and (name == "end" or name in names):
            i = 15 if name == "end" else names.index(name)
            e(f"{'s_memtime' if self.p.get('cyc') else 's_memrealtime'} s[{sST + 18}:{sST + 19}]")
            e("s_waitcnt lgkmcnt(0)")
            e(f"s_mov_b32 s{sST + i}, s{sST + 18}")
            e.ds = []

    def finish(self, e, role):
        if self.p.get("leak") and role == 0:
            self.stamp(e, "end")
            lp, sk = self.lab("leak"), self.lab("noleak")
            e(f"s_cmp_ge_u32 s{sJ}, 28"); e(f"s_cbranch_scc1 {sk}")
            e("s_memrealtime s[84:85]"); e("s_waitcnt lgkmcnt(0)")
            e("s_sub_u32 s82, s82, s80")
            e(f"{lp}:")
            e("s_memrealtime s[86:87]"); e("s_waitcnt lgkmcnt(0)")
            e("s_sub_u32 s86, s86, s84"); e("s_cmp_lt_u32 s86, s82"); e(f"s_cbranch_scc1 {lp}")
            e(f"{sk}:")
        if self.stamps:
            self.stamp(e, "end")
            e("s_mov_b64 exec, -1")
            e(f"s_lshl_b32 s{sT0}, s2, 3"); e(f"s_add_u32 s{sT0}, s{sT0}, s{sW}"); e(f"s_add_u32 s{sT0}, s{sT0}, {4 * role}")
            e(f"s_lshl_b32 s{sT0}, s{sT0}, 6"); e(f"s_add_u32 s{sT0}, s{sT0}, {WS_STAMP}")
            e("s_waitcnt vmcnt(0)")
            for i in range(16):
                e(f"v_mov_b32 v{32 + i}, s{sST + i}")
            e("v_mov_b32 v3, 0"); e("s_mov_b64 exec, 1")
            for i in range(4):
                e(f"buffer_store_dwordx4 {vr(32 + 4 * i, 4)}, v3, {WS}, s{sT0} offen offset:{16 * i}")
        e("s_endpgm")

    def poll(self, e, vaddr, soff, cmp, vt, srd=WS):
        a, b = self.lab("poll"), self.lab("polled")
        e(f"{a}:")
        e(f"buffer_load_dword v{vt}, v{vaddr}, {srd}, {soff} offen sc1")
        e(f"s_add_u32 s{sSPIN}, s{sSPIN}, 1")
        e("s_waitcnt vmcnt(0)")
        e(cmp)
        e(f"s_cmp_gt_u32 s{sSPIN}, {SPIN_LIMIT}")
        e(f"s_cbranch_scc1 {b}")
        e(f"s_cbranch_vccnz {a}")
        e(f"{b}:")
        e.vm = []

    def check_or_poll(self, e, vaddr, soff, cmp, vt, srd=WS):
        late, ok = self.lab("late"), self.lab("ok")
        e(cmp)
        e(f"s_cbranch_vccnz {late}")
        e(f"{ok}:")
        tl = Stream(); tl(f"{late}:")
        self.poll(tl, vaddr, soff, cmp, vt, srd)
        tl(f"s_branch {ok}")
        self.tail += tl.L

    def publish(self, e, stores, tag="pub", wt=False):
        if wt:
            for s in stores:
                e.vmem(s + " sc1", tag)
            return
        slow, done = self.lab("slow"), self.lab("pubd")
        e(f"s_cmp_eq_u32 s{sMODE}, 0")
        e(f"s_cbranch_scc1 {slow}")
        for s in stores:
            e.vmem(s, tag)
        e(f"{done}:")
        self.tail += [f"{slow}:"] + [s + " sc1" for s in stores] + [f"s_branch {done}"]

    def mode_issue(self, e, va, vt):
        e(f"v_lshlrev_b32 v{va}, 2, v{vLANE}"); e(f"v_add_u32 v{va}, {FX_F0}, v{va}")
        e("s_mov_b32 exec_hi, 0")
        e.vmem(f"buffer_load_dword v{vt}, v{va}, {WS}, s{sFX} offen sc1", "mode")
        e("s_mov_b64 exec, -1")

    def mode_check(self, e, va, vt):
        e.wait(vm="mode")
        e("s_mov_b32 exec_hi, 0")
        self.check_or_poll(e, va, f"s{sFX}", f"v_cmp_eq_u32 vcc, 0, v{vt}", vt)
        e(f"v_cmp_ne_u32 vcc, s{sXCC}, v{vt}")
        e("s_mov_b64 exec, -1")
        e("s_cmp_eq_u64 vcc, 0"); e(f"s_cselect_b32 s{sMODE}, {0 if self.force_slow else 1}, 0")

    def touch(self, e, srd, soff, nl, va=24, vt=25):
        if nl < 64:
            m = (1 << nl) - 1
            e(f"s_mov_b32 exec_lo, {m & 0xffffffff}"); e(f"s_mov_b32 exec_hi, {m >> 32}")
        e(f"buffer_load_dword v{vt}, v{va}, {srd}, {soff} offen sc1")
        if nl < 64:
            e("s_mov_b64 exec, -1")

    def dma4(self, e, srd, vas, soff, n=4, tag=None, fl=""):
        for i in range(n):
            e.vmem(f"buffer_load_dwordx4 v{vas[i]}, {srd}, {soff} offen offset:{1024 * i} {fl} lds", tag)

    def next_kc(self, e, r=sKC):
        e(f"s_add_u32 s{r}, s{r}, 1"); e(f"s_cmp_eq_u32 s{r}, 7"); e(f"s_cselect_b32 s{r}, 0, s{r}")

    def tr_base(self, e, vd, hmul, stride, nhmul):
        e(f"v_lshrrev_b32 v{vd}, 5, v{vLANE}")
        e(f"v_mul_u32_u24 v{vd}, {hmul}, v{vd}")
        e(f"v_bfe_u32 v{t}, v{vLANE}, 2, 2")
        e(f"v_add_u32 v{vd}, v{vd}, v{t}")
        e(f"v_mul_u32_u24 v{vd}, {stride}, v{vd}")
        e(f"v_bfe_u32 v{t}, v{vLANE}, 4, 1")
        e(f"v_mul_u32_u24 v{t}, {nhmul}, v{t}")
        e(f"v_add_u32 v{vd}, v{vd}, v{t}")
        e(f"v_and_b32 v{t}, 3, v{vLANE}")
        e(f"v_lshl_add_u32 v{vd}, v{t}, 3, v{vd}")

    def rows128_src(self, e, vas, rowstride, partmul, rowof):
        v = vas[0]
        e(f"v_lshrrev_b32 v{v}, 3, v{vLANE}")
        e(f"v_mul_u32_u24 v{v}, {rowstride}, v{v}")
        e(f"v_lshrrev_b32 v{t}, 2, v{vLANE}")
        e(f"v_lshrrev_b32 v{t + 1}, 4, v{vLANE}")
        e(f"v_xor_b32 v{t}, v{t}, v{t + 1}")
        e(f"v_and_b32 v{t}, 1, v{t}")
        e(f"v_mul_u32_u24 v{t}, {partmul}, v{t}")
        e(f"v_add_u32 v{v}, v{v}, v{t}")
        e(f"v_and_b32 v{t}, 3, v{vLANE}")
        e(f"v_lshl_add_u32 v{v}, v{t}, 4, v{v}")
        for i in range(1, len(vas)):
            e(f"v_add_u32 v{vas[i]}, {rowof(i) * rowstride - 1024 * i}, v{v}")

    def rows64_src(self, e, vas, rowstride, gx):
        v = vas[0]
        e(f"v_lshrrev_b32 v{v}, 2, v{vLANE}")
        e(f"v_mul_u32_u24 v{v}, {rowstride}, v{v}")
        e(f"v_and_b32 v{t}, 3, v{vLANE}")
        if gx:
            e(f"v_xor_b32 v{t}, {gx}, v{t}")
        e(f"v_lshl_add_u32 v{v}, v{t}, 4, v{v}")
        for i in range(1, len(vas)):
            e(f"v_add_u32 v{vas[i]}, {16 * i * rowstride - 1024 * i}, v{v}")

    @staticmethod
    def trd(e, dst, vaddr, off0, step, tag):
        e.lds(f"ds_read_b64_tr_b16 {vr(dst, 2)}, v{vaddr} offset:{off0}", tag)
        e.lds(f"ds_read_b64_tr_b16 {vr(dst + 2, 2)}, v{vaddr} offset:{off0 + step}", tag)

    @staticmethod
    def mf(e, d, a, b, c=None):
        e(f"v_mfma_f32_32x32x16_bf16 {vr(d, 16)}, {vr(a, 4)}, {vr(b, 4)}, {vr(d, 16) if c is None else c}")

    @staticmethod
    def mf8(e, d, a, b, c=None):
        e(f"v_mfma_f32_32x32x8_bf16 {vr(d, 16)}, {vr(a, 2)}, {vr(b, 2)}, {vr(d, 16) if c is None else c}")

    @staticmethod
    def mf4(e, d, a, b, first):
        e(f"v_mfma_f32_4x4x4_16b_bf16 {vr(d, 4)}, {vr(a, 2)}, {vr(b, 2)}, {'0' if first else vr(d, 4)}")

    @staticmethod
    def split_hi_lo(e, dst, c):
        e(f"v_cvt_pk_bf16_f32 v{dst + 1}, v{c}, v{c}")
        e(f"v_and_b32 v{t}, 0xffff0000, v{dst + 1}")
        e(f"v_sub_f32 v{t}, v{c}, v{t}")
        e(f"v_cvt_pk_bf16_f32 v{dst}, v{c}, v{t}")

    def prologue(self, e):
        e(f"s_cmp_ge_u32 s2, {0 if self.stop == 0 else 256}")
        e("s_cbranch_scc1 L_exit")
        if self.p.get("leak"): e("s_memrealtime s[80:81]")
        e("s_load_dwordx16 s[84:99], s[0:1], 0")
        e("s_load_dwordx4 s[4:7], s[0:1], 64")
        e("v_lshrrev_b32 v3, 6, v0")
        e(f"v_and_b32 v{vLANE}, 63, v0")
        e(f"v_readfirstlane_b32 s47, v3")
        e(f"v_lshlrev_b32 v{vL16}, 4, v{vLANE}")
        e(f"s_and_b32 s{sG}, s2, 7"); e(f"s_bfe_u32 s{sHEAD}, s2, 0x40003"); e(f"s_lshr_b32 s{sT1}, s2, 7")
        e(f"s_and_b32 s{sW}, s47, 3")
        e(f"s_lshl_b32 s{sT5}, s{sW}, 12")
        e(f"s_lshl_b32 s{sRB}, s{sG}, 1"); e(f"s_add_u32 s{sRB}, s{sRB}, s{sT1}")
        e(f"s_lshl_b32 s{sMT}, s{sRB}, 2"); e(f"s_add_u32 s{sMT}, s{sMT}, s{sW}")
        e(f"s_cmp_lt_u32 s{sHEAD}, 14"); e(f"s_cselect_b32 s{sT0}, 14, 2"); e(f"s_cselect_b32 s{sJ}, 0, 14")
        e(f"s_mul_i32 s{sT0}, s{sT0}, s{sT1}"); e(f"s_add_u32 s{sJ}, s{sJ}, s{sT0}"); e(f"s_add_u32 s{sJ}, s{sJ}, s{sHEAD}")
        e(f"s_mul_i32 s{sKC}, s{sT1}, {self.p['rot']}"); e(f"s_add_u32 s{sKC}, s{sKC}, s{sG}")
        e(f"s_cmp_ge_u32 s{sKC}, 7"); e(f"s_cselect_b32 s{sT0}, 7, 0"); e(f"s_sub_u32 s{sKC}, s{sKC}, s{sT0}")
        e(f"s_lshl_b32 s{sFX}, s{sG}, 12"); e(f"s_add_u32 s{sFX}, s{sFX}, {WS_FX}")
        for b, n in ((8, 2048 * 896), (12, 448 * 2688), (36, 256), (40, WS_SIZE)):
            e(f"s_mov_b32 s{b + 2}, {n}"); e(f"s_mov_b32 s{b + 3}, 0x20000")

    def got_args(self, e):
        e("s_waitcnt lgkmcnt(0)")
        for b, src in ((8, 84), (12, 86), (40, 6), (36, 4)):
            e(f"s_mov_b64 s[{b}:{b + 1}], s[{src}:{src + 1}]")

    def late_setup(self, e, last=True):
        for b, src, n in ((16, 88, 448 * 896), (20, 92, 448 * 3584), (24, 94, 448 * 3584), (28, 96, 1792 * 896), (32, 98, 2048 * 896)):
            e(f"s_mov_b64 s[{b}:{b + 1}], s[{src}:{src + 1}]")
            e(f"s_mov_b32 s{b + 2}, {n}"); e(f"s_mov_b32 s{b + 3}, 0x20000")
        e(f"s_mul_i32 s{sMG}, s{sJ}, 37"); e(f"s_lshr_b32 s{sMG}, s{sMG}, 8")
        e(f"s_mul_i32 s{sT0}, s{sMG}, 7"); e(f"s_sub_u32 s{sNG}, s{sJ}, s{sT0}")
        e(f"s_and_b32 s{sPAR}, s{sJ}, 1")
        e(f"s_and_b32 s{sMI}, s{sW}, 1"); e(f"s_lshr_b32 s{sKH}, s{sW}, 1"); e(f"s_lshr_b32 s{sHF}, s{sMG}, 1")
        e(f"s_mov_b32 s{sSPIN}, 0")
        e(f"s_mov_b32 s{sHI}, 0"); e(f"s_mov_b32 s{sHI + 1}, -1")
        e(f"s_getreg_b32 s{sXCC}, hwreg(HW_REG_XCC_ID, 0, 4)"); e(f"s_or_b32 s{sXCC}, s{sXCC}, 0x100")
        if self.stamps and last:
            for i in range(16):
                e(f"s_mov_b32 s{sST + i}, 0")

    def kv_pass(self, e, kind, R):
        wf, cf = vRING, R["PK"]
        a0, a1 = vACC, vACC + 16
        XS, XQ, C0, C1 = R["XS"], R["XQ"], R["C0"], R["C1"]
        vW0, vW1, vC0, vC1, vXR, vONE = R["vW0"], R["vW1"], R["vC0"], R["vC1"], R["vXR"], R["vONE"]
        def xrd(c):
            e("s_barrier")
            self.stamp(e, f"b{c}")
            for s in range(4):
                e.lds(f"ds_read_b128 {vr(vH + 16 * c + 4 * s, 4)}, v{vXR[s]} offset:{(c % 4) * 16384}", ("x", 4 * c + s))
        vis = self.wvis()
        st = dict(w=0, c=0, m=0, b=0)
        def wrd(upto):
            while kind and st["w"] <= min(upto, 27) and st["w"] >> 2 <= vis[st["b"]]:
                n = st["w"]; st["w"] += 1
                for k, va in enumerate((vW0, vW1)):
                    self.trd(e, wf + 8 * (n % 4) + 4 * k, va, 16 * n * 128, 512, ("w", n))
        def crd():
            while kind and st["c"] <= vis[st["b"]] and st["c"] < st["m"] + 2:
                c = st["c"]; st["c"] += 1
                for k, va in enumerate((vC0, vC1)):
                    self.trd(e, cf + 8 * (c & 1) + 4 * k, va, 64 * c * 128, 512, ("c", c))
        def cmm():
            out = []
            while st["m"] < st["c"]:
                c = st["m"]; st["m"] += 1
                e.wait(ds=("c", c))
                b = cf + 8 * (c & 1)
                out += [(C0, vONE, b, c == 0), (C1, vONE, b + 4, c == 0), (C0, vONE, b + 2, False), (C1, vONE, b + 6, False)]
            return out
        xrd(0)
        wrd(1)
        for n in range(28):
            c, s = divmod(n, 4)
            if s == 3 and c < 6:
                if kind and c == 5:
                    assert st["m"] == 7
                    e.lds(f"ds_write2st64_b32 v{R['vCS']}, v{C0}, v{C1} offset0:0 offset1:4")
                    e.wait(ds="all")
                xrd(c + 1)
                st["b"] = c + 1
                wrd(n + 1)
                if kind and c == 5:
                    for k in range(2):
                        e.lds(f"ds_read_b128 {vr(cf + 4 * k, 4)}, v{R['vCR']} offset:{1024 * k}", "cs")
            if n == 21:
                e("s_mov_b64 exec, 3")
                e.vmem(f"buffer_load_dword v{R['vRDY']}, v{R['vRA']}, {DBG}, 0 offen sc1")
                e("s_mov_b64 exec, -1")
            if s & 1 == 0:
                e.wait(ds=("x", n + 1))
                small = []
                for i in range(4):
                    x = vH + 4 * n + 2 * i
                    small += [(XS + 8 * (i & 1), vONE, x, n == 0 and i < 2), (XQ + 8 * (i & 1), x, x, n == 0 and i < 2)]
                if kind and s == 2:
                    for i, m in enumerate(cmm()):
                        small.insert(min(2 * i + 1, len(small)), m)
                for m in small:
                    self.mf4(e, *m)
            if kind:
                e.wait(ds=("w", n))
                x, w0 = vH + 4 * n, wf + 8 * (n % 4)
                for k, acc in enumerate((a0, a1)):
                    A, B = (w0 + 4 * k, x) if kind == "K" else (x, w0 + 4 * k)
                    self.mf(e, acc, A, B, "0" if n == 0 else None)
                    if k == 0: wrd(n + 2)
                if s == 0:
                    crd()
        self.stamp(e, "kv")
        vMU, vRS, vNM, vCP, vOH, PK = R["vMU"], R["vRS"], R["vNM"], R["vCP"], R["vOH"], R["PK"]
        if kind:
            e.wait(ds="cs")
            for k in range(2):
                e(f"v_add_f32 v{cf + 4 * k}, v{cf + 4 * k}, v{cf + 4 * k + 1}")
                e(f"v_add_f32 v{cf + 4 * k + 2}, v{cf + 4 * k + 2}, v{cf + 4 * k + 3}")
            e(f"v_add_f32 v{C0}, v{cf}, v{cf + 2}"); e(f"v_add_f32 v{C1}, v{cf + 4}, v{cf + 6}")
        e(f"v_add_f32 v{XS}, v{XS}, v{XS + 8}")
        for i in range(4):
            e(f"v_add_f32 v{XQ + i}, v{XQ + i}, v{XQ + 8 + i}")
        e(f"v_cndmask_b32 v{XQ}, v{XQ}, v{XQ + 1}, s[{sM1}:{sM1 + 1}]")
        e(f"v_cndmask_b32 v{XQ}, v{XQ}, v{XQ + 2}, s[{sM2}:{sM2 + 1}]")
        e(f"v_cndmask_b32 v{XQ}, v{XQ}, v{XQ + 3}, s[{sM3}:{sM3 + 1}]")
        if kind: self.split_hi_lo(e, C0 + 2, C0)
        e(f"v_permlane32_swap_b32 v{XS}, v{XQ}")
        e(f"v_add_f32 v{XS}, v{XS}, v{XQ}")
        e(f"v_mov_b32 v{XQ}, v{XS}")
        if kind: self.split_hi_lo(e, C1 + 2, C1)
        e(f"v_permlane32_swap_b32 v{XS}, v{XQ}")
        e(f"v_mul_f32 v{vMU}, {f32(1 / 448)}, v{XS}")
        e(f"v_mul_f32 v{XQ}, {f32(1 / 448)}, v{XQ}")
        e(f"v_cvt_pk_bf16_f32 v{vNM}, -v{vMU}, -v{vMU}")
        e(f"v_fma_f32 v{XQ}, -v{vMU}, v{vMU}, v{XQ}")
        e(f"v_and_b32 v{t}, 0xffff0000, v{vNM}")
        e(f"v_max_f32 v{XQ}, 0, v{XQ}")
        e(f"v_add_f32 v{t}, v{vMU}, v{t}")
        e(f"v_add_f32 v{XQ}, {f32(1e-5)}, v{XQ}")
        e(f"v_cvt_pk_bf16_f32 v{vNM + 1}, -v{t}, 0")
        e(f"v_rsq_f32 v{vRS}, v{XQ}")
        if kind == "K":
            self.mf8(e, a0, C0 + 2, vNM); self.mf8(e, a1, C1 + 2, vNM)
            e(f"s_mul_i32 s{sT0}, s{sMT}, 28672"); e(f"s_lshl_b32 s{sT1}, s{sHEAD}, 12"); e(f"s_add_u32 s{sT0}, s{sT0}, s{sT1}")
            e(f"v_lshlrev_b32 v{t + 1}, 3, v{vLANE}")
            for k, acc in enumerate((a0, a1)):
                for i in range(16):
                    e(f"v_mul_f32 v{acc + i}, v{vRS}, v{acc + i}")
                for i in range(8):
                    e(f"v_cvt_pk_bf16_f32 v{PK + 8 * k + i}, v{acc + 2 * i}, v{acc + 2 * i + 1}")
                    if i & 1:
                        e.vmem(f"buffer_store_dwordx2 {vr(PK + 8 * k + i - 1, 2)}, v{t + 1}, {WS}, s{sT0} offen offset:{(8 * k + i - 1) * 256} sc1")
        if kind == "V":
            aR = wf
            self.mf8(e, a0, vNM, C0 + 2)
            self.split_hi_lo(e, vCP, vRS)
            self.mf8(e, aR, vCP, vOH, "0")
            self.mf8(e, a1, vNM, C1 + 2)
            e(f"s_mul_i32 s{sT0}, s{sMT}, 28672"); e(f"s_lshl_b32 s{sT1}, s{sHEAD}, 10"); e(f"s_add_u32 s{sT0}, s{sT0}, s{sT1}")
            e(f"s_add_u32 s{sT0}, s{sT0}, {WS_V - 7 * 1024}"); e(f"s_add_u32 s{sT1}, s{sT0}, 14336")
            for k, acc in enumerate((a0, a1)):
                for i in range(16):
                    e(f"v_mul_f32 v{acc + i}, v{aR + i}, v{acc + i}")
                for i in range(8):
                    e(f"v_cvt_pk_bf16_f32 v{PK + 8 * k + i}, v{acc + 2 * i}, v{acc + 2 * i + 1}")
                    if i & 3 == 3:
                        e.vmem(f"buffer_store_dwordx4 {vr(PK + 8 * k + i - 3, 4)}, v{R['vVA']}, {WS}, s{(sT0, sT1)[i >> 2]} offen offset:{512 * k} sc1")

    def role_L(self):
        e = Stream(); e.role = 0
        vCS, vRA, vC0, vC1, vCR, vXR, vW0, vW1, vWQ, vRDY = 3, 4, 5, 6, 7, [8, 9, 10, 11], 12, 13, 14, 15
        vONE, vOH, vMU, vRS, vNM, vCP, vVA = 16, 18, 20, 21, 22, 24, 30
        aQ = vACC + 32
        wf = vRING
        XS, XQ, C0, C1, PK = aQ, aQ + 4, 232, 236, 240
        R = dict(locals())
        for i in range(4): e(f"v_mov_b32 v{32 + i}, 0")
        self.got_args(e)
        nolead, nocode = self.lab("nolead"), self.lab("nocode")
        e(f"s_lshl_b32 s{sT0}, s{sJ}, 2"); e(f"s_add_u32 s{sT0}, s{sT0}, s{sW}")
        e(f"s_cmp_lg_u32 s{sT0}, {28 * 4}"); e(f"s_cbranch_scc1 {nolead}")
        e(f"v_lshlrev_b32 v{t}, 7, v{vLANE}")
        e(f"s_lshl_b32 s{sT0}, s{sG}, 14"); e(f"s_add_u32 s{sT0}, s{sT0}, {WS_F1}"); e(f"s_add_u32 s{sT1}, s{sT0}, 8192")
        for base in (sT0, sT1):
            e(f"buffer_store_dword v32, v{t}, {WS}, s{base} offen sc1")
        for i in range(4):
            e(f"buffer_store_dwordx4 v[32:35], v{vL16}, {WS}, s{sFX} offen offset:{1024 * i} sc1")
        e(f"s_lshl_b32 s{sT0}, s{sG}, 2"); e("v_mov_b32 v36, 1")
        e("s_waitcnt vmcnt(0)")
        e("s_mov_b64 exec, 1")
        e(f"buffer_store_dword v36, v32, {DBG}, s{sT0} offen sc1")
        e("s_mov_b64 exec, -1")
        e(f"{nolead}:")
        e(f"s_cmp_lg_u32 s{sW}, 1"); e(f"s_cbranch_scc1 {nocode}")
        e("s_getpc_b64 s[100:101]")
        e("L_pc:")
        e(f"s_sub_u32 s100, s100, L_pc-{NAME}"); e("s_subb_u32 s101, s101, 0")
        e(f"s_mul_i32 s{sT0}, s{sJ}, 1536")
        e(f"v_lshlrev_b32 v{t}, 7, v{vLANE}"); e(f"v_add_u32 v{t}, s{sT0}, v{t}")
        e(f"v_min_u32 v{t}, L_end-{NAME}-4, v{t}")
        e("s_mov_b64 exec, 0xfff")
        e(f"global_load_dword v{vRDY}, v{t}, s[100:101]")
        e("s_mov_b64 exec, -1")
        e(f"{nocode}:")
        self.late_setup(e)
        if self.p["tlb"]:
            notlb = self.lab("notlb")
            e(f"s_cmp_lg_u32 s{sW}, 2"); e(f"s_cbranch_scc1 {notlb}")
            e("s_mov_b64 exec, 1")
            e(f"s_mov_b32 s{sT0}, {WS_SIZE - 128}")
            e(f"buffer_load_dword v{vRDY}, v32, {WS}, s{sT0} offen")
            for srd in (WO, WG, WU, WD, OUT):
                e(f"buffer_load_dword v{vRDY}, v32, {srd}, 0 offen")
            e("s_mov_b64 exec, -1")
            e(f"{notlb}:")
        self.stamp(e, "start")
        e(f"v_and_b32 v{t}, 31, v{vLANE}")
        e(f"v_lshlrev_b32 v{vVA}, 4, v{t}")
        e(f"v_lshlrev_b32 v{t + 1}, 7, v{t}")
        e(f"v_add_u32 v{t + 1}, s{sT5}, v{t + 1}")
        e(f"v_bfe_u32 v{t}, v{vLANE}, 1, 3")
        e(f"v_lshrrev_b32 v{t + 2}, 5, v{vLANE}")
        e(f"v_mul_u32_u24 v{t + 3}, 7168, v{t + 2}"); e(f"v_add_u32 v{vVA}, v{vVA}, v{t + 3}")
        e(f"v_xor_b32 v{t}, v{t}, v{t + 2}")
        for s in range(4):
            e(f"v_xor_b32 v{t + 2}, {2 * s}, v{t}")
            e(f"v_lshl_add_u32 v{vXR[s]}, v{t + 2}, 4, v{t + 1}")
        self.tr_base(e, vW0, 8, 128, 32)
        e(f"v_bfe_u32 v{t}, v{vLANE}, 3, 1")
        e(f"v_lshlrev_b32 v{t}, 6, v{t}")
        e(f"v_add_u32 v{vW0}, {LC}, v{vW0}")
        e(f"v_xor_b32 v{t + 1}, 64, v{t}")
        e(f"v_add_u32 v{vW1}, v{vW0}, v{t + 1}")
        e(f"v_add_u32 v{vW0}, v{vW0}, v{t}")
        e(f"s_lshl_b32 s{sT0}, s{sW}, 11")
        e(f"v_add_u32 v{vC0}, s{sT0}, v{vW0}"); e(f"v_add_u32 v{vC1}, s{sT0}, v{vW1}")
        e(f"v_add_u32 v{vCR}, {L_CS}, v{vL16}")
        e(f"s_lshl_b32 s{sT0}, s{sW}, 2"); e(f"v_add_u32 v{vCS}, s{sT0}, v{vCR}")
        self.tr_base(e, vWQ, 8, 64, 32)
        e(f"v_add_u32 v{vWQ}, {L_WQ}, v{vWQ}")
        e(f"v_mov_b32 v{vONE}, {ONES}"); e(f"v_mov_b32 v{vONE + 1}, {ONES}")
        e(f"v_cndmask_b32 v{vOH}, v{vONE}, 0, {HI}"); e(f"v_mov_b32 v{vOH + 1}, 0")
        for m, val in ((sM1, 0x22222222), (sM2, 0x44444444), (sM3, 0x88888888)):
            e(f"s_mov_b32 s{m}, {val}"); e(f"s_mov_b32 s{m + 1}, {val}")
        e(f"v_and_b32 v{vRA}, 1, v{vLANE}"); e(f"v_min_u32 v{vRA}, s{sG}, v{vRA}")
        e(f"v_sub_u32 v{vRA}, s{sG}, v{vRA}"); e(f"v_lshlrev_b32 v{vRA}, 2, v{vRA}")
        lv, ln, lj = self.lab("formV"), self.lab("formN"), self.lab("kvjoin")
        e(f"s_cmp_ge_u32 s{sHEAD}, 14"); e(f"s_cbranch_scc1 {ln}")
        e(f"s_cmp_ge_u32 s{sHEAD}, 7"); e(f"s_cbranch_scc1 {lv}")
        for kind, lb in (("K", None), (None, ln), ("V", lv)):
            if lb: e(f"{lb}:")
            e.vm, e.ds = [], []
            self.kv_pass(e, kind, R)
            if kind != "V": e(f"s_branch {lj}")
        e(f"{lj}:")
        e.ds = []
        self.stamp(e, "kvst")
        e(f"s_lshl_b32 s{sT4}, s{sMT}, 4"); e(f"s_add_u32 s{sT0}, s{sT4}, s{sHEAD}"); e(f"s_lshl_b32 s{sT0}, s{sT0}, 7")
        e(f"s_add_u32 s{sT2}, s{sT0}, {WS_F1}")
        e(f"v_mov_b32 v{t + 2}, 0"); e(f"v_mov_b32 v{t + 3}, 1")
        def kv_flag():
            e.wait(vm="all")
            nof0 = self.lab("nof0")
            e("s_mov_b64 exec, 3")
            self.check_or_poll(e, vRA, "0", f"v_cmp_ne_u32 vcc, 1, v{vRDY}", vRDY, srd=DBG)
            e("s_mov_b64 exec, 1")
            e.vmem(f"buffer_store_dword v{t + 3}, v{t + 2}, {WS}, s{sT2} offen sc1")
            e(f"s_cmp_lg_u32 s{sW}, 0"); e(f"s_cbranch_scc1 {nof0}")
            e(f"v_mov_b32 v{vRDY}, s{sXCC}")
            e(f"s_lshl_b32 s{sT0}, s{sJ}, 2"); e(f"s_add_u32 s{sT0}, s{sT0}, s{sFX}")
            e(f"buffer_store_dword v{vRDY}, v{t + 2}, {WS}, s{sT0} offen offset:{FX_F0} sc1")
            e(f"{nof0}:")
            e("s_mov_b64 exec, -1")
            self.stamp(e, "fl1")
        if self.p["f1_at"] < 0:
            kv_flag()
        e("s_barrier")
        self.stamp(e, "Bkv")
        vS, aO, vRM, vM = vH, vACC + 32, vRES, 5
        vKA, vKV, vV0, vV1, vPO, vPZ = 7, 8, 9, 10, 224, 228
        side = Stream()
        side(f"v_add_u32 v{vKV}, s{sT5}, v{vL16}")
        side(f"v_lshlrev_b32 v{vKA}, 3, v{vLANE}"); side(f"v_add_u32 v{vKA}, s{sT5}, v{vKA}")
        side(f"v_and_b32 v{t}, 31, v{vLANE}"); side(f"v_lshrrev_b32 v{t + 1}, 5, v{vLANE}")
        side(f"v_lshlrev_b32 v11, 4, v{t + 1}"); side(f"v_add_u32 v11, {L_MISC}, v11")
        side(f"v_lshlrev_b32 v{t + 1}, 2, v{t + 1}"); side(f"v_sub_u32 v{t}, v{t}, v{t + 1}")
        side(f"v_mov_b32 v{t + 1}, {BIG}")
        for r in range(16):
            m = (sM1, sM2, sM3)[r % 3]
            side(f"v_cmp_le_i32 s[{m}:{m + 1}], {8 * (r >> 2) + (r & 3)}, v{t}")
            if r:
                q, m = r - 1, (sM1, sM2, sM3)[(r - 1) % 3]
                side(f"v_cndmask_b32 v{vS + 128 + q}, v{t + 1}, 0, s[{m}:{m + 1}]")
                side(f"v_cndmask_b32 v{vS + 112 + q}, 0, v{t + 1}, s[{m}:{m + 1}]")
        for i in range(4):
            side(f"v_mov_b32 v{vPO + i}, v{vONE}"); side(f"v_mov_b32 v{vPZ + i}, 0")
        side(f"v_cndmask_b32 v{vS + 128 + 15}, v{t + 1}, 0, s[{sM1}:{sM1 + 1}]")
        side(f"v_cndmask_b32 v{vS + 112 + 15}, 0, v{t + 1}, s[{sM1}:{sM1 + 1}]")
        fill = list(side.L)
        def qread(s):
            self.trd(e, wf + 4 * (s % NR), vWQ, 16 * s * 64, 256, ("q", s))
        for s in range(NR - 2):
            qread(s)
        for s in range(0, 28, 2):
            if s == self.p["f1_at"] & ~1:
                kv_flag()
            e.wait(ds=("q", s + 1))
            for k in range(2):
                q = wf + 4 * ((s + k) % NR)
                self.mf4(e, C0, vONE, q, s + k == 0); self.mf4(e, C1, vONE, q + 2, s + k == 0)
                if k == 0 and fill: e(fill.pop(0))
            for k in range(2):
                self.mf(e, aQ, wf + 4 * ((s + k) % NR), vH + 4 * (s + k), "0" if s + k == 0 else None)
                if s + k + NR - 2 < 28:
                    qread(s + k + NR - 2)
                for i in range(2 + k):
                    if fill: e(fill.pop(0))
        assert not fill
        e(f"v_add_f32 v{C0}, v{C0}, v{C1}")
        self.split_hi_lo(e, C0 + 2, C0)
        self.mf8(e, aQ, C0 + 2, vNM)
        e("s_mov_b32 exec_lo, 0xf0000000"); e("s_mov_b32 exec_hi, 0xf0000000")
        for u in range(3):
            for s in range(2):
                e.lds(f"ds_write_b128 v{vKV}, {vr(vPO, 4)} offset:{u * 16384 + 2048 + 1024 * s}")
        e("s_mov_b32 exec_lo, 0"); e("s_mov_b32 exec_hi, 0xffff0000")
        for u in (2, 1, 0):
            if u < 2:
                e(f"s_cmp_ge_u32 s{sRB}, {2 - u}"); e(f"s_cselect_b32 s{sT0}, 0, {BIG >> 16}")
                e(f"v_mov_b32 v{vPZ}, s{sT0}"); e(f"v_mov_b32 v{vPZ + 2}, s{sT0}")
            e.lds(f"ds_write_b128 v{vKV}, {vr(vPZ, 4)} offset:{u * 16384 + 1024}")
        e("s_mov_b64 exec, -1")
        e(f"v_mov_b32 v{t + 2}, 0x3f80")
        vQ = vTMP
        e(f"v_mul_f32 v{vRS}, {f32(28 ** -0.5 * math.log2(math.e))}, v{vRS}")
        e(f"v_mul_f32 v{vMU}, {f32(1 / 16)}, v{vMU}")
        for i in range(16):
            e(f"v_mul_f32 v{aQ + i}, v{vRS}, v{aQ + i}")
        e.wait(ds="all")
        for i in range(8):
            e(f"v_cvt_pk_bf16_f32 v{vQ + i}, v{aQ + 2 * i}, v{aQ + 2 * i + 1}")
        e(f"v_cndmask_b32 v{vQ + 6}, v{vQ + 6}, v{t + 2}, {HI}")
        e(f"v_cndmask_b32 v{vQ + 7}, v{vQ + 7}, 0, {HI}")
        self.stamp(e, "q")
        e(f"s_mul_i32 s{sT0}, s{sHEAD}, 28"); e(f"s_add_u32 s{sT1}, s{sT0}, 27")
        e(f"s_lshr_b32 s{sT0}, s{sT0}, 6"); e(f"s_lshr_b32 s{sT1}, s{sT1}, 6"); e(f"s_sub_u32 s{sT1}, s{sT1}, s{sT0}")
        e(f"v_and_b32 v{t}, s{sT1}, v{vLANE}")
        e(f"v_bfe_u32 v{t + 1}, v{vLANE}, 1, 1"); e(f"v_mad_u32_u24 v{t}, v{t + 1}, 7, v{t}")
        e(f"v_lshrrev_b32 v{t + 1}, 2, v{vLANE}"); e(f"v_lshl_add_u32 v{t}, v{t + 1}, 6, v{t}")
        e(f"v_lshlrev_b32 v{t}, 7, v{t}")
        e(f"s_add_u32 s{sT0}, s{sT0}, s{sT4}"); e(f"s_lshl_b32 s{sT0}, s{sT0}, 7"); e(f"s_add_u32 s{sT0}, s{sT0}, {WS_F1 - 16384}")
        e(f"s_min_u32 s{sT1}, s{sRB}, 2"); e(f"s_lshl_b32 s{sT1}, s{sT1}, 2")
        e(f"s_lshr_b32 s{sT1}, 0xfff00, s{sT1}"); e(f"s_and_b32 exec_lo, s{sT1}, 0xfff"); e("s_mov_b32 exec_hi, 0")
        e(f"s_mul_i32 s{sT2}, s{sMT}, 28672")
        e(f"s_mul_i32 s{sT1}, s{sHEAD}, 1792"); e(f"s_add_u32 s{sT2}, s{sT2}, s{sT1}")
        self.poll(e, t, f"s{sT0}", f"v_cmp_ne_u32 vcc, 1, v{t + 1}", t + 1)
        self.stamp(e, "f1")
        for u in range(3):
            e(f"s_sub_u32 s{sT1}, s{sT2}, {(8 - 4 * u) * 28672}")
            if u < 2:
                e(f"s_cmp_ge_u32 s{sRB}, {2 - u}"); e(f"s_cselect_b32 s{sT1}, s{sT1}, 0x7f000000")
            e(f"s_add_u32 m0, s{sT5}, {u * 16384}")
            e("s_mov_b64 exec, -1")
            e.vmem(f"buffer_load_dwordx4 v{vL16}, {WS}, s{sT1} offen sc1 lds")
            e("s_mov_b32 exec_hi, 0xffff")
            e.vmem(f"buffer_load_dwordx4 v{vL16}, {WS}, s{sT1} offen offset:1024 sc1 lds")
        e("s_mov_b64 exec, -1")
        e.wait(vm="all", ds="all")
        self.stamp(e, "Batt_")
        e("s_barrier")
        self.stamp(e, "Batt")
        def frag(n):
            kv, i = divmod(n, 18)
            if kv:
                e.lds(f"ds_read_b128 {vr(wf + 4 * (n % NR), 4)}, v{vKV} offset:{(i >> 1) * 4096 + 2048 + (i & 1) * 1024}", ("kv", n))
            else:
                o = 8 * (i >> 1) + 2 * (i & 1)
                e.lds(f"ds_read2st64_b64 {vr(wf + 4 * (n % NR), 4)}, v{vKA} offset0:{o} offset1:{o + 1}", ("kv", n))
        for n in range(NR - 1):
            frag(n)
        def maxtile(tt, half):
            b = vS + 16 * tt + 8 * half
            for i in range(0, 8, 2):
                if tt == 0 and half == 0 and i == 0:
                    e(f"v_max_f32 v{vM}, v{b}, v{b + 1}")
                else:
                    e(f"v_max3_f32 v{vM}, v{b + i}, v{b + i + 1}, v{vM}")
        for n in range(18):
            e.wait(ds=("kv", n))
            cin = None if n & 1 or n == 16 else (vr(vS + 112, 16) if n == 0 else "0")
            self.mf(e, vS + 16 * (n >> 1), wf + 4 * (n % NR), vQ + 4 * (n & 1), cin)
            if n + NR - 1 < 18: frag(n + NR - 1)
            if n < 4:
                e.lds(f"ds_read_b128 {vr(vRM + 4 * n, 4)}, v11 offset:{32 * n}", "rm")
            else:
                maxtile((n - 4) >> 1, n & 1)
        self.stamp(e, "qk")
        for n in range(14, 18):
            maxtile(n >> 1, n & 1)
        e(f"v_mov_b32 v{vM + 1}, v{vM}")
        e(f"v_permlane32_swap_b32 v{vM}, v{vM + 1}")
        e(f"v_max_f32 v{vM + 1}, v{vM}, v{vM + 1}")
        for i in range(0, 144, 2):
            e(f"v_pk_add_f32 {vr(vS + i, 2)}, {vr(vS + i, 2)}, {vr(vM + 1, 2)} op_sel_hi:[1,0] neg_lo:[0,1] neg_hi:[0,1]")
        self.stamp(e, "sub")
        e.wait(vm="all", ds="all")
        self.mode_issue(e, 3, vRDY)
        e("s_barrier")
        self.stamp(e, "Bm")
        for n in range(18, 18 + NR - 1):
            frag(n)
        pend = []
        for hb in range(18):
            b = vS + 8 * hb
            for i in range(8):
                e(f"v_exp_f32 v{b + i}, v{b + i}")
                if i == 2 and pend:
                    n = pend.pop()
                    e.wait(ds=("kv", 18 + n))
                    self.mf(e, aO, wf + 4 * ((18 + n) % NR), vS + 8 * n, "0" if n == 0 else None)
                    if 18 + n + NR - 1 < 36:
                        frag(18 + n + NR - 1)
            for i in range(4):
                e(f"v_cvt_pk_bf16_f32 v{b + i}, v{b + 2 * i}, v{b + 2 * i + 1}")
            pend.append(hb)
            if hb == self.p["m2at"]:
                e("s_barrier")
                self.stamp(e, "Bm2")
        e.wait(ds="all")
        self.mf(e, aO, wf + 4 * (35 % NR), vS + 8 * 17)
        e(f"s_lshl_b32 s{sT0}, s{sMT}, 4"); e(f"s_add_u32 s{sT0}, s{sT0}, s{sHEAD}"); e(f"s_lshl_b32 s{sT0}, s{sT0}, 11")
        e(f"s_add_u32 s{sT0}, s{sT0}, {WS_O}")
        e(f"s_and_b32 s{sT1}, s{sMT}, 7"); e(f"s_lshl_b32 s{sT1}, s{sT1}, 5"); e(f"s_add_u32 s{sT1}, s{sT1}, s{sHEAD}")
        e(f"s_lshl_b32 s{sT1}, s{sT1}, 2"); e(f"s_add_u32 s{sT1}, s{sT1}, s{sFX}")
        self.stamp(e, "pv")
        self.mode_check(e, 3, vRDY)
        e(f"v_mov_b32 v{t}, v{aO + 12}"); e(f"v_mov_b32 v{t + 1}, v{aO + 12}")
        e(f"v_mul_f32 v{t + 2}, v{aO}, v{vRM}")
        e(f"v_mul_f32 v{t + 3}, v{aO + 1}, v{vRM + 1}")
        e(f"v_permlane32_swap_b32 v{t}, v{t + 1}")
        e(f"v_rcp_f32 v{t + 1}, v{t + 1}")
        for i in range(2, 16):
            e(f"v_fmac_f32 v{t + 2 + (i & 1)}, v{aO + i}, v{vRM + i}")
        e(f"v_add_f32 v{t + 2}, v{t + 2}, v{t + 3}")
        e(f"v_mov_b32 v{t + 3}, v{t + 2}")
        for i in range(8):
            e(f"v_mul_f32 v{aO + i}, v{t + 1}, v{aO + i}")
        e(f"v_permlane32_swap_b32 v{t + 2}, v{t + 3}")
        for i in range(4):
            e(f"v_cvt_pk_bf16_f32 v{vQ + i}, v{aO + 2 * i}, v{aO + 2 * i + 1}")
        e(f"v_add_f32 v{t + 2}, v{t + 2}, v{t + 3}")
        e(f"v_fma_f32 v{t + 2}, v{t + 2}, v{t + 1}, v{vMU}")
        for i in range(8, 16):
            e(f"v_mul_f32 v{aO + i}, v{t + 1}, v{aO + i}")
        self.split_hi_lo(e, vCP, t + 2)
        for i in range(4, 8):
            e(f"v_cvt_pk_bf16_f32 v{vQ + i}, v{aO + 2 * i}, v{aO + 2 * i + 1}")
        e(f"v_cndmask_b32 v{vQ + 6}, v{vQ + 6}, v{vCP}, {HI}")
        e(f"v_cndmask_b32 v{vQ + 7}, v{vQ + 7}, 0, {HI}")
        self.stamp(e, "att")
        self.publish(e, [f"buffer_store_dwordx4 {vr(vQ + 4 * i, 4)}, v{vL16}, {WS}, s{sT0} offen offset:{1024 * i}" for i in range(2)], wt=self.p["ohwt"] & 1)
        e(f"v_mov_b32 v{t}, 0"); e(f"v_mov_b32 v{t + 1}, 1")
        e.wait(vm="all")
        e("s_mov_b64 exec, 1")
        self.publish(e, [f"buffer_store_dword v{t + 1}, v{t}, {WS}, s{sT1} offen offset:{FX_F2}"])
        e("s_mov_b64 exec, -1")
        self.stamp(e, "opub")
        if self.stop > 2:
            e(f"s_cmp_ge_u32 s{sJ}, 28"); e("s_cbranch_scc1 L_Ldone")
            self.ffn_setup(e, 0)
            self.out_addr(e)
            e("s_barrier")
            self.stamp(e, "Bp")
            for op in self.gu_ops(e, WU, L_UP, range(self.p["upe"]), "up"): op()
            e("s_barrier")
            self.stamp(e, "Bx")
        if self.stop > 3:
            self.ffn_L(e)
        e("L_Ldone:")
        self.finish(e, 0)
        return e

    def ffn_setup(self, e, role):
        self.rows128_src(e, vD, 896, 64, lambda i: 128 * i)
        self.tr_base(e, vP[0], 4, 128, 32)
        e(f"v_bfe_u32 v{t}, v{vLANE}, 3, 1"); e(f"v_lshlrev_b32 v{t}, 6, v{t}")
        e(f"v_xor_b32 v{t + 1}, 64, v{t}")
        e(f"s_mov_b32 s{sT0}, {L_GATE}"); e(f"s_mov_b32 s{sT1}, {L_UP}")
        e(f"v_add3_u32 v{vP[1]}, v{vP[0]}, v{t + 1}, s{sT0}")
        e(f"v_add3_u32 v{vP[2]}, v{vP[0]}, v{t}, s{sT1}")
        e(f"v_add3_u32 v{vP[3]}, v{vP[0]}, v{t + 1}, s{sT1}")
        e(f"v_add3_u32 v{vP[0]}, v{vP[0]}, v{t}, s{sT0}")
        if role == 0:
            self.rows128_src(e, vGA, 3584, 64, lambda i: 8 * i)
        self.w5_base(e)
        e(f"s_mul_i32 s{sT0}, s{sKH}, 14336")
        for k in range(2):
            e(f"v_add_u32 v{vW5[k]}, s{sT0}, v{vW5[k]}")
        e(f"s_lshl_b32 s{sT1}, s{sG}, 2"); e(f"s_add_u32 s{sT1}, s{sT1}, s{sMG}"); e(f"s_lshl_b32 s{sT1}, s{sT1}, 1")
        e(f"s_add_u32 s{sA5}, s{sT1}, s{sMI}")
        e(f"s_mul_i32 s{sWD}, s{sKH}, {896 * 896}"); e(f"s_mul_i32 s{sT0}, s{sMI}, {8 * 896}")
        e(f"s_add_u32 s{sWD}, s{sWD}, s{sT0}"); e(f"s_lshl_b32 s{sT0}, s{sNG}, 7"); e(f"s_add_u32 s{sWD}, s{sWD}, s{sT0}")
        e(f"s_xor_b32 s{sML}, s{sPAR}, {role}"); e(f"s_lshl_b32 s{sML}, s{sML}, 2"); e(f"s_add_u32 s{sML}, s{sML}, s{sW}")
        e(f"s_lshl_b32 s{sMT}, s{sG}, 3"); e(f"s_add_u32 s{sMT}, s{sMT}, s{sML}")
        e(f"s_lshr_b32 s{sT1}, s{sJ}, 1"); e(f"s_lshl_b32 s{sT1}, s{sT1}, 10")
        for k, dst in enumerate((sACT, sAC2)):
            base, stride = ACTLOC[0 if self.p.get("fake", 0) & 4 else role][k]
            e(f"s_mul_i32 s{sT0}, s{sMT}, {stride}"); e(f"s_add_u32 s{sT0}, s{sT0}, s{sT1}"); e(f"s_add_u32 s{dst}, s{sT0}, {base}")
        e(f"s_lshl_b32 s{sT0}, s{sML}, 5"); e(f"s_add_u32 s{sT0}, s{sT0}, s{sJ}"); e(f"s_lshl_b32 s{sT0}, s{sT0}, 2")
        e(f"s_add_u32 s{sT0}, s{sT0}, s{sFX}"); e(f"s_add_u32 s{sF4P}, s{sT0}, {FX_F4}")
        e(f"s_lshl_b32 s{sT0}, s{sMG}, 1"); e(f"s_add_u32 s{sT0}, s{sT0}, s{sMI}"); e(f"s_lshl_b32 s{sT0}, s{sT0}, 7")
        e(f"s_mul_i32 s{sT1}, s{sKH}, 56"); e(f"s_add_u32 s{sT0}, s{sT0}, s{sT1}")
        e(f"s_add_u32 s{sT0}, s{sT0}, s{sFX}"); e(f"s_add_u32 s{sF4C}, s{sT0}, {FX_F4}")
        e(f"v_lshlrev_b32 v{vPA}, 2, v{vLANE}")
        e(f"v_and_b32 v{vPR}, 1, v{vLANE}"); e(f"v_xor_b32 v{vPR}, s{sHF}, v{vPR}")

    def w5_base(self, e, vW5=vW5):
        self.tr_base(e, vW5[0], 4, 128, 32)
        e(f"v_bfe_u32 v{t}, v{vLANE}, 3, 1"); e(f"v_xor_b32 v{t}, s{sKH}, v{t}"); e(f"v_lshlrev_b32 v{t}, 6, v{t}")
        e(f"v_xor_b32 v{t + 1}, 64, v{t}")
        e(f"v_add_u32 v{vW5[1]}, v{vW5[0]}, v{t + 1}")
        e(f"v_add_u32 v{vW5[0]}, v{vW5[0]}, v{t}")

    def gu_ops(self, e, srd, base, cs, tag):
        ops = []
        if self.p.get("fake", 0) & 2: srd = WG
        for c in cs:
            for i in range(2):
                def op(c=c, i=i):
                    if i == 0:
                        e(f"s_add_u32 s{sT2}, s{sG}, {c}"); e(f"s_cmp_ge_u32 s{sT2}, 7"); e(f"s_cselect_b32 s{sT3}, 7, 0")
                        e(f"s_sub_u32 s{sT2}, s{sT2}, s{sT3}"); e(f"s_lshl_b32 s{sT2}, s{sT2}, 2"); e(f"s_add_u32 s{sT2}, s{sT2}, s{sW}")
                        e(f"s_lshl_b32 s{sT3}, s{sT2}, 11"); e(f"s_add_u32 m0, s{sT3}, {base}")
                        e(f"s_mul_i32 s{sT2}, s{sT2}, {16 * 3584}"); e(f"s_lshl_b32 s{sT3}, s{sJ}, 7"); e(f"s_add_u32 s{sT2}, s{sT2}, s{sT3}")
                    e.vmem(f"buffer_load_dwordx4 v{vGA[i]}, {srd}, s{sT2} offen offset:{1024 * i} lds", tag)
                ops.append(op)
        return ops

    def paced(self, e, ops, depth):
        for i, op in enumerate(ops):
            if i > depth:
                e(f"s_waitcnt vmcnt({depth})")
            op()

    def wd_ops(self, e, qs):
        ops = []
        for q in qs:
            role, tile = CHUNK[q]
            if self.p.get("fake", 0) & 1: role, tile = 0, 0
            for grp in range(2):
                for i in range(4 - grp):
                    def op(q=q, role=role, tile=tile, grp=grp, i=i):
                        if i == 0:
                            e(f"s_xor_b32 s{sT2}, s{sHF}, {role}"); e(f"s_mul_i32 s{sT2}, s{sT2}, {64 * 896}")
                            e(f"s_add_u32 s{sT2}, s{sT2}, s{sWD}")
                            e(f"s_add_u32 s{sT2}, s{sT2}, {(16 * tile + 512 * grp) * 896}")
                            e(f"s_mul_i32 s{sT3}, s{sW}, 7168"); e(f"s_add_u32 m0, s{sT3}, {SLOT[q] + 4096 * grp}")
                        e.vmem(f"buffer_load_dwordx4 v{vD[i]}, {WD}, s{sT2} offen offset:{1024 * i} lds", ("wd", q))
                    ops.append(op)
        return ops

    def wd_dma(self, e, qs):
        for op in self.wd_ops(e, qs):
            op()

    def h_poll(self, e, between=None):
        e(f"s_lshl_b32 s{sT0}, s{sML}, 7"); e(f"s_add_u32 s{sT0}, s{sT0}, s{sFX}"); e(f"s_add_u32 s{sT0}, s{sT0}, {FX_F3}")
        e(f"s_mul_i32 s{sT4}, s{sMT}, 28672"); e(f"s_add_u32 s{sT4}, s{sT4}, {WS_H}")
        e(f"s_lshl_b32 s{sT5}, s{sMT}, 11"); e(f"s_add_u32 s{sT5}, s{sT5}, {WS_SS}")
        e("s_mov_b64 exec, 0x3fff")
        self.poll(e, vPA, f"s{sT0}", f"v_cmp_ne_u32 vcc, 1, v{vSM}", vSM)
        e("s_mov_b64 exec, -1")

    def h_load(self, e, s):
        e.vmem(f"buffer_load_dwordx4 {vr(vH + 4 * s, 4)}, v{vL16}, {WS}, s{sT4} offen offset:{1024 * (s & 3)} sc1", ("h", s))
        if s & 3 == 3:
            e(f"s_add_u32 s{sT4}, s{sT4}, 4096")

    def ss_load(self, e, i):
        e.vmem(f"buffer_load_dword v{vSS + i}, v{vPA}, {WS}, s{sT5} offen offset:{256 * i} sc1", "ss")

    KMAJ = [(s, k) for s in range(28) for k in range(2)]
    TMAJ = [(s, k) for k in range(2) for s in range(28)]

    def gu_rd(self, e, mat, order, n):
        s, k = order[n]
        self.trd(e, vRING + 4 * (n % NR), vP[2 * mat + k], 16 * s * 128, 1024, ("g", n))

    def gu_pre(self, e, mat, order):
        for n in range(NR - 1):
            self.gu_rd(e, mat, order, n)

    def gu_pass(self, e, mat, order, accs, hook=None, wait_h=False):
        for n, (s, k) in enumerate(order):
            e.wait(vm=("h", s) if (wait_h and k == 0) else None, ds=("g", n))
            self.mf(e, accs[k], vRING + 4 * (n % NR), vH + 4 * s, "0" if s == 0 else None)
            if n + NR - 1 < 56:
                self.gu_rd(e, mat, order, n + NR - 1)
            if hook:
                hook(n)

    def gelu_consts(self, e):
        k1 = 2 * math.sqrt(2 / math.pi) * math.log2(math.e)
        e.wait(vm="ss")
        for i in range(3):
            e(f"v_add_f32 v{vSS + i}, v{vSS + i}, v{vSS + 3 + i}")
        e(f"v_add_f32 v{vSS}, v{vSS}, v{vSS + 6}")
        e(f"v_add_f32 v{vSS + 1}, v{vSS + 1}, v{vSS + 2}")
        e(f"v_add_f32 v{vSS}, v{vSS}, v{vSS + 1}")
        e(f"v_mov_b32 v{vSS + 1}, v{vSS}")
        e(f"v_permlane32_swap_b32 v{vSS}, v{vSS + 1}")
        e(f"v_add_f32 v{vSS}, v{vSS}, v{vSS + 1}")
        e(f"v_mul_f32 v{vSS}, {f32(1 / 448)}, v{vSS}")
        e(f"v_add_f32 v{vRI}, {f32(1e-5)}, v{vSS}")
        e(f"v_rsq_f32 v{vSS}, v{vRI}")
        e(f"v_mul_f32 v{vK1}, {f32(-k1)}, v{vSS}")
        e(f"v_mul_f32 v{vSS}, v{vSS}, v{vSS}")
        e(f"v_mul_f32 v{vSS}, {f32(0.044715)}, v{vSS}")
        e(f"v_mul_f32 v{vK2}, v{vSS}, v{vK1}")

    def gelu_gate(self, e, ops=()):
        T = vTMP
        ops = list(ops)
        per = -(-len(ops) // 12)
        def side():
            for i in range(per):
                if ops: ops.pop(0)()
        for a in range(vACC, vACC + 32, 8):
            side()
            for i in range(8): e(f"v_mul_f32 v{T + i}, v{a + i}, v{a + i}")
            for i in range(8): e(f"v_fma_f32 v{T + i}, v{T + i}, v{vK2}, v{vK1}")
            for i in range(8): e(f"v_mul_f32 v{T + i}, v{T + i}, v{a + i}")
            side()
            for i in range(8): e(f"v_exp_f32 v{T + i}, v{T + i}")
            for i in range(8): e(f"v_fma_f32 v{T + i}, v{T + i}, v{vRI}, v{vRI}")
            side()
            for i in range(8): e(f"v_rcp_f32 v{T + i}, v{T + i}")
            for i in range(8): e(f"v_mul_f32 v{a + i}, v{T + i}, v{a + i}")
        assert not ops

    def prod_ops(self, e, k):
        g, u = vACC + 16 * k, UACC[k]
        ops = []
        for hf in range(2):
            b = 8 * hf
            for i in range(0, 8, 2):
                ops.append(lambda b=b, i=i: [e(f"v_mul_f32 v{u + b + j}, v{g + b + j}, v{u + b + j}") for j in (i, i + 1)])
            for i in range(0, 4, 2):
                ops.append(lambda b=b, i=i: [e(f"v_cvt_pk_bf16_f32 v{u + b + j}, v{u + b + 2 * j}, v{u + b + 2 * j + 1}") for j in (i, i + 1)])
            def st(b=b, tile=2 * k + hf):
                e(f"s_add_u32 s{sT0}, s{(sACT, sAC2)[k]}, {(tile & 1) * 14336}")
                self.publish(e, [f"buffer_store_dwordx4 {vr(u + b, 4)}, v{vL16}, {WS}, s{sT0} offen"], ("act", tile), wt=e.role == 1 and not self.p.get("fake", 0) & 4)
                self.last_act = ("act", tile)
            ops.append(st)
        return ops

    def up_pass(self, e, flag_at, extra=None):
        ops = self.prod_ops(e, 0)
        def hook(n):
            if n >= 30 and ops: ops.pop(0)()
            if n == flag_at: self.act_flag(e, 2)
            if extra: extra(n)
        self.gu_pass(e, 1, self.TMAJ, UACC, hook)
        assert not ops

    def act_flag(self, e, stage):
        e(f"v_mov_b32 v{vFL}, {stage}")
        e.wait(vm=self.last_act if stage > 1 else "ss")
        e("s_mov_b64 exec, 1")
        self.publish(e, [f"buffer_store_dword v{vFL}, v{vPA}, {WS}, s{sF4P} offen"], "flag")
        e("s_mov_b64 exec, -1")

    def act_sample(self, e):
        e("s_mov_b64 exec, 0x3fff")
        e.vmem(f"buffer_load_dword v{vSM}, v{vPA}, {WS}, s{sF4C} offen sc1", "sample")
        e("s_mov_b64 exec, -1")

    def act_check(self, e, st0, st1):
        e(f"v_mad_i32_i24 v{t}, v{vPR}, {st1 - st0}, {st0}")
        e.wait(vm="sample")
        e("s_mov_b64 exec, 0x3fff")
        self.check_or_poll(e, vPA, f"s{sF4C}", f"v_cmp_gt_u32 vcc, v{t}, v{vSM}", vSM)
        e("s_mov_b64 exec, -1")

    def act_ops(self, e, q):
        role, tile = CHUNK[q]
        ops = []
        for s in range(7):
            def op(s=s):
                if s == 0:
                    base, stride = ACTLOC[0 if self.p.get("fake", 0) & 4 else role][tile >> 1]
                    e(f"s_mul_i32 s{sT1}, s{sA5}, {stride}"); e(f"s_mul_i32 s{sT0}, s{sKH}, 7168")
                    e(f"s_add_u32 s{sT1}, s{sT1}, s{sT0}"); e(f"s_add_u32 s{sT1}, s{sT1}, {base + (tile & 1) * 14336}")
                e.vmem(f"buffer_load_dwordx4 {vr(ABUF[q % 5] + 4 * s, 4)}, v{vL16}, {WS}, s{sT1} offen offset:{1024 * (s & 3)} sc1", ("a", q, s))
                if s == 3:
                    e(f"s_add_u32 s{sT1}, s{sT1}, 4096")
            ops.append(op)
        return ops

    def act_load(self, e, q):
        for op in self.act_ops(e, q):
            op()

    def down_rd(self, e, qs, n):
        c, r = divmod(n, 14)
        s, k = divmod(r, 2)
        if r == 0:
            if qs[c] in (3, 5, 6, 7):
                e("s_barrier")
                self.stamp(e, f"X{qs[c]}")
            for kk in range(2):
                e(f"v_add_u32 v{vW5t[kk]}, {SLOT[qs[c]]}, v{vW5[kk]}")
        self.trd(e, vRING + 4 * (n % NR), vW5t[k], 1024 * s, 7168, ("d", n))

    def down_pre(self, e, qs):
        for n in range(NR - 1):
            self.down_rd(e, qs, n)

    def down_chunks(self, e, qs, acc, cinit, hook=None):
        N = 14 * len(qs)
        for n in range(N):
            c, r = divmod(n, 14)
            s, k = divmod(r, 2)
            q = qs[c]
            e.wait(vm=("a", q, s) if k == 0 else None, ds=("d", n))
            self.mf(e, acc[k], vRING + 4 * (n % NR), ABUF[q % 5] + 4 * s, cinit[k] if n < 2 else None)
            if n + NR - 1 < N:
                self.down_rd(e, qs, n + NR - 1)
            if hook:
                hook(q, r)

    def out_addr(self, e):
        e(f"v_and_b32 v{vXO}, 31, v{vLANE}"); e(f"v_mul_u32_u24 v{vXO}, 896, v{vXO}")
        e(f"v_lshrrev_b32 v{t + 1}, 5, v{vLANE}")
        e(f"v_lshl_add_u32 v{vXO}, v{t + 1}, 4, v{vXO}")
        e(f"s_lshl_b32 s{sT0}, s{sG}, 2"); e(f"s_add_u32 s{sT0}, s{sT0}, s{sMG}"); e(f"s_lshl_b32 s{sT0}, s{sT0}, 1")
        e(f"s_add_u32 s{sT0}, s{sT0}, s{sMI}")
        e(f"s_mul_i32 s{sXO}, s{sT0}, {32 * 896}"); e(f"s_lshl_b32 s{sT1}, s{sNG}, 1"); e(f"s_add_u32 s{sT1}, s{sT1}, s{sKH}")
        e(f"s_lshl_b32 s{sT1}, s{sT1}, 6"); e(f"s_add_u32 s{sXO}, s{sXO}, s{sT1}")

    def first_pass(self, e, pre, extra):
        for s in range(pre):
            self.h_load(e, s)
        self.stamp(e, "hpre")
        ops = [lambda s=s: self.h_load(e, s) for s in range(pre, 28)]
        ops += [lambda: [self.ss_load(e, i) for i in range(7)]] + extra
        def hook(n):
            if n & 1 == 0 and ops: ops.pop(0)()
        self.gu_pass(e, 0, self.KMAJ, [vACC, vACC + 16], hook, wait_h=True)
        assert not ops

    def ffn_L(self, e):
        A0, A1 = vACC, vACC + 16
        p = self.p
        full = self.stop > 4
        self.gu_pre(e, 0, self.KMAJ)
        self.h_poll(e)
        self.stamp(e, "hpoll")
        e("s_setprio 2")
        self.first_pass(e, p["pre"], [lambda: e("s_barrier")])
        self.stamp(e, "seg1")
        self.act_flag(e, 1)
        self.gelu_consts(e)
        self.gelu_gate(e, self.gu_ops(e, WU, L_UP, range(p["upe"] + p["ups"], 7), "up"))
        e.wait(vm="up")
        self.stamp(e, "gelu1")
        e("s_barrier")
        self.stamp(e, "Bb")
        self.gu_pre(e, 1, self.TMAJ)
        e(f"s_lshl_b32 s{sT4}, s{sJ}, 2"); e(f"s_sub_u32 s{sT4}, s{sF4P}, s{sT4}")
        def extra(n):
            if n == 24:
                e("s_mov_b64 exec, 0xfffffff")
                e.vmem(f"buffer_load_dword v{vSM}, v{vPA}, {WS}, s{sT4} offen sc1", "sample")
                e("s_mov_b64 exec, -1")
        self.up_pass(e, p["fl1"], extra)
        self.stamp(e, "seg3")
        e.wait(vm="sample")
        e("s_mov_b64 exec, 0xfffffff")
        self.check_or_poll(e, vPA, f"s{sT4}", f"v_cmp_eq_u32 vcc, 0, v{vSM}", vSM)
        e("s_mov_b64 exec, -1")
        ops = self.prod_ops(e, 1)
        for op in ops[:6]: op()
        if full: self.act_sample(e)
        for op in ops[6:]: op()
        if not full:
            self.act_flag(e, 3)
            return
        e(f"s_lshl_b32 s{sT0}, s{sW}, 12"); e(f"v_add_u32 v{t + 1}, s{sT0}, v{vL16}"); e(f"v_xor_b32 v{t + 2}, 8192, v{t + 1}")
        e(f"s_xor_b32 s{sT0}, s{sW}, 2"); e(f"s_lshl_b32 s{sT0}, s{sT0}, 8"); e(f"v_add_u32 v{t + 3}, s{sT0}, v{vPA}")
        for i in range(4):
            e.lds(f"ds_read_b128 {vr(A0 + 4 * i, 4)}, v{t + 2} offset:{L_RES + 1024 * i}")
        e.lds(f"ds_read_b32 v{vMU2}, v{t + 3} offset:{L_MU}")
        e(f"v_add_u32 v{t + 1}, {L_XCH5}, v{t + 1}"); e(f"v_add_u32 v{t + 2}, {L_XCH5}, v{t + 2}")
        self.act_flag(e, 3)
        self.act_check(e, 2, 0)
        self.stamp(e, "chk1")
        self.act_load(e, 0)
        self.act_sample(e)
        self.act_load(e, 1)
        e.wait(ds="all")
        for i in range(16):
            e(f"v_add_f32 v{A0 + i}, v{vMU2}, v{A0 + i}")
        self.act_check(e, 3, 0)
        self.act_load(e, 2)
        qs = list(range(8))
        self.stamp(e, "Bd_")
        e("s_barrier")
        self.stamp(e, "Bd")
        self.down_pre(e, qs)
        early, mid, late = self.act_ops(e, 3), self.act_ops(e, 4) + self.act_ops(e, 5), self.act_ops(e, 6) + self.act_ops(e, 7)
        s1, s2 = p.get("s1", 21), p.get("s2", 51)
        def hook(q, r):
            n = 14 * q + r
            if n in (s1 - 8, s2 - 8): self.act_sample(e)
            if n & 1 == 0 and early: early.pop(0)()
            if n == s1: self.act_check(e, 3, 2)
            if n > s1 and n & 1 == 0 and mid: mid.pop(0)()
            if n == s2:
                assert not mid
                self.act_check(e, 3, 3)
            if n > s2 and n & 1 == 0 and late: late.pop(0)()
        self.down_chunks(e, qs, [A0, A1], [None, "0"], hook)
        self.stamp(e, "dn")
        for i in range(4):
            e.lds(f"ds_write_b128 v{t + 1}, {vr(A1 + 4 * i, 4)} offset:{1024 * i}")
        e.wait(ds="all")
        e("s_barrier")
        for i in range(4):
            e.lds(f"ds_read_b128 {vr(A1 + 4 * i, 4)}, v{t + 2} offset:{1024 * i}", ("x", i))
        PK = vH
        for i in range(4):
            e.wait(ds=("x", i))
            for k in (0, 2):
                r = 4 * i + k
                e(f"v_pk_add_f32 {vr(A0 + r, 2)}, {vr(A0 + r, 2)}, {vr(A1 + r, 2)}")
            for k in (0, 2):
                r = 4 * i + k
                e(f"v_cvt_pk_bf16_f32 v{PK + r // 2}, v{A0 + r}, v{A0 + r + 1}")
            if i & 1:
                b = PK + 2 * (i - 1)
                e(f"v_permlane32_swap_b32 v{b}, v{b + 2}")
                e(f"v_permlane32_swap_b32 v{b + 1}, v{b + 3}")
                e.vmem(f"buffer_store_dwordx4 {vr(b, 4)}, v{vXO}, {OUT}, s{sXO} offen offset:{16 * (i - 1)} {('', 'sc1', 'nt', 'sc0 sc1')[p['outfl']]}")

    SCHED = ["WX.TWX|WWX|WX|WXWX|XQQ|QQQ|QQ|",
             "WX.TWX|WWX|WXWX|WX|XQQ|QQQ|QQ|",
             "WX.TWX|WWX|WX|WXWX|X|QQQ|QQ|QQ",
             "TWX.WX|WWX|WXWX|WXQ|XQQ|QQ|QQ|",
             "WX.TWX|WWXWX|WX|WXQ|XQQ|QQ|QQ|",
             "WWX.TWX|WX|WXWX|WX|XQQ|QQQ|QQ|"]

    def wvis(self):
        out, w = [], 0
        for ch in self.SCHED[self.p["sched"]]:
            if ch == "W": w += 1
            if ch == "X": out.append(w - 1)
        return out

    def role_S(self):
        e = Stream(); e.role = 1
        p = self.p
        vXA, vWA, vQA = [4, 5, 6, 7], [8, 9], 10
        e(f"v_lshrrev_b32 v{t}, 3, v{vLANE}")
        e(f"v_mul_u32_u24 v{t + 1}, 896, v{t}")
        e(f"v_lshrrev_b32 v{t}, 1, v{t}")
        e(f"v_and_b32 v{t + 2}, 7, v{vLANE}")
        e(f"v_xor_b32 v{t}, v{t}, v{t + 2}")
        e(f"v_lshl_add_u32 v{vXA[0]}, v{t}, 4, v{t + 1}")
        e(f"v_xor_b32 v{t}, 4, v{t}")
        e(f"v_lshl_add_u32 v{vXA[1]}, v{t}, 4, v{t + 1}")
        e(f"v_add_u32 v{vXA[2]}, {16 * 896 - 2048}, v{vXA[0]}")
        e(f"v_add_u32 v{vXA[3]}, {24 * 896 - 3072}, v{vXA[1]}")
        e(f"v_add_u32 v{vXA[1]}, {8 * 896 - 1024}, v{vXA[1]}")
        self.rows128_src(e, vWA, 2688, 64, lambda i: 8 * i)
        e(f"v_lshlrev_b32 v24, 7, v{vLANE}")
        sKX, sWB = sA5, sACT
        e(f"s_mov_b32 s{sKX}, s{sKC}")
        e(f"s_mul_i32 s{sT4}, s{sMT}, {32 * 896}")
        e(f"s_mul_i32 s{sT3}, s{sW}, {16 * 2688}"); e(f"s_lshl_b32 s{sT0}, s{sHEAD}, 7"); e(f"s_add_u32 s{sWB}, s{sT3}, s{sT0}")
        e(f"s_add_u32 s{sWB}, s{sWB}, 896"); e(f"s_cmp_lt_u32 s{sHEAD}, 14"); e(f"s_cselect_b32 s{sWB}, s{sWB}, 0x7f000000")
        e(f"s_mul_i32 s{sT0}, s{sHEAD}, 56"); e(f"s_add_u32 s{sT3}, s{sT3}, s{sT0}")
        e(f"s_lshl_b32 s{sT2}, s{sW}, 11")
        sXT, vXT = sWD, 23
        e(f"s_lshl_b32 s{sXT}, s{sRB}, 4"); e(f"s_add_u32 s{sXT}, s{sXT}, s{sHEAD}"); e(f"s_lshl_b32 s{sXT}, s{sXT}, 2")
        e(f"s_add_u32 s{sXT}, s{sXT}, s{sW}"); e(f"s_mul_i32 s{sXT}, s{sXT}, 1792")
        e(f"v_lshrrev_b32 v{vXT}, 1, v{vLANE}"); e(f"v_add_u32 v{vXT}, s{sKC}, v{vXT}")
        e(f"v_subrev_u32 v{t}, 7, v{vXT}"); e(f"v_min_u32 v{vXT}, v{vXT}, v{t}")
        e(f"v_and_b32 v{t}, 1, v{vLANE}"); e(f"v_mul_u32_u24 v{t}, 896, v{t}"); e(f"v_lshl_add_u32 v{vXT}, v{vXT}, 7, v{t}")
        def xtouch(mask):
            e(f"s_mov_b64 exec, {mask}")
            e.vmem(f"buffer_load_dword v25, v{vXT}, {X_}, s{sXT} offen")
            e("s_mov_b64 exec, -1")
        self.got_args(e)
        def wkv(ic):
            e(f"s_add_u32 m0, s{sT2}, {LC + ic * 8192}")
            e(f"s_mul_i32 s{sT0}, s{sKC}, {64 * 2688}"); e(f"s_add_u32 s{sT0}, s{sT0}, s{sWB}")
            self.dma4(e, WQKV, vWA, f"s{sT0}", n=2)
            self.next_kc(e)
        def xch(ic):
            e(f"s_add_u32 m0, s{sT5}, {(ic % 4) * 16384}")
            e(f"s_lshl_b32 s{sT0}, s{sKX}, 7"); e(f"s_add_u32 s{sT0}, s{sT0}, s{sT4}")
            self.dma4(e, X_, vXA, f"s{sT0}", tag=("c", ic))
            self.next_kc(e, sKX)
        def wq(ic):
            e(f"s_lshr_b32 s{sT1}, s{sT2}, 1"); e(f"s_add_u32 m0, s{sT1}, {L_WQ + ic * 4096}")
            e(f"s_mul_i32 s{sT0}, s{sKC}, {64 * 2688}"); e(f"s_add_u32 s{sT0}, s{sT0}, s{sT3}")
            self.dma4(e, WQKV, [vQA], f"s{sT0}", n=1, tag="wq")
            self.next_kc(e)
        if p["pull"]:
            e(f"s_cmp_ge_u32 s{sJ}, 28"); e("s_cbranch_scc1 L_pull")
            e("L_pulled:")
            self.pull(vXT, sXT)
        cnt = dict(W=0, X=0, Q=0, b=0)
        def run(chars):
            for ch in chars:
                if ch == "W": wkv(cnt[ch])
                elif ch == "X":
                    assert cnt["X"] < 4 or cnt["b"] >= cnt["X"] - 2
                    xch(cnt[ch])
                elif ch == "Q":
                    assert cnt["W"] == 7
                    wq(cnt[ch])
                elif ch == "T": xtouch(0x3ffc)
                elif ch == "|":
                    ch = "b"
                    e.wait(vm=("c", cnt[ch]))
                    self.stamp(e, f"b{cnt[ch]}")
                    e("s_barrier")
                if ch in cnt: cnt[ch] += 1
        first, rest = self.SCHED[p["sched"]].split(".")
        run(first)
        self.late_setup(e)
        self.stamp(e, "start")
        head, rest = rest.split("|", 1)
        run(head)
        self.rows64_src(e, [vQA], 2688, 0)
        vA, vRA, vRMr = [12, 13, 14, 15], 11, 160
        self.rows128_src(e, vA, 896, 64, lambda i: 8 * i)
        e(f"v_lshrrev_b32 v{vRA}, 3, v{vLANE}"); e(f"v_mul_u32_u24 v{vRA}, 896, v{vRA}")
        e(f"v_and_b32 v{t + 1}, 7, v{vLANE}"); e(f"v_lshl_add_u32 v{vRA}, v{t + 1}, 4, v{vRA}")
        def rm_load(r):
            e(f"s_lshl_b32 s{sT0}, s{sHEAD}, 2"); e(f"s_add_u32 s{sT0}, s{sT0}, s{sW}"); e(f"s_mul_i32 s{sT0}, s{sT0}, {7 * 896}")
            for i in r:
                e.vmem(f"buffer_load_dwordx4 {vr(vRMr + 4 * i, 4)}, v{vRA}, {WO}, s{sT0} offen offset:{128 * i}", "rm")
        def xr_load():
            e(f"s_lshl_b32 s{sT0}, s{sG}, 2"); e(f"s_add_u32 s{sT0}, s{sT0}, s{sMG}"); e(f"s_lshl_b32 s{sT0}, s{sT0}, 2")
            e(f"s_add_u32 s{sT0}, s{sT0}, s{sW}"); e(f"s_mul_i32 s{sT0}, s{sT0}, {16 * 896}")
            e(f"s_lshl_b32 s{sT1}, s{sNG}, 7"); e(f"s_add_u32 s{sT0}, s{sT0}, s{sT1}")
            e(f"s_cmp_lt_u32 s{sJ}, 28"); e(f"s_cselect_b32 s{sT0}, s{sT0}, 0x7f000000")
            e(f"s_add_u32 m0, s{sT2}, {L_XR}")
            self.dma4(e, X_, vA, f"s{sT0}", n=2, tag="rm")
        def o_touch():
            e(f"s_lshl_b32 s{sT0}, s{sG}, 5"); e(f"s_add_u32 s{sT0}, s{sT0}, s{sJ}"); e(f"s_lshl_b32 s{sT0}, s{sT0}, 2")
            e(f"s_add_u32 s{sT0}, s{sT0}, s{sW}"); e(f"s_lshl_b32 s{sT0}, s{sT0}, 11"); e(f"s_add_u32 s{sT0}, s{sT0}, {WS_O}")
            self.touch(e, WS, f"s{sT0}", 16)
        def h_touch():
            e(f"s_lshl_b32 s{sT1}, s{sG}, 5"); e(f"s_add_u32 s{sT1}, s{sT1}, s{sJ}"); e(f"s_lshl_b32 s{sT1}, s{sT1}, 2")
            e(f"s_add_u32 s{sT1}, s{sT1}, s{sW}"); e(f"s_mul_i32 s{sT0}, s{sT1}, {14 * 128}"); e(f"s_add_u32 s{sT0}, s{sT0}, {WS_H}")
            self.touch(e, WS, f"s{sT0}", 14)
            e(f"s_lshl_b32 s{sT0}, s{sT1}, 7"); e(f"s_add_u32 s{sT0}, s{sT0}, {WS_SS}")
            self.touch(e, WS, f"s{sT0}", 1)
        self.rows128_src(e, vGA, 3584, 64, lambda i: 8 * i)
        vV0, vV1, vXL = 16, 17, 21
        e(f"v_and_b32 v{t}, 31, v{vLANE}"); e(f"v_lshrrev_b32 v{t + 1}, 5, v{vLANE}")
        e(f"v_mul_u32_u24 v{vV0}, 7168, v{t + 1}"); e(f"v_lshl_add_u32 v{vV0}, v{t}, 4, v{vV0}")
        e(f"v_add_u32 v{vV1}, {WS_V + 14336 - 3072}, v{vV0}"); e(f"v_add_u32 v{vV0}, {WS_V - 2048}, v{vV0}")
        e(f"v_bfe_u32 v{vXL}, v{vLANE}, 1, 1"); e(f"v_xor_b32 v{vXL}, s{sKH}, v{vXL}"); e(f"v_lshlrev_b32 v{vXL}, 6, v{vXL}")
        e(f"v_lshl_add_u32 v{vXL}, v{t}, 7, v{vXL}"); e(f"v_lshl_add_u32 v{vXL}, v{t + 1}, 3, v{vXL}")
        e(f"s_lshl_b32 s{sT0}, s{sMI}, 12"); e(f"s_add_u32 s{sT0}, s{sT0}, {L_XR}"); e(f"v_add_u32 v{vXL}, s{sT0}, v{vXL}")
        self.w5_base(e, vW5t)
        e(f"s_mul_i32 s{sT0}, s{sKH}, {224 * 128}"); e(f"s_add_u32 s{sT0}, s{sT0}, {L_WO}")
        for k in range(2):
            e(f"v_add_u32 v{vW5t[k]}, s{sT0}, v{vW5t[k]}")
        run("|" + rest)
        assert cnt == dict(W=7, X=7, Q=7, b=7), cnt
        e(f"s_mul_i32 s{sT4}, s{sMT}, 28672"); e(f"s_mul_i32 s{sT0}, s{sHEAD}, 448"); e(f"s_add_u32 s{sT4}, s{sT4}, s{sT0}")
        aOwn, aOth, vWf, vO = vRES, 224, vH, 160
        e(f"s_lshl_b32 s{sML}, s{sMG}, 1"); e(f"s_add_u32 s{sML}, s{sML}, s{sMI}")
        e(f"s_lshl_b32 s{sMT}, s{sG}, 3"); e(f"s_add_u32 s{sMT}, s{sMT}, s{sML}")
        def wo_dma(grp):
            rows = 32 if grp < 3 else 16
            e(f"s_mul_i32 s{sT0}, s{sW}, {rows * 128}"); e(f"s_add_u32 m0, s{sT0}, {L_WO + grp * 16384}")
            e(f"s_mul_i32 s{sT0}, s{sW}, {rows * 896}"); e(f"s_lshl_b32 s{sT1}, s{sNG}, 7"); e(f"s_add_u32 s{sT0}, s{sT0}, s{sT1}")
            e(f"s_add_u32 s{sT0}, s{sT0}, {grp * 128 * 896}")
            self.dma4(e, WO, vA, f"s{sT0}", n=rows // 8, tag="wo")
        e.wait(vm="wq")
        self.stamp(e, "wq")
        e("s_barrier")
        self.stamp(e, "Bkv")
        gate = self.gu_ops(e, WG, L_GATE, range(7), "gate")
        nogate = self.lab("nogate")
        rm_load(range(7)); xr_load()
        e(f"s_cmp_ge_u32 s{sJ}, 28"); e(f"s_cbranch_scc1 {nogate}")
        self.paced(e, gate[:2 * p["g1"]], p["gdep"])
        back = self.lab("gated")
        e(f"{back}:")
        tl = Stream(); tl(f"{nogate}:")
        if p["ctouch"] & 1: self.code_touch(tl)
        tl("s_waitcnt vmcnt(0)")
        tl(f"s_branch {back}")
        self.tail += tl.L
        e("s_waitcnt vmcnt(%d)" % min(p["gdep"] + 1, 2 * p["g1"]))
        for i in range(28):
            acc = t + (i & 1)
            e(f"v_lshlrev_b32 v{t + 2}, 16, v{vRMr + i}"); e(f"v_and_b32 v{t + 3}, 0xffff0000, v{vRMr + i}")
            if i < 2:
                e(f"v_add_f32 v{acc}, v{t + 2}, v{t + 3}")
            else:
                e(f"v_add_f32 v{acc}, v{acc}, v{t + 2}"); e(f"v_add_f32 v{acc}, v{acc}, v{t + 3}")
        e(f"v_add_f32 v{t}, v{t}, v{t + 1}")
        for d in ("quad_perm:[1,0,3,2]", "quad_perm:[2,3,0,1]", "row_half_mirror"):
            e(f"v_add_f32_dpp v{t}, v{t}, v{t} {d} row_mask:0xf bank_mask:0xf")
        e(f"v_mul_f32 v{t}, {f32(1 / 448)}, v{t}")
        e(f"s_mov_b32 s{sM1}, 0"); e(f"s_mov_b32 s{sM1 + 1}, 0xff000000")
        e(f"v_cndmask_b32 v{t}, v{t}, 0, s[{sM1}:{sM1 + 1}]")
        e(f"s_mul_i32 s{sT0}, s{sW}, 7"); e(f"s_add_u32 s{sT1}, s{sW}, 28")
        e(f"v_lshrrev_b32 v{t + 1}, 3, v{vLANE}"); e(f"v_add_u32 v{t + 1}, s{sT0}, v{t + 1}")
        e(f"v_mov_b32 v{t + 2}, s{sT1}")
        e(f"v_cndmask_b32 v{t + 1}, v{t + 1}, v{t + 2}, s[{sM1}:{sM1 + 1}]")
        e(f"v_lshlrev_b32 v{t + 1}, 2, v{t + 1}"); e(f"v_add_u32 v{t + 1}, {L_MISC}, v{t + 1}")
        e.lds(f"ds_write_b32 v{t + 1}, v{t}")
        e.wait(ds="all")
        self.stamp(e, "pre")
        e("s_barrier")
        self.stamp(e, "Batt")
        e("s_mov_b32 exec_lo, 0x0fffffff"); e("s_mov_b32 exec_hi, 0x0fffffff")
        for u in range(3):
            e(f"s_sub_u32 s{sT1}, s{sT4}, {(8 - 4 * u) * 28672}")
            if u < 2:
                e(f"s_cmp_ge_u32 s{sRB}, {2 - u}"); e(f"s_cselect_b32 s{sT1}, s{sT1}, 0x7f000000")
            e(f"s_add_u32 m0, s{sT5}, {u * 16384}")
            e.vmem(f"buffer_load_dwordx4 v{vV0}, {WS}, s{sT1} offen offset:2048 sc1 lds", "vt")
            e.vmem(f"buffer_load_dwordx4 v{vV1}, {WS}, s{sT1} offen offset:3072 sc1 lds", "vt")
        e("s_mov_b64 exec, -1")
        def oh_touch():
            if not p["ohwt"] & 1:
                o_touch(); e.vm += [None]
            if not p["ohwt"] & 2:
                h_touch(); e.vm += [None] * 2
        self.oh_touch = oh_touch
        e(f"s_cmp_ge_u32 s{sJ}, 28"); e("s_cbranch_scc1 L_helper")
        if p["otouch"] == 1: self.oh_touch()
        wo_dma(0); wo_dma(1)
        if p["otouch"] == 2: self.oh_touch()
        for a in range(4):
            e.lds(f"ds_read_b64 {vr(aOth + 2 * a, 2)}, v{vXL} offset:{16 * a}")
        e.wait(vm="vt", ds="all")
        e("s_barrier")
        self.stamp(e, "Bm")
        wo_dma(2); wo_dma(3)
        if p["otouch"] == 3: self.oh_touch()
        for op in gate[2 * p["g1"]:]: op()
        e.wait(vm="wo")
        self.stamp(e, "wo")
        e("s_barrier")
        for st in range(16):
            for k in range(2):
                self.trd(e, vWf + 8 * st + 4 * k, vW5t[k], (28 * (st >> 1) + 16 * (st & 1)) * 128, 1024, None)
        self.mode_issue(e, 3, 22)
        e(f"v_mov_b32 v{t}, 0xbf80bf80")
        e.wait(ds="all")
        for st in range(1, 16, 2):
            for k in range(2):
                r = vWf + 8 * st + 4 * k
                e(f"v_cndmask_b32 v{r + 2}, v{r + 2}, v{t}, {HI}")
                e(f"v_cndmask_b32 v{r + 3}, v{r + 3}, 0, {HI}")
        for i in range(8):
            e(f"v_lshlrev_b32 v{aOwn + 2 * i}, 16, v{aOth + i}")
            e(f"v_and_b32 v{aOwn + 2 * i + 1}, 0xffff0000, v{aOth + i}")
        self.mode_check(e, 3, 22)
        self.stamp(e, "gu")
        if self.stop > 2:
            self.out_proj(e, aOwn, aOth, vWf, vO)
        if self.stop > 3:
            self.ffn_S(e)
        self.finish(e, 1)
        self.helper(e)
        return e

    def pull(self, vXT, sXT):
        e = Stream(); e.role = 1
        e("L_pull:")
        e("s_mov_b64 exec, 0x3ffc")
        e(f"buffer_load_dword v25, v{vXT}, {X_}, s{sXT} offen")
        e("s_mov_b64 exec, -1")
        self.late_setup(e, False)
        sPI = sML
        e(f"s_lshl_b32 s{sPI}, s{sG}, 2"); e(f"s_add_u32 s{sPI}, s{sPI}, s{sJ}"); e(f"s_sub_u32 s{sPI}, s{sPI}, 28")
        e(f"s_lshl_b32 s{sPI}, s{sPI}, 2"); e(f"s_add_u32 s{sPI}, s{sPI}, s{sW}")
        e(f"v_mul_u32_u24 v{t}, 37, v{vLANE}"); e(f"v_lshrrev_b32 v{t}, 8, v{t}")
        e(f"v_mul_u32_u24 v{t}, {2688 - 896}, v{t}"); e(f"v_add_u32 v{t}, v{t}, v24")
        e(f"s_mul_i32 s{sT0}, s{sPI}, {4 * 2688}")
        self.touch(e, WQKV, f"s{sT0}", 28, va=t)
        e(f"s_mul_i32 s{sT0}, s{sPI}, {25 * 128}")
        self.touch(e, WO, f"s{sT0}", 25)
        for u in range(self.p["pull"] - 2):
            srd, half = ((WG, 0), (WG, 1), (WU, 0), (WU, 1), (WD, 0), (WD, 1))[u]
            e(f"s_mul_i32 s{sT0}, s{sPI}, {98 * 128}")
            if half: e(f"s_add_u32 s{sT0}, s{sT0}, {49 * 128}")
            self.touch(e, srd, f"s{sT0}", 49)
        e("s_branch L_pulled")
        self.tail += e.L

    def code_touch(self, e):
        lb = self.lab("pc")
        e("s_getpc_b64 s[100:101]")
        e(f"{lb}:")
        e(f"s_sub_u32 s100, s100, {lb}-{NAME}"); e("s_subb_u32 s101, s101, 0")
        e(f"s_sub_u32 s{sT0}, s{sJ}, 28"); e(f"s_lshl_b32 s{sT0}, s{sT0}, 2"); e(f"s_add_u32 s{sT0}, s{sT0}, s{sW}")
        e(f"s_mul_i32 s{sT0}, s{sT0}, 3072")
        e(f"v_add_u32 v25, s{sT0}, v24"); e(f"v_min_u32 v25, L_end-{NAME}-4, v25")
        e("s_mov_b64 exec, 0xffffff")
        e("global_load_dword v25, v25, s[100:101] sc1")
        e("s_mov_b64 exec, -1")

    def cold_pull(self, e, srd):
        e(f"s_lshl_b32 s{sT0}, s{sG}, 2"); e(f"s_add_u32 s{sT0}, s{sT0}, s{sJ}"); e(f"s_sub_u32 s{sT0}, s{sT0}, 28")
        e(f"s_lshl_b32 s{sT0}, s{sT0}, 2"); e(f"s_add_u32 s{sT0}, s{sT0}, s{sW}"); e(f"s_mul_i32 s{sT0}, s{sT0}, {98 * 128}")
        self.touch(e, srd, f"s{sT0}", 49); e(f"s_add_u32 s{sT0}, s{sT0}, {49 * 128}"); self.touch(e, srd, f"s{sT0}", 49)

    def helper(self, e):
        e("L_helper:")
        e.vm, e.ds = [], []
        p = self.p
        self.oh_touch()
        self.touch(e, WS, f"s{sFX}", 24)
        e(f"s_waitcnt vmcnt({len(e.vm) + 1})")
        e("s_barrier")
        if p["hp2"]: self.cold_pull(e, WD)
        e("s_barrier")
        sHI_ = sKC
        e(f"s_sub_u32 s{sHI_}, s{sJ}, 28"); e(f"s_lshl_b32 s{sHI_}, s{sHI_}, 2"); e(f"s_add_u32 s{sHI_}, s{sHI_}, s{sW}")
        e("s_barrier")
        if p["ctouch"] & 2:
            e("s_waitcnt vmcnt(0)")
            self.code_touch(e)
        self.cold_pull(e, WU)
        if not p["hp2"]: self.cold_pull(e, WD)
        for c in range(p["hup"]):
            e(f"s_add_u32 s{sT2}, s{sG}, {c}"); e(f"s_cmp_ge_u32 s{sT2}, 7"); e(f"s_cselect_b32 s{sT3}, 7, 0")
            e(f"s_sub_u32 s{sT2}, s{sT2}, s{sT3}"); e(f"s_lshl_b32 s{sT2}, s{sT2}, 4"); e(f"s_add_u32 s{sT2}, s{sT2}, s{sHI_}")
            e(f"s_mul_i32 s{sT0}, s{sT2}, {4 * 3584}")
            self.touch(e, WU, f"s{sT0}", 56); e(f"s_add_u32 s{sT0}, s{sT0}, {56 * 128}"); self.touch(e, WU, f"s{sT0}", 56)
        def wd_touch(tile):
            for u in range(4):
                e(f"s_add_u32 s{sT2}, s{sHI_}, {16 * u}"); e(f"s_lshl_b32 s{sT0}, s{sG}, 3"); e(f"s_add_u32 s{sT2}, s{sT2}, s{sT0}")
                e(f"s_and_b32 s{sT2}, s{sT2}, 63")
                e(f"s_lshr_b32 s{sT0}, s{sT2}, 1"); e(f"s_mul_i32 s{sT0}, s{sT0}, {64 * 896}")
                e(f"s_and_b32 s{sT2}, s{sT2}, 1"); e(f"s_mul_i32 s{sT2}, s{sT2}, {8 * 896}")
                e(f"s_add_u32 s{sT0}, s{sT0}, s{sT2}"); e(f"s_add_u32 s{sT0}, s{sT0}, {16 * tile * 896}")
                self.touch(e, WD, f"s{sT0}", 56)
        for tile in range(p["hwd"]):
            wd_touch(tile)
        if p["ctouch"] & 4:
            e("s_waitcnt vmcnt(0)")
            self.code_touch(e)
        if p["wb"] == 1:
            nw = self.lab("nowb")
            e(f"s_cmp_lg_u32 s{sHI_}, 0"); e(f"s_cbranch_scc1 {nw}")
            e(f"v_lshlrev_b32 v{t}, 3, v{vLANE}"); e(f"s_add_u32 s{sT0}, s{sFX}, {FX_F4}")
            e("s_mov_b64 exec, 0x3fff")
            a, b = self.lab("wbp"), self.lab("wbd")
            e(f"{a}:")
            e("s_sleep 8")
            e(f"buffer_load_dword v{t + 1}, v{t}, {WS}, s{sT0} offen sc1")
            e(f"s_add_u32 s{sSPIN}, s{sSPIN}, 1"); e("s_waitcnt vmcnt(0)")
            e(f"v_cmp_gt_u32 vcc, 3, v{t + 1}")
            e(f"s_cmp_gt_u32 s{sSPIN}, {SPIN_LIMIT}"); e(f"s_cbranch_scc1 {b}"); e(f"s_cbranch_vccnz {a}")
            e(f"{b}:")
            e("s_mov_b64 exec, -1")
            e("buffer_wbl2 sc1")
            e("s_waitcnt vmcnt(0)")
            e(f"{nw}:")
        self.finish(e, 1)

    def out_proj(self, e, aOwn, aOth, vWf, vO):
        e(f"v_lshlrev_b32 v{t}, 2, v{vLANE}")
        e(f"s_lshl_b32 s{sT0}, s{sML}, 2"); e(f"s_add_u32 s{sT0}, s{sT0}, s{sKH}"); e(f"s_lshl_b32 s{sT0}, s{sT0}, 5")
        e(f"s_add_u32 s{sT0}, s{sT0}, s{sFX}")
        e(f"s_lshl_b32 s{sT2}, s{sMT}, 1"); e(f"s_add_u32 s{sT2}, s{sT2}, s{sKH}"); e(f"s_lshl_b32 s{sT2}, s{sT2}, 14")
        e(f"s_add_u32 s{sT2}, s{sT2}, {WS_O}")
        e(f"s_lshl_b32 s{sT1}, s{sNG}, 1"); e(f"s_add_u32 s{sT1}, s{sT1}, s{sKH}")
        e(f"s_mul_i32 s{sT4}, s{sMT}, 14"); e(f"s_add_u32 s{sT4}, s{sT4}, s{sT1}"); e(f"s_lshl_b32 s{sT4}, s{sT4}, 11")
        e(f"s_add_u32 s{sT4}, s{sT4}, {WS_H}")
        e(f"s_lshl_b32 s{sT5}, s{sMT}, 4"); e(f"s_add_u32 s{sT5}, s{sT5}, s{sT1}"); e(f"s_lshl_b32 s{sT5}, s{sT5}, 7")
        e(f"s_add_u32 s{sT5}, s{sT5}, {WS_SS}")
        e(f"s_lshl_b32 s{sT3}, s{sML}, 5"); e(f"s_add_u32 s{sT3}, s{sT3}, s{sT1}"); e(f"s_lshl_b32 s{sT3}, s{sT3}, 2")
        e(f"s_add_u32 s{sT3}, s{sT3}, s{sFX}")
        e("s_mov_b64 exec, 0xff")
        self.poll(e, t, f"s{sT0}", f"v_cmp_ne_u32 vcc, 1, v{t + 1}", t + 1)
        e("s_mov_b64 exec, -1")
        self.stamp(e, "opoll")
        def oload(st):
            e.vmem(f"buffer_load_dwordx4 {vr(vO + 4 * st, 4)}, v{vL16}, {WS}, s{sT2} offen offset:{1024 * (st & 3)} sc1", ("o", st))
            if st & 3 == 3: e(f"s_add_u32 s{sT2}, s{sT2}, 4096")
            if st == 15: e("s_barrier")
        PRE = self.p["opre"]
        for st in range(PRE):
            oload(st)
        e(f"s_lshl_b32 s{sT0}, s{sW}, 12"); e(f"v_add_u32 v{t}, s{sT0}, v{vL16}"); e(f"v_xor_b32 v{t + 1}, 8192, v{t}")
        for st in range(16):
            e.wait(vm=("o", st))
            self.mf(e, aOth, vWf + 8 * st + 4, vO + 4 * st, "0" if st == 0 else None)
            if st + PRE < 16: oload(st + PRE)
            self.mf(e, aOwn, vWf + 8 * st, vO + 4 * st)
        self.stamp(e, "omm")
        for i in range(4):
            e.lds(f"ds_write_b128 v{t}, {vr(aOth + 4 * i, 4)} offset:{LA + 1024 * i}")
        e.wait(ds="all")
        e("s_barrier")
        self.stamp(e, "Bx")
        for i in range(4):
            e.lds(f"ds_read_b128 {vr(aOth + 4 * i, 4)}, v{t + 1} offset:{LA + 1024 * i}", ("x", i))
        PK = vH
        for i in range(4):
            e.wait(ds=("x", i))
            for k in (0, 2):
                r = 4 * i + k
                e(f"v_pk_add_f32 {vr(aOwn + r, 2)}, {vr(aOwn + r, 2)}, {vr(aOth + r, 2)}")
            for k in (0, 2):
                r = 4 * i + k
                e(f"v_cvt_pk_bf16_f32 v{PK + r // 2}, v{aOwn + r}, v{aOwn + r + 1}")
        self.publish(e, [f"buffer_store_dwordx4 {vr(PK + 4 * i, 4)}, v{vL16}, {WS}, s{sT4} offen offset:{1024 * i}" for i in range(2)], wt=self.p["ohwt"] & 2)
        self.stamp(e, "hst")
        e(f"v_pk_mul_f32 {vr(t + 2, 2)}, {vr(aOwn, 2)}, {vr(aOwn, 2)}")
        for r in range(2, 16, 2):
            e(f"v_pk_fma_f32 {vr(t + 2, 2)}, {vr(aOwn + r, 2)}, {vr(aOwn + r, 2)}, {vr(t + 2, 2)}")
        e(f"v_add_f32 v{t + 2}, v{t + 2}, v{t + 3}")
        e(f"v_mov_b32 v{t + 3}, v{t + 2}")
        e(f"v_lshlrev_b32 v{t}, 2, v{vLANE}")
        e(f"v_permlane32_swap_b32 v{t + 2}, v{t + 3}")
        e(f"v_add_f32 v{t + 2}, v{t + 2}, v{t + 3}")
        e("s_mov_b32 exec_hi, 0")
        self.publish(e, [f"buffer_store_dword v{t + 2}, v{t}, {WS}, s{sT5} offen"], wt=self.p["ohwt"] & 2)
        e("s_mov_b64 exec, -1")
        e(f"v_mov_b32 v{t + 1}, 1"); e(f"v_mov_b32 v{t + 3}, {ONES}"); e(f"v_mov_b32 v{vMU2}, 0")
        for st in range(1, 16, 2):
            e(f"v_dot2c_f32_bf16 v{vMU2}, v{vO + 4 * st + 2}, v{t + 3}")
        e.wait(vm="all")
        e("s_mov_b64 exec, 1")
        self.publish(e, [f"buffer_store_dword v{t + 1}, v{t}, {WS}, s{sT3} offen offset:{FX_F3}"])
        e("s_mov_b64 exec, -1")
        self.stamp(e, "hpub")
        e(f"v_mov_b32 v{t + 3}, v{vMU2}")
        e(f"v_permlane32_swap_b32 v{t + 3}, v{vMU2}")
        for i in range(16):
            e(f"v_add_f32 v{aOwn + i}, v{vMU2}, v{aOwn + i}")
        e(f"s_xor_b32 s{sT0}, s{sW}, 2"); e(f"s_lshl_b32 s{sT0}, s{sT0}, 12"); e(f"v_add_u32 v{t + 1}, s{sT0}, v{vL16}")
        e(f"s_lshl_b32 s{sT0}, s{sW}, 8"); e(f"v_add_u32 v{t}, s{sT0}, v{t}")
        for i in range(4):
            e.lds(f"ds_write_b128 v{t + 1}, {vr(aOwn + 4 * i, 4)} offset:{L_RES + 1024 * i}")
        e.lds(f"ds_write_b32 v{t}, v{vMU2} offset:{L_MU}")

    def ffn_S(self, e):
        p = self.p
        full = self.stop > 4
        self.ffn_setup(e, 1)
        self.gu_pre(e, 0, self.KMAJ)
        self.h_poll(e)
        self.paced(e, self.gu_ops(e, WU, L_UP, range(p["upe"], p["upe"] + p["ups"]), "up"), p["udep"])
        self.stamp(e, "Bh_")
        e("s_barrier")
        self.stamp(e, "Bh")
        e("s_setprio 1")
        def bb():
            e.wait(ds="all")
            self.stamp(e, "seg2")
            e("s_barrier")
        self.first_pass(e, p["spre"], [lambda: None] * (p["spre"] - 3) + [bb])
        self.stamp(e, "Bb")
        self.act_flag(e, 1)
        self.gelu_consts(e)
        self.gelu_gate(e, self.wd_ops(e, [0, 1, 2]) if full else [])
        self.gu_pre(e, 1, self.TMAJ)
        self.stamp(e, "gelu2")
        def extra(n):
            if n == 52 and full:
                e.wait(vm=("wd", 2), ds="all")
                self.stamp(e, "seg4")
                e("s_barrier")
        self.up_pass(e, -1, extra)
        self.stamp(e, "Bd")
        first = self.last_act
        for op in self.prod_ops(e, 1): op()
        second, self.last_act = self.last_act, first
        self.act_flag(e, 2)
        self.last_act = second
        if not full:
            self.act_flag(e, 3)
            return
        self.wd_dma(e, [3, 4])
        self.act_flag(e, 3)
        self.stamp(e, "fl2")
        e.wait(vm=("wd", 4))
        self.stamp(e, "X3_")
        e("s_barrier")
        self.wd_dma(e, [5, 6])
        for q in range(5, 8):
            e.wait(vm=("wd", q))
            self.stamp(e, f"X{q}_")
            e("s_barrier")
            if q == 5:
                self.wd_dma(e, [7])
            if q == p["wb"]:
                nw = self.lab("nowb")
                e(f"s_or_b32 s{sT0}, s{sJ}, s{sW}"); e(f"s_cmp_lg_u32 s{sT0}, 0"); e(f"s_cbranch_scc1 {nw}")
                e("buffer_wbl2 sc1")
                e(f"{nw}:")

    def build(self):
        e = Stream()
        self.prologue(e)
        e("s_cmp_lt_u32 s47, 4")
        e("s_cbranch_scc1 L_roleL")
        S = self.role_S()
        L = self.role_L()
        body = e.L + S.L + ["L_roleL:"] + L.L + self.tail + ["L_exit:", "s_endpgm", "L_end:"]
        body, nops = pad_hazards(body)
        if self.p["align"]:
            body, self.promoted = align8(body, NAME)
        head = open("sequential_preLN__sliding_block__geglu_ffn__prompt.s.ref").read().splitlines()
        cm = [l for l in head if l.startswith(";") and "@launch" not in l]
        out = cm + ["; @launch grid=(256,1,1) block=(512,1,1) lds=163840",
                    '.amdgcn_target "amdgcn-amd-amdhsa--gfx950"', ".text", f".globl {NAME}", ".p2align 8",
                    f".type {NAME},@function", f"{NAME}:"]
        out += [("" if l.endswith(":") else "    ") + l for l in body]
        out += ['.section .rodata,"a"', ".p2align 6", f".amdhsa_kernel {NAME}",
                "  .amdhsa_next_free_vgpr 256", "  .amdhsa_next_free_sgpr 102", "  .amdhsa_accum_offset 256",
                "  .amdhsa_group_segment_fixed_size 0", "  .amdhsa_kernarg_size 80", "  .amdhsa_user_sgpr_count 2",
                "  .amdhsa_user_sgpr_kernarg_segment_ptr 1", "  .amdhsa_system_sgpr_workgroup_id_x 1",
                ".end_amdhsa_kernel", ""]
        self.nops = nops
        return "\n".join(out)

if __name__ == "__main__":
    import argparse
    ap = argparse.ArgumentParser()
    ap.add_argument("-o", default="sequential_preLN__sliding_block__geglu_ffn__prompt.s")
    ap.add_argument("--stop", type=int, default=99)
    ap.add_argument("--stamps", action="store_true")
    ap.add_argument("--slow", action="store_true")
    ap.add_argument("-p", action="append", default=[])
    a = ap.parse_args()
    kw = {k: int(v) for k, v in (x.split("=") for x in a.p)}
    g = Gen(a.stop, a.stamps, a.slow, **kw)
    s = g.build()
    open(a.o, "w").write(s)
    print("lines", s.count("\n"), "nops", g.nops)
```

```python
import math, struct, sys
from asmlib import Stream, vr, sr, pad_hazards, align8

NAME = "sequential_preLN__sliding_block__geglu_ffn__prompt_kernel"
MB = 1 << 20
WS_K, WS_V, WS_O, WS_H, WS_SS, WS_ACT = 0, 2 * MB, 4 * MB, 6 * MB, 6 * MB + 1792 * 1024, 8 * MB
WS_F1, WS_FX, WS_STAMP, WS_SIZE = 16 * MB, 16 * MB + 131072, 17 * MB, 18 * MB
FX_F2, FX_F3, FX_F4, FX_F6, FX_F0 = 0, 1024, 2048, 3072, 3584
LA, LB, LC = 0, 49152, 106496
L_WQ, L_MISC = LB + 16384, LB + 45056
L_GATE, L_UP, L_WO = LC, LB, LB
SLOT = [LA + 20480, LC, LC + 28672, LB]
L_RES, L_MU, L_PF, L_XCH5 = LA, LA + 16384, LA + 17408, LB + 28672
L_CS, L_XR = L_MISC + 1024, L_MISC + 4096
ACTLOC = [[(WS_O, 32768), (WS_H, 28672)], [(WS_ACT, 57344), (WS_ACT + 28672, 57344)]]
X_, WQKV, WO, WG, WU, WD, OUT, DBG, WS = (sr(b, 4) for b in (8, 12, 16, 20, 24, 28, 32, 36, 40))
sXO = 3
sG, sJ, sW, sHEAD, sRB, sXCC, sMODE, sSPIN = 44, 45, 46, 48, 49, 50, 51, 52
sT0, sT1, sT2, sT3, sT4, sT5, sA5 = 53, 54, 55, 56, 57, 58, 59
sHI, sM1, sM2, sM3 = 60, 62, 64, 66
sMT, sKC, sPAR, sML, sMG, sNG, sKH, sMI, sHF, sFX, sACT, sWD = range(68, 80)
sF4P, sF4C, sAC2 = sHEAD, sRB, sKC
sWL = sM1
sST = 80
vLANE, vL16 = 1, 2
vH, vACC, vRING, vTMP, vSS, vRES = 32, 144, 192, 220, 228, 240
vD, vP, vW5 = [4, 5, 6, 7], [8, 9, 10, 11], [12, 13]
vK1, vK2, vRI, vMU2, vW5t, vXO = 14, 15, 16, 17, [18, 19], 20
vPA, vPR, vSM, vFL, vGA = 21, 22, 23, 3, [30, 31]
UACC = [vACC + 32, vRES]
t = 26
NR = 7
BIG = 0xF149F2CA
ONES = 0x3F803F80
SPIN_LIMIT = 0x80000
HI = f"s[{sHI}:{sHI + 1}]"

def f32(x):
    return struct.unpack("<I", struct.pack("<f", x))[0]

class Gen:
    def __init__(self, stop=99, stamps=False, force_slow=False, **kw):
        self.stop, self.stamps, self.force_slow = stop, stamps, force_slow
        self.p = dict(f1_at=10, rot=3, sched=1, pull=2, act_wt=1, pre=12, spre=14, opre=5, hwd=0,
                      g1=4, gdep=2, m2at=17, otouch=3, upe=0, ups=2, udep=3, s2at=-14, hp1=0, hp2=0, hup=7, fl1=50, align=1, tlb=1, ksplit=1, ctouch=7, ohwt=0, outfl=0, wb=0, ssb=1, ptouch=0, swt=1, c3at=2, uper=1, word=3210, q2s=1, x3at=42, hcp=4, upa=0, ltouch=0, bmat=8, exact=0, qk0=3, sprio=1, gpre=3, bh=1, lord=1, sord=1, q2at=8, q0e=0)
        self.p.update(kw)
        self.tail = []
        self.trn = ([], [])
        self.nlab = 0

    def lab(self, n):
        self.nlab += 1
        return f"L_{n}_{self.nlab}"

    PROF = {
        0: (["start", "b0", "kv", "Bkv", "q", "f1", "Batt", "att", "opub", "hpoll", "seg1", "Bb", "Bd", "X3"],
            ["start", "Bkv", "pre", "Bm", "gu", "opoll", "Bx", "hpub", "Bh", "Bb", "Bd"]),
        1: (["start", "hpoll", "seg1", "gelu1", "Bb", "seg3", "chk1", "Bd_", "Bd", "X3", "dn"],
            ["Bh_", "Bh", "hpre", "seg2", "Bb", "gelu2", "seg4", "Bd", "X3_", "dn"]),
        2: (["start", "f1", "Batt_", "Batt", "sub", "Bm", "pv", "att", "opub", "Bp", "Bx", "hpoll"],
            ["Bkv", "pre", "Batt", "Bm", "gu", "opoll", "omm", "Bx", "hst", "hpub", "Bh"]),
        3: (["start", "b0", "b1", "b2", "b3", "b4", "b5", "b6", "kv", "kvst", "Bkv", "fl1", "q", "f1", "Batt"],
            ["start", "b0", "b1", "b2", "b3", "b4", "b5", "b6", "wq", "Bkv", "pre", "Batt"]),
    }

    LEAK = [None, "end", "start", "b0", "Bkv", "Batt", "opub", "hpoll", "Bb", "Bd", "f1", "kv"]

    def tr(self, e, name, zone):
        if not self.stamps or self.p.get("trace") != zone:
            return
        names = self.trn[e.role]
        k = len(names)
        if k >= 63: return
        names.append(name)
        e(f"s_memtime s[{82 + 2 * (k % 4)}:{83 + 2 * (k % 4)}]")
        if k >= 2:
            e(f"v_writelane_b32 v0, s{82 + 2 * ((k - 2) % 4)}, {k - 2}")

    ZONE = dict(hpoll=1, hpre=1, seg1=1, gelu1=1, Bb=1, seg3=1, chk1=1, Bd_=1, Bd=1, X3=1, X5=1, X6=1, X7=1, dn=1, Bh_=1, Bh=1,
                seg2=1, gelu2=1, seg4=1, fl2=1, X3_=1, X5_=1, X6_=1, X7_=1,
                start=3, b0=3, b1=3, b2=3, b3=3, b4=3, b5=3, b6=3, kv=3, wq=3)

    def stamp(self, e, name):
        if self.p.get("trace"):
            self.tr(e, name, self.ZONE.get(name, 2))
            return
        if e.role == 0 and name == self.LEAK[self.p.get("leak", 0)]:
            e("s_memrealtime s[82:83]")
        names = self.PROF[self.p.get("prof", 0)][e.role]
        if self.stamps and (name == "end" or name in names):
            i = 15 if name == "end" else names.index(name)
            e(f"{'s_memtime' if self.p.get('cyc') else 's_memrealtime'} s[{sST + 18}:{sST + 19}]")
            e("s_waitcnt lgkmcnt(0)")
            e(f"s_mov_b32 s{sST + i}, s{sST + 18}")
            e.ds = []

    def finish(self, e, role):
        if self.p.get("leak") and role == 0 and False:
            self.stamp(e, "end")
            lp, sk = self.lab("leak"), self.lab("noleak")
            e(f"s_cmp_ge_u32 s{sJ}, 28"); e(f"s_cbranch_scc1 {sk}")
            e("s_memrealtime s[84:85]"); e("s_waitcnt lgkmcnt(0)")
            e("s_sub_u32 s82, s82, s80")
            e(f"{lp}:")
            e("s_memrealtime s[86:87]"); e("s_waitcnt lgkmcnt(0)")
            e("s_sub_u32 s86, s86, s84"); e("s_cmp_lt_u32 s86, s82"); e(f"s_cbranch_scc1 {lp}")
            e(f"{sk}:")
        if self.stamps and self.p.get("trace"):
            self.tr(e, "end", self.p["trace"])
            k = len(self.trn[role])
            e("s_waitcnt lgkmcnt(0)")
            for i in (k - 2, k - 1):
                e(f"v_writelane_b32 v0, s{82 + 2 * (i % 4)}, {i}")
            e("s_mov_b64 exec, -1")
            e(f"s_lshl_b32 s{sT0}, s2, 3"); e(f"s_add_u32 s{sT0}, s{sT0}, s{sW}"); e(f"s_add_u32 s{sT0}, s{sT0}, {4 * role}")
            e(f"s_lshl_b32 s{sT0}, s{sT0}, 8"); e(f"s_add_u32 s{sT0}, s{sT0}, {WS_STAMP}")
            e(f"v_lshlrev_b32 v3, 2, v{vLANE}")
            e(f"buffer_store_dword v0, v3, {WS}, s{sT0} offen")
        elif self.stamps:
            self.stamp(e, "end")
            e("s_mov_b64 exec, -1")
            e(f"s_lshl_b32 s{sT0}, s2, 3"); e(f"s_add_u32 s{sT0}, s{sT0}, s{sW}"); e(f"s_add_u32 s{sT0}, s{sT0}, {4 * role}")
            e(f"s_lshl_b32 s{sT0}, s{sT0}, 6"); e(f"s_add_u32 s{sT0}, s{sT0}, {WS_STAMP}")
            e("s_waitcnt vmcnt(0)")
            for i in range(16):
                e(f"v_mov_b32 v{32 + i}, s{sST + i}")
            e("v_mov_b32 v3, 0"); e("s_mov_b64 exec, 1")
            for i in range(4):
                e(f"buffer_store_dwordx4 {vr(32 + 4 * i, 4)}, v3, {WS}, s{sT0} offen offset:{16 * i}")
        e("s_endpgm")

    def poll(self, e, vaddr, soff, cmp, vt, srd=WS):
        a, b = self.lab("poll"), self.lab("polled")
        e(f"{a}:")
        e(f"buffer_load_dword v{vt}, v{vaddr}, {srd}, {soff} offen sc1")
        e(f"s_add_u32 s{sSPIN}, s{sSPIN}, 1")
        e("s_waitcnt vmcnt(0)")
        e(cmp)
        e(f"s_cmp_gt_u32 s{sSPIN}, {SPIN_LIMIT}")
        e(f"s_cbranch_scc1 {b}")
        e(f"s_cbranch_vccnz {a}")
        e(f"{b}:")
        e.vm = []

    def check_or_poll(self, e, vaddr, soff, cmp, vt, srd=WS):
        late, ok = self.lab("late"), self.lab("ok")
        e(cmp)
        e(f"s_cbranch_vccnz {late}")
        e(f"{ok}:")
        tl = Stream(); tl(f"{late}:")
        self.poll(tl, vaddr, soff, cmp, vt, srd)
        tl(f"s_branch {ok}")
        self.tail += tl.L

    def publish(self, e, stores, tag="pub", wt=False):
        if wt:
            for s in stores:
                e.vmem(s + " sc1", tag)
            return
        slow, done = self.lab("slow"), self.lab("pubd")
        e(f"s_cmp_eq_u32 s{sMODE}, 0")
        e(f"s_cbranch_scc1 {slow}")
        for s in stores:
            e.vmem(s, tag)
        e(f"{done}:")
        self.tail += [f"{slow}:"] + [s + " sc1" for s in stores] + [f"s_branch {done}"]

    def mode_issue(self, e, va, vt):
        e(f"v_lshlrev_b32 v{va}, 2, v{vLANE}"); e(f"v_add_u32 v{va}, {FX_F0}, v{va}")
        e("s_mov_b32 exec_hi, 0")
        e.vmem(f"buffer_load_dword v{vt}, v{va}, {WS}, s{sFX} offen sc1", "mode")
        e("s_mov_b64 exec, -1")

    def mode_check(self, e, va, vt):
        e.wait(vm="mode")
        e("s_mov_b32 exec_hi, 0")
        self.check_or_poll(e, va, f"s{sFX}", f"v_cmp_eq_u32 vcc, 0, v{vt}", vt)
        e(f"v_cmp_ne_u32 vcc, s{sXCC}, v{vt}")
        e("s_mov_b64 exec, -1")
        e("s_cmp_eq_u64 vcc, 0"); e(f"s_cselect_b32 s{sMODE}, {0 if self.force_slow else 1}, 0")

    def touch(self, e, srd, soff, nl, va=24, vt=25):
        if nl < 64:
            m = (1 << nl) - 1
            e(f"s_mov_b32 exec_lo, {m & 0xffffffff}"); e(f"s_mov_b32 exec_hi, {m >> 32}")
        e(f"buffer_load_dword v{vt}, v{va}, {srd}, {soff} offen sc1")
        if nl < 64:
            e("s_mov_b64 exec, -1")

    def dma4(self, e, srd, vas, soff, n=4, tag=None, fl=""):
        for i in range(n):
            e.vmem(f"buffer_load_dwordx4 v{vas[i]}, {srd}, {soff} offen offset:{1024 * i} {fl} lds", tag)

    def next_kc(self, e, r=sKC):
        e(f"s_add_u32 s{r}, s{r}, 1"); e(f"s_cmp_eq_u32 s{r}, 7"); e(f"s_cselect_b32 s{r}, 0, s{r}")

    def tr_base(self, e, vd, hmul, stride, nhmul):
        e(f"v_lshrrev_b32 v{vd}, 5, v{vLANE}")
        e(f"v_mul_u32_u24 v{vd}, {hmul}, v{vd}")
        e(f"v_bfe_u32 v{t}, v{vLANE}, 2, 2")
        e(f"v_add_u32 v{vd}, v{vd}, v{t}")
        e(f"v_mul_u32_u24 v{vd}, {stride}, v{vd}")
        e(f"v_bfe_u32 v{t}, v{vLANE}, 4, 1")
        e(f"v_mul_u32_u24 v{t}, {nhmul}, v{t}")
        e(f"v_add_u32 v{vd}, v{vd}, v{t}")
        e(f"v_and_b32 v{t}, 3, v{vLANE}")
        e(f"v_lshl_add_u32 v{vd}, v{t}, 3, v{vd}")

    def rows128_src(self, e, vas, rowstride, partmul, rowof):
        v = vas[0]
        e(f"v_lshrrev_b32 v{v}, 3, v{vLANE}")
        e(f"v_mul_u32_u24 v{v}, {rowstride}, v{v}")
        e(f"v_lshrrev_b32 v{t}, 2, v{vLANE}")
        e(f"v_lshrrev_b32 v{t + 1}, 4, v{vLANE}")
        e(f"v_xor_b32 v{t}, v{t}, v{t + 1}")
        e(f"v_and_b32 v{t}, 1, v{t}")
        e(f"v_mul_u32_u24 v{t}, {partmul}, v{t}")
        e(f"v_add_u32 v{v}, v{v}, v{t}")
        e(f"v_and_b32 v{t}, 3, v{vLANE}")
        e(f"v_lshl_add_u32 v{v}, v{t}, 4, v{v}")
        for i in range(1, len(vas)):
            e(f"v_add_u32 v{vas[i]}, {rowof(i) * rowstride - 1024 * i}, v{v}")

    def rows64_src(self, e, vas, rowstride, gx):
        v = vas[0]
        e(f"v_lshrrev_b32 v{v}, 2, v{vLANE}")
        e(f"v_mul_u32_u24 v{v}, {rowstride}, v{v}")
        e(f"v_and_b32 v{t}, 3, v{vLANE}")
        if gx:
            e(f"v_xor_b32 v{t}, {gx}, v{t}")
        e(f"v_lshl_add_u32 v{v}, v{t}, 4, v{v}")
        for i in range(1, len(vas)):
            e(f"v_add_u32 v{vas[i]}, {16 * i * rowstride - 1024 * i}, v{v}")

    @staticmethod
    def trd(e, dst, vaddr, off0, step, tag):
        e.lds(f"ds_read_b64_tr_b16 {vr(dst, 2)}, v{vaddr} offset:{off0}", tag)
        e.lds(f"ds_read_b64_tr_b16 {vr(dst + 2, 2)}, v{vaddr} offset:{off0 + step}", tag)

    @staticmethod
    def mf(e, d, a, b, c=None):
        e(f"v_mfma_f32_32x32x16_bf16 {vr(d, 16)}, {vr(a, 4)}, {vr(b, 4)}, {vr(d, 16) if c is None else c}")

    @staticmethod
    def mf8(e, d, a, b, c=None):
        e(f"v_mfma_f32_32x32x8_bf16 {vr(d, 16)}, {vr(a, 2)}, {vr(b, 2)}, {vr(d, 16) if c is None else c}")

    @staticmethod
    def mf4(e, d, a, b, first):
        e(f"v_mfma_f32_4x4x4_16b_bf16 {vr(d, 4)}, {vr(a, 2)}, {vr(b, 2)}, {'0' if first else vr(d, 4)}")

    @staticmethod
    def split_hi_lo(e, dst, c):
        e(f"v_cvt_pk_bf16_f32 v{dst + 1}, v{c}, v{c}")
        e(f"v_and_b32 v{t}, 0xffff0000, v{dst + 1}")
        e(f"v_sub_f32 v{t}, v{c}, v{t}")
        e(f"v_cvt_pk_bf16_f32 v{dst}, v{c}, v{t}")

    def prologue(self, e):
        e(f"s_cmp_ge_u32 s2, {0 if self.stop == 0 else 256}")
        e("s_cbranch_scc1 L_exit")
        if self.p.get("leak"): e("s_memrealtime s[80:81]")
        e("s_load_dwordx16 s[84:99], s[0:1], 0")
        e("s_load_dwordx4 s[4:7], s[0:1], 64")
        e("v_lshrrev_b32 v3, 6, v0")
        e(f"v_and_b32 v{vLANE}, 63, v0")
        e(f"v_readfirstlane_b32 s47, v3")
        e(f"v_lshlrev_b32 v{vL16}, 4, v{vLANE}")
        e(f"s_and_b32 s{sG}, s2, 7"); e(f"s_bfe_u32 s{sHEAD}, s2, 0x40003"); e(f"s_lshr_b32 s{sT1}, s2, 7")
        e(f"s_and_b32 s{sW}, s47, 3")
        e(f"s_lshl_b32 s{sT5}, s{sW}, 12")
        e(f"s_lshl_b32 s{sRB}, s{sG}, 1"); e(f"s_add_u32 s{sRB}, s{sRB}, s{sT1}")
        e(f"s_lshl_b32 s{sMT}, s{sRB}, 2"); e(f"s_add_u32 s{sMT}, s{sMT}, s{sW}")
        e(f"s_cmp_lt_u32 s{sHEAD}, 14"); e(f"s_cselect_b32 s{sT0}, 14, 2"); e(f"s_cselect_b32 s{sJ}, 0, 14")
        e(f"s_mul_i32 s{sT0}, s{sT0}, s{sT1}"); e(f"s_add_u32 s{sJ}, s{sJ}, s{sT0}"); e(f"s_add_u32 s{sJ}, s{sJ}, s{sHEAD}")
        e(f"s_mul_i32 s{sKC}, s{sT1}, {self.p['rot']}"); e(f"s_add_u32 s{sKC}, s{sKC}, s{sG}")
        e(f"s_cmp_ge_u32 s{sKC}, 7"); e(f"s_cselect_b32 s{sT0}, 7, 0"); e(f"s_sub_u32 s{sKC}, s{sKC}, s{sT0}")
        e(f"s_lshl_b32 s{sFX}, s{sG}, 12"); e(f"s_add_u32 s{sFX}, s{sFX}, {WS_FX}")
        for b, n in ((8, 2048 * 896), (12, 448 * 2688), (36, 256), (40, WS_SIZE)):
            e(f"s_mov_b32 s{b + 2}, {n}"); e(f"s_mov_b32 s{b + 3}, 0x20000")

    def got_args(self, e):
        e("s_waitcnt lgkmcnt(0)")
        for b, src in ((8, 84), (12, 86), (40, 6), (36, 4)):
            e(f"s_mov_b64 s[{b}:{b + 1}], s[{src}:{src + 1}]")

    def late_setup(self, e, last=True):
        for b, src, n in ((16, 88, 448 * 896), (20, 92, 448 * 3584), (24, 94, 448 * 3584), (28, 96, 1792 * 896), (32, 98, 2048 * 896)):
            e(f"s_mov_b64 s[{b}:{b + 1}], s[{src}:{src + 1}]")
            e(f"s_mov_b32 s{b + 2}, {n}"); e(f"s_mov_b32 s{b + 3}, 0x20000")
        e(f"s_mul_i32 s{sMG}, s{sJ}, 37"); e(f"s_lshr_b32 s{sMG}, s{sMG}, 8")
        e(f"s_mul_i32 s{sT0}, s{sMG}, 7"); e(f"s_sub_u32 s{sNG}, s{sJ}, s{sT0}")
        e(f"s_and_b32 s{sPAR}, s{sJ}, 1")
        e(f"s_and_b32 s{sMI}, s{sW}, 1"); e(f"s_lshr_b32 s{sKH}, s{sW}, 1"); e(f"s_lshr_b32 s{sHF}, s{sMG}, 1")
        e(f"s_mov_b32 s{sSPIN}, 0")
        e(f"s_mov_b32 s{sHI}, 0"); e(f"s_mov_b32 s{sHI + 1}, -1")
        e(f"s_getreg_b32 s{sXCC}, hwreg(HW_REG_XCC_ID, 0, 4)"); e(f"s_or_b32 s{sXCC}, s{sXCC}, 0x100")
        if self.stamps and last:
            for i in range(16):
                e(f"s_mov_b32 s{sST + i}, 0")

    def kv_pass(self, e, kind, R):
        wf, cf = vRING, R["PK"]
        a0, a1 = vACC, vACC + 16
        XS, XQ, C0, C1 = R["XS"], R["XQ"], R["C0"], R["C1"]
        vW0, vW1, vC0, vC1, vXR, vONE = R["vW0"], R["vW1"], R["vC0"], R["vC1"], R["vXR"], R["vONE"]
        def xrd(c):
            e("s_barrier")
            self.stamp(e, f"b{c}")
            for s in range(4):
                e.lds(f"ds_read_b128 {vr(vH + 16 * c + 4 * s, 4)}, v{vXR[s]} offset:{(c % 4) * 16384}", ("x", 4 * c + s))
        vis = self.wvis()
        st = dict(w=0, c=0, m=0, b=0)
        def wrd(upto):
            while kind and st["w"] <= min(upto, 27) and st["w"] >> 2 <= vis[st["b"]]:
                n = st["w"]; st["w"] += 1
                for k, va in enumerate((vW0, vW1)):
                    self.trd(e, wf + 8 * (n % 4) + 4 * k, va, 16 * n * 128, 512, ("w", n))
        def crd():
            while kind and st["c"] <= vis[st["b"]] and st["c"] < st["m"] + 2:
                c = st["c"]; st["c"] += 1
                for k, va in enumerate((vC0, vC1)):
                    self.trd(e, cf + 8 * (c & 1) + 4 * k, va, 64 * c * 128, 512, ("c", c))
        def cmm():
            out = []
            while st["m"] < st["c"]:
                c = st["m"]; st["m"] += 1
                e.wait(ds=("c", c))
                b = cf + 8 * (c & 1)
                out += [(C0, vONE, b, c == 0), (C1, vONE, b + 4, c == 0), (C0, vONE, b + 2, False), (C1, vONE, b + 6, False)]
            return out
        xrd(0)
        wrd(1)
        for n in range(28):
            c, s = divmod(n, 4)
            if s == 3 and c < 6:
                if kind and c == 5:
                    assert st["m"] == 7
                    e.lds(f"ds_write2st64_b32 v{R['vCS']}, v{C0}, v{C1} offset0:0 offset1:4")
                    e.wait(ds="all")
                xrd(c + 1)
                st["b"] = c + 1
                wrd(n + 1)
                if kind and c == 5:
                    for k in range(2):
                        e.lds(f"ds_read_b128 {vr(cf + 4 * k, 4)}, v{R['vCR']} offset:{1024 * k}", "cs")
            if n == 21:
                e("s_mov_b64 exec, 3")
                e.vmem(f"buffer_load_dword v{R['vRDY']}, v{R['vRA']}, {DBG}, 0 offen sc1")
                e("s_mov_b64 exec, -1")
            if s & 1 == 0:
                e.wait(ds=("x", n + 1))
                small = []
                for i in range(4):
                    x = vH + 4 * n + 2 * i
                    small += [(XS + 8 * (i & 1), vONE, x, n == 0 and i < 2), (XQ + 8 * (i & 1), x, x, n == 0 and i < 2)]
                if kind and s == 2:
                    for i, m in enumerate(cmm()):
                        small.insert(min(2 * i + 1, len(small)), m)
                for m in small:
                    self.mf4(e, *m)
            if kind:
                e.wait(ds=("w", n))
                x, w0 = vH + 4 * n, wf + 8 * (n % 4)
                for k, acc in enumerate((a0, a1)):
                    A, B = (w0 + 4 * k, x) if kind == "K" else (x, w0 + 4 * k)
                    self.mf(e, acc, A, B, "0" if n == 0 else None)
                    if k == 0: wrd(n + 2)
                if s == 0:
                    crd()
        self.stamp(e, "kv")
        vMU, vRS, vNM, vCP, vOH, PK = R["vMU"], R["vRS"], R["vNM"], R["vCP"], R["vOH"], R["PK"]
        if kind:
            e.wait(ds="cs")
            for k in range(2):
                e(f"v_add_f32 v{cf + 4 * k}, v{cf + 4 * k}, v{cf + 4 * k + 1}")
                e(f"v_add_f32 v{cf + 4 * k + 2}, v{cf + 4 * k + 2}, v{cf + 4 * k + 3}")
            e(f"v_add_f32 v{C0}, v{cf}, v{cf + 2}"); e(f"v_add_f32 v{C1}, v{cf + 4}, v{cf + 6}")
        e(f"v_add_f32 v{XS}, v{XS}, v{XS + 8}")
        for i in range(4):
            e(f"v_add_f32 v{XQ + i}, v{XQ + i}, v{XQ + 8 + i}")
        e(f"v_cndmask_b32 v{XQ}, v{XQ}, v{XQ + 1}, s[{sM1}:{sM1 + 1}]")
        e(f"v_cndmask_b32 v{XQ}, v{XQ}, v{XQ + 2}, s[{sM2}:{sM2 + 1}]")
        e(f"v_cndmask_b32 v{XQ}, v{XQ}, v{XQ + 3}, s[{sM3}:{sM3 + 1}]")
        if kind: self.split_hi_lo(e, C0 + 2, C0)
        e(f"v_permlane32_swap_b32 v{XS}, v{XQ}")
        e(f"v_add_f32 v{XS}, v{XS}, v{XQ}")
        e(f"v_mov_b32 v{XQ}, v{XS}")
        if kind: self.split_hi_lo(e, C1 + 2, C1)
        e(f"v_permlane32_swap_b32 v{XS}, v{XQ}")
        e(f"v_mul_f32 v{vMU}, {f32(1 / 448)}, v{XS}")
        e(f"v_mul_f32 v{XQ}, {f32(1 / 448)}, v{XQ}")
        e(f"v_cvt_pk_bf16_f32 v{vNM}, -v{vMU}, -v{vMU}")
        e(f"v_fma_f32 v{XQ}, -v{vMU}, v{vMU}, v{XQ}")
        e(f"v_and_b32 v{t}, 0xffff0000, v{vNM}")
        e(f"v_max_f32 v{XQ}, 0, v{XQ}")
        e(f"v_add_f32 v{t}, v{vMU}, v{t}")
        e(f"v_add_f32 v{XQ}, {f32(1e-5)}, v{XQ}")
        e(f"v_cvt_pk_bf16_f32 v{vNM + 1}, -v{t}, 0")
        e(f"v_rsq_f32 v{vRS}, v{XQ}")
        if kind == "K":
            self.mf8(e, a0, C0 + 2, vNM); self.mf8(e, a1, C1 + 2, vNM)
            e(f"s_mul_i32 s{sT0}, s{sMT}, 28672"); e(f"s_lshl_b32 s{sT1}, s{sHEAD}, 12"); e(f"s_add_u32 s{sT0}, s{sT0}, s{sT1}")
            e(f"v_lshlrev_b32 v{t + 1}, 3, v{vLANE}")
            for k, acc in enumerate((a0, a1)):
                for i in range(16):
                    e(f"v_mul_f32 v{acc + i}, v{vRS}, v{acc + i}")
                for i in range(8):
                    e(f"v_cvt_pk_bf16_f32 v{PK + 8 * k + i}, v{acc + 2 * i}, v{acc + 2 * i + 1}")
                    if i & 1:
                        e.vmem(f"buffer_store_dwordx2 {vr(PK + 8 * k + i - 1, 2)}, v{t + 1}, {WS}, s{sT0} offen offset:{(8 * k + i - 1) * 256} sc1")
        if kind == "V":
            aR = wf
            self.mf8(e, a0, vNM, C0 + 2)
            self.split_hi_lo(e, vCP, vRS)
            self.mf8(e, aR, vCP, vOH, "0")
            self.mf8(e, a1, vNM, C1 + 2)
            e(f"s_mul_i32 s{sT0}, s{sMT}, 28672"); e(f"s_lshl_b32 s{sT1}, s{sHEAD}, 10"); e(f"s_add_u32 s{sT0}, s{sT0}, s{sT1}")
            e(f"s_add_u32 s{sT0}, s{sT0}, {WS_V - 7 * 1024}"); e(f"s_add_u32 s{sT1}, s{sT0}, 14336")
            for k, acc in enumerate((a0, a1)):
                for i in range(16):
                    e(f"v_mul_f32 v{acc + i}, v{aR + i}, v{acc + i}")
                for i in range(8):
                    e(f"v_cvt_pk_bf16_f32 v{PK + 8 * k + i}, v{acc + 2 * i}, v{acc + 2 * i + 1}")
                    if i & 3 == 3:
                        e.vmem(f"buffer_store_dwordx4 {vr(PK + 8 * k + i - 3, 4)}, v{R['vVA']}, {WS}, s{(sT0, sT1)[i >> 2]} offen offset:{512 * k} sc1")

    def role_L(self):
        e = Stream(); e.role = 0
        vCS, vRA, vC0, vC1, vCR, vXR, vW0, vW1, vWQ, vRDY = 3, 4, 5, 6, 7, [8, 9, 10, 11], 12, 13, 14, 15
        vONE, vOH, vMU, vRS, vNM, vCP, vVA = 16, 18, 20, 21, 22, 24, 30
        aQ = vACC + 32
        wf = vRING
        XS, XQ, C0, C1, PK = aQ, aQ + 4, 232, 236, 240
        R = dict(locals())
        for i in range(4): e(f"v_mov_b32 v{32 + i}, 0")
        self.got_args(e)
        nolead, nocode = self.lab("nolead"), self.lab("nocode")
        e(f"s_lshl_b32 s{sT0}, s{sJ}, 2"); e(f"s_add_u32 s{sT0}, s{sT0}, s{sW}")
        e(f"s_cmp_lg_u32 s{sT0}, {28 * 4}"); e(f"s_cbranch_scc1 {nolead}")
        e(f"v_lshlrev_b32 v{t}, 7, v{vLANE}")
        e(f"s_lshl_b32 s{sT0}, s{sG}, 14"); e(f"s_add_u32 s{sT0}, s{sT0}, {WS_F1}"); e(f"s_add_u32 s{sT1}, s{sT0}, 8192")
        for base in (sT0, sT1):
            e(f"buffer_store_dword v32, v{t}, {WS}, s{base} offen sc1")
        for i in range(4):
            e(f"buffer_store_dwordx4 v[32:35], v{vL16}, {WS}, s{sFX} offen offset:{1024 * i} sc1")
        e(f"s_lshl_b32 s{sT0}, s{sG}, 2"); e("v_mov_b32 v36, 1")
        e("s_waitcnt vmcnt(0)")
        e("s_mov_b64 exec, 1")
        e(f"buffer_store_dword v36, v32, {DBG}, s{sT0} offen sc1")
        e("s_mov_b64 exec, -1")
        e(f"{nolead}:")
        e(f"s_cmp_lg_u32 s{sW}, 1"); e(f"s_cbranch_scc1 {nocode}")
        e("s_getpc_b64 s[100:101]")
        e("L_pc:")
        e(f"s_sub_u32 s100, s100, L_pc-{NAME}"); e("s_subb_u32 s101, s101, 0")
        e(f"s_mul_i32 s{sT0}, s{sJ}, 1536")
        e(f"v_lshlrev_b32 v{t}, 7, v{vLANE}"); e(f"v_add_u32 v{t}, s{sT0}, v{t}")
        e(f"v_min_u32 v{t}, L_end-{NAME}-4, v{t}")
        e("s_mov_b64 exec, 0xfff")
        e(f"global_load_dword v{vRDY}, v{t}, s[100:101]")
        e("s_mov_b64 exec, -1")
        e(f"{nocode}:")
        self.late_setup(e)
        if self.p["tlb"]:
            notlb = self.lab("notlb")
            e(f"s_cmp_lg_u32 s{sW}, 2"); e(f"s_cbranch_scc1 {notlb}")
            e("s_mov_b64 exec, 1")
            e(f"s_mov_b32 s{sT0}, {WS_SIZE - 128}")
            e(f"buffer_load_dword v{vRDY}, v32, {WS}, s{sT0} offen")
            for srd in (WO, WG, WU, WD, OUT):
                e(f"buffer_load_dword v{vRDY}, v32, {srd}, 0 offen")
            e("s_mov_b64 exec, -1")
            e(f"{notlb}:")
        self.stamp(e, "start")
        e(f"v_and_b32 v{t}, 31, v{vLANE}")
        e(f"v_lshlrev_b32 v{vVA}, 4, v{t}")
        e(f"v_lshlrev_b32 v{t + 1}, 7, v{t}")
        e(f"v_add_u32 v{t + 1}, s{sT5}, v{t + 1}")
        e(f"v_bfe_u32 v{t}, v{vLANE}, 1, 3")
        e(f"v_lshrrev_b32 v{t + 2}, 5, v{vLANE}")
        e(f"v_mul_u32_u24 v{t + 3}, 7168, v{t + 2}"); e(f"v_add_u32 v{vVA}, v{vVA}, v{t + 3}")
        e(f"v_xor_b32 v{t}, v{t}, v{t + 2}")
        for s in range(4):
            e(f"v_xor_b32 v{t + 2}, {2 * s}, v{t}")
            e(f"v_lshl_add_u32 v{vXR[s]}, v{t + 2}, 4, v{t + 1}")
        self.tr_base(e, vW0, 8, 128, 32)
        e(f"v_bfe_u32 v{t}, v{vLANE}, 3, 1")
        e(f"v_lshlrev_b32 v{t}, 6, v{t}")
        e(f"v_add_u32 v{vW0}, {LC}, v{vW0}")
        e(f"v_xor_b32 v{t + 1}, 64, v{t}")
        e(f"v_add_u32 v{vW1}, v{vW0}, v{t + 1}")
        e(f"v_add_u32 v{vW0}, v{vW0}, v{t}")
        e(f"s_lshl_b32 s{sT0}, s{sW}, 11")
        e(f"v_add_u32 v{vC0}, s{sT0}, v{vW0}"); e(f"v_add_u32 v{vC1}, s{sT0}, v{vW1}")
        e(f"v_add_u32 v{vCR}, {L_CS}, v{vL16}")
        e(f"s_lshl_b32 s{sT0}, s{sW}, 2"); e(f"v_add_u32 v{vCS}, s{sT0}, v{vCR}")
        self.tr_base(e, vWQ, 8, 64, 32)
        e(f"v_add_u32 v{vWQ}, {L_WQ}, v{vWQ}")
        e(f"v_mov_b32 v{vONE}, {ONES}"); e(f"v_mov_b32 v{vONE + 1}, {ONES}")
        e(f"v_cndmask_b32 v{vOH}, v{vONE}, 0, {HI}"); e(f"v_mov_b32 v{vOH + 1}, 0")
        for m, val in ((sM1, 0x22222222), (sM2, 0x44444444), (sM3, 0x88888888)):
            e(f"s_mov_b32 s{m}, {val}"); e(f"s_mov_b32 s{m + 1}, {val}")
        e(f"v_and_b32 v{vRA}, 1, v{vLANE}"); e(f"v_min_u32 v{vRA}, s{sG}, v{vRA}")
        e(f"v_sub_u32 v{vRA}, s{sG}, v{vRA}"); e(f"v_lshlrev_b32 v{vRA}, 2, v{vRA}")
        lv, ln, lj = self.lab("formV"), self.lab("formN"), self.lab("kvjoin")
        e(f"s_cmp_ge_u32 s{sHEAD}, 14"); e(f"s_cbranch_scc1 {ln}")
        e(f"s_cmp_ge_u32 s{sHEAD}, 7"); e(f"s_cbranch_scc1 {lv}")
        for kind, lb in (("K", None), (None, ln), ("V", lv)):
            if lb: e(f"{lb}:")
            e.vm, e.ds = [], []
            self.kv_pass(e, kind, R)
            if kind != "V": e(f"s_branch {lj}")
        e(f"{lj}:")
        e.ds = []
        self.stamp(e, "kvst")
        e(f"s_lshl_b32 s{sT4}, s{sMT}, 4"); e(f"s_add_u32 s{sT0}, s{sT4}, s{sHEAD}"); e(f"s_lshl_b32 s{sT0}, s{sT0}, 7")
        e(f"s_add_u32 s{sT2}, s{sT0}, {WS_F1}")
        e(f"v_mov_b32 v{t + 2}, 0"); e(f"v_mov_b32 v{t + 3}, 1")
        def kv_flag():
            e.wait(vm="all")
            nof0 = self.lab("nof0")
            e("s_mov_b64 exec, 3")
            self.check_or_poll(e, vRA, "0", f"v_cmp_ne_u32 vcc, 1, v{vRDY}", vRDY, srd=DBG)
            e("s_mov_b64 exec, 1")
            e.vmem(f"buffer_store_dword v{t + 3}, v{t + 2}, {WS}, s{sT2} offen sc1")
            e(f"s_cmp_lg_u32 s{sW}, 0"); e(f"s_cbranch_scc1 {nof0}")
            e(f"v_mov_b32 v{vRDY}, s{sXCC}")
            e(f"s_lshl_b32 s{sT0}, s{sJ}, 2"); e(f"s_add_u32 s{sT0}, s{sT0}, s{sFX}")
            e(f"buffer_store_dword v{vRDY}, v{t + 2}, {WS}, s{sT0} offen offset:{FX_F0} sc1")
            e(f"{nof0}:")
            e("s_mov_b64 exec, -1")
            self.stamp(e, "fl1")
        if self.p["f1_at"] < 0:
            kv_flag()
        e("s_barrier")
        self.stamp(e, "Bkv")
        vS, aO, vRM, vM = vH, vACC + 32, vRES, 5
        vKA, vKV, vV0, vV1, vPO, vPZ = 7, 8, 9, 10, 224, 228
        side = Stream()
        side(f"v_add_u32 v{vKV}, s{sT5}, v{vL16}")
        side(f"v_lshlrev_b32 v{vKA}, 3, v{vLANE}"); side(f"v_add_u32 v{vKA}, s{sT5}, v{vKA}")
        side(f"v_lshrrev_b32 v11, 5, v{vLANE}"); side("v_lshlrev_b32 v11, 4, v11"); side(f"v_add_u32 v11, {L_MISC}, v11")
        for i in range(4):
            side(f"v_mov_b32 v{vPO + i}, v{vONE}"); side(f"v_mov_b32 v{vPZ + i}, 0")
        def masks(o):
            o(f"v_and_b32 v{t}, 31, v{vLANE}"); o(f"v_lshrrev_b32 v{t + 1}, 5, v{vLANE}")
            o(f"v_lshlrev_b32 v{t + 1}, 2, v{t + 1}"); o(f"v_sub_u32 v{t}, v{t}, v{t + 1}")
            o(f"v_mov_b32 v{t + 1}, {BIG}")
            for r in range(17):
                if r < 16:
                    m = (sM1, sM2, sM3)[r % 3]
                    o(f"v_cmp_le_i32 s[{m}:{m + 1}], {8 * (r >> 2) + (r & 3)}, v{t}")
                if r:
                    q, m = r - 1, (sM1, sM2, sM3)[(r - 1) % 3]
                    o(f"v_cndmask_b32 v{vS + 128 + q}, v{t + 1}, 0, s[{m}:{m + 1}]")
                    o(f"v_cndmask_b32 v{vS + 112 + q}, 0, v{t + 1}, s[{m}:{m + 1}]")
        masks(side)
        fill = list(side.L)
        def qread(s):
            self.trd(e, wf + 4 * (s % NR), vWQ, 16 * s * 64, 256, ("q", s))
        for s in range(NR - 2):
            qread(s)
        for s in range(0, 28, 2):
            if s == self.p["f1_at"] & ~1:
                kv_flag()
            e.wait(ds=("q", s + 1))
            for k in range(2):
                q = wf + 4 * ((s + k) % NR)
                self.mf4(e, C0, vONE, q, s + k == 0); self.mf4(e, C1, vONE, q + 2, s + k == 0)
                if k == 0 and fill: e(fill.pop(0))
            for k in range(2):
                self.mf(e, aQ, wf + 4 * ((s + k) % NR), vH + 4 * (s + k), "0" if s + k == 0 else None)
                if s + k + NR - 2 < 28:
                    qread(s + k + NR - 2)
                for i in range(2 + k):
                    if fill: e(fill.pop(0))
        assert not fill
        e(f"v_add_f32 v{C0}, v{C0}, v{C1}")
        self.split_hi_lo(e, C0 + 2, C0)
        self.mf8(e, aQ, C0 + 2, vNM)
        e("s_mov_b32 exec_lo, 0xf0000000"); e("s_mov_b32 exec_hi, 0xf0000000")
        for u in range(3):
            for s in range(2):
                e.lds(f"ds_write_b128 v{vKV}, {vr(vPO, 4)} offset:{u * 16384 + 2048 + 1024 * s}")
        e("s_mov_b32 exec_lo, 0"); e("s_mov_b32 exec_hi, 0xffff0000")
        for u in (2, 1, 0):
            if u < 2:
                e(f"s_cmp_ge_u32 s{sRB}, {2 - u}"); e(f"s_cselect_b32 s{sT0}, 0, {BIG >> 16}")
                e(f"v_mov_b32 v{vPZ}, s{sT0}"); e(f"v_mov_b32 v{vPZ + 2}, s{sT0}")
            e.lds(f"ds_write_b128 v{vKV}, {vr(vPZ, 4)} offset:{u * 16384 + 1024}")
        e("s_mov_b64 exec, -1")
        e(f"v_mov_b32 v{t + 2}, 0x3f80")
        vQ = vTMP
        e(f"v_mul_f32 v{vRS}, {f32(28 ** -0.5 * math.log2(math.e))}, v{vRS}")
        e(f"v_mul_f32 v{vMU}, {f32(1 / 16)}, v{vMU}")
        for i in range(16):
            e(f"v_mul_f32 v{aQ + i}, v{vRS}, v{aQ + i}")
        e.wait(ds="all")
        for i in range(8):
            e(f"v_cvt_pk_bf16_f32 v{vQ + i}, v{aQ + 2 * i}, v{aQ + 2 * i + 1}")
        e(f"v_cndmask_b32 v{vQ + 6}, v{vQ + 6}, v{t + 2}, {HI}")
        e(f"v_cndmask_b32 v{vQ + 7}, v{vQ + 7}, 0, {HI}")
        self.stamp(e, "q")
        e(f"s_mul_i32 s{sT0}, s{sHEAD}, 28"); e(f"s_add_u32 s{sT1}, s{sT0}, 27")
        e(f"s_lshr_b32 s{sT0}, s{sT0}, 6"); e(f"s_lshr_b32 s{sT1}, s{sT1}, 6"); e(f"s_sub_u32 s{sT1}, s{sT1}, s{sT0}")
        e(f"v_and_b32 v{t}, s{sT1}, v{vLANE}")
        e(f"v_bfe_u32 v{t + 1}, v{vLANE}, 1, 1"); e(f"v_mad_u32_u24 v{t}, v{t + 1}, 7, v{t}")
        e(f"v_lshrrev_b32 v{t + 1}, 2, v{vLANE}"); e(f"v_lshl_add_u32 v{t}, v{t + 1}, 6, v{t}")
        e(f"v_lshlrev_b32 v{t}, 7, v{t}")
        e(f"s_add_u32 s{sT0}, s{sT0}, s{sT4}"); e(f"s_lshl_b32 s{sT0}, s{sT0}, 7"); e(f"s_add_u32 s{sT0}, s{sT0}, {WS_F1 - 16384}")
        e(f"s_min_u32 s{sT1}, s{sRB}, 2"); e(f"s_lshl_b32 s{sT1}, s{sT1}, 2")
        e(f"s_lshr_b32 s{sT1}, 0xfff00, s{sT1}"); e(f"s_and_b32 exec_lo, s{sT1}, 0xfff"); e("s_mov_b32 exec_hi, 0")
        e(f"s_mul_i32 s{sT2}, s{sMT}, 28672")
        e(f"s_mul_i32 s{sT1}, s{sHEAD}, 1792"); e(f"s_add_u32 s{sT2}, s{sT2}, s{sT1}")
        self.poll(e, t, f"s{sT0}", f"v_cmp_ne_u32 vcc, 1, v{t + 1}", t + 1)
        self.stamp(e, "f1")
        for u in range(3):
            e(f"s_sub_u32 s{sT1}, s{sT2}, {(8 - 4 * u) * 28672}")
            if u < 2:
                e(f"s_cmp_ge_u32 s{sRB}, {2 - u}"); e(f"s_cselect_b32 s{sT1}, s{sT1}, 0x7f000000")
            e(f"s_add_u32 m0, s{sT5}, {u * 16384}")
            e("s_mov_b64 exec, -1")
            e.vmem(f"buffer_load_dwordx4 v{vL16}, {WS}, s{sT1} offen sc1 lds")
            e("s_mov_b32 exec_hi, 0xffff")
            e.vmem(f"buffer_load_dwordx4 v{vL16}, {WS}, s{sT1} offen offset:1024 sc1 lds")
        e("s_mov_b64 exec, -1")
        e("s_barrier")
        self.tr(e, "Bk", 2)
        for n in range(4):
            e.lds(f"ds_read_b128 {vr(vRM + 4 * n, 4)}, v11 offset:{32 * n}")
        e.wait(vm="all", ds="all")
        self.stamp(e, "Batt_")
        e("s_barrier")
        self.stamp(e, "Batt")
        def frag(o, n):
            kv, i = divmod(n, 18)
            if kv:
                o.lds(f"ds_read_b128 {vr(wf + 4 * (n % NR), 4)}, v{vKV} offset:{(i >> 1) * 4096 + 2048 + (i & 1) * 1024}", ("kv", n))
            else:
                k = 8 * (i >> 1) + 2 * (i & 1)
                o.lds(f"ds_read2st64_b64 {vr(wf + 4 * (n % NR), 4)}, v{vKA} offset0:{k} offset1:{k + 1}", ("kv", n))
        def mm(o, n, last):
            o.wait(ds=("kv", n))
            if n < 18:
                cin = None if n & 1 or n == 16 else (vr(vS + 112, 16) if n == 0 else "0")
                self.mf(o, vS + 16 * (n >> 1), wf + 4 * (n % NR), vQ + 4 * (n & 1), cin)
            else:
                self.mf(o, aO, wf + 4 * (n % NR), vS + 8 * (n - 18), "0" if n == 18 else None)
            if n + NR - 1 < last: frag(o, n + NR - 1)
        def expblock(o, hb, slots):
            b = vS + 8 * hb
            for i in range(8):
                o(f"v_exp_f32 v{b + i}, v{b + i}")
                if i in slots: slots[i]()
            for i in range(4):
                o(f"v_cvt_pk_bf16_f32 v{b + i}, v{b + 2 * i}, v{b + 2 * i + 1}")
        for n in range(NR - 1):
            frag(e, n)
        self.mode_issue(e, 3, vRDY)
        nxt, BM = self.p["qk0"], self.p["bmat"]
        for n in range(nxt):
            mm(e, n, 18)
        for hb in range(18):
            k = min(2, 18 - nxt) if nxt < 18 else (min(-(-(35 - nxt) // (18 - hb)), hb + 18 - nxt) if hb > BM else 0)
            pos = {0: [], 1: [2], 2: [1, 5], 3: [0, 3, 6]}[k]
            expblock(e, hb, {i: (lambda n=nxt + j: mm(e, n, 18 if n < 18 else 36)) for j, i in enumerate(pos)})
            nxt += k
            if hb % 3 == 2: self.tr(e, f"e{hb}", 2)
            if hb == BM:
                assert nxt == 18
                self.stamp(e, "sub")
                e("s_barrier")
                self.stamp(e, "Bm")
                for n in range(18, 18 + NR - 1):
                    frag(e, n)
        assert nxt == 35
        mm(e, 35, 36)
        exact, checked = self.lab("exact"), self.lab("checked")
        x = Stream(); x.role = 0
        x(f"{exact}:")
        masks(x)
        for n in range(NR - 1):
            frag(x, n)
        for n in range(18):
            mm(x, n, 36)
        x(f"v_max_f32 v{vM}, v{vS}, v{vS + 1}")
        for i in range(2, 144, 2):
            x(f"v_max3_f32 v{vM}, v{vS + i}, v{vS + i + 1}, v{vM}")
        x(f"v_mov_b32 v{vM + 1}, v{vM}")
        x(f"v_permlane32_swap_b32 v{vM}, v{vM + 1}")
        x(f"v_max_f32 v{vM + 1}, v{vM}, v{vM + 1}")
        for i in range(0, 144, 2):
            x(f"v_pk_add_f32 {vr(vS + i, 2)}, {vr(vS + i, 2)}, {vr(vM + 1, 2)} op_sel_hi:[1,0] neg_lo:[0,1] neg_hi:[0,1]")
        for hb in range(18):
            expblock(x, hb, {})
            mm(x, 18 + hb, 36)
        x(f"v_mov_b32 v{t}, v{aO + 12}"); x(f"v_mov_b32 v{t + 1}, v{aO + 12}")
        x(f"v_permlane32_swap_b32 v{t}, v{t + 1}")
        x("s_nop 1")
        x(f"s_branch {checked}")
        self.tail += x.L
        e(f"s_lshl_b32 s{sT0}, s{sMT}, 4"); e(f"s_add_u32 s{sT0}, s{sT0}, s{sHEAD}"); e(f"s_lshl_b32 s{sT0}, s{sT0}, 11")
        e(f"s_add_u32 s{sT0}, s{sT0}, {WS_O}")
        e(f"s_and_b32 s{sT1}, s{sMT}, 7"); e(f"s_lshl_b32 s{sT1}, s{sT1}, 5"); e(f"s_add_u32 s{sT1}, s{sT1}, s{sHEAD}")
        e(f"s_lshl_b32 s{sT1}, s{sT1}, 2"); e(f"s_add_u32 s{sT1}, s{sT1}, s{sFX}")
        self.stamp(e, "pv")
        self.mode_check(e, 3, vRDY)
        lo, hi = f32(2.0 ** -30), f32(2.0 ** 60)
        e(f"v_mov_b32 v{t}, v{aO + 12}"); e(f"v_mov_b32 v{t + 1}, v{aO + 12}")
        e(f"v_permlane32_swap_b32 v{t}, v{t + 1}")
        e(f"v_subrev_u32 v{t}, {lo}, v{t + 1}")
        e(f"v_cmp_lt_u32 vcc, {0 if self.p['exact'] else hi - lo}, v{t}")
        e(f"s_cbranch_vccnz {exact}")
        e(f"{checked}:")
        e(f"v_rcp_f32 v{t + 1}, v{t + 1}")
        e(f"v_mul_f32 v{t + 2}, v{aO}, v{vRM}")
        e(f"v_mul_f32 v{t + 3}, v{aO + 1}, v{vRM + 1}")
        for i in range(2, 16):
            e(f"v_fmac_f32 v{t + 2 + (i & 1)}, v{aO + i}, v{vRM + i}")
        e(f"v_add_f32 v{t + 2}, v{t + 2}, v{t + 3}")
        e(f"v_mov_b32 v{t + 3}, v{t + 2}")
        for i in range(8):
            e(f"v_mul_f32 v{aO + i}, v{t + 1}, v{aO + i}")
        e(f"v_permlane32_swap_b32 v{t + 2}, v{t + 3}")
        for i in range(4):
            e(f"v_cvt_pk_bf16_f32 v{vQ + i}, v{aO + 2 * i}, v{aO + 2 * i + 1}")
        e(f"v_add_f32 v{t + 2}, v{t + 2}, v{t + 3}")
        e(f"v_fma_f32 v{t + 2}, v{t + 2}, v{t + 1}, v{vMU}")
        for i in range(8, 16):
            e(f"v_mul_f32 v{aO + i}, v{t + 1}, v{aO + i}")
        self.split_hi_lo(e, vCP, t + 2)
        for i in range(4, 8):
            e(f"v_cvt_pk_bf16_f32 v{vQ + i}, v{aO + 2 * i}, v{aO + 2 * i + 1}")
        e(f"v_cndmask_b32 v{vQ + 6}, v{vQ + 6}, v{vCP}, {HI}")
        e(f"v_cndmask_b32 v{vQ + 7}, v{vQ + 7}, 0, {HI}")
        self.stamp(e, "att")
        self.publish(e, [f"buffer_store_dwordx4 {vr(vQ + 4 * i, 4)}, v{vL16}, {WS}, s{sT0} offen offset:{1024 * i}" for i in range(2)], wt=self.p["ohwt"] & 1)
        e(f"v_mov_b32 v{t}, 0"); e(f"v_mov_b32 v{t + 1}, 1")
        e.wait(vm="all")
        e("s_mov_b64 exec, 1")
        self.publish(e, [f"buffer_store_dword v{t + 1}, v{t}, {WS}, s{sT1} offen offset:{FX_F2}"])
        e("s_mov_b64 exec, -1")
        self.stamp(e, "opub")
        if self.stop > 2:
            e(f"s_cmp_ge_u32 s{sJ}, 28"); e("s_cbranch_scc1 L_Ldone")
            self.ffn_setup(e, 0)
            e("s_barrier")
            self.stamp(e, "Bp")
            for op in self.gu_ops(e, WU, L_UP, range(self.p["upe"]), "up"): op()
            for tile in range(self.p["ltouch"]):
                e(f"v_lshlrev_b32 v24, 7, v{vLANE}")
                e(f"s_lshl_b32 s{sT0}, s{sJ}, 4"); e(f"s_add_u32 s{sT0}, s{sT0}, s{sW}"); e(f"s_add_u32 s{sT0}, s{sT0}, {4 * tile}")
                e(f"s_mul_i32 s{sT0}, s{sT0}, {4 * 896}")
                self.touch(e, WD, f"s{sT0}", 28)
            e("s_barrier")
            self.stamp(e, "Bx")
        if self.stop > 3:
            self.ffn_L(e)
        e("L_Ldone:")
        self.finish(e, 0)
        return e

    def ffn_setup(self, e, role):
        self.rows128_src(e, vD, 896, 64, lambda i: 128 * i)
        self.tr_base(e, vP[0], 4, 128, 32)
        e(f"v_bfe_u32 v{t}, v{vLANE}, 3, 1"); e(f"v_lshlrev_b32 v{t}, 6, v{t}")
        e(f"v_xor_b32 v{t + 1}, 64, v{t}")
        e(f"s_mov_b32 s{sT0}, {L_GATE}"); e(f"s_mov_b32 s{sT1}, {L_UP}")
        e(f"v_add3_u32 v{vP[1]}, v{vP[0]}, v{t + 1}, s{sT0}")
        e(f"v_add3_u32 v{vP[2]}, v{vP[0]}, v{t}, s{sT1}")
        e(f"v_add3_u32 v{vP[3]}, v{vP[0]}, v{t + 1}, s{sT1}")
        e(f"v_add3_u32 v{vP[0]}, v{vP[0]}, v{t}, s{sT0}")
        if role == 0:
            self.rows128_src(e, vGA, 3584, 64, lambda i: 8 * i)
        else:
            e(f"v_lshrrev_b32 v{t}, 3, v{vLANE}"); e(f"v_mul_u32_u24 v{t}, {14336 - 1024}, v{t}"); e(f"v_add_u32 v24, v24, v{t}")
        self.w5_base(e)
        e(f"s_mul_i32 s{sT0}, s{sKH}, 14336")
        for k in range(2):
            e(f"v_add_u32 v{vW5[k]}, s{sT0}, v{vW5[k]}")
        e(f"s_xor_b32 s{sT1}, s{sMG}, {2 - 2 * role}"); e(f"s_lshl_b32 s{sT1}, s{sT1}, 1"); e(f"s_add_u32 s{sT1}, s{sT1}, s{sMI}")
        e(f"s_lshl_b32 s{sA5}, s{sG}, 3"); e(f"s_add_u32 s{sA5}, s{sA5}, s{sT1}")
        e(f"s_lshl_b32 s{sT1}, s{sT1}, 5"); e(f"s_mul_i32 s{sT0}, s{sKH}, 14"); e(f"s_add_u32 s{sT1}, s{sT1}, s{sT0}")
        e(f"s_sub_u32 s{sT1}, s{sT1}, s{sHF}"); e(f"s_add_u32 s{sT1}, s{sT1}, 1"); e(f"s_lshl_b32 s{sT1}, s{sT1}, 2")
        e(f"s_add_u32 s{sT1}, s{sT1}, s{sFX}"); e(f"s_add_u32 s{sF4C}, s{sT1}, {FX_F4}")
        e(f"s_mul_i32 s{sWD}, s{sKH}, {896 * 896}"); e(f"s_mul_i32 s{sT0}, s{sMI}, {8 * 896}")
        e(f"s_add_u32 s{sWD}, s{sWD}, s{sT0}"); e(f"s_lshl_b32 s{sT0}, s{sNG}, 7"); e(f"s_add_u32 s{sWD}, s{sWD}, s{sT0}")
        e(f"s_xor_b32 s{sT0}, s{sHF}, 1"); e(f"s_mul_i32 s{sT0}, s{sT0}, {64 * 896}"); e(f"s_add_u32 s{sWD}, s{sWD}, s{sT0}")
        e(f"s_mul_i32 s{sWL}, s{sW}, 7168")
        e(f"s_xor_b32 s{sML}, s{sPAR}, {role}"); e(f"s_lshl_b32 s{sML}, s{sML}, 2"); e(f"s_add_u32 s{sML}, s{sML}, s{sW}")
        e(f"s_lshl_b32 s{sMT}, s{sG}, 3"); e(f"s_add_u32 s{sMT}, s{sMT}, s{sML}")
        e(f"s_lshr_b32 s{sT1}, s{sJ}, 1"); e(f"s_lshl_b32 s{sT1}, s{sT1}, 10")
        for k, dst in enumerate((sACT, sAC2)):
            base, stride = ACTLOC[role][k]
            e(f"s_mul_i32 s{sT0}, s{sMT}, {stride}"); e(f"s_add_u32 s{sT0}, s{sT0}, s{sT1}"); e(f"s_add_u32 s{dst}, s{sT0}, {base}")
        e(f"s_lshl_b32 s{sT0}, s{sML}, 5"); e(f"s_add_u32 s{sT0}, s{sT0}, s{sJ}"); e(f"s_lshl_b32 s{sT0}, s{sT0}, 2")
        e(f"s_add_u32 s{sT0}, s{sT0}, s{sFX}"); e(f"s_add_u32 s{sF4P}, s{sT0}, {FX_F4}")
        e(f"v_lshlrev_b32 v{vPA}, 2, v{vLANE}"); e(f"v_lshlrev_b32 v{vPR}, 3, v{vLANE}")

    def w5_base(self, e, vW5=vW5):
        self.tr_base(e, vW5[0], 4, 128, 32)
        e(f"v_bfe_u32 v{t}, v{vLANE}, 3, 1"); e(f"v_xor_b32 v{t}, s{sKH}, v{t}"); e(f"v_lshlrev_b32 v{t}, 6, v{t}")
        e(f"v_xor_b32 v{t + 1}, 64, v{t}")
        e(f"v_add_u32 v{vW5[1]}, v{vW5[0]}, v{t + 1}")
        e(f"v_add_u32 v{vW5[0]}, v{vW5[0]}, v{t}")

    def gu_ops(self, e, srd, base, cs, tag):
        ops = []
        for c in cs:
            for i in range(2):
                def op(c=c, i=i):
                    if i == 0:
                        e(f"s_add_u32 s{sT2}, s{sG}, {c}"); e(f"s_cmp_ge_u32 s{sT2}, 7"); e(f"s_cselect_b32 s{sT3}, 7, 0")
                        e(f"s_sub_u32 s{sT2}, s{sT2}, s{sT3}"); e(f"s_lshl_b32 s{sT2}, s{sT2}, 2"); e(f"s_add_u32 s{sT2}, s{sT2}, s{sW}")
                        e(f"s_lshl_b32 s{sT3}, s{sT2}, 11"); e(f"s_add_u32 m0, s{sT3}, {base}")
                        e(f"s_mul_i32 s{sT2}, s{sT2}, {16 * 3584}"); e(f"s_lshl_b32 s{sT3}, s{sJ}, 7"); e(f"s_add_u32 s{sT2}, s{sT2}, s{sT3}")
                    e.vmem(f"buffer_load_dwordx4 v{vGA[i]}, {srd}, s{sT2} offen offset:{1024 * i} lds", tag)
                ops.append(op)
        return ops

    def paced(self, e, ops, depth):
        for i, op in enumerate(ops):
            if i > depth:
                e(f"s_waitcnt vmcnt({depth})")
            op()

    def wd_ops(self, e, qs):
        ops = []
        for q in qs:
            for grp in range(2):
                for i in range(4 - grp):
                    def op(q=q, grp=grp, i=i):
                        if i == 0:
                            e(f"s_add_u32 m0, s{sWL}, {SLOT[q] + 4096 * grp}")
                            e(f"s_add_u32 s{sT2}, s{sWD}, {(16 * q + 512 * grp) * 896}")
                        e.vmem(f"buffer_load_dwordx4 v{vD[i]}, {WD}, s{sT2} offen offset:{1024 * i} lds", ("wd", q))
                    ops.append(op)
        return ops

    def wd_dma(self, e, qs):
        for q in qs:
            for op in self.wd_ops(e, [q]):
                op()
            self.tr(e, f"q{q}", 1)

    def h_poll(self, e, between=None):
        e(f"s_lshl_b32 s{sT0}, s{sML}, 7"); e(f"s_add_u32 s{sT0}, s{sT0}, s{sFX}"); e(f"s_add_u32 s{sT0}, s{sT0}, {FX_F3}")
        e(f"s_mul_i32 s{sT4}, s{sMT}, 28672"); e(f"s_add_u32 s{sT4}, s{sT4}, {WS_H}")
        e(f"s_lshl_b32 s{sT5}, s{sMT}, 11"); e(f"s_add_u32 s{sT5}, s{sT5}, {WS_SS}")
        e("s_mov_b64 exec, 0x3fff")
        self.poll(e, vPA, f"s{sT0}", f"v_cmp_ne_u32 vcc, 1, v{vSM}", vSM)
        e("s_mov_b64 exec, -1")

    def h_load(self, e, s):
        e.vmem(f"buffer_load_dwordx4 {vr(vH + 4 * s, 4)}, v{vL16}, {WS}, s{sT4} offen offset:{1024 * (s & 3)} sc1", ("h", s))
        if s & 3 == 3:
            e(f"s_add_u32 s{sT4}, s{sT4}, 4096")

    def ss_load(self, e):
        if not self.p["ssb"]:
            for i in range(7):
                e.vmem(f"buffer_load_dword v{vSS + i}, v{vPA}, {WS}, s{sT5} offen offset:{256 * i} sc1", "ss")
            return
        e(f"s_lshl_b32 s{sT0}, s{sW}, 11"); e(f"s_add_u32 m0, s{sT0}, {SLOT[0] + 8192 * e.role}")
        e(f"v_add_u32 v{vSS + 7}, s{sT0}, v{vPA}")
        self.dma4(e, WS, [vL16] * 2, f"s{sT5}", n=2, tag="ss", fl="sc1")

    def ss_read(self, e):
        e.wait(vm="ss")
        if self.p["ssb"]:
            for i in range(7):
                e.lds(f"ds_read_b32 v{vSS + i}, v{vSS + 7} offset:{SLOT[0] + 8192 * e.role + 256 * i}", "ss")

    KMAJ = [(s, k) for s in range(28) for k in range(2)]
    TMAJ = [(s, k) for k in range(2) for s in range(28)]

    def gu_rd(self, e, mat, order, n):
        s, k = order[n]
        self.trd(e, vRING + 4 * (n % NR), vP[2 * mat + k], 16 * s * 128, 1024, ("g", n))

    def gu_pre(self, e, mat, order):
        for n in range(NR - 1):
            self.gu_rd(e, mat, order, n)

    def gu_pass(self, e, mat, order, accs, hook=None, wait_h=False):
        for n, (s, k) in enumerate(order):
            e.wait(vm=("h", s) if (wait_h and k == 0) else None, ds=("g", n))
            self.mf(e, accs[k], vRING + 4 * (n % NR), vH + 4 * s, "0" if s == 0 else None)
            if n % 8 == 7: self.tr(e, f"m{mat}.{n}", 1)
            if n + NR - 1 < 56:
                self.gu_rd(e, mat, order, n + NR - 1)
            if hook:
                hook(n)

    def gelu_consts(self, e):
        k1 = 2 * math.sqrt(2 / math.pi) * math.log2(math.e)
        e.wait(ds="ss")
        for i in range(3):
            e(f"v_add_f32 v{vSS + i}, v{vSS + i}, v{vSS + 3 + i}")
        e(f"v_add_f32 v{vSS}, v{vSS}, v{vSS + 6}")
        e(f"v_add_f32 v{vSS + 1}, v{vSS + 1}, v{vSS + 2}")
        e(f"v_add_f32 v{vSS}, v{vSS}, v{vSS + 1}")
        e(f"v_mov_b32 v{vSS + 1}, v{vSS}")
        e(f"v_permlane32_swap_b32 v{vSS}, v{vSS + 1}")
        e(f"v_add_f32 v{vSS}, v{vSS}, v{vSS + 1}")
        e(f"v_mul_f32 v{vSS}, {f32(1 / 448)}, v{vSS}")
        e(f"v_add_f32 v{vRI}, {f32(1e-5)}, v{vSS}")
        e(f"v_rsq_f32 v{vSS}, v{vRI}")
        e(f"v_mul_f32 v{vK1}, {f32(-k1)}, v{vSS}")
        e(f"v_mul_f32 v{vSS}, v{vSS}, v{vSS}")
        e(f"v_mul_f32 v{vSS}, {f32(0.044715)}, v{vSS}")
        e(f"v_mul_f32 v{vK2}, v{vSS}, v{vK1}")

    def gelu_gate(self, e, ops=()):
        T = vTMP
        ops = list(ops)
        per = max(-(-len(ops) // 12), self.p["uper"] if e.role == 0 else 1)
        def side():
            for i in range(per):
                if ops: ops.pop(0)()
        for a in range(vACC, vACC + 32, 8):
            self.tr(e, f"g{(a - vACC) // 8}", 1)
            side()
            for i in range(8): e(f"v_mul_f32 v{T + i}, v{a + i}, v{a + i}")
            for i in range(8): e(f"v_fma_f32 v{T + i}, v{T + i}, v{vK2}, v{vK1}")
            for i in range(8): e(f"v_mul_f32 v{T + i}, v{T + i}, v{a + i}")
            side()
            for i in range(8): e(f"v_exp_f32 v{T + i}, v{T + i}")
            for i in range(8): e(f"v_fma_f32 v{T + i}, v{T + i}, v{vRI}, v{vRI}")
            side()
            for i in range(8): e(f"v_rcp_f32 v{T + i}, v{T + i}")
            for i in range(8): e(f"v_mul_f32 v{a + i}, v{T + i}, v{a + i}")
        assert not ops

    def prod_ops(self, e, k):
        g, u = vACC + 16 * k, UACC[k]
        ops = []
        for hf in range(2):
            b = 8 * hf
            for i in range(0, 8, 2):
                ops.append(lambda b=b, i=i: [e(f"v_mul_f32 v{u + b + j}, v{g + b + j}, v{u + b + j}") for j in (i, i + 1)])
            for i in range(0, 4, 2):
                ops.append(lambda b=b, i=i: [e(f"v_cvt_pk_bf16_f32 v{u + b + j}, v{u + b + 2 * j}, v{u + b + 2 * j + 1}") for j in (i, i + 1)])
            def st(b=b, tile=2 * k + hf):
                e(f"s_add_u32 s{sT0}, s{(sACT, sAC2)[k]}, {(tile & 1) * 14336}")
                self.publish(e, [f"buffer_store_dwordx4 {vr(u + b, 4)}, v{vL16}, {WS}, s{sT0} offen"], ("act", tile), wt=e.role == 1 and self.p["swt"])
                self.last_act = ("act", tile)
            ops.append(st)
        return ops

    def up_pass(self, e, flag_at, extra=None):
        ops = self.prod_ops(e, 0)
        def hook(n):
            if n >= 30 and ops: ops.pop(0)()
            if n == flag_at: self.act_flag(e, 2)
            if extra: extra(n)
        self.gu_pass(e, 1, self.TMAJ, UACC, hook)
        assert not ops

    def act_flag(self, e, stage):
        e(f"v_mov_b32 v{vFL}, {stage}")
        self.tr(e, f"F{stage}<", 1)
        e.wait(vm=self.last_act if stage > 1 else "ss")
        self.tr(e, f"F{stage}>", 1)
        e("s_mov_b64 exec, 1")
        self.publish(e, [f"buffer_store_dword v{vFL}, v{vPA}, {WS}, s{sF4P} offen"], "flag")
        if e.role == 1 and stage > 1 and self.p["ptouch"] and self.p["swt"]:
            e("s_mov_b64 exec, 0xffff")
            e.vmem(f"buffer_load_dword v25, v24, {WS}, s{(sACT, sAC2)[stage - 2]} offen sc1")
        e("s_mov_b64 exec, -1")

    def act_sample(self, e):
        e("s_mov_b64 exec, 0x7f")
        e.vmem(f"buffer_load_dword v{vSM}, v{vPR}, {WS}, s{sF4C} offen sc1", "sample")
        e("s_mov_b64 exec, -1")

    def act_check(self, e, stage):
        e.wait(vm="sample")
        e("s_mov_b64 exec, 0x7f")
        self.check_or_poll(e, vPR, f"s{sF4C}", f"v_cmp_gt_u32 vcc, {stage}, v{vSM}", vSM)
        e("s_mov_b64 exec, -1")
        self.tr(e, f"C{stage}", 1)

    def act_ops(self, e, q):
        ops = []
        for s in range(7):
            def op(s=s):
                if s == 0:
                    base, stride = ACTLOC[e.role][q >> 1]
                    e(f"s_mul_i32 s{sT1}, s{sA5}, {stride}"); e(f"s_mul_i32 s{sT0}, s{sKH}, 7168")
                    e(f"s_add_u32 s{sT1}, s{sT1}, s{sT0}"); e(f"s_add_u32 s{sT1}, s{sT1}, {base + (q & 1) * 14336}")
                e.vmem(f"buffer_load_dwordx4 {vr(vH + 28 * q + 4 * s, 4)}, v{vL16}, {WS}, s{sT1} offen offset:{1024 * (s & 3)} sc1", ("a", q, s))
                if s == 3:
                    e(f"s_add_u32 s{sT1}, s{sT1}, 4096")
            ops.append(op)
        return ops

    def act_load(self, e, q):
        for op in self.act_ops(e, q):
            op()
        self.tr(e, f"a{q}", 1)

    def down_rd(self, e, n):
        q, r = divmod(n, 14)
        s, k = divmod(r, 2)
        if n == self.p["x3at"] and e.role == 0:
            e("s_barrier")
            self.stamp(e, "X3")
        if r == 0:
            for kk in range(2):
                e(f"v_add_u32 v{vW5t[kk]}, {SLOT[q]}, v{vW5[kk]}")
        self.trd(e, vRING + 4 * (n % NR), vW5t[k], 1024 * s, 7168, ("d", n))

    def down_pre(self, e):
        for n in range(NR - 1):
            self.down_rd(e, n)

    def down_half(self, e, cinit, hook=None):
        for n in range(56):
            q, r = divmod(n, 14)
            s, k = divmod(r, 2)
            e.wait(vm=("a", q, s) if k == 0 else None, ds=("d", n))
            self.mf(e, vACC + 16 * k, vRING + 4 * (n % NR), vH + 28 * q + 4 * s, cinit[k] if n < 2 else None)
            if n % 7 == 6: self.tr(e, f"d{n}", 1)
            if n + NR - 1 < 56:
                self.down_rd(e, n + NR - 1)
            if hook:
                hook(n)

    def out_addr(self, e):
        e(f"v_and_b32 v{vXO}, 31, v{vLANE}"); e(f"v_mul_u32_u24 v{vXO}, 896, v{vXO}")
        e(f"v_lshrrev_b32 v{t + 1}, 5, v{vLANE}")
        e(f"v_lshl_add_u32 v{vXO}, v{t + 1}, 4, v{vXO}")
        e(f"s_lshl_b32 s{sT0}, s{sG}, 2"); e(f"s_add_u32 s{sT0}, s{sT0}, s{sMG}"); e(f"s_lshl_b32 s{sT0}, s{sT0}, 1")
        e(f"s_add_u32 s{sT0}, s{sT0}, s{sMI}")
        e(f"s_mul_i32 s{sXO}, s{sT0}, {32 * 896}"); e(f"s_lshl_b32 s{sT1}, s{sNG}, 1"); e(f"s_add_u32 s{sT1}, s{sT1}, s{sKH}")
        e(f"s_lshl_b32 s{sT1}, s{sT1}, 6"); e(f"s_add_u32 s{sXO}, s{sXO}, s{sT1}")

    def first_pass(self, e, pre, extra):
        for s in range(pre):
            self.h_load(e, s)
        self.stamp(e, "hpre")
        ops = [lambda s=s: self.h_load(e, s) for s in range(pre, 28)]
        ops += [lambda: self.ss_load(e)] + extra
        def hook(n):
            if n & 1 == 0 and ops: ops.pop(0)()
        self.gu_pass(e, 0, self.KMAJ, [vACC, vACC + 16], hook, wait_h=True)
        assert not ops

    def ffn_L(self, e):
        A0, A1 = vACC, vACC + 16
        p = self.p
        full = self.stop > 4
        self.gu_pre(e, 0, self.KMAJ)
        self.h_poll(e)
        self.tr(e, "hpoll", 2)
        self.stamp(e, "hpoll")
        e("s_setprio 2")
        self.first_pass(e, p["pre"], [lambda: e("s_barrier")] if p["bh"] else [])
        self.stamp(e, "seg1")
        self.ss_read(e)
        self.act_flag(e, 1)
        vPF = vMU2
        e(f"s_lshl_b32 s{sT0}, s{sW}, 2"); e(f"s_add_u32 s{sT0}, s{sT0}, {L_PF}")
        e(f"v_mov_b32 v{vPF}, s{sT0}"); e(f"v_mov_b32 v{t}, 0")
        e.lds(f"ds_write_b32 v{vPF}, v{t}", "ss")
        self.gelu_consts(e)
        self.gelu_gate(e, self.gu_ops(e, WU, L_UP, range(p["upe"] + p["ups"], 7), "up"))
        e.wait(vm="up")
        self.stamp(e, "gelu1")
        e("s_barrier")
        self.stamp(e, "Bb")
        self.gu_pre(e, 1, self.TMAJ)
        e(f"s_lshl_b32 s{sT4}, s{sJ}, 2"); e(f"s_sub_u32 s{sT4}, s{sF4P}, s{sT4}")
        qops = self.wd_ops(e, [0, 1, 2][p["q0e"]:3 - p["q2s"]]) if full else []
        def extra(n):
            if qops and (n & 1 == 0 and n < 28 or n >= 44): qops.pop(0)()
            if n == 29:
                e("s_mov_b64 exec, 0xfffffff")
                e.vmem(f"buffer_load_dword v{vSM}, v{vPA}, {WS}, s{sT4} offen sc1", "sample")
                e("s_mov_b64 exec, -1")
        self.up_pass(e, p["fl1"], extra)
        assert not qops
        e("s_setprio 0")
        self.stamp(e, "seg3")
        e.wait(vm="sample")
        e("s_mov_b64 exec, 0xfffffff")
        self.check_or_poll(e, vPA, f"s{sT4}", f"v_cmp_eq_u32 vcc, 0, v{vSM}", vSM)
        e("s_mov_b64 exec, -1")
        ops = self.prod_ops(e, 1)
        if full and p["lord"]:
            ops.insert(6, lambda: self.act_sample(e))
        for op in ops: op()
        if not full:
            self.act_flag(e, 3)
            return
        late = self.act_ops(e, 2) + self.act_ops(e, 3)
        if p["lord"]:
            self.act_check(e, 2)
            self.stamp(e, "chk1")
            ops = self.act_ops(e, 0)
            for op in ops[:3]: op()
            self.act_flag(e, 3)
            for op in ops[3:]: op()
            ops = self.act_ops(e, 1)
            for op in ops[:p["lord"]]: op()
            self.act_sample(e)
            for op in ops[p["lord"]:]: op()
        else:
            self.act_sample(e)
            self.act_flag(e, 3)
            self.act_check(e, 2)
            self.stamp(e, "chk1")
            self.act_load(e, 0)
            self.act_load(e, 1)
            self.act_sample(e)
        if p["c3at"] < 0:
            self.act_check(e, 3)
            for i in range(7): late.pop(0)()
        e(f"s_lshl_b32 s{sT0}, s{sW}, 12"); e(f"v_add_u32 v{t}, s{sT0}, v{vL16}"); e(f"v_xor_b32 v{t + 1}, 8192, v{t}")
        e(f"v_add_u32 v{t + 3}, {14336 - 1024}, v{vL16}"); e(f"v_mov_b32 v{vFL}, 1")
        e(f"s_add_u32 s{sT4}, s{sJ}, 14"); e(f"s_cmp_ge_u32 s{sT4}, 28"); e(f"s_cselect_b32 s{sT5}, 28, 0")
        e(f"s_sub_u32 s{sT4}, s{sT4}, s{sT5}"); e(f"s_mul_i32 s{sT3}, s{sMG}, 7")
        e(f"s_lshl_b32 s{sT0}, s{sW}, 2"); e(f"s_add_u32 s{sT0}, s{sT0}, s{sFX}"); e(f"s_add_u32 s{sT0}, s{sT0}, {FX_F6}")
        for dst, j in ((sT5, sJ), (sT4, sT4), (sT3, sT3)):
            e(f"s_lshl_b32 s{dst}, s{j}, 4"); e(f"s_add_u32 s{dst}, s{dst}, s{sT0}")
        self.stamp(e, "Bd_")
        e("s_barrier")
        e("s_setprio 2")
        self.stamp(e, "Bd")
        self.down_pre(e)
        def hook(n):
            if n == p["c3at"]: self.act_check(e, 3)
            if n >= p["c3at"] and late and (n & 1 == 0 or len(late) > 7): late.pop(0)()
            if n == 27:
                e("s_mov_b64 exec, 1")
                self.publish(e, [f"buffer_store_dword v{vFL}, v{vPA}, {WS}, s{sT5} offen"])
                e("s_mov_b64 exec, -1")
            if n == 46:
                e("s_mov_b64 exec, 0x7f")
                e.vmem(f"buffer_load_dword v{t + 2}, v{vL16}, {WS}, s{sT3} offen sc1", "sample")
                e("s_mov_b64 exec, -1")
        self.down_half(e, ["0", "0"], hook)
        e("s_setprio 0")
        self.stamp(e, "dn")
        e(f"s_mul_i32 s{sT0}, s{sKH}, 7"); e(f"s_add_u32 s{sT0}, s{sT0}, s{sNG}"); e(f"s_lshl_b32 s{sT0}, s{sT0}, 10")
        e(f"s_add_u32 s{sT0}, s{sT0}, {WS_O}")
        e(f"s_lshl_b32 s{sT1}, s{sA5}, 15"); e(f"s_add_u32 s{sT1}, s{sT1}, s{sT0}")
        e(f"s_xor_b32 s{sT2}, s{sA5}, 4"); e(f"s_lshl_b32 s{sT2}, s{sT2}, 15"); e(f"s_add_u32 s{sT2}, s{sT2}, s{sT0}")
        for i in range(4):
            e.lds(f"ds_write_b128 v{t}, {vr(A1 + 4 * i, 4)} offset:{L_RES + 1024 * i}")
        e.lds(f"ds_write_b32 v{vPF}, v{vFL}")
        e(f"v_xor_b32 v{vPF}, 8, v{vPF}")
        e.wait(vm="sample")
        e("s_mov_b64 exec, 0x7f")
        self.check_or_poll(e, vL16, f"s{sT3}", f"v_cmp_eq_u32 vcc, 0, v{t + 2}", t + 2)
        e("s_mov_b64 exec, -1")
        spin, got = self.lab("pair"), self.lab("paired")
        e(f"{spin}:")
        e(f"ds_read_b32 v{vSM}, v{vPF}")
        for i in range(4):
            e(f"ds_read_b128 {vr(vH + 4 * i, 4)}, v{t + 1} offset:{L_RES + 1024 * i}")
        e(f"s_add_u32 s{sSPIN}, s{sSPIN}, 1")
        e("s_waitcnt lgkmcnt(0)")
        e(f"v_cmp_ne_u32 vcc, 1, v{vSM}")
        e(f"s_cmp_gt_u32 s{sSPIN}, {SPIN_LIMIT}"); e(f"s_cbranch_scc1 {got}"); e(f"s_cbranch_vccnz {spin}")
        e(f"{got}:")
        e.ds = []
        self.tr(e, "pair", 1)
        for i in range(2):
            for r in range(8 * i, 8 * i + 8):
                e(f"v_add_f32 v{A0 + r}, v{A0 + r}, v{vH + r}")
            for r in range(4 * i, 4 * i + 4):
                e(f"v_cvt_pk_bf16_f32 v{A1 + r}, v{A0 + 2 * r}, v{A0 + 2 * r + 1}")
            self.publish(e, [f"buffer_store_dwordx4 {vr(A1 + 4 * i, 4)}, v{(vL16, t + 3)[i]}, {WS}, s{sT1} offen offset:{1024 * i}"])
        e(f"s_xor_b32 s{sT0}, s{sW}, 2"); e(f"s_lshl_b32 s{sT0}, s{sT0}, 12"); e(f"s_add_u32 m0, s{sT0}, {L_RES}")
        e(f"v_mov_b32 v{vFL}, 2")
        e.wait(vm="all")
        self.tr(e, "pack", 1)
        e("s_mov_b64 exec, 1")
        self.publish(e, [f"buffer_store_dword v{vFL}, v{vPA}, {WS}, s{sT5} offen"])
        self.poll(e, vPA, f"s{sT4}", f"v_cmp_ne_u32 vcc, 2, v{vSM}", vSM)
        e("s_mov_b64 exec, -1")
        self.tr(e, "ppoll", 1)
        self.dma4(e, WS, [vL16, t + 3], f"s{sT2}", n=2, fl="sc1")
        e.wait(vm="all")
        self.tr(e, "Br_", 1)
        e("s_barrier")

    SCHED = ["WX.TWX|WWX|WX|WXWX|XQQ|QQQ|QQ|",
             "WX.TWX|WWX|WXWX|WX|XQQ|QQQ|QQ|",
             "WX.TWX|WWX|WXWX|WX|XQQ|QQQ|QQG|G",
             "WX.TWX|WWX|WXWX|WX|XQQ|QQQG|QQG|G",
             "WX.TWX|WWX|WXWX|WX|XQQQ|QQQQ|GG|GG",
             "WX.TWX|WWX|WXWX|WX|XQQQG|QQG|QQG|G",
             "WX.TWX|WWX|WXWX|WX|XGQQQ|GQQG|QQGG|",
             "WX.TWX|WWX|WXWX|WX|XGGQQ|QQQ|QQ|"]

    def wvis(self):
        out, w = [], 0
        for ch in self.SCHED[self.p["sched"]]:
            if ch == "W": w += 1
            if ch == "X": out.append(w - 1)
        return out

    def role_S(self):
        e = Stream(); e.role = 1
        p = self.p
        vXA, vWA, vQA = [4, 5, 6, 7], [8, 9], 10
        e(f"v_lshrrev_b32 v{t}, 3, v{vLANE}")
        e(f"v_mul_u32_u24 v{t + 1}, 896, v{t}")
        e(f"v_lshrrev_b32 v{t}, 1, v{t}")
        e(f"v_and_b32 v{t + 2}, 7, v{vLANE}")
        e(f"v_xor_b32 v{t}, v{t}, v{t + 2}")
        e(f"v_lshl_add_u32 v{vXA[0]}, v{t}, 4, v{t + 1}")
        e(f"v_xor_b32 v{t}, 4, v{t}")
        e(f"v_lshl_add_u32 v{vXA[1]}, v{t}, 4, v{t + 1}")
        e(f"v_add_u32 v{vXA[2]}, {16 * 896 - 2048}, v{vXA[0]}")
        e(f"v_add_u32 v{vXA[3]}, {24 * 896 - 3072}, v{vXA[1]}")
        e(f"v_add_u32 v{vXA[1]}, {8 * 896 - 1024}, v{vXA[1]}")
        self.rows128_src(e, vWA, 2688, 64, lambda i: 8 * i)
        e(f"v_lshlrev_b32 v24, 7, v{vLANE}")
        sKX, sWB = sA5, sACT
        e(f"s_mov_b32 s{sKX}, s{sKC}")
        e(f"s_mul_i32 s{sT4}, s{sMT}, {32 * 896}")
        e(f"s_mul_i32 s{sT3}, s{sW}, {16 * 2688}"); e(f"s_lshl_b32 s{sT0}, s{sHEAD}, 7"); e(f"s_add_u32 s{sWB}, s{sT3}, s{sT0}")
        e(f"s_add_u32 s{sWB}, s{sWB}, 896"); e(f"s_cmp_lt_u32 s{sHEAD}, 14"); e(f"s_cselect_b32 s{sWB}, s{sWB}, 0x7f000000")
        e(f"s_mul_i32 s{sT0}, s{sHEAD}, 56"); e(f"s_add_u32 s{sT3}, s{sT3}, s{sT0}")
        e(f"s_lshl_b32 s{sT2}, s{sW}, 11")
        sXT, vXT = sWD, 23
        e(f"s_lshl_b32 s{sXT}, s{sRB}, 4"); e(f"s_add_u32 s{sXT}, s{sXT}, s{sHEAD}"); e(f"s_lshl_b32 s{sXT}, s{sXT}, 2")
        e(f"s_add_u32 s{sXT}, s{sXT}, s{sW}"); e(f"s_mul_i32 s{sXT}, s{sXT}, 1792")
        e(f"v_lshrrev_b32 v{vXT}, 1, v{vLANE}"); e(f"v_add_u32 v{vXT}, s{sKC}, v{vXT}")
        e(f"v_subrev_u32 v{t}, 7, v{vXT}"); e(f"v_min_u32 v{vXT}, v{vXT}, v{t}")
        e(f"v_and_b32 v{t}, 1, v{vLANE}"); e(f"v_mul_u32_u24 v{t}, 896, v{t}"); e(f"v_lshl_add_u32 v{vXT}, v{vXT}, 7, v{t}")
        def xtouch(mask):
            e(f"s_mov_b64 exec, {mask}")
            e.vmem(f"buffer_load_dword v25, v{vXT}, {X_}, s{sXT} offen")
            e("s_mov_b64 exec, -1")
        self.got_args(e)
        def wkv(ic):
            e(f"s_add_u32 m0, s{sT2}, {LC + ic * 8192}")
            e(f"s_mul_i32 s{sT0}, s{sKC}, {64 * 2688}"); e(f"s_add_u32 s{sT0}, s{sT0}, s{sWB}")
            self.dma4(e, WQKV, vWA, f"s{sT0}", n=2)
            self.next_kc(e)
        def xch(ic):
            e(f"s_add_u32 m0, s{sT5}, {(ic % 4) * 16384}")
            e(f"s_lshl_b32 s{sT0}, s{sKX}, 7"); e(f"s_add_u32 s{sT0}, s{sT0}, s{sT4}")
            self.dma4(e, X_, vXA, f"s{sT0}", tag=("c", ic))
            self.next_kc(e, sKX)
        def wq(ic):
            e(f"s_lshr_b32 s{sT1}, s{sT2}, 1"); e(f"s_add_u32 m0, s{sT1}, {L_WQ + ic * 4096}")
            e(f"s_mul_i32 s{sT0}, s{sKC}, {64 * 2688}"); e(f"s_add_u32 s{sT0}, s{sT0}, s{sT3}")
            self.dma4(e, WQKV, [vQA], f"s{sT0}", n=1, tag="wq")
            self.next_kc(e)
        if p["pull"]:
            e(f"s_cmp_ge_u32 s{sJ}, 28"); e("s_cbranch_scc1 L_pull")
            e("L_pulled:")
            self.pull(vXT, sXT)
        sNI = sM2
        def g_touch(c):
            e(f"s_add_u32 s{sT0}, s{sG}, {c}"); e(f"s_cmp_ge_u32 s{sT0}, 7"); e(f"s_cselect_b32 s{sT1}, 7, 0")
            e(f"s_sub_u32 s{sT0}, s{sT0}, s{sT1}"); e(f"s_mul_i32 s{sT0}, s{sT0}, {64 * 3584}"); e(f"s_add_u32 s{sT0}, s{sT0}, s{sNI}")
            self.touch(e, WG, f"s{sT0}", 28)
            e.vm.append(None)
        cnt = dict(W=0, X=0, Q=0, b=0, G=0)
        def run(chars):
            for ch in chars:
                if ch == "W": wkv(cnt[ch])
                elif ch == "X":
                    assert cnt["X"] < 4 or cnt["b"] >= cnt["X"] - 2
                    xch(cnt[ch])
                elif ch == "Q":
                    assert cnt["W"] == 7
                    wq(cnt[ch])
                elif ch == "T": xtouch(0x3ffc)
                elif ch == "G": g_touch(cnt[ch])
                elif ch == "|":
                    ch = "b"
                    e.wait(vm=("c", cnt[ch]))
                    self.stamp(e, f"b{cnt[ch]}")
                    e("s_barrier")
                if ch in cnt: cnt[ch] += 1
        first, rest = self.SCHED[p["sched"]].split(".")
        run(first)
        self.late_setup(e)
        self.stamp(e, "start")
        head, rest = rest.split("|", 1)
        run(head)
        self.rows64_src(e, [vQA], 2688, 0)
        vA, vRA, vRMr = [12, 13, 14, 15], 11, 160
        self.rows128_src(e, vA, 896, 64, lambda i: 8 * i)
        e(f"v_lshrrev_b32 v{vRA}, 3, v{vLANE}"); e(f"v_mul_u32_u24 v{vRA}, 896, v{vRA}")
        e(f"v_and_b32 v{t + 1}, 7, v{vLANE}"); e(f"v_lshl_add_u32 v{vRA}, v{t + 1}, 4, v{vRA}")
        def rm_load(r):
            e(f"s_lshl_b32 s{sT0}, s{sHEAD}, 2"); e(f"s_add_u32 s{sT0}, s{sT0}, s{sW}"); e(f"s_mul_i32 s{sT0}, s{sT0}, {7 * 896}")
            for i in r:
                e.vmem(f"buffer_load_dwordx4 {vr(vRMr + 4 * i, 4)}, v{vRA}, {WO}, s{sT0} offen offset:{128 * i}", "rm")
        def xr_load():
            e(f"s_lshl_b32 s{sT0}, s{sG}, 2"); e(f"s_add_u32 s{sT0}, s{sT0}, s{sMG}"); e(f"s_lshl_b32 s{sT0}, s{sT0}, 2")
            e(f"s_add_u32 s{sT0}, s{sT0}, s{sW}"); e(f"s_mul_i32 s{sT0}, s{sT0}, {16 * 896}")
            e(f"s_lshl_b32 s{sT1}, s{sNG}, 7"); e(f"s_add_u32 s{sT0}, s{sT0}, s{sT1}")
            e(f"s_cmp_lt_u32 s{sJ}, 28"); e(f"s_cselect_b32 s{sT0}, s{sT0}, 0x7f000000")
            e(f"s_add_u32 m0, s{sT2}, {L_XR}")
            self.dma4(e, X_, vA, f"s{sT0}", n=2, tag="rm")
        def o_touch():
            e(f"s_lshl_b32 s{sT0}, s{sG}, 5"); e(f"s_add_u32 s{sT0}, s{sT0}, s{sJ}"); e(f"s_lshl_b32 s{sT0}, s{sT0}, 2")
            e(f"s_add_u32 s{sT0}, s{sT0}, s{sW}"); e(f"s_lshl_b32 s{sT0}, s{sT0}, 11"); e(f"s_add_u32 s{sT0}, s{sT0}, {WS_O}")
            self.touch(e, WS, f"s{sT0}", 16)
        def h_touch():
            e(f"s_lshl_b32 s{sT1}, s{sG}, 5"); e(f"s_add_u32 s{sT1}, s{sT1}, s{sJ}"); e(f"s_lshl_b32 s{sT1}, s{sT1}, 2")
            e(f"s_add_u32 s{sT1}, s{sT1}, s{sW}"); e(f"s_mul_i32 s{sT0}, s{sT1}, {14 * 128}"); e(f"s_add_u32 s{sT0}, s{sT0}, {WS_H}")
            self.touch(e, WS, f"s{sT0}", 14)
            e(f"s_lshl_b32 s{sT0}, s{sT1}, 7"); e(f"s_add_u32 s{sT0}, s{sT0}, {WS_SS}")
            self.touch(e, WS, f"s{sT0}", 1)
        self.rows128_src(e, vGA, 3584, 64, lambda i: 8 * i)
        vV0, vV1, vXL = 16, 17, 21
        e(f"v_and_b32 v{t}, 31, v{vLANE}"); e(f"v_lshrrev_b32 v{t + 1}, 5, v{vLANE}")
        e(f"v_mul_u32_u24 v{vV0}, 7168, v{t + 1}"); e(f"v_lshl_add_u32 v{vV0}, v{t}, 4, v{vV0}")
        e(f"v_add_u32 v{vV1}, {WS_V + 14336 - 3072}, v{vV0}"); e(f"v_add_u32 v{vV0}, {WS_V - 2048}, v{vV0}")
        e(f"v_bfe_u32 v{vXL}, v{vLANE}, 1, 1"); e(f"v_xor_b32 v{vXL}, s{sKH}, v{vXL}"); e(f"v_lshlrev_b32 v{vXL}, 6, v{vXL}")
        e(f"v_lshl_add_u32 v{vXL}, v{t}, 7, v{vXL}"); e(f"v_lshl_add_u32 v{vXL}, v{t + 1}, 3, v{vXL}")
        e(f"s_lshl_b32 s{sT0}, s{sMI}, 12"); e(f"s_add_u32 s{sT0}, s{sT0}, {L_XR}"); e(f"v_add_u32 v{vXL}, s{sT0}, v{vXL}")
        self.w5_base(e, vW5t)
        e(f"s_mul_i32 s{sT0}, s{sKH}, {224 * 128}"); e(f"s_add_u32 s{sT0}, s{sT0}, {L_WO}")
        for k in range(2):
            e(f"v_add_u32 v{vW5t[k]}, s{sT0}, v{vW5t[k]}")
        near = [0, 1, 3, 5, 7, 8, 10, 12]
        tab = sum((near.index(h) if h in near else 15) << (4 * h) for h in range(16))
        e(f"s_mov_b32 s{sNI}, {tab & 0xffffffff}"); e(f"s_mov_b32 s{sNI + 1}, {tab >> 32}"); e(f"s_lshl_b32 s{sT0}, s{sHEAD}, 2")
        e(f"s_lshr_b64 s[{sNI}:{sNI + 1}], s[{sNI}:{sNI + 1}], s{sT0}"); e(f"s_and_b32 s{sT0}, s{sNI}, 15")
        e(f"s_and_b32 s{sNI}, s{sRB}, 1"); e(f"s_lshl_b32 s{sNI}, s{sNI}, 3"); e(f"s_add_u32 s{sNI}, s{sNI}, s{sT0}")
        e(f"s_lshl_b32 s{sNI}, s{sNI}, 2"); e(f"s_add_u32 s{sNI}, s{sNI}, s{sW}"); e(f"s_mul_i32 s{sNI}, s{sNI}, 3584")
        e(f"s_cmp_lt_u32 s{sT0}, 8"); e(f"s_cselect_b32 s{sNI}, s{sNI}, 0x7f000000")
        run("|" + rest)
        cnt.pop("G")
        assert cnt == dict(W=7, X=7, Q=7, b=7), cnt
        e(f"s_mul_i32 s{sT4}, s{sMT}, 28672"); e(f"s_mul_i32 s{sT0}, s{sHEAD}, 448"); e(f"s_add_u32 s{sT4}, s{sT4}, s{sT0}")
        aOwn, aOth, vWf, vO = vRES, 224, vH, 160
        e(f"s_lshl_b32 s{sML}, s{sMG}, 1"); e(f"s_add_u32 s{sML}, s{sML}, s{sMI}")
        e(f"s_lshl_b32 s{sMT}, s{sG}, 3"); e(f"s_add_u32 s{sMT}, s{sMT}, s{sML}")
        def wo_dma(grp):
            rows = 32 if grp < 3 else 16
            e(f"s_mul_i32 s{sT0}, s{sW}, {rows * 128}"); e(f"s_add_u32 m0, s{sT0}, {L_WO + grp * 16384}")
            e(f"s_mul_i32 s{sT0}, s{sW}, {rows * 896}"); e(f"s_lshl_b32 s{sT1}, s{sNG}, 7"); e(f"s_add_u32 s{sT0}, s{sT0}, s{sT1}")
            e(f"s_add_u32 s{sT0}, s{sT0}, {grp * 128 * 896}")
            self.dma4(e, WO, vA, f"s{sT0}", n=rows // 8, tag="wo")
        e.wait(vm="wq")
        self.stamp(e, "wq")
        e("s_barrier")
        self.stamp(e, "Bkv")
        gate = self.gu_ops(e, WG, L_GATE, range(7), "gate")
        nogate = self.lab("nogate")
        rm_load(range(7)); xr_load()
        e(f"s_cmp_ge_u32 s{sJ}, 28"); e(f"s_cbranch_scc1 {nogate}")
        self.tr(e, "rmi", 2)
        self.paced(e, gate[:2 * p["g1"]], p["gdep"])
        self.tr(e, "g1i", 2)
        back = self.lab("gated")
        e(f"{back}:")
        tl = Stream(); tl(f"{nogate}:")
        if p["ctouch"] & 1: self.code_touch(tl)
        tl("s_waitcnt vmcnt(0)")
        tl(f"s_branch {back}")
        self.tail += tl.L
        e("s_waitcnt vmcnt(%d)" % min(p["gdep"] + 1, 2 * p["g1"]))
        for i in range(28):
            acc = t + (i & 1)
            e(f"v_lshlrev_b32 v{t + 2}, 16, v{vRMr + i}"); e(f"v_and_b32 v{t + 3}, 0xffff0000, v{vRMr + i}")
            if i < 2:
                e(f"v_add_f32 v{acc}, v{t + 2}, v{t + 3}")
            else:
                e(f"v_add_f32 v{acc}, v{acc}, v{t + 2}"); e(f"v_add_f32 v{acc}, v{acc}, v{t + 3}")
        e(f"v_add_f32 v{t}, v{t}, v{t + 1}")
        for d in ("quad_perm:[1,0,3,2]", "quad_perm:[2,3,0,1]", "row_half_mirror"):
            e(f"v_add_f32_dpp v{t}, v{t}, v{t} {d} row_mask:0xf bank_mask:0xf")
        e(f"v_mul_f32 v{t}, {f32(1 / 448)}, v{t}")
        e(f"s_mov_b32 s{sM1}, 0"); e(f"s_mov_b32 s{sM1 + 1}, 0xff000000")
        e(f"v_cndmask_b32 v{t}, v{t}, 0, s[{sM1}:{sM1 + 1}]")
        e(f"s_mul_i32 s{sT0}, s{sW}, 7"); e(f"s_add_u32 s{sT1}, s{sW}, 28")
        e(f"v_lshrrev_b32 v{t + 1}, 3, v{vLANE}"); e(f"v_add_u32 v{t + 1}, s{sT0}, v{t + 1}")
        e(f"v_mov_b32 v{t + 2}, s{sT1}")
        e(f"v_cndmask_b32 v{t + 1}, v{t + 1}, v{t + 2}, s[{sM1}:{sM1 + 1}]")
        e(f"v_lshlrev_b32 v{t + 1}, 2, v{t + 1}"); e(f"v_add_u32 v{t + 1}, {L_MISC}, v{t + 1}")
        e.lds(f"ds_write_b32 v{t + 1}, v{t}")
        e.wait(ds="all")
        self.stamp(e, "pre")
        e("s_barrier")
        self.tr(e, "Bk", 2)
        e("s_mov_b32 exec_lo, 0x0fffffff"); e("s_mov_b32 exec_hi, 0x0fffffff")
        for u in range(3):
            e(f"s_sub_u32 s{sT1}, s{sT4}, {(8 - 4 * u) * 28672}")
            if u < 2:
                e(f"s_cmp_ge_u32 s{sRB}, {2 - u}"); e(f"s_cselect_b32 s{sT1}, s{sT1}, 0x7f000000")
            e(f"s_add_u32 m0, s{sT5}, {u * 16384}")
            e.vmem(f"buffer_load_dwordx4 v{vV0}, {WS}, s{sT1} offen offset:2048 sc1 lds", "vt")
            e.vmem(f"buffer_load_dwordx4 v{vV1}, {WS}, s{sT1} offen offset:3072 sc1 lds", "vt")
        e("s_mov_b64 exec, -1")
        def oh_touch():
            if not p["ohwt"] & 1:
                o_touch(); e.vm += [None]
            if not p["ohwt"] & 2:
                h_touch(); e.vm += [None] * 2
        self.oh_touch = oh_touch
        e(f"s_cmp_ge_u32 s{sJ}, 28"); e("s_cbranch_scc1 L_helper")
        self.tr(e, "vi", 2)
        for a in range(4):
            e.lds(f"ds_read_b64 {vr(aOth + 2 * a, 2)}, v{vXL} offset:{16 * a}")
        wo_dma(0)
        e.wait(ds="all")
        for i in range(8):
            e(f"v_lshlrev_b32 v{aOwn + 2 * i}, 16, v{aOth + i}")
            e(f"v_and_b32 v{aOwn + 2 * i + 1}, 0xffff0000, v{aOth + i}")
        e(f"v_mov_b32 v{t}, 0xbf80bf80")
        self.tr(e, "Batt_", 2)
        e("s_barrier")
        self.stamp(e, "Batt")
        wo_dma(1); wo_dma(2); wo_dma(3)
        self.tr(e, "wo", 2)
        rest = gate[2 * p["g1"]:]
        if p["otouch"] == 2: self.oh_touch()
        for op in rest[:2 * p["gpre"]]: op()
        e.wait(vm="wo")
        self.tr(e, "Bm_", 2)
        e("s_barrier")
        self.stamp(e, "Bm")
        if p["otouch"] == 3: self.oh_touch()
        for op in rest[2 * p["gpre"]:]: op()
        for c in range(p["upa"]):
            e(f"s_add_u32 s{sT0}, s{sG}, {c}"); e(f"s_cmp_ge_u32 s{sT0}, 7"); e(f"s_cselect_b32 s{sT1}, 7, 0")
            e(f"s_sub_u32 s{sT0}, s{sT0}, s{sT1}"); e(f"s_mul_i32 s{sT0}, s{sT0}, 112"); e(f"s_lshl_b32 s{sT1}, s{sJ}, 2")
            e(f"s_add_u32 s{sT0}, s{sT0}, s{sT1}"); e(f"s_add_u32 s{sT0}, s{sT0}, s{sW}"); e(f"s_lshl_b32 s{sT0}, s{sT0}, 11")
            self.touch(e, WU, f"s{sT0}", 16)
            e.vm.append(None)
        self.tr(e, "gi", 2)
        for st in range(16):
            for k in range(2):
                self.trd(e, vWf + 8 * st + 4 * k, vW5t[k], (28 * (st >> 1) + 16 * (st & 1)) * 128, 1024, None)
        if p["sprio"]: e("s_setprio 1")
        self.mode_issue(e, 3, 22)
        e.wait(ds="all")
        self.tr(e, "wfr", 2)
        for st in range(1, 16, 2):
            for k in range(2):
                r = vWf + 8 * st + 4 * k
                e(f"v_cndmask_b32 v{r + 2}, v{r + 2}, v{t}, {HI}")
                e(f"v_cndmask_b32 v{r + 3}, v{r + 3}, 0, {HI}")
        self.tr(e, "fix", 2)
        self.mode_check(e, 3, 22)
        self.stamp(e, "gu")
        if self.stop > 2:
            self.out_proj(e, aOwn, aOth, vWf, vO)
        if self.stop > 3:
            self.ffn_S(e)
        self.finish(e, 1)
        self.helper(e)
        return e

    def pull(self, vXT, sXT):
        e = Stream(); e.role = 1
        e("L_pull:")
        e("s_mov_b64 exec, 0x3ffc")
        e(f"buffer_load_dword v25, v{vXT}, {X_}, s{sXT} offen")
        e("s_mov_b64 exec, -1")
        self.late_setup(e, False)
        sPI = sML
        e(f"s_lshl_b32 s{sPI}, s{sG}, 2"); e(f"s_add_u32 s{sPI}, s{sPI}, s{sJ}"); e(f"s_sub_u32 s{sPI}, s{sPI}, 28")
        e(f"s_lshl_b32 s{sPI}, s{sPI}, 2"); e(f"s_add_u32 s{sPI}, s{sPI}, s{sW}")
        e(f"v_mul_u32_u24 v{t}, 37, v{vLANE}"); e(f"v_lshrrev_b32 v{t}, 8, v{t}")
        e(f"v_mul_u32_u24 v{t}, {2688 - 896}, v{t}"); e(f"v_add_u32 v{t}, v{t}, v24")
        e(f"s_mul_i32 s{sT0}, s{sPI}, {4 * 2688}")
        self.touch(e, WQKV, f"s{sT0}", 28, va=t)
        e(f"s_mul_i32 s{sT0}, s{sPI}, {25 * 128}")
        self.touch(e, WO, f"s{sT0}", 25)
        for u in range(self.p["pull"] - 2):
            srd, half = ((WG, 0), (WG, 1), (WU, 0), (WU, 1), (WD, 0), (WD, 1))[u]
            e(f"s_mul_i32 s{sT0}, s{sPI}, {98 * 128}")
            if half: e(f"s_add_u32 s{sT0}, s{sT0}, {49 * 128}")
            self.touch(e, srd, f"s{sT0}", 49)
        e("s_branch L_pulled")
        self.tail += e.L

    def code_touch(self, e):
        lb = self.lab("pc")
        e("s_getpc_b64 s[100:101]")
        e(f"{lb}:")
        e(f"s_sub_u32 s100, s100, {lb}-{NAME}"); e("s_subb_u32 s101, s101, 0")
        e(f"s_sub_u32 s{sT0}, s{sJ}, 28"); e(f"s_lshl_b32 s{sT0}, s{sT0}, 2"); e(f"s_add_u32 s{sT0}, s{sT0}, s{sW}")
        e(f"s_mul_i32 s{sT0}, s{sT0}, 3072")
        e(f"v_add_u32 v25, s{sT0}, v24"); e(f"v_min_u32 v25, L_end-{NAME}-4, v25")
        e("s_mov_b64 exec, 0xffffff")
        e("global_load_dword v25, v25, s[100:101] sc1")
        e("s_mov_b64 exec, -1")

    def cold_pull(self, e, srd):
        e(f"s_lshl_b32 s{sT0}, s{sG}, 2"); e(f"s_add_u32 s{sT0}, s{sT0}, s{sJ}"); e(f"s_sub_u32 s{sT0}, s{sT0}, 28")
        e(f"s_lshl_b32 s{sT0}, s{sT0}, 2"); e(f"s_add_u32 s{sT0}, s{sT0}, s{sW}"); e(f"s_mul_i32 s{sT0}, s{sT0}, {98 * 128}")
        self.touch(e, srd, f"s{sT0}", 49); e(f"s_add_u32 s{sT0}, s{sT0}, {49 * 128}"); self.touch(e, srd, f"s{sT0}", 49)

    def helper(self, e):
        e("L_helper:")
        e.vm, e.ds = [], []
        p = self.p
        e("s_barrier")
        self.oh_touch()
        self.touch(e, WS, f"s{sFX}", 28)
        e(f"s_waitcnt vmcnt({len(e.vm) + 1})")
        e("s_barrier")
        if p["hp2"]: self.cold_pull(e, WD)
        sHI_ = sKC
        e(f"s_sub_u32 s{sHI_}, s{sJ}, 28"); e(f"s_lshl_b32 s{sHI_}, s{sHI_}, 2"); e(f"s_add_u32 s{sHI_}, s{sHI_}, s{sW}")
        e("s_barrier")
        if p["ctouch"] & 2:
            e("s_waitcnt vmcnt(0)")
            self.code_touch(e)
        if p["hcp"] & 1: self.cold_pull(e, WU)
        if p["hcp"] & 2: self.cold_pull(e, WD)
        for c in range(p["upa"], p["hup"]):
            e(f"s_add_u32 s{sT2}, s{sG}, {c}"); e(f"s_cmp_ge_u32 s{sT2}, 7"); e(f"s_cselect_b32 s{sT3}, 7, 0")
            e(f"s_sub_u32 s{sT2}, s{sT2}, s{sT3}"); e(f"s_lshl_b32 s{sT2}, s{sT2}, 4"); e(f"s_add_u32 s{sT2}, s{sT2}, s{sHI_}")
            e(f"s_mul_i32 s{sT0}, s{sT2}, {4 * 3584}")
            self.touch(e, WU, f"s{sT0}", 56); e(f"s_add_u32 s{sT0}, s{sT0}, {56 * 128}"); self.touch(e, WU, f"s{sT0}", 56)
        if p["hcp"] & 4: self.cold_pull(e, WD)
        def wd_touch(tile):
            for u in range(4):
                e(f"s_add_u32 s{sT2}, s{sHI_}, {16 * u}"); e(f"s_lshl_b32 s{sT0}, s{sG}, 3"); e(f"s_add_u32 s{sT2}, s{sT2}, s{sT0}")
                e(f"s_and_b32 s{sT2}, s{sT2}, 63")
                e(f"s_lshr_b32 s{sT0}, s{sT2}, 1"); e(f"s_mul_i32 s{sT0}, s{sT0}, {64 * 896}")
                e(f"s_and_b32 s{sT2}, s{sT2}, 1"); e(f"s_mul_i32 s{sT2}, s{sT2}, {8 * 896}")
                e(f"s_add_u32 s{sT0}, s{sT0}, s{sT2}"); e(f"s_add_u32 s{sT0}, s{sT0}, {16 * tile * 896}")
                self.touch(e, WD, f"s{sT0}", 56)
        for tile in f"{p['word']:04d}"[:p["hwd"]]:
            wd_touch(int(tile))
        if not p["swt"]:
            e(f"s_lshl_b32 s{sT0}, s{sG}, 4"); e(f"s_add_u32 s{sT0}, s{sT0}, s{sHI_}"); e(f"s_mul_i32 s{sT0}, s{sT0}, 28672")
            e(f"s_add_u32 s{sT0}, s{sT0}, {WS_ACT}")
            for i in range(4):
                self.touch(e, WS, f"s{sT0}", 56); e(f"s_add_u32 s{sT0}, s{sT0}, {56 * 128}")
        if p["ctouch"] & 4:
            e("s_waitcnt vmcnt(0)")
            self.code_touch(e)
        if p.get("trace"): e("s_endpgm")
        else: self.finish(e, 1)

    def out_proj(self, e, aOwn, aOth, vWf, vO):
        e(f"v_lshlrev_b32 v{t}, 2, v{vLANE}")
        e(f"s_lshl_b32 s{sT0}, s{sML}, 2"); e(f"s_add_u32 s{sT0}, s{sT0}, s{sKH}"); e(f"s_lshl_b32 s{sT0}, s{sT0}, 5")
        e(f"s_add_u32 s{sT0}, s{sT0}, s{sFX}")
        e(f"s_lshl_b32 s{sT2}, s{sMT}, 1"); e(f"s_add_u32 s{sT2}, s{sT2}, s{sKH}"); e(f"s_lshl_b32 s{sT2}, s{sT2}, 14")
        e(f"s_add_u32 s{sT2}, s{sT2}, {WS_O}")
        e(f"s_lshl_b32 s{sT1}, s{sNG}, 1"); e(f"s_add_u32 s{sT1}, s{sT1}, s{sKH}")
        e(f"s_mul_i32 s{sT4}, s{sMT}, 14"); e(f"s_add_u32 s{sT4}, s{sT4}, s{sT1}"); e(f"s_lshl_b32 s{sT4}, s{sT4}, 11")
        e(f"s_add_u32 s{sT4}, s{sT4}, {WS_H}")
        e(f"s_lshl_b32 s{sT5}, s{sMT}, 4"); e(f"s_add_u32 s{sT5}, s{sT5}, s{sT1}"); e(f"s_lshl_b32 s{sT5}, s{sT5}, 7")
        e(f"s_add_u32 s{sT5}, s{sT5}, {WS_SS}")
        e(f"s_lshl_b32 s{sT3}, s{sML}, 5"); e(f"s_add_u32 s{sT3}, s{sT3}, s{sT1}"); e(f"s_lshl_b32 s{sT3}, s{sT3}, 2")
        e(f"s_add_u32 s{sT3}, s{sT3}, s{sFX}")
        e("s_mov_b64 exec, 0xff")
        self.poll(e, t, f"s{sT0}", f"v_cmp_ne_u32 vcc, 1, v{t + 1}", t + 1)
        e("s_mov_b64 exec, -1")
        self.stamp(e, "opoll")
        def oload(st):
            e.vmem(f"buffer_load_dwordx4 {vr(vO + 4 * st, 4)}, v{vL16}, {WS}, s{sT2} offen offset:{1024 * (st & 3)} sc1", ("o", st))
            if st & 3 == 3: e(f"s_add_u32 s{sT2}, s{sT2}, 4096")
            if st == 15: e("s_barrier")
        PRE = self.p["opre"]
        for st in range(PRE):
            oload(st)
        e(f"s_lshl_b32 s{sT0}, s{sW}, 12"); e(f"v_add_u32 v{t}, s{sT0}, v{vL16}"); e(f"v_xor_b32 v{t + 1}, 8192, v{t}")
        for st in range(16):
            e.wait(vm=("o", st))
            self.mf(e, aOth, vWf + 8 * st + 4, vO + 4 * st, "0" if st == 0 else None)
            if st + PRE < 16: oload(st + PRE)
            self.mf(e, aOwn, vWf + 8 * st, vO + 4 * st)
        self.stamp(e, "omm")
        for i in range(4):
            e.lds(f"ds_write_b128 v{t}, {vr(aOth + 4 * i, 4)} offset:{LA + 1024 * i}")
        e.wait(ds="all")
        e("s_barrier")
        self.stamp(e, "Bx")
        for i in range(4):
            e.lds(f"ds_read_b128 {vr(aOth + 4 * i, 4)}, v{t + 1} offset:{LA + 1024 * i}", ("x", i))
        PK = vH
        for i in range(4):
            e.wait(ds=("x", i))
            for k in (0, 2):
                r = 4 * i + k
                e(f"v_pk_add_f32 {vr(aOwn + r, 2)}, {vr(aOwn + r, 2)}, {vr(aOth + r, 2)}")
            for k in (0, 2):
                r = 4 * i + k
                e(f"v_cvt_pk_bf16_f32 v{PK + r // 2}, v{aOwn + r}, v{aOwn + r + 1}")
        self.publish(e, [f"buffer_store_dwordx4 {vr(PK + 4 * i, 4)}, v{vL16}, {WS}, s{sT4} offen offset:{1024 * i}" for i in range(2)], wt=self.p["ohwt"] & 2)
        self.stamp(e, "hst")
        e(f"v_pk_mul_f32 {vr(t + 2, 2)}, {vr(aOwn, 2)}, {vr(aOwn, 2)}")
        for r in range(2, 16, 2):
            e(f"v_pk_fma_f32 {vr(t + 2, 2)}, {vr(aOwn + r, 2)}, {vr(aOwn + r, 2)}, {vr(t + 2, 2)}")
        e(f"v_add_f32 v{t + 2}, v{t + 2}, v{t + 3}")
        e(f"v_mov_b32 v{t + 3}, v{t + 2}")
        e(f"v_lshlrev_b32 v{t}, 2, v{vLANE}")
        e(f"v_permlane32_swap_b32 v{t + 2}, v{t + 3}")
        e(f"v_add_f32 v{t + 2}, v{t + 2}, v{t + 3}")
        e("s_mov_b32 exec_hi, 0")
        self.publish(e, [f"buffer_store_dword v{t + 2}, v{t}, {WS}, s{sT5} offen"], wt=self.p["ohwt"] & 2)
        e("s_mov_b64 exec, -1")
        e(f"v_mov_b32 v{t + 1}, 1"); e(f"v_mov_b32 v{t + 3}, {ONES}"); e(f"v_mov_b32 v{vMU2}, 0")
        for st in range(1, 16, 2):
            e(f"v_dot2c_f32_bf16 v{vMU2}, v{vO + 4 * st + 2}, v{t + 3}")
        e.wait(vm="all")
        e("s_mov_b64 exec, 1")
        self.publish(e, [f"buffer_store_dword v{t + 1}, v{t}, {WS}, s{sT3} offen offset:{FX_F3}"])
        e("s_mov_b64 exec, -1")
        self.stamp(e, "hpub")
        e(f"v_mov_b32 v{t + 3}, v{vMU2}")
        e(f"v_permlane32_swap_b32 v{t + 3}, v{vMU2}")
        for i in range(16):
            e(f"v_add_f32 v{aOwn + i}, v{vMU2}, v{aOwn + i}")
        e(f"s_xor_b32 s{sT0}, s{sW}, 2"); e(f"s_lshl_b32 s{sT0}, s{sT0}, 12"); e(f"v_add_u32 v{t + 1}, s{sT0}, v{vL16}")
        e(f"s_lshl_b32 s{sT0}, s{sW}, 8"); e(f"v_add_u32 v{t}, s{sT0}, v{t}")
        for i in range(4):
            e.lds(f"ds_write_b128 v{t + 1}, {vr(aOwn + 4 * i, 4)} offset:{L_RES + 1024 * i}")
        e.lds(f"ds_write_b32 v{t}, v{vMU2} offset:{L_MU}")

    def ffn_S(self, e):
        p = self.p
        full = self.stop > 4
        self.ffn_setup(e, 1)
        self.out_addr(e)
        self.gu_pre(e, 0, self.KMAJ)
        self.h_poll(e)
        self.paced(e, self.gu_ops(e, WU, L_UP, range(p["upe"], p["upe"] + p["ups"]), "up"), p["udep"])
        if p["q0e"] and full:
            assert not p["ssb"]
            self.wd_dma(e, [0])
        self.stamp(e, "Bh_")
        if p["bh"]: e("s_barrier")
        self.stamp(e, "Bh")
        e("s_setprio 1")
        def bb():
            e.wait(ds="all")
            self.stamp(e, "seg2")
            e("s_barrier")
        self.first_pass(e, p["spre"], [lambda: None] * (p["spre"] - 4) + [lambda: self.ss_read(e), bb])
        self.stamp(e, "Bb")
        self.act_flag(e, 1)
        self.gelu_consts(e)
        self.gelu_gate(e)
        qops = self.wd_ops(e, [2]) if full and p["q2s"] else []
        while qops and p["q2at"] < 0: qops.pop(0)()
        self.gu_pre(e, 1, self.TMAJ)
        self.stamp(e, "gelu2")
        def extra(n):
            if qops and n >= p["q2at"] and n & 1 == 0: qops.pop(0)()
            if n == 52 and full:
                e.wait(vm=("wd", 2), ds="all")
                self.stamp(e, "seg4")
                e("s_barrier")
        self.up_pass(e, -1, extra)
        self.stamp(e, "Bd")
        if p["sord"]:
            self.act_flag(e, 2)
            if full: self.wd_dma(e, [3])
            for op in self.prod_ops(e, 1): op()
        else:
            first = self.last_act
            if full: self.wd_dma(e, [3])
            for op in self.prod_ops(e, 1): op()
            second, self.last_act = self.last_act, first
            self.act_flag(e, 2)
            self.last_act = second
        if not full:
            self.act_flag(e, 3)
            return
        A0, A1 = vACC, vACC + 16
        if p["sord"]: self.act_sample(e)
        e(f"s_lshl_b32 s{sT0}, s{sW}, 12"); e(f"v_add_u32 v{t}, s{sT0}, v{vL16}"); e(f"v_xor_b32 v{t + 1}, 8192, v{t}")
        e(f"s_xor_b32 s{sT0}, s{sW}, 2"); e(f"s_lshl_b32 s{sT0}, s{sT0}, 8"); e(f"v_add_u32 v{t + 3}, s{sT0}, v{vPA}")
        for i in range(4):
            e.lds(f"ds_read_b128 {vr(A0 + 4 * i, 4)}, v{t + 1} offset:{L_RES + 1024 * i}")
        e.lds(f"ds_read_b32 v{vMU2}, v{t + 3} offset:{L_MU}")
        e(f"v_add_u32 v{t}, {L_XCH5}, v{t}"); e(f"v_add_u32 v{t + 2}, {L_XCH5}, v{t + 1}")
        e.wait(ds="all")
        for i in range(16):
            e(f"v_add_f32 v{A0 + i}, v{vMU2}, v{A0 + i}")
        if p["sord"]:
            self.act_flag(e, 3)
            self.act_check(e, 2)
            self.act_load(e, 0)
            self.stamp(e, "X3_")
            e("s_barrier")
        else:
            self.act_sample(e)
            e.wait(vm=("wd", 3))
            self.stamp(e, "X3_")
            e("s_barrier")
            self.act_flag(e, 3)
            self.act_check(e, 2)
            self.act_load(e, 0)
        self.act_sample(e)
        self.act_load(e, 1)
        self.down_pre(e)
        late = self.act_ops(e, 2) + self.act_ops(e, 3)
        def hook(n):
            if n == 0: self.act_check(e, 3)
            if n & 1 == 0 and late: late.pop(0)()
        self.down_half(e, [None, "0"], hook)
        self.stamp(e, "dn")
        for i in range(4):
            e.lds(f"ds_write_b128 v{t}, {vr(A1 + 4 * i, 4)} offset:{1024 * i}")
        e.wait(ds="all")
        e("s_barrier")
        self.tr(e, "Br", 1)
        P1, P2 = UACC[0], UACC[1]
        for i in range(4):
            if i & 1 == 0:
                e.lds(f"ds_read_b128 {vr(P2 + 2 * i, 4)}, v{t + 1} offset:{L_RES + 512 * i}", ("p", i))
            e.lds(f"ds_read_b128 {vr(A1 + 4 * i, 4)}, v{t + 2} offset:{1024 * i}", ("x", i))
        PK = vH
        for i in range(4):
            e.wait(ds=("p", i))
            for k in (0, 2):
                r = 4 * i + k
                e(f"v_lshlrev_b32 v{P1 + r}, 16, v{P2 + r // 2}"); e(f"v_and_b32 v{P1 + r + 1}, 0xffff0000, v{P2 + r // 2}")
            e.wait(ds=("x", i))
            for src in (A1, P1):
                for k in (0, 2):
                    r = 4 * i + k
                    e(f"v_pk_add_f32 {vr(A0 + r, 2)}, {vr(A0 + r, 2)}, {vr(src + r, 2)}")
            for k in (0, 2):
                r = 4 * i + k
                e(f"v_cvt_pk_bf16_f32 v{PK + r // 2}, v{A0 + r}, v{A0 + r + 1}")
            if i & 1:
                b = PK + 2 * (i - 1)
                e(f"v_permlane32_swap_b32 v{b}, v{b + 2}")
                e(f"v_permlane32_swap_b32 v{b + 1}, v{b + 3}")
                e.vmem(f"buffer_store_dwordx4 {vr(b, 4)}, v{vXO}, {OUT}, s{sXO} offen offset:{16 * (i - 1)}")

    def build(self):
        e = Stream()
        self.prologue(e)
        e("s_cmp_lt_u32 s47, 4")
        e("s_cbranch_scc1 L_roleL")
        S = self.role_S()
        L = self.role_L()
        body = e.L + S.L + ["L_roleL:"] + L.L + self.tail + ["L_exit:", "s_endpgm", "L_end:"]
        body, nops = pad_hazards(body)
        if self.p["align"]:
            body, self.promoted = align8(body, NAME)
        head = open("sequential_preLN__sliding_block__geglu_ffn__prompt.s.ref").read().splitlines()
        cm = [l for l in head if l.startswith(";") and "@launch" not in l]
        out = cm + ["; @launch grid=(256,1,1) block=(512,1,1) lds=163840",
                    '.amdgcn_target "amdgcn-amd-amdhsa--gfx950"', ".text", f".globl {NAME}", ".p2align 8",
                    f".type {NAME},@function", f"{NAME}:"]
        out += [("" if l.endswith(":") else "    ") + l for l in body]
        out += ['.section .rodata,"a"', ".p2align 6", f".amdhsa_kernel {NAME}",
                "  .amdhsa_next_free_vgpr 256", "  .amdhsa_next_free_sgpr 102", "  .amdhsa_accum_offset 256",
                "  .amdhsa_group_segment_fixed_size 0", "  .amdhsa_kernarg_size 80", "  .amdhsa_user_sgpr_count 2",
                "  .amdhsa_user_sgpr_kernarg_segment_ptr 1", "  .amdhsa_system_sgpr_workgroup_id_x 1",
                ".end_amdhsa_kernel", ""]
        self.nops = nops
        return "\n".join(out)

if __name__ == "__main__":
    import argparse
    ap = argparse.ArgumentParser()
    ap.add_argument("-o", default="sequential_preLN__sliding_block__geglu_ffn__prompt.s")
    ap.add_argument("--stop", type=int, default=99)
    ap.add_argument("--stamps", action="store_true")
    ap.add_argument("--slow", action="store_true")
    ap.add_argument("-p", action="append", default=[])
    a = ap.parse_args()
    kw = {k: int(v) for k, v in (x.split("=") for x in a.p)}
    g = Gen(a.stop, a.stamps, a.slow, **kw)
    s = g.build()
    open(a.o, "w").write(s)
    print("lines", s.count("\n"), "nops", g.nops)
```

```python
import re

def vr(b, n=1):
    return f"v{b}" if n == 1 else f"v[{b}:{b+n-1}]"
def sr(b, n=1):
    return f"s{b}" if n == 1 else f"s[{b}:{b+n-1}]"

class Stream:
    def __init__(self):
        self.L = []
        self.vm = []
        self.ds = []
    def __call__(self, s):
        self.L.append(s)
    def vmem(self, s, tag=None):
        self.L.append(s); self.vm.append(tag)
    def lds(self, s, tag=None):
        self.L.append(s); self.ds.append(tag)
    @staticmethod
    def _n_after(q, tag):
        idx = [i for i, t in enumerate(q) if t == tag]
        if not idx:
            return None
        return len(q) - 1 - idx[-1]
    def wait(self, vm=None, ds=None):
        parts = []
        if vm is not None:
            n = 0 if vm == "all" else self._n_after(self.vm, vm)
            if n is not None:
                n = min(n, 63)
                parts.append(f"vmcnt({n})")
                self.vm = self.vm[len(self.vm) - n:] if n else []
        if ds is not None:
            n = 0 if ds == "all" else self._n_after(self.ds, ds)
            if n is not None:
                n = min(n, 15)
                parts.append(f"lgkmcnt({n})")
                self.ds = self.ds[len(self.ds) - n:] if n else []
        if parts:
            self.L.append("s_waitcnt " + " ".join(parts))

_REG = re.compile(r"(?<![\w.])(-?\|?)([vsa])(?:(\d+)|\[(\d+):(\d+)\])(?![\w])|\b(vcc|exec|m0|scc)\b")
def regs_of(op):
    out = set()
    for m in _REG.finditer(op):
        if m.group(6):
            out.add(m.group(6))
        else:
            k = m.group(2)
            if m.group(3) is not None:
                out.add((k, int(m.group(3))))
            else:
                out.update((k, i) for i in range(int(m.group(4)), int(m.group(5)) + 1))
    return out

TRANS = ("v_exp_f32", "v_log_f32", "v_rcp_f32", "v_rsq_f32", "v_sqrt_f32", "v_sin_f32", "v_cos_f32")

class Ins:
    def __init__(self, text):
        self.text = text
        t = text.split(";")[0].strip()
        self.label = t[:-1] if t.endswith(":") else None
        self.op = t.split()[0] if t and not self.label else ""
        rest = t[len(self.op):].strip() if self.op else ""
        self.rest = rest
        ops = [o.strip() for o in re.split(r",(?![^\[]*\])", rest)] if rest else []
        self.ops = ops
        op = self.op
        self.mfma = op.startswith("v_mfma")
        self.valu = op.startswith("v_") and not self.mfma
        self.salu = op.startswith("s_")
        self.vmem = op.startswith(("buffer_", "global_"))
        self.ds = op.startswith("ds_")
        self.trans = op.replace("_e32", "").replace("_e64", "") in TRANS
        self.dot = op.startswith("v_dot")
        self.dpp = "_dpp" in op or any(k in rest for k in ("row_shr", "row_ror", "quad_perm", "row_bcast", "row_mirror", "row_half_mirror", "row_shl"))
        self.perml = op.startswith("v_permlane")
        self.rdlane = op.startswith(("v_readlane", "v_readfirstlane"))
        self.ldsdma = self.vmem and re.search(r"\blds\b", rest) is not None
        self.states = 1
        if op == "s_nop":
            self.states = int(ops[0], 0) + 1
        self.defs, self.uses = set(), set()
        self.A = self.B = self.C = set()
        self.passes = 0
        self.store_data = set()
        if self.mfma:
            self.defs = regs_of(ops[0]); self.A = regs_of(ops[1]); self.B = regs_of(ops[2]); self.C = regs_of(ops[3].split()[0])
            self.uses = self.A | self.B | self.C
            self.passes = 8 if "32x32" in op else (4 if "16x16" in op else 2)
        elif self.valu:
            self.defs = regs_of(ops[0])
            for o in ops[1:]:
                self.uses |= regs_of(o)
            if self.perml:
                self.defs |= regs_of(ops[1]); self.uses |= regs_of(ops[0])
            if op.startswith(("v_fmac", "v_dot2c", "v_writelane")) or self.dpp:
                self.uses |= regs_of(ops[0])
            if op.startswith(("v_add_co", "v_sub_co", "v_addc_co", "v_mad_u64")):
                self.defs |= regs_of(ops[1])
        elif self.ds:
            if op.startswith(("ds_read", "ds_bpermute", "ds_permute", "ds_swizzle")):
                self.defs = regs_of(ops[0])
                for o in ops[1:]:
                    self.uses |= regs_of(o)
            else:
                for o in ops:
                    self.uses |= regs_of(o)
        elif self.vmem:
            if "load" in op and not self.ldsdma:
                self.defs = regs_of(ops[0])
                for o in ops[1:]:
                    self.uses |= regs_of(o)
            else:
                for o in ops:
                    self.uses |= regs_of(o)
                if "store" in op and ("x3" in op or "x4" in op):
                    self.store_data = regs_of(ops[0] if op.startswith("buffer") else ops[1])
            if self.ldsdma:
                self.uses.add("m0")
        elif self.salu and ops and op not in ("s_waitcnt", "s_nop", "s_sleep", "s_setprio", "s_barrier") and not op.startswith(("s_cbranch", "s_branch")):
            if op.startswith("s_cmp"):
                for o in ops:
                    self.uses |= regs_of(o)
            else:
                self.defs = regs_of(ops[0])
                for o in ops[1:]:
                    self.uses |= regs_of(o)
        self.target = ops[0] if op.startswith(("s_cbranch", "s_branch")) else None

def _isv(r): return isinstance(r, tuple) and r[0] in "va"
def _iss(r): return r == "vcc" or (isinstance(r, tuple) and r[0] == "s")

def need(p, c):
    n = 0
    pv = {r for r in p.defs if _isv(r)}
    ps = {r for r in p.defs if _iss(r)}
    if p.valu:
        if c.mfma and pv & c.uses: n = max(n, 3 if p.dot else 2)
        if c.valu and (c.dpp or c.perml) and pv & c.uses: n = max(n, 2)
        if c.rdlane and pv & c.uses: n = max(n, 1)
        if p.trans and c.valu and not c.trans and pv & c.uses: n = max(n, 1)
        if p.trans and (c.vmem or c.ds) and pv & c.uses: n = max(n, 1)
        if ps:
            if c.vmem and ps & c.uses: n = max(n, 5)
            if c.valu and ps & c.uses: n = max(n, 4 if c.rdlane or c.op.startswith("v_writelane") else 2)
        if p.dot and pv & (c.uses | c.defs):
            same_acc = c.op == p.op and not (pv & set().union(*[regs_of(o) for o in c.ops[1:3]]))
            if not same_acc: n = max(n, 3)
    if p.mfma:
        k = {2: 0, 4: 1, 8: 2}[p.passes]
        if c.mfma:
            if pv & (c.A | c.B): n = max(n, (5, 8, 12)[k])
            if pv & c.C:
                if pv == c.C and p.passes == c.passes: n = max(n, (2, 0, 0)[k])
                else: n = max(n, (4, 6, 10)[k])
            elif pv & c.defs: n = max(n, (4, 6, 10)[k])
        elif (c.valu or c.vmem or c.ds) and pv & (c.uses | c.defs): n = max(n, (5, 8, 12)[k])
        if c.valu and p.C & c.defs: n = max(n, (1, 3, 7)[k])
    if p.salu and "m0" in p.defs and c.ldsdma: n = max(n, 1)
    if p.store_data and p.store_data & c.defs: n = max(n, 2 if c.valu else 1)
    return n

def pad_hazards(lines):
    out = []
    hists = [[]]
    pending = {}
    WIN = 14
    nops = 0
    def trim(h):
        tot, k = 0, len(h)
        while k > 0 and tot < WIN:
            k -= 1; tot += h[k].states
        return h[k:]
    for text in lines:
        s = text.strip()
        if not s or s.startswith((";", ".")):
            out.append(text); continue
        c = Ins(s)
        if c.label:
            hists += pending.pop(c.label, [])
            out.append(text); continue
        req = 0
        for h in hists:
            dist = 0
            for p in reversed(h):
                req = max(req, need(p, c) - dist)
                dist += p.states
        while req > 0:
            k = min(req, 16)
            nop = Ins(f"s_nop {k-1}")
            out.append(nop.text); nops += 1
            hists = [h + [nop] for h in hists]
            req -= k
        out.append(text)
        hists = [trim(h + [c]) for h in hists]
        uniq = {}
        for h in hists:
            uniq[tuple(id(x) for x in h)] = h
        hists = list(uniq.values())
        if c.target:
            pending.setdefault(c.target, []).extend([list(h) for h in hists])
            if c.op == "s_branch":
                hists = [[]]
        if c.op == "s_endpgm":
            hists = [[]]
    return out, nops

import subprocess, tempfile, os
PROMOTE = ("v_mul_f32", "v_add_f32", "v_sub_f32", "v_max_f32", "v_mov_b32", "v_exp_f32", "v_rcp_f32", "v_rsq_f32",
           "v_and_b32", "v_lshlrev_b32", "v_lshrrev_b32", "v_add_u32", "v_xor_b32", "v_fmac_f32")

def sizes(lines, name):
    src = ['.amdgcn_target "amdgcn-amd-amdhsa--gfx950"', ".text", f"{name}:"] + lines
    with tempfile.TemporaryDirectory() as d:
        open(d + "/a.s", "w").write("\n".join(src) + "\n")
        subprocess.run(["clang", "-x", "assembler", "-target", "amdgcn-amd-amdhsa", "-mcpu=gfx950",
                        "-c", d + "/a.s", "-o", d + "/a.o"], check=True)
        out = subprocess.run(["llvm-objdump", "-d", "--mcpu=gfx950", d + "/a.o"], capture_output=True, text=True).stdout
    return [4 * len(m.group(1).split()) for m in re.finditer(r"// [0-9A-F]+: ((?:[0-9A-F]{8} ?)+)", out)]

def paginate(lines, name, start_label, stop_label, align=True, min_run=2):
    isins = lambda l: l.strip() and not l.strip().endswith(":") and not l.strip().startswith((";", "."))
    idx = [i for i, l in enumerate(lines) if isins(l)]
    sz = sizes([l for l in lines if not l.startswith(".")], name)
    assert len(sz) == len(idx), (len(sz), len(idx))
    run = [0] * (len(idx) + 1)
    for k in range(len(idx) - 1, -1, -1):
        run[k] = run[k + 1] + 1 if sz[k] != 4 else 0
    out, off, active, pg, k, zone = [], 0, False, 0, 0, []
    for l in lines:
        if l == start_label + ":" or l == ".newpage":
            out.append(".p2align 12")
            active, off, zone = True, 0, []
            if l == ".newpage": continue
        if l == stop_label + ":":
            active = False
        if not isins(l):
            out.append(l); continue
        n = sz[k]
        if active and off + n + 8 > 4096:
            out += [f"s_branch L_pg{pg}_skip", ".p2align 12", f"L_pg{pg}:", f"s_branch L_pg{pg}_next", "s_nop 0", f"L_pg{pg}_skip:"]
            off, zone = 8, []
            pg += 1
        if n == 4:
            zone.append(len(out))
        else:
            if align and off % 8 == 4 and run[k] >= min_run:
                for z in reversed(zone):
                    op = out[z].split()[0]
                    if op in PROMOTE:
                        out[z] = out[z].replace(op, op + "_e64", 1); off += 4
                        break
            zone = []
        out.append(l)
        off += n; k += 1
    return out, pg
```

```python
import math, struct, sys
from asmlib import Stream, vr, sr, pad_hazards, paginate

NAME = "sequential_preLN__sliding_block__geglu_ffn__prompt_kernel"
MB = 1 << 20
WS_K, WS_V, WS_O, WS_H, WS_SS, WS_ACT = 0, 2 * MB, 4 * MB, 6 * MB, 6 * MB + 1792 * 1024, 8 * MB
WS_F1, WS_FX, WS_STAMP, WS_SIZE = 16 * MB, 16 * MB + 131072, 17 * MB, 18 * MB
FX_F2, FX_F3, FX_F4, FX_F6, FX_F0 = 0, 1024, 2048, 3072, 3584
LA, LB, LC = 0, 49152, 106496
L_WQ, L_MISC = LB + 16384, LB + 45056
L_GATE, L_UP, L_WO = LC, LB, LB
SLOT = [LA + 20480, LC, LC + 28672, LB]
L_RES, L_MU, L_PF, L_XCH5 = LA, LA + 16384, LA + 17408, LB + 28672
L_CS, L_XR = L_MISC + 1024, L_MISC + 4096
ACTLOC = [[(WS_O, 32768), (WS_H, 28672)], [(WS_ACT, 57344), (WS_ACT + 28672, 57344)]]
X_, WQKV, WO, WG, WU, WD, OUT, DBG, WS = (sr(b, 4) for b in (8, 12, 16, 20, 24, 28, 32, 36, 40))
sXO = 3
sG, sJ, sW, sHEAD, sRB, sXCC, sMODE, sSPIN = 44, 45, 46, 48, 49, 50, 51, 52
sT0, sT1, sT2, sT3, sT4, sT5, sA5 = 53, 54, 55, 56, 57, 58, 59
sHI, sM1, sM2, sM3 = 60, 62, 64, 66
sMT, sKC, sPAR, sML, sMG, sNG, sKH, sMI, sHF, sFX, sACT, sWD = range(68, 80)
sF4P, sF4C, sAC2 = sHEAD, sRB, sKC
sWL = sM1
sST = 80
vLANE, vL16 = 1, 2
vH, vACC, vRING, vTMP, vSS, vRES = 32, 144, 192, 220, 228, 240
vD, vP, vW5 = [4, 5, 6, 7], [8, 9, 10, 11], [12, 13]
vK1, vK2, vRI, vMU2, vW5t, vXO = 14, 15, 16, 17, [18, 19], 20
vPA, vPR, vSM, vFL, vGA = 21, 22, 23, 3, [30, 31]
UACC = [vACC + 32, vRES]
t = 26
NR = 7
BIG = 0xF149F2CA
ONES = 0x3F803F80
SPIN_LIMIT = 0x80000
HI = f"s[{sHI}:{sHI + 1}]"

def f32(x):
    return struct.unpack("<I", struct.pack("<f", x))[0]

class Gen:
    def __init__(self, stop=99, stamps=False, force_slow=False, **kw):
        self.stop, self.stamps, self.force_slow = stop, stamps, force_slow
        self.p = dict(f1_at=8, rot=0, sched=5, pull=1, act_wt=1, pre=12, spre=14, opre=5, hwd=0,
                      g1=4, gdep=2, m2at=17, otouch=3, upe=0, ups=2, udep=3, s2at=-14, hp1=0, hp2=0, hup=7, fl1=53, align=1, tlb=0, ksplit=1, ctouch=0, ohwt=0, outfl=0, wb=0, ssb=1, ptouch=0, swt=1, c3at=2, uper=1, word=3210, q2s=1, x3at=42, hcp=4, upa=0, ltouch=0, bmat=8, exact=0, qk0=3, sprio=1, gpre=2, bh=1, lord=0, sord=1, q2at=8, q0e=0, pages=2, ft=0)
        self.p.update(kw)
        self.tail = []
        self.trn = ([], [])
        self.pull_code = []
        self.nlab = 0

    def lab(self, n):
        self.nlab += 1
        return f"L_{n}_{self.nlab}"

    PROF = {
        0: (["start", "b0", "kv", "Bkv", "q", "f1", "Batt", "att", "opub", "hpoll", "seg1", "Bb", "Bd", "X3"],
            ["start", "Bkv", "pre", "Bm", "gu", "opoll", "Bx", "hpub", "Bh", "Bb", "Bd"]),
        1: (["start", "hpoll", "seg1", "gelu1", "Bb", "seg3", "chk1", "Bd_", "Bd", "X3", "dn"],
            ["Bh_", "Bh", "hpre", "seg2", "Bb", "gelu2", "seg4", "Bd", "X3_", "dn"]),
        2: (["start", "f1", "Batt_", "Batt", "sub", "Bm", "pv", "att", "opub", "Bp", "Bx", "hpoll"],
            ["Bkv", "pre", "Batt", "Bm", "gu", "opoll", "omm", "Bx", "hst", "hpub", "Bh"]),
        3: (["start", "b0", "b1", "b2", "b3", "b4", "b5", "b6", "kv", "kvst", "Bkv", "fl1", "f1", "Batt", "entry"],
            ["start", "b0", "b1", "b2", "b3", "b4", "b5", "b6", "wq", "Bkv", "pre", "Batt", "-", "-", "entry"]),
    }

    LEAK = [None, "end", "start", "b0", "Bkv", "Batt", "opub", "hpoll", "Bb", "Bd", "f1", "kv"]

    def tr(self, e, name, zone):
        if not self.stamps or self.p.get("trace") != zone:
            return
        names = self.trn[e.role]
        k = len(names)
        if k >= 63: return
        names.append(name)
        e(f"s_memtime s[{82 + 2 * (k % 4)}:{83 + 2 * (k % 4)}]")
        if k >= 2:
            e(f"v_writelane_b32 v0, s{82 + 2 * ((k - 2) % 4)}, {k - 2}")

    ZONE = dict(hpoll=1, hpre=1, seg1=1, gelu1=1, Bb=1, seg3=1, chk1=1, Bd_=1, Bd=1, X3=1, X5=1, X6=1, X7=1, dn=1, Bh_=1, Bh=1,
                seg2=1, gelu2=1, seg4=1, fl2=1, X3_=1, X5_=1, X6_=1, X7_=1,
                start=3, b0=3, b1=3, b2=3, b3=3, b4=3, b5=3, b6=3, kv=3, wq=3)

    def stamp(self, e, name):
        if self.p.get("trace"):
            self.tr(e, name, self.ZONE.get(name, 2))
            return
        if e.role == 0 and name == self.LEAK[self.p.get("leak", 0)]:
            e("s_memrealtime s[82:83]")
        names = self.PROF[self.p.get("prof", 0)][e.role]
        if self.stamps and (name == "end" or name in names):
            i = 15 if name == "end" else names.index(name)
            e(f"{'s_memtime' if self.p.get('cyc') else 's_memrealtime'} s[{sST + 18}:{sST + 19}]")
            e("s_waitcnt lgkmcnt(0)")
            e(f"s_mov_b32 s{sST + i}, s{sST + 18}")
            e.ds = []

    def finish(self, e, role):
        if self.p.get("leak") and role == 0 and False:
            self.stamp(e, "end")
            lp, sk = self.lab("leak"), self.lab("noleak")
            e(f"s_cmp_ge_u32 s{sJ}, 28"); e(f"s_cbranch_scc1 {sk}")
            e("s_memrealtime s[84:85]"); e("s_waitcnt lgkmcnt(0)")
            e("s_sub_u32 s82, s82, s80")
            e(f"{lp}:")
            e("s_memrealtime s[86:87]"); e("s_waitcnt lgkmcnt(0)")
            e("s_sub_u32 s86, s86, s84"); e("s_cmp_lt_u32 s86, s82"); e(f"s_cbranch_scc1 {lp}")
            e(f"{sk}:")
        if self.stamps and self.p.get("trace"):
            self.tr(e, "end", self.p["trace"])
            k = len(self.trn[role])
            e("s_waitcnt lgkmcnt(0)")
            for i in (k - 2, k - 1):
                e(f"v_writelane_b32 v0, s{82 + 2 * (i % 4)}, {i}")
            e("s_mov_b64 exec, -1")
            e(f"s_lshl_b32 s{sT0}, s2, 3"); e(f"s_add_u32 s{sT0}, s{sT0}, s{sW}"); e(f"s_add_u32 s{sT0}, s{sT0}, {4 * role}")
            e(f"s_lshl_b32 s{sT0}, s{sT0}, 8"); e(f"s_add_u32 s{sT0}, s{sT0}, {WS_STAMP}")
            e(f"v_lshlrev_b32 v3, 2, v{vLANE}")
            e(f"buffer_store_dword v0, v3, {WS}, s{sT0} offen")
        elif self.stamps:
            self.stamp(e, "end")
            e("s_mov_b64 exec, -1")
            e(f"s_lshl_b32 s{sT0}, s2, 3"); e(f"s_add_u32 s{sT0}, s{sT0}, s{sW}"); e(f"s_add_u32 s{sT0}, s{sT0}, {4 * role}")
            e(f"s_lshl_b32 s{sT0}, s{sT0}, 6"); e(f"s_add_u32 s{sT0}, s{sT0}, {WS_STAMP}")
            e("s_waitcnt vmcnt(0)")
            for i in range(16):
                e(f"v_mov_b32 v{32 + i}, s{sST + i}")
            e("v_mov_b32 v3, 0"); e("s_mov_b64 exec, 1")
            for i in range(4):
                e(f"buffer_store_dwordx4 {vr(32 + 4 * i, 4)}, v3, {WS}, s{sT0} offen offset:{16 * i}")
        e("s_endpgm")

    def poll(self, e, vaddr, soff, cmp, vt, srd=WS):
        a, b = self.lab("poll"), self.lab("polled")
        e(f"{a}:")
        e(f"buffer_load_dword v{vt}, v{vaddr}, {srd}, {soff} offen sc1")
        e(f"s_add_u32 s{sSPIN}, s{sSPIN}, 1")
        e("s_waitcnt vmcnt(0)")
        e(cmp)
        e(f"s_cmp_gt_u32 s{sSPIN}, {SPIN_LIMIT}")
        e(f"s_cbranch_scc1 {b}")
        e(f"s_cbranch_vccnz {a}")
        e(f"{b}:")
        e.vm = []

    def check_or_poll(self, e, vaddr, soff, cmp, vt, srd=WS):
        late, ok = self.lab("late"), self.lab("ok")
        e(cmp)
        e(f"s_cbranch_vccnz {late}")
        e(f"{ok}:")
        tl = Stream(); tl(f"{late}:")
        self.poll(tl, vaddr, soff, cmp, vt, srd)
        tl(f"s_branch {ok}")
        self.tail += tl.L

    def publish(self, e, stores, tag="pub", wt=False):
        if wt:
            for s in stores:
                e.vmem(s + " sc1", tag)
            return
        slow, done = self.lab("slow"), self.lab("pubd")
        e(f"s_cmp_eq_u32 s{sMODE}, 0")
        e(f"s_cbranch_scc1 {slow}")
        for s in stores:
            e.vmem(s, tag)
        e(f"{done}:")
        self.tail += [f"{slow}:"] + [s + " sc1" for s in stores] + [f"s_branch {done}"]

    def mode_issue(self, e, va, vt):
        e(f"v_lshlrev_b32 v{va}, 2, v{vLANE}"); e(f"v_add_u32 v{va}, {FX_F0}, v{va}")
        e("s_mov_b32 exec_hi, 0")
        e.vmem(f"buffer_load_dword v{vt}, v{va}, {WS}, s{sFX} offen sc1", "mode")
        e("s_mov_b64 exec, -1")

    def mode_check(self, e, va, vt):
        e.wait(vm="mode")
        e("s_mov_b32 exec_hi, 0")
        self.check_or_poll(e, va, f"s{sFX}", f"v_cmp_eq_u32 vcc, 0, v{vt}", vt)
        e(f"v_cmp_ne_u32 vcc, s{sXCC}, v{vt}")
        e("s_mov_b64 exec, -1")
        e("s_cmp_eq_u64 vcc, 0"); e(f"s_cselect_b32 s{sMODE}, {0 if self.force_slow else 1}, 0")

    def touch(self, e, srd, soff, nl, va=24, vt=25):
        if nl < 64:
            m = (1 << nl) - 1
            e(f"s_mov_b32 exec_lo, {m & 0xffffffff}"); e(f"s_mov_b32 exec_hi, {m >> 32}")
        e(f"buffer_load_dword v{vt}, v{va}, {srd}, {soff} offen sc1")
        if nl < 64:
            e("s_mov_b64 exec, -1")

    def dma4(self, e, srd, vas, soff, n=4, tag=None, fl=""):
        for i in range(n):
            e.vmem(f"buffer_load_dwordx4 v{vas[i]}, {srd}, {soff} offen offset:{1024 * i} {fl} lds", tag)

    def next_kc(self, e, r=sKC):
        e(f"s_add_u32 s{r}, s{r}, 1"); e(f"s_cmp_eq_u32 s{r}, 7"); e(f"s_cselect_b32 s{r}, 0, s{r}")

    def tr_base(self, e, vd, hmul, stride, nhmul):
        e(f"v_lshrrev_b32 v{vd}, 5, v{vLANE}")
        e(f"v_mul_u32_u24 v{vd}, {hmul}, v{vd}")
        e(f"v_bfe_u32 v{t}, v{vLANE}, 2, 2")
        e(f"v_add_u32 v{vd}, v{vd}, v{t}")
        e(f"v_mul_u32_u24 v{vd}, {stride}, v{vd}")
        e(f"v_bfe_u32 v{t}, v{vLANE}, 4, 1")
        e(f"v_mul_u32_u24 v{t}, {nhmul}, v{t}")
        e(f"v_add_u32 v{vd}, v{vd}, v{t}")
        e(f"v_and_b32 v{t}, 3, v{vLANE}")
        e(f"v_lshl_add_u32 v{vd}, v{t}, 3, v{vd}")

    def rows128_src(self, e, vas, rowstride, partmul, rowof):
        v = vas[0]
        e(f"v_lshrrev_b32 v{v}, 3, v{vLANE}")
        e(f"v_mul_u32_u24 v{v}, {rowstride}, v{v}")
        e(f"v_lshrrev_b32 v{t}, 2, v{vLANE}")
        e(f"v_lshrrev_b32 v{t + 1}, 4, v{vLANE}")
        e(f"v_xor_b32 v{t}, v{t}, v{t + 1}")
        e(f"v_and_b32 v{t}, 1, v{t}")
        e(f"v_mul_u32_u24 v{t}, {partmul}, v{t}")
        e(f"v_add_u32 v{v}, v{v}, v{t}")
        e(f"v_and_b32 v{t}, 3, v{vLANE}")
        e(f"v_lshl_add_u32 v{v}, v{t}, 4, v{v}")
        for i in range(1, len(vas)):
            e(f"v_add_u32 v{vas[i]}, {rowof(i) * rowstride - 1024 * i}, v{v}")

    def rows64_src(self, e, vas, rowstride, gx):
        v = vas[0]
        e(f"v_lshrrev_b32 v{v}, 2, v{vLANE}")
        e(f"v_mul_u32_u24 v{v}, {rowstride}, v{v}")
        e(f"v_and_b32 v{t}, 3, v{vLANE}")
        if gx:
            e(f"v_xor_b32 v{t}, {gx}, v{t}")
        e(f"v_lshl_add_u32 v{v}, v{t}, 4, v{v}")
        for i in range(1, len(vas)):
            e(f"v_add_u32 v{vas[i]}, {16 * i * rowstride - 1024 * i}, v{v}")

    @staticmethod
    def trd(e, dst, vaddr, off0, step, tag):
        e.lds(f"ds_read_b64_tr_b16 {vr(dst, 2)}, v{vaddr} offset:{off0}", tag)
        e.lds(f"ds_read_b64_tr_b16 {vr(dst + 2, 2)}, v{vaddr} offset:{off0 + step}", tag)

    @staticmethod
    def mf(e, d, a, b, c=None):
        e(f"v_mfma_f32_32x32x16_bf16 {vr(d, 16)}, {vr(a, 4)}, {vr(b, 4)}, {vr(d, 16) if c is None else c}")

    @staticmethod
    def mf8(e, d, a, b, c=None):
        e(f"v_mfma_f32_32x32x8_bf16 {vr(d, 16)}, {vr(a, 2)}, {vr(b, 2)}, {vr(d, 16) if c is None else c}")

    @staticmethod
    def mf4(e, d, a, b, first):
        e(f"v_mfma_f32_4x4x4_16b_bf16 {vr(d, 4)}, {vr(a, 2)}, {vr(b, 2)}, {'0' if first else vr(d, 4)}")

    @staticmethod
    def split_hi_lo(e, dst, c):
        e(f"v_cvt_pk_bf16_f32 v{dst + 1}, v{c}, v{c}")
        e(f"v_and_b32 v{t}, 0xffff0000, v{dst + 1}")
        e(f"v_sub_f32 v{t}, v{c}, v{t}")
        e(f"v_cvt_pk_bf16_f32 v{dst}, v{c}, v{t}")

    def visit(self, e, grp):
        for w in range(4):
            if self.p["pages"] >> grp & 1:
                e(f"s_cmp_eq_u32 s{sW}, {w}"); e(f"s_cbranch_scc1 L_visit{grp}_{w}")
        e(f"L_visit{grp}_back:")

    def prologue(self, e):
        e(f"s_cmp_ge_u32 s2, {0 if self.stop == 0 else 256}")
        e("s_cbranch_scc1 L_exit")
        if self.stamps and not self.p.get("trace"):
            e(f"{'s_memtime' if self.p.get('cyc') else 's_memrealtime'} s[80:81]")
        e("s_load_dwordx16 s[84:99], s[0:1], 0")
        e("s_load_dwordx4 s[4:7], s[0:1], 64")
        e("v_lshrrev_b32 v3, 6, v0")
        e(f"v_and_b32 v{vLANE}, 63, v0")
        e(f"v_readfirstlane_b32 s47, v3")
        e(f"s_and_b32 s{sG}, s2, 7"); e(f"s_bfe_u32 s{sHEAD}, s2, 0x40003")
        e(f"s_and_b32 s{sW}, s47, 3")
        e("s_cmp_lt_u32 s47, 4")
        e("s_cbranch_scc1 L_roleL")

    def first_touch(self, e):
        e(f"s_lshl_b32 s{sT0}, s{sG}, 5"); e(f"s_lshr_b32 s{sT1}, s2, 3"); e(f"s_add_u32 s{sT0}, s{sT0}, s{sT1}")
        e(f"s_lshl_b32 s{sT2}, s{sW}, 3"); e(f"s_lshr_b32 s{sT2}, {56 | 13 << 8 | 13 << 16 | 13 << 24}, s{sT2}"); e(f"s_and_b32 s{sT2}, s{sT2}, 63")
        e(f"s_cmp_eq_u32 s{sW}, 3"); e(f"s_cselect_b32 s{sT0}, s{sT1}, s{sT0}")
        e(f"s_mul_i32 s{sT0}, s{sT0}, s{sT2}")
        e(f"v_add_u32 v3, s{sT0}, v{vLANE}")
        e("v_mul_u32_u24 v15, 9363, v3"); e("v_lshrrev_b32 v15, 16, v15")
        e(f"s_cmp_eq_u32 s{sW}, 1"); e(f"s_cselect_b32 s{sT0}, 14, 0")
        e(f"v_mad_u32_u24 v3, v15, s{sT0}, v3"); e("v_lshlrev_b32 v3, 7, v3")
        e(f"s_bfm_b64 exec, s{sT2}, 0")
        e("s_getpc_b64 s[100:101]")
        e("L_pc:")
        e(f"s_mov_b32 s{sT3}, L_tail-L_pc")
        for w, src, n in ((0, 84, 2048 * 896), (1, 86, 448 * 2688), (2, 88, 448 * 896)):
            e(f"s_cmp_eq_u32 s{sW}, {w}"); e(f"s_cselect_b64 s[100:101], s[{src}:{src + 1}], s[100:101]")
            e(f"s_cselect_b32 s{sT3}, {n - 4}, s{sT3}")
        e(f"v_min_u32 v3, s{sT3}, v3")
        e("global_load_dword v15, v3, s[100:101]")
        e("s_mov_b64 exec, -1")

    def ids(self, e, part):
        if part == 0:
            e(f"s_lshr_b32 s{sT1}, s2, 7"); e(f"s_lshl_b32 s{sRB}, s{sG}, 1"); e(f"s_add_u32 s{sRB}, s{sRB}, s{sT1}")
            e(f"s_lshl_b32 s{sMT}, s{sRB}, 2"); e(f"s_add_u32 s{sMT}, s{sMT}, s{sW}")
            e(f"s_lshl_b32 s{sT5}, s{sW}, 12")
            return
        e(f"s_lshr_b32 s{sT1}, s2, 7")
        e(f"s_cmp_lt_u32 s{sHEAD}, 14"); e(f"s_cselect_b32 s{sT0}, 14, 2"); e(f"s_cselect_b32 s{sJ}, 0, 14")
        e(f"s_mul_i32 s{sT0}, s{sT0}, s{sT1}"); e(f"s_add_u32 s{sJ}, s{sJ}, s{sT0}"); e(f"s_add_u32 s{sJ}, s{sJ}, s{sHEAD}")
        e(f"s_lshl_b32 s{sFX}, s{sG}, 12"); e(f"s_add_u32 s{sFX}, s{sFX}, {WS_FX}")
        e(f"v_lshlrev_b32 v{vL16}, 4, v{vLANE}")
        self.srd(e, 40, 6, WS_SIZE); self.srd(e, 36, 4, 256)

    @staticmethod
    def srd(e, b, src, n):
        e(f"s_mov_b64 s[{b}:{b + 1}], s[{src}:{src + 1}]")
        e(f"s_mov_b32 s{b + 2}, {n}"); e(f"s_mov_b32 s{b + 3}, 0x20000")

    def late_setup(self, e, last=True):
        for b, src, n in ((16, 88, 448 * 896), (20, 92, 448 * 3584), (24, 94, 448 * 3584), (28, 96, 1792 * 896), (32, 98, 2048 * 896)):
            e(f"s_mov_b64 s[{b}:{b + 1}], s[{src}:{src + 1}]")
            e(f"s_mov_b32 s{b + 2}, {n}"); e(f"s_mov_b32 s{b + 3}, 0x20000")
        e(f"s_mul_i32 s{sMG}, s{sJ}, 37"); e(f"s_lshr_b32 s{sMG}, s{sMG}, 8")
        e(f"s_mul_i32 s{sT0}, s{sMG}, 7"); e(f"s_sub_u32 s{sNG}, s{sJ}, s{sT0}")
        e(f"s_and_b32 s{sPAR}, s{sJ}, 1")
        e(f"s_and_b32 s{sMI}, s{sW}, 1"); e(f"s_lshr_b32 s{sKH}, s{sW}, 1"); e(f"s_lshr_b32 s{sHF}, s{sMG}, 1")
        e(f"s_mov_b32 s{sSPIN}, 0")
        e(f"s_mov_b32 s{sHI}, 0"); e(f"s_mov_b32 s{sHI + 1}, -1")
        e(f"s_getreg_b32 s{sXCC}, hwreg(HW_REG_XCC_ID, 0, 4)"); e(f"s_or_b32 s{sXCC}, s{sXCC}, 0x100")
        if self.stamps and last:
            e(f"s_mov_b32 s{sST + 14}, s80")
            for i in range(14):
                e(f"s_mov_b32 s{sST + i}, 0")

    def kv_pass(self, e, kind, R):
        wf, cf = vRING, R["PK"]
        a0, a1 = vACC, vACC + 16
        XS, XQ, C0, C1 = R["XS"], R["XQ"], R["C0"], R["C1"]
        vW0, vW1, vC0, vC1, vXR, vONE = R["vW0"], R["vW1"], R["vC0"], R["vC1"], R["vXR"], R["vONE"]
        def xrd(c):
            e("s_barrier")
            self.stamp(e, f"b{c}")
            for s in range(4):
                e.lds(f"ds_read_b128 {vr(vH + 16 * c + 4 * s, 4)}, v{vXR[s]} offset:{(c % 4) * 16384}", ("x", 4 * c + s))
        vis = self.wvis()
        st = dict(w=0, c=0, m=0, b=0)
        def wrd(upto):
            while kind and st["w"] <= min(upto, 27) and st["w"] >> 2 <= vis[st["b"]]:
                n = st["w"]; st["w"] += 1
                for k, va in enumerate((vW0, vW1)):
                    self.trd(e, wf + 8 * (n % 4) + 4 * k, va, 16 * n * 128, 512, ("w", n))
        def crd():
            while kind and st["c"] <= vis[st["b"]] and st["c"] < st["m"] + 2:
                c = st["c"]; st["c"] += 1
                for k, va in enumerate((vC0, vC1)):
                    self.trd(e, cf + 8 * (c & 1) + 4 * k, va, 64 * c * 128, 512, ("c", c))
        def cmm():
            out = []
            while st["m"] < st["c"]:
                c = st["m"]; st["m"] += 1
                e.wait(ds=("c", c))
                b = cf + 8 * (c & 1)
                out += [(C0, vONE, b, c == 0), (C1, vONE, b + 4, c == 0), (C0, vONE, b + 2, False), (C1, vONE, b + 6, False)]
            return out
        vMU, vRS, vNM, vCP, vOH, PK = R["vMU"], R["vRS"], R["vNM"], R["vCP"], R["vOH"], R["PK"]
        aR = PK
        z = Stream()
        if kind:
            for k in range(2):
                z(f"v_add_f32 v{cf + 4 * k}, v{cf + 4 * k}, v{cf + 4 * k + 1}")
                z(f"v_add_f32 v{cf + 4 * k + 2}, v{cf + 4 * k + 2}, v{cf + 4 * k + 3}")
            z(f"v_add_f32 v{C0}, v{cf}, v{cf + 2}"); z(f"v_add_f32 v{C1}, v{cf + 4}, v{cf + 6}")
        z(f"v_add_f32 v{XS}, v{XS}, v{XS + 8}")
        for i in range(4):
            z(f"v_add_f32 v{XQ + i}, v{XQ + i}, v{XQ + 8 + i}")
        z(f"v_cndmask_b32 v{XQ}, v{XQ}, v{XQ + 1}, s[{sM1}:{sM1 + 1}]")
        z(f"v_cndmask_b32 v{XQ}, v{XQ}, v{XQ + 2}, s[{sM2}:{sM2 + 1}]")
        z(f"v_cndmask_b32 v{XQ}, v{XQ}, v{XQ + 3}, s[{sM3}:{sM3 + 1}]")
        if kind: self.split_hi_lo(z, C0 + 2, C0)
        z(f"v_permlane32_swap_b32 v{XS}, v{XQ}")
        z(f"v_add_f32 v{XS}, v{XS}, v{XQ}")
        z(f"v_mov_b32 v{XQ}, v{XS}")
        if kind: self.split_hi_lo(z, C1 + 2, C1)
        z(f"v_permlane32_swap_b32 v{XS}, v{XQ}")
        z(f"v_mul_f32 v{vMU}, {f32(1 / 448)}, v{XS}")
        z(f"v_mul_f32 v{XQ}, {f32(1 / 448)}, v{XQ}")
        z(f"v_cvt_pk_bf16_f32 v{vNM}, -v{vMU}, -v{vMU}")
        z(f"v_fma_f32 v{XQ}, -v{vMU}, v{vMU}, v{XQ}")
        z(f"v_and_b32 v{t}, 0xffff0000, v{vNM}")
        z(f"v_max_f32 v{XQ}, 0, v{XQ}")
        z(f"v_add_f32 v{t}, v{vMU}, v{t}")
        z(f"v_add_f32 v{XQ}, {f32(1e-5)}, v{XQ}")
        z(f"v_cvt_pk_bf16_f32 v{vNM + 1}, -v{t}, 0")
        z(f"v_rsq_f32 v{vRS}, v{XQ}")
        chain = list(z.L)
        xrd(0)
        wrd(1)
        wrote = False
        for n in range(28):
            c, s = divmod(n, 4)
            if s == 3 and c < 6:
                if kind and c == 5:
                    e.wait(ds="csw")
                xrd(c + 1)
                st["b"] = c + 1
                wrd(n + 1)
                if kind and c == 5:
                    for k in range(2):
                        e.lds(f"ds_read_b128 {vr(cf + 4 * k, 4)}, v{R['vCR']} offset:{1024 * k}", "cs")
            if n == 21:
                e("s_mov_b64 exec, 3")
                e.vmem(f"buffer_load_dword v{R['vRDY']}, v{R['vRA']}, {DBG}, 0 offen sc1")
                e("s_mov_b64 exec, -1")
            nst = (4 if s == 0 else 0) if c == 6 else (2 if s & 1 == 0 else 0)
            if nst:
                e.wait(ds=("x", n + nst - 1))
                small = []
                for i in range(2 * nst):
                    x = vH + 4 * n + 2 * i
                    small += [(XS + 8 * (i & 1), vONE, x, n == 0 and i < 2), (XQ + 8 * (i & 1), x, x, n == 0 and i < 2)]
                if kind and s == 2:
                    for i, m in enumerate(cmm()):
                        small.insert(min(2 * i, len(small)), m)
                for m in small:
                    self.mf4(e, *m)
            if kind:
                if n == 24: e.wait(ds="cs")
                e.wait(ds=("w", n))
                x, w0 = vH + 4 * n, wf + 8 * (n % 4)
                for k, acc in enumerate((a0, a1)):
                    A, B = (w0 + 4 * k, x) if kind == "K" else (x, w0 + 4 * k)
                    self.mf(e, acc, A, B, "0" if n == 0 else None)
                    if k == 0 and st["m"] == 7 and not wrote:
                        e.lds(f"ds_write2st64_b32 v{R['vCS']}, v{C0}, v{C1} offset0:0 offset1:4", "csw")
                        wrote = True
                    if k == 0: wrd(n + 2)
                    if c == 6:
                        for i in range(5 if k or n > 25 else 2):
                            if chain: e(chain.pop(0))
                if s == 0:
                    crd()
        self.stamp(e, "kv")
        for l in chain: e(l)
        if kind == "K":
            self.mf8(e, a0, C0 + 2, vNM); self.mf8(e, a1, C1 + 2, vNM)
            e(f"s_mul_i32 s{sT0}, s{sMT}, 28672"); e(f"s_lshl_b32 s{sT1}, s{sHEAD}, 12"); e(f"s_add_u32 s{sT0}, s{sT0}, s{sT1}")
            e(f"v_and_b32 v{t}, 15, v{vLANE}"); e(f"v_bfe_u32 v{t + 1}, v{vLANE}, 4, 1"); e(f"v_lshlrev_b32 v{t + 1}, 9, v{t + 1}")
            e(f"v_lshl_add_u32 v{t + 1}, v{t}, 4, v{t + 1}"); e(f"v_lshrrev_b32 v{t}, 5, v{vLANE}")
            e(f"v_lshl_add_u32 v{t + 1}, v{t}, 8, v{t + 1}")
        if kind == "V":
            self.mf8(e, a0, vNM, C0 + 2)
            self.split_hi_lo(e, vCP, vRS)
            self.mf8(e, aR, vCP, vOH, "0")
            self.mf8(e, a1, vNM, C1 + 2)
            e(f"s_mul_i32 s{sT0}, s{sMT}, 28672"); e(f"s_lshl_b32 s{sT1}, s{sHEAD}, 10"); e(f"s_add_u32 s{sT0}, s{sT0}, s{sT1}")
            e(f"s_add_u32 s{sT0}, s{sT0}, {WS_V - 7 * 1024}"); e(f"s_add_u32 s{sT1}, s{sT0}, 14336")
        if kind:
            out = wf
            for k, acc in enumerate((a0, a1)):
                for hf in range(2):
                    b, o = acc + 8 * hf, out + 8 * k + 4 * hf
                    for i in range(0, 8, 2):
                        if kind == "K":
                            e(f"v_pk_mul_f32 {vr(b + i, 2)}, {vr(b + i, 2)}, {vr(vMU, 2)} op_sel:[0,1] op_sel_hi:[1,1]")
                        else:
                            e(f"v_pk_mul_f32 {vr(b + i, 2)}, {vr(b + i, 2)}, {vr(aR + 8 * hf + i, 2)}")
                    for i in range(4):
                        e(f"v_cvt_pk_bf16_f32 v{o + i}, v{b + 2 * i}, v{b + 2 * i + 1}")
                    if kind == "K":
                        e(f"v_permlane16_swap_b32 v{o}, v{o + 2}"); e(f"v_permlane16_swap_b32 v{o + 1}, v{o + 3}")
                        e.vmem(f"buffer_store_dwordx4 {vr(o, 4)}, v{t + 1}, {WS}, s{sT0} offen offset:{(8 * k + 4 * hf) * 256} sc1")
                    else:
                        e.vmem(f"buffer_store_dwordx4 {vr(o, 4)}, v{R['vVA']}, {WS}, s{(sT0, sT1)[hf]} offen offset:{512 * k} sc1")

    def role_L(self):
        e = Stream(); e.role = 0
        vCS, vRA, vC0, vC1, vCR, vXR, vW0, vW1, vWQ, vRDY = 3, 4, 5, 6, 7, [8, 9, 10, 11], 12, 13, 14, 15
        vONE, vOH, vMU, vRS, vNM, vCP, vVA = 16, 18, 20, 21, 22, 24, 30
        aQ = vACC + 32
        wf = vRING
        XS, XQ, C0, C1, PK = aQ, aQ + 4, 232, 236, 240
        R = dict(locals())
        e("s_waitcnt lgkmcnt(0)")
        if self.p["ft"] == 0: self.first_touch(e)
        self.ids(e, 1)
        for i in range(4): e(f"v_mov_b32 v{32 + i}, 0")
        nolead = self.lab("nolead")
        e(f"s_lshl_b32 s{sT0}, s{sJ}, 2"); e(f"s_add_u32 s{sT0}, s{sT0}, s{sW}")
        e(f"s_cmp_lg_u32 s{sT0}, {28 * 4}"); e(f"s_cbranch_scc1 {nolead}")
        e(f"v_lshlrev_b32 v{t}, 7, v{vLANE}")
        e(f"s_lshl_b32 s{sT0}, s{sG}, 14"); e(f"s_add_u32 s{sT0}, s{sT0}, {WS_F1}"); e(f"s_add_u32 s{sT1}, s{sT0}, 8192")
        for base in (sT0, sT1):
            e(f"buffer_store_dword v32, v{t}, {WS}, s{base} offen sc1")
        for i in range(4):
            e(f"buffer_store_dwordx4 v[32:35], v{vL16}, {WS}, s{sFX} offen offset:{1024 * i} sc1")
        e(f"s_lshl_b32 s{sT0}, s{sG}, 2"); e("v_mov_b32 v36, 1")
        e("s_waitcnt vmcnt(0)")
        e("s_mov_b64 exec, 1")
        e(f"buffer_store_dword v36, v32, {DBG}, s{sT0} offen sc1")
        e("s_mov_b64 exec, -1")
        e(f"{nolead}:")
        self.ids(e, 0)
        if self.p["ft"] == 1: self.first_touch(e)
        self.late_setup(e)
        if self.p["tlb"]:
            notlb = self.lab("notlb")
            e(f"s_cmp_lg_u32 s{sW}, 2"); e(f"s_cbranch_scc1 {notlb}")
            if self.p["tlb"] == 1:
                e("s_mov_b64 exec, 1"); e(f"s_mov_b32 s{sT0}, {WS_SIZE - 128}")
                e(f"buffer_load_dword v{vRDY}, v32, {WS}, s{sT0} offen")
            else:
                e(f"v_lshlrev_b32 v33, 21, v{vLANE}"); e("s_mov_b64 exec, 0x13f"); e(f"s_mov_b32 s{sT0}, {2 * MB - 128}")
                e(f"buffer_load_dword v{vRDY}, v33, {WS}, s{sT0} offen")
                e("s_mov_b64 exec, 1")
            for srd in (WG, WU, WD, OUT, DBG)[:4 if self.p["tlb"] == 1 else 5]:
                e(f"buffer_load_dword v{vRDY}, v32, {srd}, 0 offen offset:128")
            e("s_mov_b64 exec, -1")
            e(f"{notlb}:")
        self.stamp(e, "start")
        e(f"v_and_b32 v{t}, 31, v{vLANE}")
        e(f"v_lshlrev_b32 v{vVA}, 4, v{t}")
        e(f"v_lshlrev_b32 v{t + 1}, 7, v{t}")
        e(f"v_add_u32 v{t + 1}, s{sT5}, v{t + 1}")
        e(f"v_bfe_u32 v{t}, v{vLANE}, 1, 3")
        e(f"v_lshrrev_b32 v{t + 2}, 5, v{vLANE}")
        e(f"v_mul_u32_u24 v{t + 3}, 7168, v{t + 2}"); e(f"v_add_u32 v{vVA}, v{vVA}, v{t + 3}")
        e(f"v_xor_b32 v{t}, v{t}, v{t + 2}")
        for s in range(4):
            e(f"v_xor_b32 v{t + 2}, {2 * s}, v{t}")
            e(f"v_lshl_add_u32 v{vXR[s]}, v{t + 2}, 4, v{t + 1}")
        self.tr_base(e, vW0, 8, 128, 32)
        e(f"v_bfe_u32 v{t}, v{vLANE}, 3, 1")
        e(f"v_lshlrev_b32 v{t}, 6, v{t}")
        e(f"v_add_u32 v{vW0}, {LC}, v{vW0}")
        e(f"v_xor_b32 v{t + 1}, 64, v{t}")
        e(f"v_add_u32 v{vW1}, v{vW0}, v{t + 1}")
        e(f"v_add_u32 v{vW0}, v{vW0}, v{t}")
        e(f"s_lshl_b32 s{sT0}, s{sW}, 11")
        e(f"v_add_u32 v{vC0}, s{sT0}, v{vW0}"); e(f"v_add_u32 v{vC1}, s{sT0}, v{vW1}")
        e(f"v_add_u32 v{vCR}, {L_CS}, v{vL16}")
        e(f"s_lshl_b32 s{sT0}, s{sW}, 2"); e(f"v_add_u32 v{vCS}, s{sT0}, v{vCR}")
        self.tr_base(e, vWQ, 8, 64, 32)
        e(f"v_add_u32 v{vWQ}, {L_WQ}, v{vWQ}")
        e(f"v_mov_b32 v{vONE}, {ONES}"); e(f"v_mov_b32 v{vONE + 1}, {ONES}")
        e(f"v_cndmask_b32 v{vOH}, v{vONE}, 0, {HI}"); e(f"v_mov_b32 v{vOH + 1}, 0")
        for m, val in ((sM1, 0x22222222), (sM2, 0x44444444), (sM3, 0x88888888)):
            e(f"s_mov_b32 s{m}, {val}"); e(f"s_mov_b32 s{m + 1}, {val}")
        e(f"v_and_b32 v{vRA}, 1, v{vLANE}"); e(f"v_min_u32 v{vRA}, s{sG}, v{vRA}")
        e(f"v_sub_u32 v{vRA}, s{sG}, v{vRA}"); e(f"v_lshlrev_b32 v{vRA}, 2, v{vRA}")
        self.visit(e, 0)
        lv, ln, lj = self.lab("formV"), self.lab("formN"), self.lab("kvjoin")
        e(f"s_cmp_ge_u32 s{sHEAD}, 14"); e(f"s_cbranch_scc1 {ln}")
        e(f"s_cmp_ge_u32 s{sHEAD}, 7"); e(f"s_cbranch_scc1 {lv}")
        e("s_branch L_formK")
        e("L_setup_end:")
        for kind, lb in (("K", "L_formK"), ("V", lv), (None, ln)):
            e(".newpage")
            e(f"{lb}:")
            e.vm, e.ds = [], []
            self.kv_pass(e, kind, R)
            if kind: e(f"s_branch {lj}")
        e(f"{lj}:")
        e.ds = []
        self.stamp(e, "kvst")
        e(f"s_lshl_b32 s{sT4}, s{sMT}, 4"); e(f"s_add_u32 s{sT0}, s{sT4}, s{sHEAD}"); e(f"s_lshl_b32 s{sT0}, s{sT0}, 7")
        e(f"s_add_u32 s{sT2}, s{sT0}, {WS_F1}")
        e(f"v_mov_b32 v{t + 2}, 0"); e(f"v_mov_b32 v{t + 3}, 1")
        def kv_flag():
            e.wait(vm="all")
            nof0 = self.lab("nof0")
            e("s_mov_b64 exec, 3")
            self.check_or_poll(e, vRA, "0", f"v_cmp_ne_u32 vcc, 1, v{vRDY}", vRDY, srd=DBG)
            e("s_mov_b64 exec, 1")
            e.vmem(f"buffer_store_dword v{t + 3}, v{t + 2}, {WS}, s{sT2} offen sc1")
            e(f"s_cmp_lg_u32 s{sW}, 0"); e(f"s_cbranch_scc1 {nof0}")
            e(f"v_mov_b32 v{vRDY}, s{sXCC}")
            e(f"s_lshl_b32 s{sT0}, s{sJ}, 2"); e(f"s_add_u32 s{sT0}, s{sT0}, s{sFX}")
            e(f"buffer_store_dword v{vRDY}, v{t + 2}, {WS}, s{sT0} offen offset:{FX_F0} sc1")
            e(f"{nof0}:")
            e("s_mov_b64 exec, -1")
            self.stamp(e, "fl1")
        if self.p["f1_at"] < 0:
            kv_flag()
        e("s_barrier")
        self.stamp(e, "Bkv")
        vS, aO, vRM, vM = vH, vACC + 32, vRES, 5
        vKA, vKV, vV0, vV1, vPO, vPZ = 7, 8, 9, 10, 224, 228
        side = Stream()
        side(f"v_add_u32 v{vKV}, s{sT5}, v{vL16}")
        side(f"v_and_b32 v{vKA}, 15, v{vLANE}"); side(f"v_lshlrev_b32 v{vKA}, 4, v{vKA}")
        side(f"v_bfe_u32 v9, v{vLANE}, 4, 1"); side(f"v_lshl_add_u32 v{vKA}, v9, 3, v{vKA}")
        side(f"v_lshrrev_b32 v9, 5, v{vLANE}"); side(f"v_lshl_add_u32 v{vKA}, v9, 8, v{vKA}"); side(f"v_add_u32 v{vKA}, s{sT5}, v{vKA}")
        side(f"v_lshrrev_b32 v11, 5, v{vLANE}"); side("v_lshlrev_b32 v11, 4, v11"); side(f"v_add_u32 v11, {L_MISC}, v11")
        for i in range(4):
            side(f"v_mov_b32 v{vPO + i}, v{vONE}"); side(f"v_mov_b32 v{vPZ + i}, 0")
        def masks(o):
            o(f"v_and_b32 v{t}, 31, v{vLANE}"); o(f"v_lshrrev_b32 v{t + 1}, 5, v{vLANE}")
            o(f"v_lshlrev_b32 v{t + 1}, 2, v{t + 1}"); o(f"v_sub_u32 v{t}, v{t}, v{t + 1}")
            o(f"v_mov_b32 v{t + 1}, {BIG}")
            for r in range(17):
                if r < 16:
                    m = (sM1, sM2, sM3)[r % 3]
                    o(f"v_cmp_le_i32 s[{m}:{m + 1}], {8 * (r >> 2) + (r & 3)}, v{t}")
                if r:
                    q, m = r - 1, (sM1, sM2, sM3)[(r - 1) % 3]
                    o(f"v_cndmask_b32 v{vS + 128 + q}, v{t + 1}, 0, s[{m}:{m + 1}]")
                    o(f"v_cndmask_b32 v{vS + 112 + q}, 0, v{t + 1}, s[{m}:{m + 1}]")
        masks(side)
        fill = list(side.L)
        QR = [PK, PK + 4, PK + 8, PK + 12, wf + 16, wf + 20, wf + 24]
        def qread(s):
            self.trd(e, QR[s % NR], vWQ, 16 * s * 64, 256, ("q", s))
        for s in range(NR - 2):
            qread(s)
        for s in range(0, 28, 2):
            if s == self.p["f1_at"] & ~1:
                kv_flag()
            e.wait(ds=("q", s + 1))
            for k in range(2):
                q = QR[(s + k) % NR]
                self.mf4(e, C0, vONE, q, s + k == 0); self.mf4(e, C1, vONE, q + 2, s + k == 0)
                if k == 0 and fill: e(fill.pop(0))
            for k in range(2):
                self.mf(e, aQ, QR[(s + k) % NR], vH + 4 * (s + k), "0" if s + k == 0 else None)
                if s + k + NR - 2 < 28:
                    qread(s + k + NR - 2)
                for i in range(2 + k):
                    if fill: e(fill.pop(0))
        assert not fill
        e(f"v_add_f32 v{C0}, v{C0}, v{C1}")
        self.split_hi_lo(e, C0 + 2, C0)
        self.mf8(e, aQ, C0 + 2, vNM)
        e("s_mov_b32 exec_lo, 0xf0000000"); e("s_mov_b32 exec_hi, 0xf0000000")
        for u in range(3):
            for s in range(2):
                e.lds(f"ds_write_b128 v{vKV}, {vr(vPO, 4)} offset:{u * 16384 + 2048 + 1024 * s}")
        e("s_mov_b32 exec_lo, 0"); e("s_mov_b32 exec_hi, 0xffff0000")
        for u in (2, 1, 0):
            if u < 2:
                e(f"s_cmp_ge_u32 s{sRB}, {2 - u}"); e(f"s_cselect_b32 s{sT0}, 0, {BIG >> 16}")
                e(f"v_mov_b32 v{vPZ}, s{sT0}"); e(f"v_mov_b32 v{vPZ + 2}, s{sT0}")
            e.lds(f"ds_write_b128 v{vKV}, {vr(vPZ, 4)} offset:{u * 16384 + 1024}")
        e("s_mov_b64 exec, -1")
        e(f"v_mov_b32 v{t + 2}, 0x3f80")
        vQ = vTMP
        e(f"v_mul_f32 v{vRS}, {f32(28 ** -0.5 * math.log2(math.e))}, v{vRS}")
        e(f"v_mul_f32 v{vMU}, {f32(1 / 16)}, v{vMU}")
        for i in range(16):
            e(f"v_mul_f32 v{aQ + i}, v{vRS}, v{aQ + i}")
        e.wait(ds="all")
        for i in range(8):
            e(f"v_cvt_pk_bf16_f32 v{vQ + i}, v{aQ + 2 * i}, v{aQ + 2 * i + 1}")
        e(f"v_cndmask_b32 v{vQ + 6}, v{vQ + 6}, v{t + 2}, {HI}")
        e(f"v_cndmask_b32 v{vQ + 7}, v{vQ + 7}, 0, {HI}")
        e("L_qdone:")
        self.stamp(e, "q")
        e(f"s_mul_i32 s{sT0}, s{sHEAD}, 28"); e(f"s_add_u32 s{sT1}, s{sT0}, 27")
        e(f"s_lshr_b32 s{sT0}, s{sT0}, 6"); e(f"s_lshr_b32 s{sT1}, s{sT1}, 6"); e(f"s_sub_u32 s{sT1}, s{sT1}, s{sT0}")
        e(f"v_and_b32 v{t}, s{sT1}, v{vLANE}")
        e(f"v_bfe_u32 v{t + 1}, v{vLANE}, 1, 1"); e(f"v_mad_u32_u24 v{t}, v{t + 1}, 7, v{t}")
        e(f"v_lshrrev_b32 v{t + 1}, 2, v{vLANE}"); e(f"v_lshl_add_u32 v{t}, v{t + 1}, 6, v{t}")
        e(f"v_lshlrev_b32 v{t}, 7, v{t}")
        e(f"s_add_u32 s{sT0}, s{sT0}, s{sT4}"); e(f"s_lshl_b32 s{sT0}, s{sT0}, 7"); e(f"s_add_u32 s{sT0}, s{sT0}, {WS_F1 - 16384}")
        e(f"s_min_u32 s{sT1}, s{sRB}, 2"); e(f"s_lshl_b32 s{sT1}, s{sT1}, 2")
        e(f"s_lshr_b32 s{sT1}, 0xfff00, s{sT1}"); e(f"s_and_b32 exec_lo, s{sT1}, 0xfff"); e("s_mov_b32 exec_hi, 0")
        e(f"s_mul_i32 s{sT2}, s{sMT}, 28672")
        e(f"s_mul_i32 s{sT1}, s{sHEAD}, 1792"); e(f"s_add_u32 s{sT2}, s{sT2}, s{sT1}")
        self.poll(e, t, f"s{sT0}", f"v_cmp_ne_u32 vcc, 1, v{t + 1}", t + 1)
        self.stamp(e, "f1")
        for u in range(3):
            e(f"s_sub_u32 s{sT1}, s{sT2}, {(8 - 4 * u) * 28672}")
            if u < 2:
                e(f"s_cmp_ge_u32 s{sRB}, {2 - u}"); e(f"s_cselect_b32 s{sT1}, s{sT1}, 0x7f000000")
            e(f"s_add_u32 m0, s{sT5}, {u * 16384}")
            e("s_mov_b64 exec, -1")
            e.vmem(f"buffer_load_dwordx4 v{vL16}, {WS}, s{sT1} offen sc1 lds")
            e("s_mov_b32 exec_hi, 0xffff")
            e.vmem(f"buffer_load_dwordx4 v{vL16}, {WS}, s{sT1} offen offset:1024 sc1 lds")
        e("s_mov_b64 exec, -1")
        e("s_barrier")
        self.tr(e, "Bk", 2)
        for n in range(4):
            e.lds(f"ds_read_b128 {vr(vRM + 4 * n, 4)}, v11 offset:{32 * n}")
        e.wait(vm="all", ds="all")
        self.stamp(e, "Batt_")
        e("s_barrier")
        self.stamp(e, "Batt")
        def frag(o, n):
            kv, i = divmod(n, 18)
            if kv:
                o.lds(f"ds_read_b128 {vr(wf + 4 * (n % NR), 4)}, v{vKV} offset:{(i >> 1) * 4096 + 2048 + (i & 1) * 1024}", ("kv", n))
            else:
                k = 8 * (i >> 1) + 2 * (i & 1)
                o.lds(f"ds_read2st64_b64 {vr(wf + 4 * (n % NR), 4)}, v{vKA} offset0:{k} offset1:{k + 1}", ("kv", n))
        def mm(o, n, last):
            o.wait(ds=("kv", n))
            if n < 18:
                cin = None if n & 1 or n == 16 else (vr(vS + 112, 16) if n == 0 else "0")
                self.mf(o, vS + 16 * (n >> 1), wf + 4 * (n % NR), vQ + 4 * (n & 1), cin)
            else:
                self.mf(o, aO, wf + 4 * (n % NR), vS + 8 * (n - 18), "0" if n == 18 else None)
            if n + NR - 1 < last: frag(o, n + NR - 1)
        def expblock(o, hb, slots):
            b = vS + 8 * hb
            for i in range(8):
                o(f"v_exp_f32 v{b + i}, v{b + i}")
                if i in slots: slots[i]()
            for i in range(4):
                o(f"v_cvt_pk_bf16_f32 v{b + i}, v{b + 2 * i}, v{b + 2 * i + 1}")
        for n in range(NR - 1):
            frag(e, n)
        self.mode_issue(e, 3, vRDY)
        nxt, BM = self.p["qk0"], self.p["bmat"]
        for n in range(nxt):
            mm(e, n, 18)
        for hb in range(18):
            k = min(2, 18 - nxt) if nxt < 18 else (min(-(-(35 - nxt) // (18 - hb)), hb + 18 - nxt) if hb > BM else 0)
            pos = {0: [], 1: [2], 2: [1, 5], 3: [0, 3, 6]}[k]
            expblock(e, hb, {i: (lambda n=nxt + j: mm(e, n, 18 if n < 18 else 36)) for j, i in enumerate(pos)})
            nxt += k
            if hb % 3 == 2: self.tr(e, f"e{hb}", 2)
            if hb == BM:
                assert nxt == 18
                self.stamp(e, "sub")
                e("s_barrier")
                self.stamp(e, "Bm")
                for n in range(18, 18 + NR - 1):
                    frag(e, n)
        assert nxt == 35
        mm(e, 35, 36)
        exact, checked = self.lab("exact"), self.lab("checked")
        x = Stream(); x.role = 0
        x(f"{exact}:")
        masks(x)
        for n in range(NR - 1):
            frag(x, n)
        for n in range(18):
            mm(x, n, 36)
        x(f"v_max_f32 v{vM}, v{vS}, v{vS + 1}")
        for i in range(2, 144, 2):
            x(f"v_max3_f32 v{vM}, v{vS + i}, v{vS + i + 1}, v{vM}")
        x(f"v_mov_b32 v{vM + 1}, v{vM}")
        x(f"v_permlane32_swap_b32 v{vM}, v{vM + 1}")
        x(f"v_max_f32 v{vM + 1}, v{vM}, v{vM + 1}")
        for i in range(0, 144, 2):
            x(f"v_pk_add_f32 {vr(vS + i, 2)}, {vr(vS + i, 2)}, {vr(vM + 1, 2)} op_sel_hi:[1,0] neg_lo:[0,1] neg_hi:[0,1]")
        for hb in range(18):
            expblock(x, hb, {})
            mm(x, 18 + hb, 36)
        x(f"v_mov_b32 v{t}, v{aO + 12}"); x(f"v_mov_b32 v{t + 1}, v{aO + 12}")
        x(f"v_permlane32_swap_b32 v{t}, v{t + 1}")
        x("s_nop 1")
        x(f"s_branch {checked}")
        self.tail += x.L
        e(f"s_lshl_b32 s{sT0}, s{sMT}, 4"); e(f"s_add_u32 s{sT0}, s{sT0}, s{sHEAD}"); e(f"s_lshl_b32 s{sT0}, s{sT0}, 11")
        e(f"s_add_u32 s{sT0}, s{sT0}, {WS_O}")
        e(f"s_and_b32 s{sT1}, s{sMT}, 7"); e(f"s_lshl_b32 s{sT1}, s{sT1}, 5"); e(f"s_add_u32 s{sT1}, s{sT1}, s{sHEAD}")
        e(f"s_lshl_b32 s{sT1}, s{sT1}, 2"); e(f"s_add_u32 s{sT1}, s{sT1}, s{sFX}")
        self.stamp(e, "pv")
        self.mode_check(e, 3, vRDY)
        lo, hi = f32(2.0 ** -30), f32(2.0 ** 60)
        e(f"v_mov_b32 v{t}, v{aO + 12}"); e(f"v_mov_b32 v{t + 1}, v{aO + 12}")
        e(f"v_permlane32_swap_b32 v{t}, v{t + 1}")
        e(f"v_subrev_u32 v{t}, {lo}, v{t + 1}")
        e(f"v_cmp_lt_u32 vcc, {0 if self.p['exact'] else hi - lo}, v{t}")
        e(f"s_cbranch_vccnz {exact}")
        e(f"{checked}:")
        e(f"v_rcp_f32 v{t + 1}, v{t + 1}")
        e(f"v_mul_f32 v{t + 2}, v{aO}, v{vRM}")
        e(f"v_mul_f32 v{t + 3}, v{aO + 1}, v{vRM + 1}")
        for i in range(2, 16):
            e(f"v_fmac_f32 v{t + 2 + (i & 1)}, v{aO + i}, v{vRM + i}")
        e(f"v_add_f32 v{t + 2}, v{t + 2}, v{t + 3}")
        e(f"v_mov_b32 v{t + 3}, v{t + 2}")
        for i in range(8):
            e(f"v_mul_f32 v{aO + i}, v{t + 1}, v{aO + i}")
        e(f"v_permlane32_swap_b32 v{t + 2}, v{t + 3}")
        for i in range(4):
            e(f"v_cvt_pk_bf16_f32 v{vQ + i}, v{aO + 2 * i}, v{aO + 2 * i + 1}")
        e(f"v_add_f32 v{t + 2}, v{t + 2}, v{t + 3}")
        e(f"v_fma_f32 v{t + 2}, v{t + 2}, v{t + 1}, v{vMU}")
        for i in range(8, 16):
            e(f"v_mul_f32 v{aO + i}, v{t + 1}, v{aO + i}")
        self.split_hi_lo(e, vCP, t + 2)
        for i in range(4, 8):
            e(f"v_cvt_pk_bf16_f32 v{vQ + i}, v{aO + 2 * i}, v{aO + 2 * i + 1}")
        e(f"v_cndmask_b32 v{vQ + 6}, v{vQ + 6}, v{vCP}, {HI}")
        e(f"v_cndmask_b32 v{vQ + 7}, v{vQ + 7}, 0, {HI}")
        self.stamp(e, "att")
        self.publish(e, [f"buffer_store_dwordx4 {vr(vQ + 4 * i, 4)}, v{vL16}, {WS}, s{sT0} offen offset:{1024 * i}" for i in range(2)], wt=self.p["ohwt"] & 1)
        e(f"v_mov_b32 v{t}, 0"); e(f"v_mov_b32 v{t + 1}, 1")
        e.wait(vm="all")
        e("s_mov_b64 exec, 1")
        self.publish(e, [f"buffer_store_dword v{t + 1}, v{t}, {WS}, s{sT1} offen offset:{FX_F2}"])
        e("s_mov_b64 exec, -1")
        self.stamp(e, "opub")
        if self.stop > 2:
            e(f"s_cmp_ge_u32 s{sJ}, 28"); e("s_cbranch_scc1 L_Ldone")
            self.ffn_setup(e, 0)
            e("s_barrier")
            self.stamp(e, "Bp")
            for op in self.gu_ops(e, WU, L_UP, range(self.p["upe"]), "up"): op()
            for tile in range(self.p["ltouch"]):
                e(f"v_lshlrev_b32 v24, 7, v{vLANE}")
                e(f"s_lshl_b32 s{sT0}, s{sJ}, 4"); e(f"s_add_u32 s{sT0}, s{sT0}, s{sW}"); e(f"s_add_u32 s{sT0}, s{sT0}, {4 * tile}")
                e(f"s_mul_i32 s{sT0}, s{sT0}, {4 * 896}")
                self.touch(e, WD, f"s{sT0}", 28)
            e("s_barrier")
            self.stamp(e, "Bx")
        if self.stop > 3:
            self.ffn_L(e)
        e("L_Ldone:")
        self.finish(e, 0)
        return e

    def ffn_setup(self, e, role):
        self.rows128_src(e, vD, 896, 64, lambda i: 128 * i)
        self.tr_base(e, vP[0], 4, 128, 32)
        e(f"v_bfe_u32 v{t}, v{vLANE}, 3, 1"); e(f"v_lshlrev_b32 v{t}, 6, v{t}")
        e(f"v_xor_b32 v{t + 1}, 64, v{t}")
        e(f"s_mov_b32 s{sT0}, {L_GATE}"); e(f"s_mov_b32 s{sT1}, {L_UP}")
        e(f"v_add3_u32 v{vP[1]}, v{vP[0]}, v{t + 1}, s{sT0}")
        e(f"v_add3_u32 v{vP[2]}, v{vP[0]}, v{t}, s{sT1}")
        e(f"v_add3_u32 v{vP[3]}, v{vP[0]}, v{t + 1}, s{sT1}")
        e(f"v_add3_u32 v{vP[0]}, v{vP[0]}, v{t}, s{sT0}")
        if role == 0:
            self.rows128_src(e, vGA, 3584, 64, lambda i: 8 * i)
        else:
            e(f"v_lshrrev_b32 v{t}, 3, v{vLANE}"); e(f"v_mul_u32_u24 v{t}, {14336 - 1024}, v{t}"); e(f"v_add_u32 v24, v24, v{t}")
        self.w5_base(e)
        e(f"s_mul_i32 s{sT0}, s{sKH}, 14336")
        for k in range(2):
            e(f"v_add_u32 v{vW5[k]}, s{sT0}, v{vW5[k]}")
        e(f"s_xor_b32 s{sT1}, s{sMG}, {2 - 2 * role}"); e(f"s_lshl_b32 s{sT1}, s{sT1}, 1"); e(f"s_add_u32 s{sT1}, s{sT1}, s{sMI}")
        e(f"s_lshl_b32 s{sA5}, s{sG}, 3"); e(f"s_add_u32 s{sA5}, s{sA5}, s{sT1}")
        e(f"s_lshl_b32 s{sT1}, s{sT1}, 5"); e(f"s_mul_i32 s{sT0}, s{sKH}, 14"); e(f"s_add_u32 s{sT1}, s{sT1}, s{sT0}")
        e(f"s_sub_u32 s{sT1}, s{sT1}, s{sHF}"); e(f"s_add_u32 s{sT1}, s{sT1}, 1"); e(f"s_lshl_b32 s{sT1}, s{sT1}, 2")
        e(f"s_add_u32 s{sT1}, s{sT1}, s{sFX}"); e(f"s_add_u32 s{sF4C}, s{sT1}, {FX_F4}")
        e(f"s_mul_i32 s{sWD}, s{sKH}, {896 * 896}"); e(f"s_mul_i32 s{sT0}, s{sMI}, {8 * 896}")
        e(f"s_add_u32 s{sWD}, s{sWD}, s{sT0}"); e(f"s_lshl_b32 s{sT0}, s{sNG}, 7"); e(f"s_add_u32 s{sWD}, s{sWD}, s{sT0}")
        e(f"s_xor_b32 s{sT0}, s{sHF}, 1"); e(f"s_mul_i32 s{sT0}, s{sT0}, {64 * 896}"); e(f"s_add_u32 s{sWD}, s{sWD}, s{sT0}")
        e(f"s_mul_i32 s{sWL}, s{sW}, 7168")
        e(f"s_xor_b32 s{sML}, s{sPAR}, {role}"); e(f"s_lshl_b32 s{sML}, s{sML}, 2"); e(f"s_add_u32 s{sML}, s{sML}, s{sW}")
        e(f"s_lshl_b32 s{sMT}, s{sG}, 3"); e(f"s_add_u32 s{sMT}, s{sMT}, s{sML}")
        e(f"s_lshr_b32 s{sT1}, s{sJ}, 1"); e(f"s_lshl_b32 s{sT1}, s{sT1}, 10")
        for k, dst in enumerate((sACT, sAC2)):
            base, stride = ACTLOC[role][k]
            e(f"s_mul_i32 s{sT0}, s{sMT}, {stride}"); e(f"s_add_u32 s{sT0}, s{sT0}, s{sT1}"); e(f"s_add_u32 s{dst}, s{sT0}, {base}")
        e(f"s_lshl_b32 s{sT0}, s{sML}, 5"); e(f"s_add_u32 s{sT0}, s{sT0}, s{sJ}"); e(f"s_lshl_b32 s{sT0}, s{sT0}, 2")
        e(f"s_add_u32 s{sT0}, s{sT0}, s{sFX}"); e(f"s_add_u32 s{sF4P}, s{sT0}, {FX_F4}")
        e(f"v_lshlrev_b32 v{vPA}, 2, v{vLANE}"); e(f"v_lshlrev_b32 v{vPR}, 3, v{vLANE}")

    def w5_base(self, e, vW5=vW5):
        self.tr_base(e, vW5[0], 4, 128, 32)
        e(f"v_bfe_u32 v{t}, v{vLANE}, 3, 1"); e(f"v_xor_b32 v{t}, s{sKH}, v{t}"); e(f"v_lshlrev_b32 v{t}, 6, v{t}")
        e(f"v_xor_b32 v{t + 1}, 64, v{t}")
        e(f"v_add_u32 v{vW5[1]}, v{vW5[0]}, v{t + 1}")
        e(f"v_add_u32 v{vW5[0]}, v{vW5[0]}, v{t}")

    def gu_ops(self, e, srd, base, cs, tag):
        ops = []
        for c in cs:
            for i in range(2):
                def op(c=c, i=i):
                    if i == 0:
                        e(f"s_add_u32 s{sT2}, s{sG}, {c}"); e(f"s_cmp_ge_u32 s{sT2}, 7"); e(f"s_cselect_b32 s{sT3}, 7, 0")
                        e(f"s_sub_u32 s{sT2}, s{sT2}, s{sT3}"); e(f"s_lshl_b32 s{sT2}, s{sT2}, 2"); e(f"s_add_u32 s{sT2}, s{sT2}, s{sW}")
                        e(f"s_lshl_b32 s{sT3}, s{sT2}, 11"); e(f"s_add_u32 m0, s{sT3}, {base}")
                        e(f"s_mul_i32 s{sT2}, s{sT2}, {16 * 3584}"); e(f"s_lshl_b32 s{sT3}, s{sJ}, 7"); e(f"s_add_u32 s{sT2}, s{sT2}, s{sT3}")
                    e.vmem(f"buffer_load_dwordx4 v{vGA[i]}, {srd}, s{sT2} offen offset:{1024 * i} lds", tag)
                ops.append(op)
        return ops

    def paced(self, e, ops, depth):
        for i, op in enumerate(ops):
            if i > depth:
                e(f"s_waitcnt vmcnt({depth})")
            op()

    def wd_ops(self, e, qs):
        ops = []
        for q in qs:
            for grp in range(2):
                for i in range(4 - grp):
                    def op(q=q, grp=grp, i=i):
                        if i == 0:
                            e(f"s_add_u32 m0, s{sWL}, {SLOT[q] + 4096 * grp}")
                            e(f"s_add_u32 s{sT2}, s{sWD}, {(16 * q + 512 * grp) * 896}")
                        e.vmem(f"buffer_load_dwordx4 v{vD[i]}, {WD}, s{sT2} offen offset:{1024 * i} lds", ("wd", q))
                    ops.append(op)
        return ops

    def wd_dma(self, e, qs):
        for q in qs:
            for op in self.wd_ops(e, [q]):
                op()
            self.tr(e, f"q{q}", 1)

    def h_poll(self, e, between=None):
        e(f"s_lshl_b32 s{sT0}, s{sML}, 7"); e(f"s_add_u32 s{sT0}, s{sT0}, s{sFX}"); e(f"s_add_u32 s{sT0}, s{sT0}, {FX_F3}")
        e(f"s_mul_i32 s{sT4}, s{sMT}, 28672"); e(f"s_add_u32 s{sT4}, s{sT4}, {WS_H}")
        e(f"s_lshl_b32 s{sT5}, s{sMT}, 11"); e(f"s_add_u32 s{sT5}, s{sT5}, {WS_SS}")
        e("s_mov_b64 exec, 0x3fff")
        self.poll(e, vPA, f"s{sT0}", f"v_cmp_ne_u32 vcc, 1, v{vSM}", vSM)
        e("s_mov_b64 exec, -1")

    def h_load(self, e, s):
        e.vmem(f"buffer_load_dwordx4 {vr(vH + 4 * s, 4)}, v{vL16}, {WS}, s{sT4} offen offset:{1024 * (s & 3)} sc1", ("h", s))
        if s & 3 == 3:
            e(f"s_add_u32 s{sT4}, s{sT4}, 4096")

    def ss_load(self, e):
        if not self.p["ssb"]:
            for i in range(7):
                e.vmem(f"buffer_load_dword v{vSS + i}, v{vPA}, {WS}, s{sT5} offen offset:{256 * i} sc1", "ss")
            return
        e(f"s_lshl_b32 s{sT0}, s{sW}, 11"); e(f"s_add_u32 m0, s{sT0}, {SLOT[0] + 8192 * e.role}")
        e(f"v_add_u32 v{vSS + 7}, s{sT0}, v{vPA}")
        self.dma4(e, WS, [vL16] * 2, f"s{sT5}", n=2, tag="ss", fl="sc1")

    def ss_read(self, e):
        e.wait(vm="ss")
        if self.p["ssb"]:
            for i in range(7):
                e.lds(f"ds_read_b32 v{vSS + i}, v{vSS + 7} offset:{SLOT[0] + 8192 * e.role + 256 * i}", "ss")

    KMAJ = [(s, k) for s in range(28) for k in range(2)]
    TMAJ = [(s, k) for k in range(2) for s in range(28)]

    def gu_rd(self, e, mat, order, n):
        s, k = order[n]
        self.trd(e, vRING + 4 * (n % NR), vP[2 * mat + k], 16 * s * 128, 1024, ("g", n))

    def gu_pre(self, e, mat, order):
        for n in range(NR - 1):
            self.gu_rd(e, mat, order, n)

    def gu_pass(self, e, mat, order, accs, hook=None, wait_h=False):
        for n, (s, k) in enumerate(order):
            e.wait(vm=("h", s) if (wait_h and k == 0) else None, ds=("g", n))
            self.mf(e, accs[k], vRING + 4 * (n % NR), vH + 4 * s, "0" if s == 0 else None)
            if n % 8 == 7: self.tr(e, f"m{mat}.{n}", 1)
            if n + NR - 1 < 56:
                self.gu_rd(e, mat, order, n + NR - 1)
            if hook:
                hook(n)

    def gelu_consts(self, e):
        k1 = 2 * math.sqrt(2 / math.pi) * math.log2(math.e)
        e.wait(ds="ss")
        for i in range(3):
            e(f"v_add_f32 v{vSS + i}, v{vSS + i}, v{vSS + 3 + i}")
        e(f"v_add_f32 v{vSS}, v{vSS}, v{vSS + 6}")
        e(f"v_add_f32 v{vSS + 1}, v{vSS + 1}, v{vSS + 2}")
        e(f"v_add_f32 v{vSS}, v{vSS}, v{vSS + 1}")
        e(f"v_mov_b32 v{vSS + 1}, v{vSS}")
        e(f"v_permlane32_swap_b32 v{vSS}, v{vSS + 1}")
        e(f"v_add_f32 v{vSS}, v{vSS}, v{vSS + 1}")
        e(f"v_mul_f32 v{vSS}, {f32(1 / 448)}, v{vSS}")
        e(f"v_add_f32 v{vRI}, {f32(1e-5)}, v{vSS}")
        e(f"v_rsq_f32 v{vSS}, v{vRI}")
        e(f"v_mul_f32 v{vK1}, {f32(-k1)}, v{vSS}")
        e(f"v_mul_f32 v{vSS}, v{vSS}, v{vSS}")
        e(f"v_mul_f32 v{vSS}, {f32(0.044715)}, v{vSS}")
        e(f"v_mul_f32 v{vK2}, v{vSS}, v{vK1}")

    def gelu_gate(self, e, ops=()):
        T = vTMP
        ops = list(ops)
        per = max(-(-len(ops) // 12), self.p["uper"] if e.role == 0 else 1)
        def side():
            for i in range(per):
                if ops: ops.pop(0)()
        for a in range(vACC, vACC + 32, 8):
            self.tr(e, f"g{(a - vACC) // 8}", 1)
            side()
            for i in range(8): e(f"v_mul_f32 v{T + i}, v{a + i}, v{a + i}")
            for i in range(8): e(f"v_fma_f32 v{T + i}, v{T + i}, v{vK2}, v{vK1}")
            for i in range(8): e(f"v_mul_f32 v{T + i}, v{T + i}, v{a + i}")
            side()
            for i in range(8): e(f"v_exp_f32 v{T + i}, v{T + i}")
            for i in range(8): e(f"v_fma_f32 v{T + i}, v{T + i}, v{vRI}, v{vRI}")
            side()
            for i in range(8): e(f"v_rcp_f32 v{T + i}, v{T + i}")
            for i in range(8): e(f"v_mul_f32 v{a + i}, v{T + i}, v{a + i}")
        assert not ops

    def prod_ops(self, e, k):
        g, u = vACC + 16 * k, UACC[k]
        ops = []
        for hf in range(2):
            b = 8 * hf
            for i in range(0, 8, 2):
                ops.append(lambda b=b, i=i: [e(f"v_mul_f32 v{u + b + j}, v{g + b + j}, v{u + b + j}") for j in (i, i + 1)])
            for i in range(0, 4, 2):
                ops.append(lambda b=b, i=i: [e(f"v_cvt_pk_bf16_f32 v{u + b + j}, v{u + b + 2 * j}, v{u + b + 2 * j + 1}") for j in (i, i + 1)])
            def st(b=b, tile=2 * k + hf):
                e(f"s_add_u32 s{sT0}, s{(sACT, sAC2)[k]}, {(tile & 1) * 14336}")
                self.publish(e, [f"buffer_store_dwordx4 {vr(u + b, 4)}, v{vL16}, {WS}, s{sT0} offen"], ("act", tile), wt=e.role == 1 and self.p["swt"])
                self.last_act = ("act", tile)
            ops.append(st)
        return ops

    def up_pass(self, e, flag_at, extra=None):
        ops = self.prod_ops(e, 0)
        def hook(n):
            if n >= 30 and ops: ops.pop(0)()
            if n == flag_at: self.act_flag(e, 2)
            if extra: extra(n)
        self.gu_pass(e, 1, self.TMAJ, UACC, hook)
        assert not ops

    def act_flag(self, e, stage):
        e(f"v_mov_b32 v{vFL}, {stage}")
        self.tr(e, f"F{stage}<", 1)
        e.wait(vm=self.last_act if stage > 1 else "ss")
        self.tr(e, f"F{stage}>", 1)
        e("s_mov_b64 exec, 1")
        self.publish(e, [f"buffer_store_dword v{vFL}, v{vPA}, {WS}, s{sF4P} offen"], "flag")
        if e.role == 1 and stage > 1 and self.p["ptouch"] and self.p["swt"]:
            e("s_mov_b64 exec, 0xffff")
            e.vmem(f"buffer_load_dword v25, v24, {WS}, s{(sACT, sAC2)[stage - 2]} offen sc1")
        e("s_mov_b64 exec, -1")

    def act_sample(self, e):
        e("s_mov_b64 exec, 0x7f")
        e.vmem(f"buffer_load_dword v{vSM}, v{vPR}, {WS}, s{sF4C} offen sc1", "sample")
        e("s_mov_b64 exec, -1")

    def act_check(self, e, stage):
        e.wait(vm="sample")
        e("s_mov_b64 exec, 0x7f")
        self.check_or_poll(e, vPR, f"s{sF4C}", f"v_cmp_gt_u32 vcc, {stage}, v{vSM}", vSM)
        e("s_mov_b64 exec, -1")
        self.tr(e, f"C{stage}", 1)

    def act_ops(self, e, q):
        ops = []
        for s in range(7):
            def op(s=s):
                if s == 0:
                    base, stride = ACTLOC[e.role][q >> 1]
                    e(f"s_mul_i32 s{sT1}, s{sA5}, {stride}"); e(f"s_mul_i32 s{sT0}, s{sKH}, 7168")
                    e(f"s_add_u32 s{sT1}, s{sT1}, s{sT0}"); e(f"s_add_u32 s{sT1}, s{sT1}, {base + (q & 1) * 14336}")
                e.vmem(f"buffer_load_dwordx4 {vr(vH + 28 * q + 4 * s, 4)}, v{vL16}, {WS}, s{sT1} offen offset:{1024 * (s & 3)} sc1", ("a", q, s))
                if s == 3:
                    e(f"s_add_u32 s{sT1}, s{sT1}, 4096")
            ops.append(op)
        return ops

    def act_load(self, e, q):
        for op in self.act_ops(e, q):
            op()
        self.tr(e, f"a{q}", 1)

    def down_rd(self, e, n):
        q, r = divmod(n, 14)
        s, k = divmod(r, 2)
        if n == self.p["x3at"] and e.role == 0:
            e("s_barrier")
            self.stamp(e, "X3")
        if r == 0:
            for kk in range(2):
                e(f"v_add_u32 v{vW5t[kk]}, {SLOT[q]}, v{vW5[kk]}")
        self.trd(e, vRING + 4 * (n % NR), vW5t[k], 1024 * s, 7168, ("d", n))

    def down_pre(self, e):
        for n in range(NR - 1):
            self.down_rd(e, n)

    def down_half(self, e, cinit, hook=None):
        for n in range(56):
            q, r = divmod(n, 14)
            s, k = divmod(r, 2)
            e.wait(vm=("a", q, s) if k == 0 else None, ds=("d", n))
            self.mf(e, vACC + 16 * k, vRING + 4 * (n % NR), vH + 28 * q + 4 * s, cinit[k] if n < 2 else None)
            if n % 7 == 6: self.tr(e, f"d{n}", 1)
            if n + NR - 1 < 56:
                self.down_rd(e, n + NR - 1)
            if hook:
                hook(n)

    def out_addr(self, e):
        e(f"v_and_b32 v{vXO}, 31, v{vLANE}"); e(f"v_mul_u32_u24 v{vXO}, 896, v{vXO}")
        e(f"v_lshrrev_b32 v{t + 1}, 5, v{vLANE}")
        e(f"v_lshl_add_u32 v{vXO}, v{t + 1}, 4, v{vXO}")
        e(f"s_lshl_b32 s{sT0}, s{sG}, 2"); e(f"s_add_u32 s{sT0}, s{sT0}, s{sMG}"); e(f"s_lshl_b32 s{sT0}, s{sT0}, 1")
        e(f"s_add_u32 s{sT0}, s{sT0}, s{sMI}")
        e(f"s_mul_i32 s{sXO}, s{sT0}, {32 * 896}"); e(f"s_lshl_b32 s{sT1}, s{sNG}, 1"); e(f"s_add_u32 s{sT1}, s{sT1}, s{sKH}")
        e(f"s_lshl_b32 s{sT1}, s{sT1}, 6"); e(f"s_add_u32 s{sXO}, s{sXO}, s{sT1}")

    def first_pass(self, e, pre, extra):
        for s in range(pre):
            self.h_load(e, s)
        self.stamp(e, "hpre")
        ops = [lambda s=s: self.h_load(e, s) for s in range(pre, 28)]
        ops += [lambda: self.ss_load(e)] + extra
        def hook(n):
            if n & 1 == 0 and ops: ops.pop(0)()
        self.gu_pass(e, 0, self.KMAJ, [vACC, vACC + 16], hook, wait_h=True)
        assert not ops

    def ffn_L(self, e):
        A0, A1 = vACC, vACC + 16
        p = self.p
        full = self.stop > 4
        self.gu_pre(e, 0, self.KMAJ)
        self.h_poll(e)
        self.tr(e, "hpoll", 2)
        self.stamp(e, "hpoll")
        e("s_setprio 2")
        self.first_pass(e, p["pre"], [lambda: e("s_barrier")] if p["bh"] else [])
        self.stamp(e, "seg1")
        self.ss_read(e)
        self.act_flag(e, 1)
        vPF = vMU2
        e(f"s_lshl_b32 s{sT0}, s{sW}, 2"); e(f"s_add_u32 s{sT0}, s{sT0}, {L_PF}")
        e(f"v_mov_b32 v{vPF}, s{sT0}"); e(f"v_mov_b32 v{t}, 0")
        e.lds(f"ds_write_b32 v{vPF}, v{t}", "ss")
        self.gelu_consts(e)
        self.gelu_gate(e, self.gu_ops(e, WU, L_UP, range(p["upe"] + p["ups"], 7), "up"))
        e.wait(vm="up")
        self.stamp(e, "gelu1")
        e("s_barrier")
        self.stamp(e, "Bb")
        self.gu_pre(e, 1, self.TMAJ)
        e(f"s_lshl_b32 s{sT4}, s{sJ}, 2"); e(f"s_sub_u32 s{sT4}, s{sF4P}, s{sT4}")
        qops = self.wd_ops(e, [0, 1, 2][p["q0e"]:3 - p["q2s"]]) if full else []
        def extra(n):
            if qops and (n & 1 == 0 and n < 28 or n >= 44): qops.pop(0)()
            if n == 29:
                e("s_mov_b64 exec, 0xfffffff")
                e.vmem(f"buffer_load_dword v{vSM}, v{vPA}, {WS}, s{sT4} offen sc1", "sample")
                e("s_mov_b64 exec, -1")
        self.up_pass(e, p["fl1"], extra)
        assert not qops
        e("s_setprio 0")
        self.stamp(e, "seg3")
        e.wait(vm="sample")
        e("s_mov_b64 exec, 0xfffffff")
        self.check_or_poll(e, vPA, f"s{sT4}", f"v_cmp_eq_u32 vcc, 0, v{vSM}", vSM)
        e("s_mov_b64 exec, -1")
        ops = self.prod_ops(e, 1)
        if full and p["lord"]:
            ops.insert(6, lambda: self.act_sample(e))
        for op in ops: op()
        if not full:
            self.act_flag(e, 3)
            return
        late = self.act_ops(e, 2) + self.act_ops(e, 3)
        if p["lord"]:
            self.act_check(e, 2)
            self.stamp(e, "chk1")
            ops = self.act_ops(e, 0)
            for op in ops[:3]: op()
            self.act_flag(e, 3)
            for op in ops[3:]: op()
            ops = self.act_ops(e, 1)
            for op in ops[:p["lord"]]: op()
            self.act_sample(e)
            for op in ops[p["lord"]:]: op()
        else:
            self.act_sample(e)
            self.act_flag(e, 3)
            self.act_check(e, 2)
            self.stamp(e, "chk1")
            self.act_load(e, 0)
            self.act_load(e, 1)
            self.act_sample(e)
        if p["c3at"] < 0:
            self.act_check(e, 3)
            for i in range(7): late.pop(0)()
        e(f"s_lshl_b32 s{sT0}, s{sW}, 12"); e(f"v_add_u32 v{t}, s{sT0}, v{vL16}"); e(f"v_xor_b32 v{t + 1}, 8192, v{t}")
        e(f"v_add_u32 v{t + 3}, {14336 - 1024}, v{vL16}"); e(f"v_mov_b32 v{vFL}, 1")
        e(f"s_add_u32 s{sT4}, s{sJ}, 14"); e(f"s_cmp_ge_u32 s{sT4}, 28"); e(f"s_cselect_b32 s{sT5}, 28, 0")
        e(f"s_sub_u32 s{sT4}, s{sT4}, s{sT5}"); e(f"s_mul_i32 s{sT3}, s{sMG}, 7")
        e(f"s_lshl_b32 s{sT0}, s{sW}, 2"); e(f"s_add_u32 s{sT0}, s{sT0}, s{sFX}"); e(f"s_add_u32 s{sT0}, s{sT0}, {FX_F6}")
        for dst, j in ((sT5, sJ), (sT4, sT4), (sT3, sT3)):
            e(f"s_lshl_b32 s{dst}, s{j}, 4"); e(f"s_add_u32 s{dst}, s{dst}, s{sT0}")
        self.stamp(e, "Bd_")
        e("s_barrier")
        e("s_setprio 2")
        self.stamp(e, "Bd")
        self.down_pre(e)
        def hook(n):
            if n == p["c3at"]: self.act_check(e, 3)
            if n >= p["c3at"] and late and (n & 1 == 0 or len(late) > 7): late.pop(0)()
            if n == 27:
                e("s_mov_b64 exec, 1")
                self.publish(e, [f"buffer_store_dword v{vFL}, v{vPA}, {WS}, s{sT5} offen"])
                e("s_mov_b64 exec, -1")
            if n == 46:
                e("s_mov_b64 exec, 0x7f")
                e.vmem(f"buffer_load_dword v{t + 2}, v{vL16}, {WS}, s{sT3} offen sc1", "sample")
                e("s_mov_b64 exec, -1")
        self.down_half(e, ["0", "0"], hook)
        e("s_setprio 0")
        self.stamp(e, "dn")
        e(f"s_mul_i32 s{sT0}, s{sKH}, 7"); e(f"s_add_u32 s{sT0}, s{sT0}, s{sNG}"); e(f"s_lshl_b32 s{sT0}, s{sT0}, 10")
        e(f"s_add_u32 s{sT0}, s{sT0}, {WS_O}")
        e(f"s_lshl_b32 s{sT1}, s{sA5}, 15"); e(f"s_add_u32 s{sT1}, s{sT1}, s{sT0}")
        e(f"s_xor_b32 s{sT2}, s{sA5}, 4"); e(f"s_lshl_b32 s{sT2}, s{sT2}, 15"); e(f"s_add_u32 s{sT2}, s{sT2}, s{sT0}")
        for i in range(4):
            e.lds(f"ds_write_b128 v{t}, {vr(A1 + 4 * i, 4)} offset:{L_RES + 1024 * i}")
        e.lds(f"ds_write_b32 v{vPF}, v{vFL}")
        e(f"v_xor_b32 v{vPF}, 8, v{vPF}")
        e.wait(vm="sample")
        e("s_mov_b64 exec, 0x7f")
        self.check_or_poll(e, vL16, f"s{sT3}", f"v_cmp_eq_u32 vcc, 0, v{t + 2}", t + 2)
        e("s_mov_b64 exec, -1")
        spin, got = self.lab("pair"), self.lab("paired")
        e(f"{spin}:")
        e(f"ds_read_b32 v{vSM}, v{vPF}")
        for i in range(4):
            e(f"ds_read_b128 {vr(vH + 4 * i, 4)}, v{t + 1} offset:{L_RES + 1024 * i}")
        e(f"s_add_u32 s{sSPIN}, s{sSPIN}, 1")
        e("s_waitcnt lgkmcnt(0)")
        e(f"v_cmp_ne_u32 vcc, 1, v{vSM}")
        e(f"s_cmp_gt_u32 s{sSPIN}, {SPIN_LIMIT}"); e(f"s_cbranch_scc1 {got}"); e(f"s_cbranch_vccnz {spin}")
        e(f"{got}:")
        e.ds = []
        self.tr(e, "pair", 1)
        for i in range(2):
            for r in range(8 * i, 8 * i + 8):
                e(f"v_add_f32 v{A0 + r}, v{A0 + r}, v{vH + r}")
            for r in range(4 * i, 4 * i + 4):
                e(f"v_cvt_pk_bf16_f32 v{A1 + r}, v{A0 + 2 * r}, v{A0 + 2 * r + 1}")
            self.publish(e, [f"buffer_store_dwordx4 {vr(A1 + 4 * i, 4)}, v{(vL16, t + 3)[i]}, {WS}, s{sT1} offen offset:{1024 * i}"])
        e(f"s_xor_b32 s{sT0}, s{sW}, 2"); e(f"s_lshl_b32 s{sT0}, s{sT0}, 12"); e(f"s_add_u32 m0, s{sT0}, {L_RES}")
        e(f"v_mov_b32 v{vFL}, 2")
        e.wait(vm="all")
        self.tr(e, "pack", 1)
        e("s_mov_b64 exec, 1")
        self.publish(e, [f"buffer_store_dword v{vFL}, v{vPA}, {WS}, s{sT5} offen"])
        self.poll(e, vPA, f"s{sT4}", f"v_cmp_ne_u32 vcc, 2, v{vSM}", vSM)
        e("s_mov_b64 exec, -1")
        self.tr(e, "ppoll", 1)
        self.dma4(e, WS, [vL16, t + 3], f"s{sT2}", n=2, fl="sc1")
        e.wait(vm="all")
        self.tr(e, "Br_", 1)
        e("s_barrier")

    SCHED = ["WX.WX|WWX|WX|WXWX|XQQ|QQQ|QQ|",
             "WX.WX|WWX|WXWX|WX|XQQ|QQQ|QQ|",
             "WXW.X|WWX|WXWX|WX|XQQ|QQQ|QQ|",
             "WXW.X|WWX|WXWX|WX|XQQQ|QQQQ||",
             "WXW.X|WX|WXWWX|WX|XQQQ|QQQQ||",
             "WXW.X|WX|WWX|WXWX|XQQQ|QQQQ||",
             "WXW.|XWX|WWX|WXWX|XQQQ|QQQQ||"]

    def wvis(self):
        out, w = [], 0
        for ch in self.SCHED[self.p["sched"]]:
            if ch == "W": w += 1
            if ch == "X": out.append(w - 1)
        return out

    def role_S(self):
        e = Stream(); e.role = 1
        p = self.p
        vXA, vWA, vQA = [4, 5, 6, 7], [8, 9], 10
        sKX, sWB = sA5, sACT
        e(f"v_lshrrev_b32 v{t + 2}, 3, v{vLANE}"); e(f"v_bfe_u32 v{t}, v{vLANE}, 4, 1"); e(f"v_and_b32 v{t + 3}, 7, v{vLANE}")
        e(f"v_lshlrev_b32 v{t}, 2, v{t}"); e(f"v_xor_b32 v{t}, v{t}, v{t + 3}"); e(f"v_mul_u32_u24 v{t + 1}, 2688, v{t + 2}")
        e(f"v_lshl_add_u32 v{vWA[0]}, v{t}, 4, v{t + 1}"); e(f"v_add_u32 v{vWA[1]}, {8 * 2688 - 1024}, v{vWA[0]}")
        e(f"s_cmp_eq_u32 s{sG}, 7"); e(f"s_cselect_b32 s{sKC}, 0, s{sG}"); e(f"s_mov_b32 s{sKX}, s{sKC}")
        e(f"s_mul_i32 s{sT3}, s{sW}, {16 * 2688}"); e(f"s_add_u32 s{sT0}, s{sHEAD}, 7"); e(f"s_lshl_b32 s{sT0}, s{sT0}, 7")
        e(f"s_add_u32 s{sWB}, s{sT3}, s{sT0}"); e(f"s_cmp_lt_u32 s{sHEAD}, 14"); e(f"s_cselect_b32 s{sWB}, s{sWB}, 0x7f000000")
        e(f"s_lshl_b32 s{sT2}, s{sW}, 11")
        def x_setup():
            e(f"v_mul_u32_u24 v{t + 1}, 896, v{t + 2}")
            e(f"v_lshrrev_b32 v{t}, 1, v{t + 2}")
            e(f"v_xor_b32 v{t}, v{t}, v{t + 3}")
            e(f"v_lshl_add_u32 v{vXA[0]}, v{t}, 4, v{t + 1}")
            e(f"v_xor_b32 v{vXA[1]}, 64, v{vXA[0]}")
            e(f"v_add_u32 v{vXA[2]}, {16 * 896 - 2048}, v{vXA[0]}")
            e(f"v_add_u32 v{vXA[3]}, {24 * 896 - 3072}, v{vXA[1]}")
            e(f"v_add_u32 v{vXA[1]}, {8 * 896 - 1024}, v{vXA[1]}")
            self.ids(e, 0)
            e(f"s_mul_i32 s{sT4}, s{sMT}, {32 * 896}")
            self.srd(e, 8, 84, 2048 * 896)
        e("s_waitcnt lgkmcnt(0)")
        self.srd(e, 12, 86, 448 * 2688)
        def wkv(ic):
            e(f"s_add_u32 m0, s{sT2}, {LC + ic * 8192}")
            e(f"s_mul_i32 s{sT0}, s{sKC}, {64 * 2688}"); e(f"s_add_u32 s{sT0}, s{sT0}, s{sWB}")
            self.dma4(e, WQKV, vWA, f"s{sT0}", n=2)
            self.next_kc(e)
        def xch(ic):
            if ic == 0: x_setup()
            e(f"s_add_u32 m0, s{sT5}, {(ic % 4) * 16384}")
            e(f"s_lshl_b32 s{sT0}, s{sKX}, 7"); e(f"s_add_u32 s{sT0}, s{sT0}, s{sT4}")
            self.dma4(e, X_, vXA, f"s{sT0}", tag=("c", ic))
            self.next_kc(e, sKX)
        def wq(ic):
            e(f"s_lshr_b32 s{sT1}, s{sT2}, 1"); e(f"s_add_u32 m0, s{sT1}, {L_WQ + ic * 4096}")
            e(f"s_mul_i32 s{sT0}, s{sKC}, {64 * 2688}"); e(f"s_add_u32 s{sT0}, s{sT0}, s{sT3}")
            self.dma4(e, WQKV, [vQA], f"s{sT0}", n=1, tag="wq")
            self.next_kc(e)
        sNI = sM2
        def g_touch(c):
            e(f"s_add_u32 s{sT0}, s{sG}, {c}"); e(f"s_cmp_ge_u32 s{sT0}, 7"); e(f"s_cselect_b32 s{sT1}, 7, 0")
            e(f"s_sub_u32 s{sT0}, s{sT0}, s{sT1}"); e(f"s_mul_i32 s{sT0}, s{sT0}, {64 * 3584}"); e(f"s_add_u32 s{sT0}, s{sT0}, s{sNI}")
            self.touch(e, WG, f"s{sT0}", 28)
            e.vm.append(None)
        cnt = dict(W=0, X=0, Q=0, b=0, G=0)
        def run(chars):
            for ch in chars:
                if ch == "W": wkv(cnt[ch])
                elif ch == "X":
                    assert cnt["X"] < 4 or cnt["b"] >= cnt["X"] - 2
                    xch(cnt[ch])
                elif ch == "Q":
                    assert cnt["W"] == 7
                    wq(cnt[ch])
                elif ch == "G": g_touch(cnt[ch])
                elif ch == "|":
                    ch = "b"
                    e.wait(vm=("c", cnt[ch]))
                    self.stamp(e, f"b{cnt[ch]}")
                    e("s_barrier")
                if ch in cnt: cnt[ch] += 1
        first, rest = self.SCHED[p["sched"]].split(".")
        run(first)
        self.ids(e, 1)
        self.late_setup(e)
        e(f"s_mul_i32 s{sT0}, s{sHEAD}, 56"); e(f"s_add_u32 s{sT3}, s{sT3}, s{sT0}")
        e(f"v_lshlrev_b32 v24, 7, v{vLANE}")
        self.stamp(e, "start")
        if p["pull"]:
            e(f"s_cmp_ge_u32 s{sJ}, 28"); e("s_cbranch_scc1 L_pull")
            e("L_pulled:")
            self.pull()
        self.rows64_src(e, [vQA], 2688, 0)
        vA, vRA, vRMr = [12, 13, 14, 15], 11, 160
        self.rows128_src(e, vA, 896, 64, lambda i: 8 * i)
        e(f"v_lshrrev_b32 v{vRA}, 3, v{vLANE}"); e(f"v_mul_u32_u24 v{vRA}, 896, v{vRA}")
        e(f"v_and_b32 v{t + 1}, 7, v{vLANE}"); e(f"v_lshl_add_u32 v{vRA}, v{t + 1}, 4, v{vRA}")
        def rm_load(r):
            e(f"s_lshl_b32 s{sT0}, s{sHEAD}, 2"); e(f"s_add_u32 s{sT0}, s{sT0}, s{sW}"); e(f"s_mul_i32 s{sT0}, s{sT0}, {7 * 896}")
            for i in r:
                e.vmem(f"buffer_load_dwordx4 {vr(vRMr + 4 * i, 4)}, v{vRA}, {WO}, s{sT0} offen offset:{128 * i}", "rm")
        def xr_load():
            e(f"s_lshl_b32 s{sT0}, s{sG}, 2"); e(f"s_add_u32 s{sT0}, s{sT0}, s{sMG}"); e(f"s_lshl_b32 s{sT0}, s{sT0}, 2")
            e(f"s_add_u32 s{sT0}, s{sT0}, s{sW}"); e(f"s_mul_i32 s{sT0}, s{sT0}, {16 * 896}")
            e(f"s_lshl_b32 s{sT1}, s{sNG}, 7"); e(f"s_add_u32 s{sT0}, s{sT0}, s{sT1}")
            e(f"s_cmp_lt_u32 s{sJ}, 28"); e(f"s_cselect_b32 s{sT0}, s{sT0}, 0x7f000000")
            e(f"s_add_u32 m0, s{sT2}, {L_XR}")
            self.dma4(e, X_, vA, f"s{sT0}", n=2, tag="rm")
        def o_touch():
            e(f"s_lshl_b32 s{sT0}, s{sG}, 5"); e(f"s_add_u32 s{sT0}, s{sT0}, s{sJ}"); e(f"s_lshl_b32 s{sT0}, s{sT0}, 2")
            e(f"s_add_u32 s{sT0}, s{sT0}, s{sW}"); e(f"s_lshl_b32 s{sT0}, s{sT0}, 11"); e(f"s_add_u32 s{sT0}, s{sT0}, {WS_O}")
            self.touch(e, WS, f"s{sT0}", 16)
        def h_touch():
            e(f"s_lshl_b32 s{sT1}, s{sG}, 5"); e(f"s_add_u32 s{sT1}, s{sT1}, s{sJ}"); e(f"s_lshl_b32 s{sT1}, s{sT1}, 2")
            e(f"s_add_u32 s{sT1}, s{sT1}, s{sW}"); e(f"s_mul_i32 s{sT0}, s{sT1}, {14 * 128}"); e(f"s_add_u32 s{sT0}, s{sT0}, {WS_H}")
            self.touch(e, WS, f"s{sT0}", 14)
            e(f"s_lshl_b32 s{sT0}, s{sT1}, 7"); e(f"s_add_u32 s{sT0}, s{sT0}, {WS_SS}")
            self.touch(e, WS, f"s{sT0}", 1)
        self.rows128_src(e, vGA, 3584, 64, lambda i: 8 * i)
        vV0, vV1, vXL = 16, 17, 21
        e(f"v_and_b32 v{t}, 31, v{vLANE}"); e(f"v_lshrrev_b32 v{t + 1}, 5, v{vLANE}")
        e(f"v_mul_u32_u24 v{vV0}, 7168, v{t + 1}"); e(f"v_lshl_add_u32 v{vV0}, v{t}, 4, v{vV0}")
        e(f"v_add_u32 v{vV1}, {WS_V + 14336 - 3072}, v{vV0}"); e(f"v_add_u32 v{vV0}, {WS_V - 2048}, v{vV0}")
        e(f"v_bfe_u32 v{vXL}, v{vLANE}, 1, 1"); e(f"v_xor_b32 v{vXL}, s{sKH}, v{vXL}"); e(f"v_lshlrev_b32 v{vXL}, 6, v{vXL}")
        e(f"v_lshl_add_u32 v{vXL}, v{t}, 7, v{vXL}"); e(f"v_lshl_add_u32 v{vXL}, v{t + 1}, 3, v{vXL}")
        e(f"s_lshl_b32 s{sT0}, s{sMI}, 12"); e(f"s_add_u32 s{sT0}, s{sT0}, {L_XR}"); e(f"v_add_u32 v{vXL}, s{sT0}, v{vXL}")
        self.w5_base(e, vW5t)
        e(f"s_mul_i32 s{sT0}, s{sKH}, {224 * 128}"); e(f"s_add_u32 s{sT0}, s{sT0}, {L_WO}")
        for k in range(2):
            e(f"v_add_u32 v{vW5t[k]}, s{sT0}, v{vW5t[k]}")
        near = [0, 1, 3, 5, 7, 8, 10, 12]
        tab = sum((near.index(h) if h in near else 15) << (4 * h) for h in range(16))
        e(f"s_mov_b32 s{sNI}, {tab & 0xffffffff}"); e(f"s_mov_b32 s{sNI + 1}, {tab >> 32}"); e(f"s_lshl_b32 s{sT0}, s{sHEAD}, 2")
        e(f"s_lshr_b64 s[{sNI}:{sNI + 1}], s[{sNI}:{sNI + 1}], s{sT0}"); e(f"s_and_b32 s{sT0}, s{sNI}, 15")
        e(f"s_and_b32 s{sNI}, s{sRB}, 1"); e(f"s_lshl_b32 s{sNI}, s{sNI}, 3"); e(f"s_add_u32 s{sNI}, s{sNI}, s{sT0}")
        e(f"s_lshl_b32 s{sNI}, s{sNI}, 2"); e(f"s_add_u32 s{sNI}, s{sNI}, s{sW}"); e(f"s_mul_i32 s{sNI}, s{sNI}, 3584")
        e(f"s_cmp_lt_u32 s{sT0}, 8"); e(f"s_cselect_b32 s{sNI}, s{sNI}, 0x7f000000")
        run(rest)
        e("s_branch L_pgS_skip")
        e("L_page0:")
        e("L_pgS_skip:")
        cnt.pop("G")
        assert cnt == dict(W=7, X=7, Q=7, b=7), cnt
        e(f"s_mul_i32 s{sT4}, s{sMT}, 28672"); e(f"s_mul_i32 s{sT0}, s{sHEAD}, 448"); e(f"s_add_u32 s{sT4}, s{sT4}, s{sT0}")
        aOwn, aOth, vWf, vO = vRES, 224, vH, 160
        e(f"s_lshl_b32 s{sML}, s{sMG}, 1"); e(f"s_add_u32 s{sML}, s{sML}, s{sMI}")
        e(f"s_lshl_b32 s{sMT}, s{sG}, 3"); e(f"s_add_u32 s{sMT}, s{sMT}, s{sML}")
        def wo_dma(grp):
            rows = 32 if grp < 3 else 16
            e(f"s_mul_i32 s{sT0}, s{sW}, {rows * 128}"); e(f"s_add_u32 m0, s{sT0}, {L_WO + grp * 16384}")
            e(f"s_mul_i32 s{sT0}, s{sW}, {rows * 896}"); e(f"s_lshl_b32 s{sT1}, s{sNG}, 7"); e(f"s_add_u32 s{sT0}, s{sT0}, s{sT1}")
            e(f"s_add_u32 s{sT0}, s{sT0}, {grp * 128 * 896}")
            self.dma4(e, WO, vA, f"s{sT0}", n=rows // 8, tag="wo")
        self.visit(e, 1)
        e.wait(vm="wq")
        self.stamp(e, "wq")
        e("s_barrier")
        self.stamp(e, "Bkv")
        gate = self.gu_ops(e, WG, L_GATE, range(7), "gate")
        nogate = self.lab("nogate")
        rm_load(range(7)); xr_load()
        e(f"s_cmp_ge_u32 s{sJ}, 28"); e(f"s_cbranch_scc1 {nogate}")
        self.tr(e, "rmi", 2)
        self.paced(e, gate[:2 * p["g1"]], p["gdep"])
        self.tr(e, "g1i", 2)
        back = self.lab("gated")
        e(f"{back}:")
        tl = Stream(); tl(f"{nogate}:")
        if p["ctouch"] & 1: self.code_touch(tl)
        tl("s_waitcnt vmcnt(0)")
        tl(f"s_branch {back}")
        self.tail += tl.L
        e("s_waitcnt vmcnt(%d)" % min(p["gdep"] + 1, 2 * p["g1"]))
        for i in range(28):
            acc = t + (i & 1)
            e(f"v_lshlrev_b32 v{t + 2}, 16, v{vRMr + i}"); e(f"v_and_b32 v{t + 3}, 0xffff0000, v{vRMr + i}")
            if i < 2:
                e(f"v_add_f32 v{acc}, v{t + 2}, v{t + 3}")
            else:
                e(f"v_add_f32 v{acc}, v{acc}, v{t + 2}"); e(f"v_add_f32 v{acc}, v{acc}, v{t + 3}")
        e(f"v_add_f32 v{t}, v{t}, v{t + 1}")
        for d in ("quad_perm:[1,0,3,2]", "quad_perm:[2,3,0,1]", "row_half_mirror"):
            e(f"v_add_f32_dpp v{t}, v{t}, v{t} {d} row_mask:0xf bank_mask:0xf")
        e(f"v_mul_f32 v{t}, {f32(1 / 448)}, v{t}")
        e(f"s_mov_b32 s{sM1}, 0"); e(f"s_mov_b32 s{sM1 + 1}, 0xff000000")
        e(f"v_cndmask_b32 v{t}, v{t}, 0, s[{sM1}:{sM1 + 1}]")
        e(f"s_mul_i32 s{sT0}, s{sW}, 7"); e(f"s_add_u32 s{sT1}, s{sW}, 28")
        e(f"v_lshrrev_b32 v{t + 1}, 3, v{vLANE}"); e(f"v_add_u32 v{t + 1}, s{sT0}, v{t + 1}")
        e(f"v_mov_b32 v{t + 2}, s{sT1}")
        e(f"v_cndmask_b32 v{t + 1}, v{t + 1}, v{t + 2}, s[{sM1}:{sM1 + 1}]")
        e(f"v_lshlrev_b32 v{t + 1}, 2, v{t + 1}"); e(f"v_add_u32 v{t + 1}, {L_MISC}, v{t + 1}")
        e.lds(f"ds_write_b32 v{t + 1}, v{t}")
        e.wait(ds="all")
        self.stamp(e, "pre")
        e("s_barrier")
        self.tr(e, "Bk", 2)
        e("s_mov_b32 exec_lo, 0x0fffffff"); e("s_mov_b32 exec_hi, 0x0fffffff")
        for u in range(3):
            e(f"s_sub_u32 s{sT1}, s{sT4}, {(8 - 4 * u) * 28672}")
            if u < 2:
                e(f"s_cmp_ge_u32 s{sRB}, {2 - u}"); e(f"s_cselect_b32 s{sT1}, s{sT1}, 0x7f000000")
            e(f"s_add_u32 m0, s{sT5}, {u * 16384}")
            e.vmem(f"buffer_load_dwordx4 v{vV0}, {WS}, s{sT1} offen offset:2048 sc1 lds", "vt")
            e.vmem(f"buffer_load_dwordx4 v{vV1}, {WS}, s{sT1} offen offset:3072 sc1 lds", "vt")
        e("s_mov_b64 exec, -1")
        def oh_touch():
            if not p["ohwt"] & 1:
                o_touch(); e.vm += [None]
            if not p["ohwt"] & 2:
                h_touch(); e.vm += [None] * 2
        self.oh_touch = oh_touch
        e(f"s_cmp_ge_u32 s{sJ}, 28"); e("s_cbranch_scc1 L_helper")
        self.tr(e, "vi", 2)
        for a in range(4):
            e.lds(f"ds_read_b64 {vr(aOth + 2 * a, 2)}, v{vXL} offset:{16 * a}")
        wo_dma(0)
        e.wait(ds="all")
        for i in range(8):
            e(f"v_lshlrev_b32 v{aOwn + 2 * i}, 16, v{aOth + i}")
            e(f"v_and_b32 v{aOwn + 2 * i + 1}, 0xffff0000, v{aOth + i}")
        e(f"v_mov_b32 v{t}, 0xbf80bf80")
        self.tr(e, "Batt_", 2)
        e("s_barrier")
        self.stamp(e, "Batt")
        wo_dma(1); wo_dma(2); wo_dma(3)
        self.tr(e, "wo", 2)
        rest = gate[2 * p["g1"]:]
        if p["otouch"] == 2: self.oh_touch()
        for op in rest[:2 * p["gpre"]]: op()
        e.wait(vm="wo")
        self.tr(e, "Bm_", 2)
        e("s_barrier")
        self.stamp(e, "Bm")
        if p["otouch"] == 3: self.oh_touch()
        for op in rest[2 * p["gpre"]:]: op()
        for c in range(p["upa"]):
            e(f"s_add_u32 s{sT0}, s{sG}, {c}"); e(f"s_cmp_ge_u32 s{sT0}, 7"); e(f"s_cselect_b32 s{sT1}, 7, 0")
            e(f"s_sub_u32 s{sT0}, s{sT0}, s{sT1}"); e(f"s_mul_i32 s{sT0}, s{sT0}, 112"); e(f"s_lshl_b32 s{sT1}, s{sJ}, 2")
            e(f"s_add_u32 s{sT0}, s{sT0}, s{sT1}"); e(f"s_add_u32 s{sT0}, s{sT0}, s{sW}"); e(f"s_lshl_b32 s{sT0}, s{sT0}, 11")
            self.touch(e, WU, f"s{sT0}", 16)
            e.vm.append(None)
        self.tr(e, "gi", 2)
        for st in range(16):
            for k in range(2):
                self.trd(e, vWf + 8 * st + 4 * k, vW5t[k], (28 * (st >> 1) + 16 * (st & 1)) * 128, 1024, None)
        if p["sprio"]: e("s_setprio 1")
        self.mode_issue(e, 3, 22)
        e.wait(ds="all")
        self.tr(e, "wfr", 2)
        for st in range(1, 16, 2):
            for k in range(2):
                r = vWf + 8 * st + 4 * k
                e(f"v_cndmask_b32 v{r + 2}, v{r + 2}, v{t}, {HI}")
                e(f"v_cndmask_b32 v{r + 3}, v{r + 3}, 0, {HI}")
        self.tr(e, "fix", 2)
        self.mode_check(e, 3, 22)
        self.stamp(e, "gu")
        if self.stop > 2:
            self.out_proj(e, aOwn, aOth, vWf, vO)
        if self.stop > 3:
            self.ffn_S(e)
        self.finish(e, 1)
        self.helper(e)
        return e

    def pull(self):
        e = Stream(); e.role = 1
        e("L_pull:")
        e(f"s_lshl_b32 s{sT1}, s{sG}, 2"); e(f"s_add_u32 s{sT1}, s{sT1}, s{sJ}"); e(f"s_sub_u32 s{sT1}, s{sT1}, 28")
        e(f"s_lshl_b32 s{sT1}, s{sT1}, 2"); e(f"s_add_u32 s{sT1}, s{sT1}, s{sW}")
        for u in range(self.p["pull"]):
            srd, half = ((WG, 0), (WG, 1), (WU, 0), (WU, 1), (WD, 0), (WD, 1))[u]
            e(f"s_mul_i32 s{sT0}, s{sT1}, {98 * 128}")
            if half: e(f"s_add_u32 s{sT0}, s{sT0}, {49 * 128}")
            self.touch(e, srd, f"s{sT0}", 49)
        e("s_branch L_pulled")
        self.pull_code = e.L

    def code_touch(self, e):
        lb = self.lab("pc")
        e("s_getpc_b64 s[100:101]")
        e(f"{lb}:")
        e(f"s_sub_u32 s100, s100, {lb}-{NAME}"); e("s_subb_u32 s101, s101, 0")
        e(f"s_sub_u32 s{sT0}, s{sJ}, 28"); e(f"s_lshl_b32 s{sT0}, s{sT0}, 2"); e(f"s_add_u32 s{sT0}, s{sT0}, s{sW}")
        e(f"s_mul_i32 s{sT0}, s{sT0}, 3328")
        e(f"v_add_u32 v25, s{sT0}, v24"); e(f"v_min_u32 v25, L_end-{NAME}-4, v25")
        e("s_mov_b64 exec, 0x3ffffff")
        e("global_load_dword v25, v25, s[100:101] sc1")
        e("s_mov_b64 exec, -1")

    def cold_pull(self, e, srd):
        e(f"s_lshl_b32 s{sT0}, s{sG}, 2"); e(f"s_add_u32 s{sT0}, s{sT0}, s{sJ}"); e(f"s_sub_u32 s{sT0}, s{sT0}, 28")
        e(f"s_lshl_b32 s{sT0}, s{sT0}, 2"); e(f"s_add_u32 s{sT0}, s{sT0}, s{sW}"); e(f"s_mul_i32 s{sT0}, s{sT0}, {98 * 128}")
        self.touch(e, srd, f"s{sT0}", 49); e(f"s_add_u32 s{sT0}, s{sT0}, {49 * 128}"); self.touch(e, srd, f"s{sT0}", 49)

    def helper(self, e):
        e("L_helper:")
        e.vm, e.ds = [], []
        p = self.p
        e("s_barrier")
        self.oh_touch()
        self.touch(e, WS, f"s{sFX}", 28)
        e(f"s_waitcnt vmcnt({len(e.vm) + 1})")
        e("s_barrier")
        if p["hp2"]: self.cold_pull(e, WD)
        sHI_ = sKC
        e(f"s_sub_u32 s{sHI_}, s{sJ}, 28"); e(f"s_lshl_b32 s{sHI_}, s{sHI_}, 2"); e(f"s_add_u32 s{sHI_}, s{sHI_}, s{sW}")
        e("s_barrier")
        if p["ctouch"] & 2:
            e("s_waitcnt vmcnt(0)")
            self.code_touch(e)
        if p["hcp"] & 1: self.cold_pull(e, WU)
        if p["hcp"] & 2: self.cold_pull(e, WD)
        for c in range(p["upa"], p["hup"]):
            e(f"s_add_u32 s{sT2}, s{sG}, {c}"); e(f"s_cmp_ge_u32 s{sT2}, 7"); e(f"s_cselect_b32 s{sT3}, 7, 0")
            e(f"s_sub_u32 s{sT2}, s{sT2}, s{sT3}"); e(f"s_lshl_b32 s{sT2}, s{sT2}, 4"); e(f"s_add_u32 s{sT2}, s{sT2}, s{sHI_}")
            e(f"s_mul_i32 s{sT0}, s{sT2}, {4 * 3584}")
            self.touch(e, WU, f"s{sT0}", 56); e(f"s_add_u32 s{sT0}, s{sT0}, {56 * 128}"); self.touch(e, WU, f"s{sT0}", 56)
        if p["hcp"] & 4: self.cold_pull(e, WD)
        def wd_touch(tile):
            for u in range(4):
                e(f"s_add_u32 s{sT2}, s{sHI_}, {16 * u}"); e(f"s_lshl_b32 s{sT0}, s{sG}, 3"); e(f"s_add_u32 s{sT2}, s{sT2}, s{sT0}")
                e(f"s_and_b32 s{sT2}, s{sT2}, 63")
                e(f"s_lshr_b32 s{sT0}, s{sT2}, 1"); e(f"s_mul_i32 s{sT0}, s{sT0}, {64 * 896}")
                e(f"s_and_b32 s{sT2}, s{sT2}, 1"); e(f"s_mul_i32 s{sT2}, s{sT2}, {8 * 896}")
                e(f"s_add_u32 s{sT0}, s{sT0}, s{sT2}"); e(f"s_add_u32 s{sT0}, s{sT0}, {16 * tile * 896}")
                self.touch(e, WD, f"s{sT0}", 56)
        for tile in f"{p['word']:04d}"[:p["hwd"]]:
            wd_touch(int(tile))
        if not p["swt"]:
            e(f"s_lshl_b32 s{sT0}, s{sG}, 4"); e(f"s_add_u32 s{sT0}, s{sT0}, s{sHI_}"); e(f"s_mul_i32 s{sT0}, s{sT0}, 28672")
            e(f"s_add_u32 s{sT0}, s{sT0}, {WS_ACT}")
            for i in range(4):
                self.touch(e, WS, f"s{sT0}", 56); e(f"s_add_u32 s{sT0}, s{sT0}, {56 * 128}")
        if p["ctouch"] & 4:
            e("s_waitcnt vmcnt(0)")
            self.code_touch(e)
        if p.get("trace"): e("s_endpgm")
        else: self.finish(e, 1)

    def out_proj(self, e, aOwn, aOth, vWf, vO):
        e(f"v_lshlrev_b32 v{t}, 2, v{vLANE}")
        e(f"s_lshl_b32 s{sT0}, s{sML}, 2"); e(f"s_add_u32 s{sT0}, s{sT0}, s{sKH}"); e(f"s_lshl_b32 s{sT0}, s{sT0}, 5")
        e(f"s_add_u32 s{sT0}, s{sT0}, s{sFX}")
        e(f"s_lshl_b32 s{sT2}, s{sMT}, 1"); e(f"s_add_u32 s{sT2}, s{sT2}, s{sKH}"); e(f"s_lshl_b32 s{sT2}, s{sT2}, 14")
        e(f"s_add_u32 s{sT2}, s{sT2}, {WS_O}")
        e(f"s_lshl_b32 s{sT1}, s{sNG}, 1"); e(f"s_add_u32 s{sT1}, s{sT1}, s{sKH}")
        e(f"s_mul_i32 s{sT4}, s{sMT}, 14"); e(f"s_add_u32 s{sT4}, s{sT4}, s{sT1}"); e(f"s_lshl_b32 s{sT4}, s{sT4}, 11")
        e(f"s_add_u32 s{sT4}, s{sT4}, {WS_H}")
        e(f"s_lshl_b32 s{sT5}, s{sMT}, 4"); e(f"s_add_u32 s{sT5}, s{sT5}, s{sT1}"); e(f"s_lshl_b32 s{sT5}, s{sT5}, 7")
        e(f"s_add_u32 s{sT5}, s{sT5}, {WS_SS}")
        e(f"s_lshl_b32 s{sT3}, s{sML}, 5"); e(f"s_add_u32 s{sT3}, s{sT3}, s{sT1}"); e(f"s_lshl_b32 s{sT3}, s{sT3}, 2")
        e(f"s_add_u32 s{sT3}, s{sT3}, s{sFX}")
        e("s_mov_b64 exec, 0xff")
        self.poll(e, t, f"s{sT0}", f"v_cmp_ne_u32 vcc, 1, v{t + 1}", t + 1)
        e("s_mov_b64 exec, -1")
        self.stamp(e, "opoll")
        def oload(st):
            e.vmem(f"buffer_load_dwordx4 {vr(vO + 4 * st, 4)}, v{vL16}, {WS}, s{sT2} offen offset:{1024 * (st & 3)} sc1", ("o", st))
            if st & 3 == 3: e(f"s_add_u32 s{sT2}, s{sT2}, 4096")
            if st == 15: e("s_barrier")
        PRE = self.p["opre"]
        for st in range(PRE):
            oload(st)
        e(f"s_lshl_b32 s{sT0}, s{sW}, 12"); e(f"v_add_u32 v{t}, s{sT0}, v{vL16}"); e(f"v_xor_b32 v{t + 1}, 8192, v{t}")
        for st in range(16):
            e.wait(vm=("o", st))
            self.mf(e, aOth, vWf + 8 * st + 4, vO + 4 * st, "0" if st == 0 else None)
            if st + PRE < 16: oload(st + PRE)
            self.mf(e, aOwn, vWf + 8 * st, vO + 4 * st)
        self.stamp(e, "omm")
        for i in range(4):
            e.lds(f"ds_write_b128 v{t}, {vr(aOth + 4 * i, 4)} offset:{LA + 1024 * i}")
        e.wait(ds="all")
        e("s_barrier")
        self.stamp(e, "Bx")
        for i in range(4):
            e.lds(f"ds_read_b128 {vr(aOth + 4 * i, 4)}, v{t + 1} offset:{LA + 1024 * i}", ("x", i))
        PK = vH
        for i in range(4):
            e.wait(ds=("x", i))
            for k in (0, 2):
                r = 4 * i + k
                e(f"v_pk_add_f32 {vr(aOwn + r, 2)}, {vr(aOwn + r, 2)}, {vr(aOth + r, 2)}")
            for k in (0, 2):
                r = 4 * i + k
                e(f"v_cvt_pk_bf16_f32 v{PK + r // 2}, v{aOwn + r}, v{aOwn + r + 1}")
        self.publish(e, [f"buffer_store_dwordx4 {vr(PK + 4 * i, 4)}, v{vL16}, {WS}, s{sT4} offen offset:{1024 * i}" for i in range(2)], wt=self.p["ohwt"] & 2)
        self.stamp(e, "hst")
        e(f"v_pk_mul_f32 {vr(t + 2, 2)}, {vr(aOwn, 2)}, {vr(aOwn, 2)}")
        for r in range(2, 16, 2):
            e(f"v_pk_fma_f32 {vr(t + 2, 2)}, {vr(aOwn + r, 2)}, {vr(aOwn + r, 2)}, {vr(t + 2, 2)}")
        e(f"v_add_f32 v{t + 2}, v{t + 2}, v{t + 3}")
        e(f"v_mov_b32 v{t + 3}, v{t + 2}")
        e(f"v_lshlrev_b32 v{t}, 2, v{vLANE}")
        e(f"v_permlane32_swap_b32 v{t + 2}, v{t + 3}")
        e(f"v_add_f32 v{t + 2}, v{t + 2}, v{t + 3}")
        e("s_mov_b32 exec_hi, 0")
        self.publish(e, [f"buffer_store_dword v{t + 2}, v{t}, {WS}, s{sT5} offen"], wt=self.p["ohwt"] & 2)
        e("s_mov_b64 exec, -1")
        e(f"v_mov_b32 v{t + 1}, 1"); e(f"v_mov_b32 v{t + 3}, {ONES}"); e(f"v_mov_b32 v{vMU2}, 0")
        for st in range(1, 16, 2):
            e(f"v_dot2c_f32_bf16 v{vMU2}, v{vO + 4 * st + 2}, v{t + 3}")
        e.wait(vm="all")
        e("s_mov_b64 exec, 1")
        self.publish(e, [f"buffer_store_dword v{t + 1}, v{t}, {WS}, s{sT3} offen offset:{FX_F3}"])
        e("s_mov_b64 exec, -1")
        self.stamp(e, "hpub")
        e(f"v_mov_b32 v{t + 3}, v{vMU2}")
        e(f"v_permlane32_swap_b32 v{t + 3}, v{vMU2}")
        for i in range(16):
            e(f"v_add_f32 v{aOwn + i}, v{vMU2}, v{aOwn + i}")
        e(f"s_xor_b32 s{sT0}, s{sW}, 2"); e(f"s_lshl_b32 s{sT0}, s{sT0}, 12"); e(f"v_add_u32 v{t + 1}, s{sT0}, v{vL16}")
        e(f"s_lshl_b32 s{sT0}, s{sW}, 8"); e(f"v_add_u32 v{t}, s{sT0}, v{t}")
        for i in range(4):
            e.lds(f"ds_write_b128 v{t + 1}, {vr(aOwn + 4 * i, 4)} offset:{L_RES + 1024 * i}")
        e.lds(f"ds_write_b32 v{t}, v{vMU2} offset:{L_MU}")

    def ffn_S(self, e):
        p = self.p
        full = self.stop > 4
        self.ffn_setup(e, 1)
        self.out_addr(e)
        self.gu_pre(e, 0, self.KMAJ)
        self.h_poll(e)
        self.paced(e, self.gu_ops(e, WU, L_UP, range(p["upe"], p["upe"] + p["ups"]), "up"), p["udep"])
        if p["q0e"] and full:
            assert not p["ssb"]
            self.wd_dma(e, [0])
        self.stamp(e, "Bh_")
        if p["bh"]: e("s_barrier")
        self.stamp(e, "Bh")
        e("s_setprio 1")
        def bb():
            e.wait(ds="all")
            self.stamp(e, "seg2")
            e("s_barrier")
        self.first_pass(e, p["spre"], [lambda: None] * (p["spre"] - 4) + [lambda: self.ss_read(e), bb])
        self.stamp(e, "Bb")
        self.act_flag(e, 1)
        self.gelu_consts(e)
        self.gelu_gate(e)
        qops = self.wd_ops(e, [2]) if full and p["q2s"] else []
        while qops and p["q2at"] < 0: qops.pop(0)()
        self.gu_pre(e, 1, self.TMAJ)
        self.stamp(e, "gelu2")
        def extra(n):
            if qops and n >= p["q2at"] and n & 1 == 0: qops.pop(0)()
            if n == 52 and full:
                e.wait(vm=("wd", 2), ds="all")
                self.stamp(e, "seg4")
                e("s_barrier")
        self.up_pass(e, -1, extra)
        self.stamp(e, "Bd")
        if p["sord"]:
            self.act_flag(e, 2)
            if full: self.wd_dma(e, [3])
            for op in self.prod_ops(e, 1): op()
        else:
            first = self.last_act
            if full: self.wd_dma(e, [3])
            for op in self.prod_ops(e, 1): op()
            second, self.last_act = self.last_act, first
            self.act_flag(e, 2)
            self.last_act = second
        if not full:
            self.act_flag(e, 3)
            return
        A0, A1 = vACC, vACC + 16
        if p["sord"]: self.act_sample(e)
        e(f"s_lshl_b32 s{sT0}, s{sW}, 12"); e(f"v_add_u32 v{t}, s{sT0}, v{vL16}"); e(f"v_xor_b32 v{t + 1}, 8192, v{t}")
        e(f"s_xor_b32 s{sT0}, s{sW}, 2"); e(f"s_lshl_b32 s{sT0}, s{sT0}, 8"); e(f"v_add_u32 v{t + 3}, s{sT0}, v{vPA}")
        for i in range(4):
            e.lds(f"ds_read_b128 {vr(A0 + 4 * i, 4)}, v{t + 1} offset:{L_RES + 1024 * i}")
        e.lds(f"ds_read_b32 v{vMU2}, v{t + 3} offset:{L_MU}")
        e(f"v_add_u32 v{t}, {L_XCH5}, v{t}"); e(f"v_add_u32 v{t + 2}, {L_XCH5}, v{t + 1}")
        e.wait(ds="all")
        for i in range(16):
            e(f"v_add_f32 v{A0 + i}, v{vMU2}, v{A0 + i}")
        if p["sord"]:
            self.act_flag(e, 3)
            self.act_check(e, 2)
            self.act_load(e, 0)
            self.stamp(e, "X3_")
            e("s_barrier")
        else:
            self.act_sample(e)
            e.wait(vm=("wd", 3))
            self.stamp(e, "X3_")
            e("s_barrier")
            self.act_flag(e, 3)
            self.act_check(e, 2)
            self.act_load(e, 0)
        self.act_sample(e)
        self.act_load(e, 1)
        self.down_pre(e)
        late = self.act_ops(e, 2) + self.act_ops(e, 3)
        def hook(n):
            if n == 0: self.act_check(e, 3)
            if n & 1 == 0 and late: late.pop(0)()
        self.down_half(e, [None, "0"], hook)
        self.stamp(e, "dn")
        for i in range(4):
            e.lds(f"ds_write_b128 v{t}, {vr(A1 + 4 * i, 4)} offset:{1024 * i}")
        e.wait(ds="all")
        e("s_barrier")
        self.tr(e, "Br", 1)
        P1, P2 = UACC[0], UACC[1]
        for i in range(4):
            if i & 1 == 0:
                e.lds(f"ds_read_b128 {vr(P2 + 2 * i, 4)}, v{t + 1} offset:{L_RES + 512 * i}", ("p", i))
            e.lds(f"ds_read_b128 {vr(A1 + 4 * i, 4)}, v{t + 2} offset:{1024 * i}", ("x", i))
        PK = vH
        for i in range(4):
            e.wait(ds=("p", i))
            for k in (0, 2):
                r = 4 * i + k
                e(f"v_lshlrev_b32 v{P1 + r}, 16, v{P2 + r // 2}"); e(f"v_and_b32 v{P1 + r + 1}, 0xffff0000, v{P2 + r // 2}")
            e.wait(ds=("x", i))
            for src in (A1, P1):
                for k in (0, 2):
                    r = 4 * i + k
                    e(f"v_pk_add_f32 {vr(A0 + r, 2)}, {vr(A0 + r, 2)}, {vr(src + r, 2)}")
            for k in (0, 2):
                r = 4 * i + k
                e(f"v_cvt_pk_bf16_f32 v{PK + r // 2}, v{A0 + r}, v{A0 + r + 1}")
            if i & 1:
                b = PK + 2 * (i - 1)
                e(f"v_permlane32_swap_b32 v{b}, v{b + 2}")
                e(f"v_permlane32_swap_b32 v{b + 1}, v{b + 3}")
                e.vmem(f"buffer_store_dwordx4 {vr(b, 4)}, v{vXO}, {OUT}, s{sXO} offen offset:{16 * (i - 1)}")

    def build(self):
        e = Stream()
        self.prologue(e)
        S = self.role_S()
        L = self.role_L()
        cs, cl = S.L.index("L_page0:"), L.L.index("L_setup_end:")
        body = (e.L + S.L[:cs] + ["L_roleL:"] + L.L[:cl] + S.L[cs:] + L.L[cl:] + ["L_tail:"] + self.tail
                + ["L_exit:", "s_endpgm", "L_end:"])
        at = body.index("L_pgS_skip:")
        body[at:at] = self.pull_code
        body, nops = pad_hazards(body)
        vis = [f"L_visit{g}_{w}:" for g in range(2) for w in range(4)]
        body, n = paginate(body + vis, NAME, "L_page0", "L_tail", self.p["align"])
        body = body[:len(body) - len(vis)]
        pos = {k: body.index(f"L_pg{k}:") for k in range(n)}
        l0, l1 = body.index("L_setup_end:"), body.index("L_qdone:")
        groups = [[f"L_pg{k}" for k in range(n) if l0 < pos[k] < l1], [f"L_pg{k}" for k in range(n) if not l0 < pos[k] < l1]]
        alias = {}
        for g, pg in enumerate(groups):
            for w in range(4):
                chain = pg[w::4] + [f"L_visit{g}_back"]
                alias[f"L_visit{g}_{w}"] = chain[0]
                for x, y in zip(chain, chain[1:]):
                    alias[x + "_next"] = y
        def fix(l):
            parts = l.split()
            return f"{parts[0]} {alias[parts[1]]}" if len(parts) == 2 and parts[1] in alias else l
        body = [fix(l) for l in body]
        head = open("sequential_preLN__sliding_block__geglu_ffn__prompt.s.ref").read().splitlines()
        cm = [l for l in head if l.startswith(";") and "@launch" not in l]
        out = cm + ["; @launch grid=(256,1,1) block=(512,1,1) lds=163840",
                    '.amdgcn_target "amdgcn-amd-amdhsa--gfx950"', ".text", f".globl {NAME}", ".p2align 12", ".p2align 8",
                    f".type {NAME},@function", f"{NAME}:"]
        out += [("" if l.endswith(":") else "    ") + l for l in body]
        out += ['.section .rodata,"a"', ".p2align 6", f".amdhsa_kernel {NAME}",
                "  .amdhsa_next_free_vgpr 256", "  .amdhsa_next_free_sgpr 102", "  .amdhsa_accum_offset 256",
                "  .amdhsa_group_segment_fixed_size 0", "  .amdhsa_kernarg_size 80", "  .amdhsa_user_sgpr_count 2",
                "  .amdhsa_user_sgpr_kernarg_segment_ptr 1", "  .amdhsa_system_sgpr_workgroup_id_x 1",
                ".end_amdhsa_kernel", ""]
        self.nops = nops
        return "\n".join(out)

if __name__ == "__main__":
    import argparse
    ap = argparse.ArgumentParser()
    ap.add_argument("-o", default="sequential_preLN__sliding_block__geglu_ffn__prompt.s")
    ap.add_argument("--stop", type=int, default=99)
    ap.add_argument("--stamps", action="store_true")
    ap.add_argument("--slow", action="store_true")
    ap.add_argument("-p", action="append", default=[])
    a = ap.parse_args()
    kw = {k: int(v) for k, v in (x.split("=") for x in a.p)}
    g = Gen(a.stop, a.stamps, a.slow, **kw)
    s = g.build()
    open(a.o, "w").write(s)
    print("lines", s.count("\n"), "nops", g.nops)
```

```python
import math, struct, sys
from asmlib import Stream, vr, sr, pad_hazards, paginate

NAME = "sequential_preLN__sliding_block__geglu_ffn__prompt_kernel"
MB = 1 << 20
WS_K, WS_V, WS_O, WS_H, WS_SS, WS_ACT = 0, 2 * MB, 4 * MB, 6 * MB, 6 * MB + 1792 * 1024, 8 * MB
WS_F1, WS_FX, WS_STAMP, WS_SIZE = 16 * MB, 16 * MB + 131072, 17 * MB, 18 * MB
FX_F2, FX_F3, FX_F4, FX_F6, FX_F0 = 0, 1024, 2048, 3072, 3584
LA, LB, LC = 0, 49152, 106496
L_WQ, L_MISC = LB + 16384, LB + 45056
L_GATE, L_UP, L_WO = LC, LB, LB
SLOT = [LA + 20480, LC, LC + 28672, LB]
L_RES, L_MU, L_PF, L_XCH5, L_PART = LA, LA + 16384, LA + 17408, LB + 28672, LB + 28672 + 16384
L_CS, L_XR = L_MISC + 1024, L_MISC + 4096
ACTLOC = [[(WS_O, 32768), (WS_H, 28672)], [(WS_ACT, 57344), (WS_ACT + 28672, 57344)]]
X_, WQKV, WO, WG, WU, WD, OUT, DBG, WS = (sr(b, 4) for b in (8, 12, 16, 20, 24, 28, 32, 36, 40))
sXO = 3
sG, sJ, sW, sHEAD, sRB, sXCC, sMODE, sSPIN = 44, 45, 46, 48, 49, 50, 51, 52
sT0, sT1, sT2, sT3, sT4, sT5, sA5 = 53, 54, 55, 56, 57, 58, 59
sHI, sM1, sM2, sM3 = 60, 62, 64, 66
sMT, sKC, sPAR, sML, sMG, sNG, sKH, sMI, sHF, sFX, sACT, sWD = range(68, 80)
sF4P, sF4C, sAC2 = sHEAD, sRB, sKC
sWL = sM1
sST = 80
vLANE, vL16 = 1, 2
vH, vACC, vRING, vTMP, vSS, vRES = 32, 144, 192, 220, 228, 240
vD, vP, vW5 = [4, 5, 6, 7], [8, 9, 10, 11], [12, 13]
vK1, vK2, vRI, vMU2, vW5t, vXO = 14, 15, 16, 17, [18, 19], 20
vPA, vPR, vSM, vFL, vGA = 21, 22, 23, 3, [30, 31]
UACC = [vACC + 32, vRES]
t = 26
NR = 7
BIG = 0xF149F2CA
ONES = 0x3F803F80
SPIN_LIMIT = 0x400000
HI = f"s[{sHI}:{sHI + 1}]"

def f32(x):
    return struct.unpack("<I", struct.pack("<f", x))[0]

class Gen:
    def __init__(self, stop=99, stamps=False, force_slow=False, **kw):
        self.stop, self.stamps, self.force_slow = stop, stamps, force_slow
        self.p = dict(f1_at=8, rot=0, sched=9, pull=0, act_wt=1, pre=12, spre=14, opre=5, hwd=0,
                      g1=4, gdep=2, m2at=17, otouch=3, upe=0, ups=2, udep=3, s2at=-14, hp1=0, hp2=0, hup=7, fl1=53, align=1, tlb=0, ksplit=1, ctouch=0, ohwt=0, outfl=0, wb=0, ssb=1, ptouch=0, swt=1, c3at=2, uper=1, word=3210, q2s=1, x3at=42, hcp=4, upa=0, ltouch=0, bmat=10, exact=0, qk0=3, sprio=1, gpre=2, bh=1, lord=0, sord=1, q2at=8, q0e=0, pages=2, ft=0, nt=0, hoh=2, olag=3, dlast=1, batt=1, m2=14, kfast=6, qfat=28, cin=1, bd=1)
        self.p.update(kw)
        self.tail = []
        self.trn = ([], [])
        self.pull_code = []
        self.nlab = 0

    def lab(self, n):
        self.nlab += 1
        return f"L_{n}_{self.nlab}"

    PROF = {
        0: (["start", "b0", "kv", "Bkv", "q", "f1", "Batt", "att", "opub", "hpoll", "seg1", "Bb", "Bd", "X3"],
            ["start", "Bkv", "pre", "Bm", "gu", "opoll", "Bx", "hpub", "Bh", "Bb", "Bd"]),
        1: (["start", "hpoll", "seg1", "gelu1", "Bb", "seg3", "chk1", "Bd_", "Bd", "X3", "dn"],
            ["Bh_", "Bh", "hpre", "seg2", "Bb", "gelu2", "seg4", "Bd", "X3_", "dn"]),
        2: (["start", "f1", "Batt_", "Batt", "sub", "Bm", "pv", "att", "opub", "Bp", "Bx", "hpoll"],
            ["Bkv", "pre", "Batt", "Bm", "gu", "opoll", "omm", "Bx", "hst", "hpub", "Bh"]),
        3: (["start", "b0", "b1", "b2", "b3", "b4", "b5", "b6", "kv", "kvst", "Bkv", "fl1", "f1", "Batt", "entry"],
            ["start", "b0", "b1", "b2", "b3", "b4", "b5", "b6", "wq", "Bkv", "pre", "Batt", "-", "-", "entry"]),
    }

    LEAK = [None, "end", "start", "b0", "Bkv", "Batt", "opub", "hpoll", "Bb", "Bd", "f1", "kv"]

    def tr(self, e, name, zone):
        if not self.stamps or self.p.get("trace") != zone:
            return
        names = self.trn[e.role]
        k = len(names)
        if k >= 63: return
        names.append(name)
        e(f"s_memtime s[{82 + 2 * (k % 4)}:{83 + 2 * (k % 4)}]")
        if k >= 2:
            e(f"v_writelane_b32 v0, s{82 + 2 * ((k - 2) % 4)}, {k - 2}")

    ZONE = dict(hpoll=1, hpre=1, seg1=1, gelu1=1, Bb=1, seg3=1, chk1=1, Bd_=1, Bd=1, X3=1, X5=1, X6=1, X7=1, dn=1, Bh_=1, Bh=1,
                seg2=1, gelu2=1, seg4=1, fl2=1, X3_=1, X5_=1, X6_=1, X7_=1,
                start=3, b0=3, b1=3, b2=3, b3=3, b4=3, b5=3, b6=3, kv=3, wq=3)

    def stamp(self, e, name):
        if self.p.get("trace"):
            self.tr(e, name, self.ZONE.get(name, 2))
            return
        if e.role == 0 and name == self.LEAK[self.p.get("leak", 0)]:
            e("s_memrealtime s[82:83]")
        names = self.PROF[self.p.get("prof", 0)][e.role]
        if self.stamps and (name == "end" or name in names):
            i = 15 if name == "end" else names.index(name)
            e(f"{'s_memtime' if self.p.get('cyc') else 's_memrealtime'} s[{sST + 18}:{sST + 19}]")
            e("s_waitcnt lgkmcnt(0)")
            e(f"s_mov_b32 s{sST + i}, s{sST + 18}")
            e.ds = []

    def finish(self, e, role):
        if self.p.get("leak") and role == 0 and False:
            self.stamp(e, "end")
            lp, sk = self.lab("leak"), self.lab("noleak")
            e(f"s_cmp_ge_u32 s{sJ}, 28"); e(f"s_cbranch_scc1 {sk}")
            e("s_memrealtime s[84:85]"); e("s_waitcnt lgkmcnt(0)")
            e("s_sub_u32 s82, s82, s80")
            e(f"{lp}:")
            e("s_memrealtime s[86:87]"); e("s_waitcnt lgkmcnt(0)")
            e("s_sub_u32 s86, s86, s84"); e("s_cmp_lt_u32 s86, s82"); e(f"s_cbranch_scc1 {lp}")
            e(f"{sk}:")
        if self.stamps and self.p.get("trace"):
            self.tr(e, "end", self.p["trace"])
            k = len(self.trn[role])
            e("s_waitcnt lgkmcnt(0)")
            for i in (k - 2, k - 1):
                e(f"v_writelane_b32 v0, s{82 + 2 * (i % 4)}, {i}")
            e("s_mov_b64 exec, -1")
            e(f"s_lshl_b32 s{sT0}, s2, 3"); e(f"s_add_u32 s{sT0}, s{sT0}, s{sW}"); e(f"s_add_u32 s{sT0}, s{sT0}, {4 * role}")
            e(f"s_lshl_b32 s{sT0}, s{sT0}, 8"); e(f"s_add_u32 s{sT0}, s{sT0}, {WS_STAMP}")
            e(f"v_lshlrev_b32 v3, 2, v{vLANE}")
            e(f"buffer_store_dword v0, v3, {WS}, s{sT0} offen")
        elif self.stamps:
            self.stamp(e, "end")
            e("s_mov_b64 exec, -1")
            e(f"s_lshl_b32 s{sT0}, s2, 3"); e(f"s_add_u32 s{sT0}, s{sT0}, s{sW}"); e(f"s_add_u32 s{sT0}, s{sT0}, {4 * role}")
            e(f"s_lshl_b32 s{sT0}, s{sT0}, 6"); e(f"s_add_u32 s{sT0}, s{sT0}, {WS_STAMP}")
            e("s_waitcnt vmcnt(0)")
            for i in range(16):
                e(f"v_mov_b32 v{32 + i}, s{sST + i}")
            e("v_mov_b32 v3, 0"); e("s_mov_b64 exec, 1")
            for i in range(4):
                e(f"buffer_store_dwordx4 {vr(32 + 4 * i, 4)}, v3, {WS}, s{sT0} offen offset:{16 * i}")
        e("s_endpgm")

    def poll(self, e, vaddr, soff, cmp, vt, srd=WS):
        a, b = self.lab("poll"), self.lab("polled")
        e(f"{a}:")
        e(f"buffer_load_dword v{vt}, v{vaddr}, {srd}, {soff} offen sc1")
        e(f"s_add_u32 s{sSPIN}, s{sSPIN}, 1")
        e("s_waitcnt vmcnt(0)")
        e(cmp)
        e(f"s_cmp_gt_u32 s{sSPIN}, {SPIN_LIMIT}")
        e(f"s_cbranch_scc1 {b}")
        e(f"s_cbranch_vccnz {a}")
        e(f"{b}:")
        e.vm = []

    def check_or_poll(self, e, vaddr, soff, cmp, vt, srd=WS, rare=False):
        late, ok = self.lab("late"), self.lab("ok")
        e(cmp)
        tl = Stream()
        self.poll(tl, vaddr, soff, cmp, vt, srd)
        if rare:
            e(f"s_cbranch_vccnz {late}")
            self.tail += [f"{late}:"] + tl.L + [f"s_branch {ok}"]
        else:
            e(f"s_cbranch_vccz {ok}")
            e.L += tl.L
        e(f"{ok}:")

    def publish(self, e, stores, tag="pub", wt=False):
        if wt:
            for s in stores:
                e.vmem(s + " sc1", tag)
            return
        slow, done = self.lab("slow"), self.lab("pubd")
        e(f"s_cmp_eq_u32 s{sMODE}, 0")
        e(f"s_cbranch_scc1 {slow}")
        for s in stores:
            e.vmem(s, tag)
        e(f"{done}:")
        self.tail += [f"{slow}:"] + [s + " sc1" for s in stores] + [f"s_branch {done}"]

    def mode_issue(self, e, va, vt):
        e(f"v_lshlrev_b32 v{va}, 2, v{vLANE}"); e(f"v_add_u32 v{va}, {FX_F0}, v{va}")
        e("s_mov_b32 exec_hi, 0")
        e.vmem(f"buffer_load_dword v{vt}, v{va}, {WS}, s{sFX} offen sc1", "mode")
        e("s_mov_b64 exec, -1")

    def mode_check(self, e, va, vt):
        e.wait(vm="mode")
        e("s_mov_b32 exec_hi, 0")
        self.check_or_poll(e, va, f"s{sFX}", f"v_cmp_eq_u32 vcc, 0, v{vt}", vt)
        e(f"v_cmp_ne_u32 vcc, s{sXCC}, v{vt}")
        e("s_mov_b64 exec, -1")
        e("s_cmp_eq_u64 vcc, 0"); e(f"s_cselect_b32 s{sMODE}, {0 if self.force_slow else 1}, 0")

    def touch(self, e, srd, soff, nl, va=24, vt=25):
        if nl < 64:
            m = (1 << nl) - 1
            e(f"s_mov_b32 exec_lo, {m & 0xffffffff}"); e(f"s_mov_b32 exec_hi, {m >> 32}")
        e(f"buffer_load_dword v{vt}, v{va}, {srd}, {soff} offen sc1")
        if nl < 64:
            e("s_mov_b64 exec, -1")

    def dma4(self, e, srd, vas, soff, n=4, tag=None, fl=""):
        for i in range(n):
            e.vmem(f"buffer_load_dwordx4 v{vas[i]}, {srd}, {soff} offen offset:{1024 * i} {fl} lds", tag)

    def next_kc(self, e, r=sKC):
        e(f"s_add_u32 s{r}, s{r}, 1"); e(f"s_cmp_eq_u32 s{r}, 7"); e(f"s_cselect_b32 s{r}, 0, s{r}")

    def tr_base(self, e, vd, hmul, stride, nhmul):
        e(f"v_lshrrev_b32 v{vd}, 5, v{vLANE}")
        e(f"v_mul_u32_u24 v{vd}, {hmul}, v{vd}")
        e(f"v_bfe_u32 v{t}, v{vLANE}, 2, 2")
        e(f"v_add_u32 v{vd}, v{vd}, v{t}")
        e(f"v_mul_u32_u24 v{vd}, {stride}, v{vd}")
        e(f"v_bfe_u32 v{t}, v{vLANE}, 4, 1")
        e(f"v_mul_u32_u24 v{t}, {nhmul}, v{t}")
        e(f"v_add_u32 v{vd}, v{vd}, v{t}")
        e(f"v_and_b32 v{t}, 3, v{vLANE}")
        e(f"v_lshl_add_u32 v{vd}, v{t}, 3, v{vd}")

    def rows128_src(self, e, vas, rowstride, partmul, rowof):
        v = vas[0]
        e(f"v_lshrrev_b32 v{v}, 3, v{vLANE}")
        e(f"v_mul_u32_u24 v{v}, {rowstride}, v{v}")
        e(f"v_lshrrev_b32 v{t}, 2, v{vLANE}")
        e(f"v_lshrrev_b32 v{t + 1}, 4, v{vLANE}")
        e(f"v_xor_b32 v{t}, v{t}, v{t + 1}")
        e(f"v_and_b32 v{t}, 1, v{t}")
        e(f"v_mul_u32_u24 v{t}, {partmul}, v{t}")
        e(f"v_add_u32 v{v}, v{v}, v{t}")
        e(f"v_and_b32 v{t}, 3, v{vLANE}")
        e(f"v_lshl_add_u32 v{v}, v{t}, 4, v{v}")
        for i in range(1, len(vas)):
            e(f"v_add_u32 v{vas[i]}, {rowof(i) * rowstride - 1024 * i}, v{v}")

    def rows64_src(self, e, vas, rowstride, gx):
        v = vas[0]
        e(f"v_lshrrev_b32 v{v}, 2, v{vLANE}")
        e(f"v_mul_u32_u24 v{v}, {rowstride}, v{v}")
        e(f"v_and_b32 v{t}, 3, v{vLANE}")
        if gx:
            e(f"v_xor_b32 v{t}, {gx}, v{t}")
        e(f"v_lshl_add_u32 v{v}, v{t}, 4, v{v}")
        for i in range(1, len(vas)):
            e(f"v_add_u32 v{vas[i]}, {16 * i * rowstride - 1024 * i}, v{v}")

    @staticmethod
    def trd(e, dst, vaddr, off0, step, tag):
        e.lds(f"ds_read_b64_tr_b16 {vr(dst, 2)}, v{vaddr} offset:{off0}", tag)
        e.lds(f"ds_read_b64_tr_b16 {vr(dst + 2, 2)}, v{vaddr} offset:{off0 + step}", tag)

    @staticmethod
    def mf(e, d, a, b, c=None):
        e(f"v_mfma_f32_32x32x16_bf16 {vr(d, 16)}, {vr(a, 4)}, {vr(b, 4)}, {vr(d, 16) if c is None else c}")

    @staticmethod
    def mf8(e, d, a, b, c=None):
        e(f"v_mfma_f32_32x32x8_bf16 {vr(d, 16)}, {vr(a, 2)}, {vr(b, 2)}, {vr(d, 16) if c is None else c}")

    @staticmethod
    def mf4(e, d, a, b, first):
        e(f"v_mfma_f32_4x4x4_16b_bf16 {vr(d, 4)}, {vr(a, 2)}, {vr(b, 2)}, {'0' if first else vr(d, 4)}")

    @staticmethod
    def split_hi_lo(e, dst, c):
        e(f"v_cvt_pk_bf16_f32 v{dst + 1}, v{c}, v{c}")
        e(f"v_and_b32 v{t}, 0xffff0000, v{dst + 1}")
        e(f"v_sub_f32 v{t}, v{c}, v{t}")
        e(f"v_cvt_pk_bf16_f32 v{dst}, v{c}, v{t}")

    def visit(self, e, grp):
        for w in range(4):
            if self.p["pages"] >> grp & 1:
                e(f"s_cmp_eq_u32 s{sW}, {w}"); e(f"s_cbranch_scc1 L_visit{grp}_{w}")
        e(f"L_visit{grp}_back:")

    def prologue(self, e):
        e(f"s_cmp_ge_u32 s2, {0 if self.stop == 0 else 256}")
        e("s_cbranch_scc1 L_exit")
        if self.stamps and not self.p.get("trace"):
            e(f"{'s_memtime' if self.p.get('cyc') else 's_memrealtime'} s[80:81]")
        e("s_load_dwordx16 s[84:99], s[0:1], 0")
        e("s_load_dwordx4 s[4:7], s[0:1], 64")
        e("v_lshrrev_b32 v3, 6, v0")
        e(f"v_and_b32 v{vLANE}, 63, v0")
        e(f"v_readfirstlane_b32 s47, v3")
        e(f"s_and_b32 s{sG}, s2, 7"); e(f"s_bfe_u32 s{sHEAD}, s2, 0x40003")
        e(f"s_and_b32 s{sW}, s47, 3")
        e("s_cmp_lt_u32 s47, 4")
        e("s_cbranch_scc1 L_roleL")

    def first_touch(self, e):
        e(f"s_lshl_b32 s{sT0}, s{sG}, 5"); e(f"s_lshr_b32 s{sT1}, s2, 3"); e(f"s_add_u32 s{sT0}, s{sT0}, s{sT1}")
        e(f"s_lshl_b32 s{sT2}, s{sW}, 3"); e(f"s_lshr_b32 s{sT2}, {56 | 13 << 8 | 13 << 16 | 13 << 24}, s{sT2}"); e(f"s_and_b32 s{sT2}, s{sT2}, 63")
        e(f"s_cmp_eq_u32 s{sW}, 3"); e(f"s_cselect_b32 s{sT0}, s{sT1}, s{sT0}")
        e(f"s_mul_i32 s{sT0}, s{sT0}, s{sT2}")
        e(f"v_add_u32 v3, s{sT0}, v{vLANE}")
        e("v_mul_u32_u24 v15, 9363, v3"); e("v_lshrrev_b32 v15, 16, v15")
        e(f"s_cmp_eq_u32 s{sW}, 1"); e(f"s_cselect_b32 s{sT0}, 14, 0")
        e(f"v_mad_u32_u24 v3, v15, s{sT0}, v3"); e("v_lshlrev_b32 v3, 7, v3")
        e(f"s_bfm_b64 exec, s{sT2}, 0")
        e("s_getpc_b64 s[100:101]")
        e("L_pc:")
        e(f"s_mov_b32 s{sT3}, L_tail-L_pc")
        for w, src, n in ((0, 84, 2048 * 896), (1, 86, 448 * 2688), (2, 88, 448 * 896)):
            e(f"s_cmp_eq_u32 s{sW}, {w}"); e(f"s_cselect_b64 s[100:101], s[{src}:{src + 1}], s[100:101]")
            e(f"s_cselect_b32 s{sT3}, {n - 4}, s{sT3}")
        e(f"v_min_u32 v3, s{sT3}, v3")
        e("global_load_dword v15, v3, s[100:101]")
        e("s_mov_b64 exec, -1")

    def ids(self, e, part):
        if part == 0:
            e(f"s_lshr_b32 s{sT1}, s2, 7"); e(f"s_lshl_b32 s{sRB}, s{sG}, 1"); e(f"s_add_u32 s{sRB}, s{sRB}, s{sT1}")
            e(f"s_lshl_b32 s{sMT}, s{sRB}, 2"); e(f"s_add_u32 s{sMT}, s{sMT}, s{sW}")
            e(f"s_lshl_b32 s{sT5}, s{sW}, 12")
            return
        e(f"s_lshr_b32 s{sT1}, s2, 7")
        e(f"s_cmp_lt_u32 s{sHEAD}, 14"); e(f"s_cselect_b32 s{sT0}, 14, 2"); e(f"s_cselect_b32 s{sJ}, 0, 14")
        e(f"s_mul_i32 s{sT0}, s{sT0}, s{sT1}"); e(f"s_add_u32 s{sJ}, s{sJ}, s{sT0}"); e(f"s_add_u32 s{sJ}, s{sJ}, s{sHEAD}")
        e(f"s_lshl_b32 s{sFX}, s{sG}, 12"); e(f"s_add_u32 s{sFX}, s{sFX}, {WS_FX}")
        e(f"v_lshlrev_b32 v{vL16}, 4, v{vLANE}")
        self.srd(e, 40, 6, WS_SIZE); self.srd(e, 36, 4, 256)

    @staticmethod
    def srd(e, b, src, n):
        e(f"s_mov_b64 s[{b}:{b + 1}], s[{src}:{src + 1}]")
        e(f"s_mov_b32 s{b + 2}, {n}"); e(f"s_mov_b32 s{b + 3}, 0x20000")

    def late_setup(self, e, last=True):
        for b, src, n in ((16, 88, 448 * 896), (20, 92, 448 * 3584), (24, 94, 448 * 3584), (28, 96, 1792 * 896), (32, 98, 2048 * 896)):
            e(f"s_mov_b64 s[{b}:{b + 1}], s[{src}:{src + 1}]")
            e(f"s_mov_b32 s{b + 2}, {n}"); e(f"s_mov_b32 s{b + 3}, 0x20000")
        e(f"s_mul_i32 s{sMG}, s{sJ}, 37"); e(f"s_lshr_b32 s{sMG}, s{sMG}, 8")
        e(f"s_mul_i32 s{sT0}, s{sMG}, 7"); e(f"s_sub_u32 s{sNG}, s{sJ}, s{sT0}")
        e(f"s_and_b32 s{sPAR}, s{sJ}, 1")
        e(f"s_and_b32 s{sMI}, s{sW}, 1"); e(f"s_lshr_b32 s{sKH}, s{sW}, 1"); e(f"s_lshr_b32 s{sHF}, s{sMG}, 1")
        e(f"s_mov_b32 s{sSPIN}, 0")
        e(f"s_mov_b32 s{sHI}, 0"); e(f"s_mov_b32 s{sHI + 1}, -1")
        e(f"s_getreg_b32 s{sXCC}, hwreg(HW_REG_XCC_ID, 0, 4)"); e(f"s_or_b32 s{sXCC}, s{sXCC}, 0x100")
        if self.stamps and last:
            e(f"s_mov_b32 s{sST + 14}, s80")
            for i in range(14):
                e(f"s_mov_b32 s{sST + i}, 0")

    def kv_pass(self, e, kind, R):
        wf, cf = vRING, R["PK"]
        a0, a1 = vACC, vACC + 16
        XS, XQ, C0, C1 = R["XS"], R["XQ"], R["C0"], R["C1"]
        vW0, vW1, vC0, vC1, vXR, vONE = R["vW0"], R["vW1"], R["vC0"], R["vC1"], R["vXR"], R["vONE"]
        def xrd(c):
            if kind == "K": self.tr(e, f"a{c}", 4)
            e("s_barrier")
            if kind == "K": self.tr(e, f"b{c}", 4)
            self.stamp(e, f"b{c}")
            for s in range(4):
                e.lds(f"ds_read_b128 {vr(vH + 16 * c + 4 * s, 4)}, v{vXR[s]} offset:{(c % 4) * 16384}", ("x", 4 * c + s))
        vis = self.wvis()
        st = dict(w=0, c=0, m=0, b=0)
        def wrd(upto):
            while kind and st["w"] <= min(upto, 27) and st["w"] >> 2 <= vis[st["b"]]:
                n = st["w"]; st["w"] += 1
                for k, va in enumerate((vW0, vW1)):
                    self.trd(e, wf + 8 * (n % 4) + 4 * k, va, 16 * n * 128, 512, ("w", n))
        def crd():
            while kind and st["c"] <= vis[st["b"]] and st["c"] < st["m"] + 2:
                c = st["c"]; st["c"] += 1
                for k, va in enumerate((vC0, vC1)):
                    self.trd(e, cf + 8 * (c & 1) + 4 * k, va, 64 * c * 128, 512, ("c", c))
        def cmm():
            out = []
            while st["m"] < st["c"]:
                c = st["m"]; st["m"] += 1
                e.wait(ds=("c", c))
                b = cf + 8 * (c & 1)
                out += [(C0, vONE, b, c == 0), (C1, vONE, b + 4, c == 0), (C0, vONE, b + 2, False), (C1, vONE, b + 6, False)]
            return out
        vMU, vRS, vNM, vCP, vOH, PK = R["vMU"], R["vRS"], R["vNM"], R["vCP"], R["vOH"], R["PK"]
        aR = PK
        z = Stream()
        if kind:
            for k in range(2):
                z(f"v_add_f32 v{cf + 4 * k}, v{cf + 4 * k}, v{cf + 4 * k + 1}")
                z(f"v_add_f32 v{cf + 4 * k + 2}, v{cf + 4 * k + 2}, v{cf + 4 * k + 3}")
            z(f"v_add_f32 v{C0}, v{cf}, v{cf + 2}"); z(f"v_add_f32 v{C1}, v{cf + 4}, v{cf + 6}")
        z(f"v_add_f32 v{XS}, v{XS}, v{XS + 8}")
        for i in range(4):
            z(f"v_add_f32 v{XQ + i}, v{XQ + i}, v{XQ + 8 + i}")
        z(f"v_cndmask_b32 v{XQ}, v{XQ}, v{XQ + 1}, s[{sM1}:{sM1 + 1}]")
        z(f"v_cndmask_b32 v{XQ}, v{XQ}, v{XQ + 2}, s[{sM2}:{sM2 + 1}]")
        z(f"v_cndmask_b32 v{XQ}, v{XQ}, v{XQ + 3}, s[{sM3}:{sM3 + 1}]")
        if kind: self.split_hi_lo(z, C0 + 2, C0)
        z(f"v_permlane32_swap_b32 v{XS}, v{XQ}")
        z(f"v_add_f32 v{XS}, v{XS}, v{XQ}")
        z(f"v_mov_b32 v{XQ}, v{XS}")
        if kind: self.split_hi_lo(z, C1 + 2, C1)
        z(f"v_permlane32_swap_b32 v{XS}, v{XQ}")
        z(f"v_mul_f32 v{vMU}, {f32(1 / 448)}, v{XS}")
        z(f"v_mul_f32 v{XQ}, {f32(1 / 448)}, v{XQ}")
        z(f"v_cvt_pk_bf16_f32 v{vNM}, -v{vMU}, -v{vMU}")
        z(f"v_fma_f32 v{XQ}, -v{vMU}, v{vMU}, v{XQ}")
        z(f"v_and_b32 v{t}, 0xffff0000, v{vNM}")
        z(f"v_max_f32 v{XQ}, 0, v{XQ}")
        z(f"v_add_f32 v{t}, v{vMU}, v{t}")
        z(f"v_add_f32 v{XQ}, {f32(1e-5)}, v{XQ}")
        z(f"v_cvt_pk_bf16_f32 v{vNM + 1}, -v{t}, 0")
        z(f"v_rsq_f32 v{vRS}, v{XQ}")
        chain = list(z.L)
        xrd(0)
        wrd(1)
        wrote = False
        for n in range(28):
            c, s = divmod(n, 4)
            if s == 3 and c < 6:
                if kind and c == 5:
                    e.wait(ds="csw")
                xrd(c + 1)
                st["b"] = c + 1
                wrd(n + 1)
                if kind and c == 5:
                    for k in range(2):
                        e.lds(f"ds_read_b128 {vr(cf + 4 * k, 4)}, v{R['vCR']} offset:{1024 * k}", "cs")
            if n == 21:
                e("s_mov_b64 exec, 3")
                e.vmem(f"buffer_load_dword v{R['vRDY']}, v{R['vRA']}, {DBG}, 0 offen sc1")
                e("s_mov_b64 exec, -1")
            nst = (4 if s == 0 else 0) if c == 6 else (2 if s & 1 == 0 else 0)
            if nst:
                e.wait(ds=("x", n + nst - 1))
                small = []
                for i in range(2 * nst):
                    x = vH + 4 * n + 2 * i
                    small += [(XS + 8 * (i & 1), vONE, x, n == 0 and i < 2), (XQ + 8 * (i & 1), x, x, n == 0 and i < 2)]
                if kind and s == 2:
                    for i, m in enumerate(cmm()):
                        small.insert(min(2 * i, len(small)), m)
                for m in small:
                    if self.p.get("fk", 0) & 1 and n >= 4 and m[0] not in (C0, C1): continue
                    self.mf4(e, *m)
            if kind:
                if n == 24: e.wait(ds="cs")
                e.wait(ds=("w", n))
                x, w0 = vH + 4 * n, wf + 8 * (n % 4)
                for k, acc in enumerate((a0, a1)):
                    A, B = (w0 + 4 * k, x) if kind == "K" else (x, w0 + 4 * k)
                    if self.p.get("fk", 0) & 2 and n >= 4: e("s_nop 6")
                    else: self.mf(e, acc, A, B, "0" if n == 0 else None)
                    if self.p.get("fk", 0) & 8: e("s_nop 7")
                    if k == 0 and st["m"] == 7 and not wrote:
                        e.lds(f"ds_write2st64_b32 v{R['vCS']}, v{C0}, v{C1} offset0:0 offset1:4", "csw")
                        wrote = True
                    if k == 0: wrd(n + 2)
                    if c == 6:
                        for i in range(5 if k or n > 25 else 2):
                            if chain: e(chain.pop(0))
                if s == 0:
                    crd()
        self.stamp(e, "kv")
        if kind == "K": self.tr(e, "kv", 4)
        for l in chain: e(l)
        if kind == "K":
            self.mf8(e, a0, C0 + 2, vNM); self.mf8(e, a1, C1 + 2, vNM)
            e(f"s_mul_i32 s{sT0}, s{sMT}, 28672"); e(f"s_lshl_b32 s{sT1}, s{sHEAD}, 12"); e(f"s_add_u32 s{sT0}, s{sT0}, s{sT1}")
            e(f"v_and_b32 v{t}, 15, v{vLANE}"); e(f"v_bfe_u32 v{t + 1}, v{vLANE}, 4, 1"); e(f"v_lshlrev_b32 v{t + 1}, 9, v{t + 1}")
            e(f"v_lshl_add_u32 v{t + 1}, v{t}, 4, v{t + 1}"); e(f"v_lshrrev_b32 v{t}, 5, v{vLANE}")
            e(f"v_lshl_add_u32 v{t + 1}, v{t}, 8, v{t + 1}")
        if kind == "V":
            self.mf8(e, a0, vNM, C0 + 2)
            self.split_hi_lo(e, vCP, vRS)
            self.mf8(e, aR, vCP, vOH, "0")
            self.mf8(e, a1, vNM, C1 + 2)
            e(f"s_mul_i32 s{sT0}, s{sMT}, 28672"); e(f"s_lshl_b32 s{sT1}, s{sHEAD}, 10"); e(f"s_add_u32 s{sT0}, s{sT0}, s{sT1}")
            e(f"s_add_u32 s{sT0}, s{sT0}, {WS_V - 7 * 1024}"); e(f"s_add_u32 s{sT1}, s{sT0}, 14336")
        if kind:
            out = wf
            for k, acc in enumerate((a0, a1)):
                for hf in range(2):
                    b, o = acc + 8 * hf, out + 8 * k + 4 * hf
                    for i in range(0, 8, 2):
                        if kind == "K":
                            e(f"v_pk_mul_f32 {vr(b + i, 2)}, {vr(b + i, 2)}, {vr(vMU, 2)} op_sel:[0,1] op_sel_hi:[1,1]")
                        else:
                            e(f"v_pk_mul_f32 {vr(b + i, 2)}, {vr(b + i, 2)}, {vr(aR + 8 * hf + i, 2)}")
                    for i in range(4):
                        e(f"v_cvt_pk_bf16_f32 v{o + i}, v{b + 2 * i}, v{b + 2 * i + 1}")
                    if kind == "K":
                        e(f"v_permlane16_swap_b32 v{o}, v{o + 2}"); e(f"v_permlane16_swap_b32 v{o + 1}, v{o + 3}")
                        e.vmem(f"buffer_store_dwordx4 {vr(o, 4)}, v{t + 1}, {WS}, s{sT0} offen offset:{(8 * k + 4 * hf) * 256} sc1")
                    else:
                        e.vmem(f"buffer_store_dwordx4 {vr(o, 4)}, v{R['vVA']}, {WS}, s{(sT0, sT1)[hf]} offen offset:{512 * k} sc1")

    def role_L(self):
        e = Stream(); e.role = 0
        vCS, vRA, vC0, vC1, vCR, vXR, vW0, vW1, vWQ, vRDY = 3, 4, 5, 6, 7, [8, 9, 10, 11], 12, 13, 14, 15
        vONE, vOH, vMU, vRS, vNM, vCP, vVA = 16, 18, 20, 21, 22, 24, 30
        aQ = vACC + 32
        wf = vRING
        XS, XQ, C0, C1, PK = aQ, aQ + 4, 232, 236, 240
        R = dict(locals())
        e("s_waitcnt lgkmcnt(0)")
        if self.p["ft"] == 0: self.first_touch(e)
        self.ids(e, 1)
        for i in range(4): e(f"v_mov_b32 v{32 + i}, 0")
        nolead = self.lab("nolead")
        e(f"s_lshl_b32 s{sT0}, s{sJ}, 2"); e(f"s_add_u32 s{sT0}, s{sT0}, s{sW}")
        e(f"s_cmp_lg_u32 s{sT0}, {28 * 4}"); e(f"s_cbranch_scc1 {nolead}")
        e(f"v_lshlrev_b32 v{t}, 7, v{vLANE}")
        e(f"s_lshl_b32 s{sT0}, s{sG}, 14"); e(f"s_add_u32 s{sT0}, s{sT0}, {WS_F1}"); e(f"s_add_u32 s{sT1}, s{sT0}, 8192")
        for base in (sT0, sT1):
            e(f"buffer_store_dword v32, v{t}, {WS}, s{base} offen sc1")
        for i in range(4):
            e(f"buffer_store_dwordx4 v[32:35], v{vL16}, {WS}, s{sFX} offen offset:{1024 * i} sc1")
        e(f"s_lshl_b32 s{sT0}, s{sG}, 2"); e("v_mov_b32 v36, 1")
        e("s_waitcnt vmcnt(0)")
        e("s_mov_b64 exec, 1")
        e(f"buffer_store_dword v36, v32, {DBG}, s{sT0} offen sc1")
        e("s_mov_b64 exec, -1")
        e(f"{nolead}:")
        self.ids(e, 0)
        if self.p.get("fake"): self.srd(e, 8, 84, 2048 * 896)
        if self.p["ft"] == 1: self.first_touch(e)
        self.late_setup(e)
        self.stamp(e, "start")
        e(f"v_and_b32 v{t}, 31, v{vLANE}")
        e(f"v_lshlrev_b32 v{vVA}, 4, v{t}")
        e(f"v_lshlrev_b32 v{t + 1}, 7, v{t}")
        e(f"v_add_u32 v{t + 1}, s{sT5}, v{t + 1}")
        e(f"v_bfe_u32 v{t}, v{vLANE}, 1, 3")
        e(f"v_lshrrev_b32 v{t + 2}, 5, v{vLANE}")
        e(f"v_mul_u32_u24 v{t + 3}, 7168, v{t + 2}"); e(f"v_add_u32 v{vVA}, v{vVA}, v{t + 3}")
        e(f"v_xor_b32 v{t}, v{t}, v{t + 2}")
        for s in range(4):
            e(f"v_xor_b32 v{t + 2}, {2 * s}, v{t}")
            e(f"v_lshl_add_u32 v{vXR[s]}, v{t + 2}, 4, v{t + 1}")
        self.tr_base(e, vW0, 8, 128, 32)
        e(f"v_bfe_u32 v{t}, v{vLANE}, 3, 1")
        e(f"v_lshlrev_b32 v{t}, 6, v{t}")
        e(f"v_add_u32 v{vW0}, {LC}, v{vW0}")
        e(f"v_xor_b32 v{t + 1}, 64, v{t}")
        e(f"v_add_u32 v{vW1}, v{vW0}, v{t + 1}")
        e(f"v_add_u32 v{vW0}, v{vW0}, v{t}")
        e(f"s_lshl_b32 s{sT0}, s{sW}, 11")
        e(f"v_add_u32 v{vC0}, s{sT0}, v{vW0}"); e(f"v_add_u32 v{vC1}, s{sT0}, v{vW1}")
        e(f"v_add_u32 v{vCR}, {L_CS}, v{vL16}")
        e(f"s_lshl_b32 s{sT0}, s{sW}, 2"); e(f"v_add_u32 v{vCS}, s{sT0}, v{vCR}")
        self.tr_base(e, vWQ, 8, 64, 32)
        e(f"v_add_u32 v{vWQ}, {L_WQ}, v{vWQ}")
        e(f"v_mov_b32 v{vONE}, {ONES}"); e(f"v_mov_b32 v{vONE + 1}, {ONES}")
        e(f"v_cndmask_b32 v{vOH}, v{vONE}, 0, {HI}"); e(f"v_mov_b32 v{vOH + 1}, 0")
        for m, val in ((sM1, 0x22222222), (sM2, 0x44444444), (sM3, 0x88888888)):
            e(f"s_mov_b32 s{m}, {val}"); e(f"s_mov_b32 s{m + 1}, {val}")
        e(f"v_and_b32 v{vRA}, 1, v{vLANE}"); e(f"v_min_u32 v{vRA}, s{sG}, v{vRA}")
        e(f"v_sub_u32 v{vRA}, s{sG}, v{vRA}"); e(f"v_lshlrev_b32 v{vRA}, 2, v{vRA}")
        self.tr(e, "setup", 4)
        self.visit(e, 0)
        lv, ln, lj = self.lab("formV"), self.lab("formN"), self.lab("kvjoin")
        e(f"s_cmp_ge_u32 s{sHEAD}, 14"); e(f"s_cbranch_scc1 {ln}")
        e(f"s_cmp_ge_u32 s{sHEAD}, 7"); e(f"s_cbranch_scc1 {lv}")
        e("s_branch L_formK")
        e("L_setup_end:")
        for kind, lb in (("K", "L_formK"), ("V", lv), (None, ln)):
            e(".newpage")
            e(f"{lb}:")
            e.vm, e.ds = [], []
            self.kv_pass(e, kind, R)
            if kind: e(f"s_branch {lj}")
        e(f"{lj}:")
        e.ds = []
        self.stamp(e, "kvst")
        self.tr(e, "kvst", 4)
        e(f"s_lshl_b32 s{sT4}, s{sMT}, 4"); e(f"s_add_u32 s{sT0}, s{sT4}, s{sHEAD}"); e(f"s_lshl_b32 s{sT0}, s{sT0}, 7")
        e(f"s_add_u32 s{sT2}, s{sT0}, {WS_F1}")
        e(f"v_mov_b32 v{t + 2}, 0"); e(f"v_mov_b32 v{t + 3}, 1")
        def kv_flag():
            e.wait(vm="all")
            nof0 = self.lab("nof0")
            e("s_mov_b64 exec, 3")
            self.check_or_poll(e, vRA, "0", f"v_cmp_ne_u32 vcc, 1, v{vRDY}", vRDY, srd=DBG, rare=True)
            e("s_mov_b64 exec, 1")
            e.vmem(f"buffer_store_dword v{t + 3}, v{t + 2}, {WS}, s{sT2} offen sc1")
            e(f"s_cmp_lg_u32 s{sW}, 0"); e(f"s_cbranch_scc1 {nof0}")
            e(f"v_mov_b32 v{vRDY}, s{sXCC}")
            e(f"s_lshl_b32 s{sT0}, s{sJ}, 2"); e(f"s_add_u32 s{sT0}, s{sT0}, s{sFX}")
            e(f"buffer_store_dword v{vRDY}, v{t + 2}, {WS}, s{sT0} offen offset:{FX_F0} sc1")
            e(f"{nof0}:")
            e("s_mov_b64 exec, -1")
            self.stamp(e, "fl1")
        if self.p["f1_at"] < 0:
            kv_flag()
        e("s_barrier")
        self.stamp(e, "Bkv")
        vS, aO, vRM, vM = vH, vACC + 32, vRES, 5
        vKA, vKV, vV0, vV1, vPO, vPZ = 7, 8, 9, 10, 224, 228
        side = Stream()
        side(f"v_add_u32 v{vKV}, s{sT5}, v{vL16}")
        side(f"v_and_b32 v{vKA}, 15, v{vLANE}"); side(f"v_lshlrev_b32 v{vKA}, 4, v{vKA}")
        side(f"v_bfe_u32 v9, v{vLANE}, 4, 1"); side(f"v_lshl_add_u32 v{vKA}, v9, 3, v{vKA}")
        side(f"v_lshrrev_b32 v9, 5, v{vLANE}"); side(f"v_lshl_add_u32 v{vKA}, v9, 8, v{vKA}"); side(f"v_add_u32 v{vKA}, s{sT5}, v{vKA}")
        side(f"v_lshrrev_b32 v11, 5, v{vLANE}"); side("v_lshlrev_b32 v11, 4, v11"); side(f"v_add_u32 v11, {L_MISC}, v11")
        for i in range(4):
            side(f"v_mov_b32 v{vPO + i}, v{vONE}"); side(f"v_mov_b32 v{vPZ + i}, 0")
        def masks(o):
            o(f"v_and_b32 v{t}, 31, v{vLANE}"); o(f"v_lshrrev_b32 v{t + 1}, 5, v{vLANE}")
            o(f"v_lshlrev_b32 v{t + 1}, 2, v{t + 1}"); o(f"v_sub_u32 v{t}, v{t}, v{t + 1}")
            o(f"v_mov_b32 v{t + 1}, {BIG}")
            for r in range(17):
                if r < 16:
                    m = (sM1, sM2, sM3)[r % 3]
                    o(f"v_cmp_le_i32 s[{m}:{m + 1}], {8 * (r >> 2) + (r & 3)}, v{t}")
                if r:
                    q, m = r - 1, (sM1, sM2, sM3)[(r - 1) % 3]
                    o(f"v_cndmask_b32 v{vS + 128 + q}, v{t + 1}, 0, s[{m}:{m + 1}]")
                    o(f"v_cndmask_b32 v{vS + 112 + q}, 0, v{t + 1}, s[{m}:{m + 1}]")
        masks(side)
        fill = list(side.L)
        QR = [PK, PK + 4, PK + 8, PK + 12, wf + 16, wf + 20, wf + 24]
        def qread(s):
            self.trd(e, QR[s % NR], vWQ, 16 * s * 64, 256, ("q", s))
        for s in range(NR - 2):
            qread(s)
        vF1, vF1s, sF1B, sF1M, sKB = 31, 10, sA5, sACT, sWD
        e(f"s_mul_i32 s{sT0}, s{sHEAD}, 28"); e(f"s_add_u32 s{sT1}, s{sT0}, 27")
        e(f"s_lshr_b32 s{sT0}, s{sT0}, 6"); e(f"s_lshr_b32 s{sT1}, s{sT1}, 6"); e(f"s_sub_u32 s{sT1}, s{sT1}, s{sT0}")
        e(f"v_and_b32 v{vF1}, s{sT1}, v{vLANE}")
        e(f"v_bfe_u32 v{t + 1}, v{vLANE}, 1, 1"); e(f"v_mad_u32_u24 v{vF1}, v{t + 1}, 7, v{vF1}")
        e(f"v_lshrrev_b32 v{t + 1}, 2, v{vLANE}"); e(f"v_lshl_add_u32 v{vF1}, v{t + 1}, 6, v{vF1}")
        e(f"v_lshlrev_b32 v{vF1}, 7, v{vF1}")
        e(f"s_add_u32 s{sT0}, s{sT0}, s{sT4}"); e(f"s_lshl_b32 s{sT0}, s{sT0}, 7"); e(f"s_add_u32 s{sF1B}, s{sT0}, {WS_F1 - 16384}")
        e(f"s_min_u32 s{sT1}, s{sRB}, 2"); e(f"s_lshl_b32 s{sT1}, s{sT1}, 2")
        e(f"s_lshr_b32 s{sT1}, 0xfff00, s{sT1}"); e(f"s_and_b32 s{sF1M}, s{sT1}, 0xfff")
        e(f"s_mul_i32 s{sKB}, s{sMT}, 28672")
        e(f"s_mul_i32 s{sT1}, s{sHEAD}, 1792"); e(f"s_add_u32 s{sKB}, s{sKB}, s{sT1}")
        for s in range(0, 28, 2):
            if s == self.p["f1_at"] & ~1:
                kv_flag()
            e.wait(ds=("q", s + 1))
            for k in range(2):
                q = QR[(s + k) % NR]
                self.mf4(e, C0, vONE, q, s + k == 0); self.mf4(e, C1, vONE, q + 2, s + k == 0)
                if k == 0 and fill: e(fill.pop(0))
            for k in range(2):
                if self.p.get("fk", 0) & 4 and s >= 4: e("s_nop 6")
                else: self.mf(e, aQ, QR[(s + k) % NR], vH + 4 * (s + k), "0" if s + k == 0 else None)
                if s + k + NR - 2 < 28:
                    qread(s + k + NR - 2)
                for i in range(2 + k):
                    if fill: e(fill.pop(0))
        assert not fill
        e(f"v_add_f32 v{C0}, v{C0}, v{C1}")
        self.split_hi_lo(e, C0 + 2, C0)
        self.mf8(e, aQ, C0 + 2, vNM)
        e("s_mov_b32 exec_lo, 0xf0000000"); e("s_mov_b32 exec_hi, 0xf0000000")
        for u in range(3):
            for s in range(2):
                e.lds(f"ds_write_b128 v{vKV}, {vr(vPO, 4)} offset:{u * 16384 + 2048 + 1024 * s}")
        e("s_mov_b32 exec_lo, 0"); e("s_mov_b32 exec_hi, 0xffff0000")
        for u in (2, 1, 0):
            if u < 2:
                e(f"s_cmp_ge_u32 s{sRB}, {2 - u}"); e(f"s_cselect_b32 s{sT0}, 0, {BIG >> 16}")
                e(f"v_mov_b32 v{vPZ}, s{sT0}"); e(f"v_mov_b32 v{vPZ + 2}, s{sT0}")
            e.lds(f"ds_write_b128 v{vKV}, {vr(vPZ, 4)} offset:{u * 16384 + 1024}")
        e("s_mov_b64 exec, -1")
        e(f"v_mov_b32 v{t + 2}, 0x3f80")
        vQ = vTMP
        e(f"v_mul_f32 v{vRS}, {f32(28 ** -0.5 * math.log2(math.e))}, v{vRS}")
        e(f"v_mul_f32 v{vMU}, {f32(1 / 16)}, v{vMU}")
        for i in range(16):
            e(f"v_mul_f32 v{aQ + i}, v{vRS}, v{aQ + i}")
        e.wait(ds="all")
        for i in range(8):
            e(f"v_cvt_pk_bf16_f32 v{vQ + i}, v{aQ + 2 * i}, v{aQ + 2 * i + 1}")
        e(f"v_cndmask_b32 v{vQ + 6}, v{vQ + 6}, v{t + 2}, {HI}")
        e(f"v_cndmask_b32 v{vQ + 7}, v{vQ + 7}, 0, {HI}")
        e("L_qdone:")
        self.stamp(e, "q")
        e(f"s_mov_b32 exec_lo, s{sF1M}"); e("s_mov_b32 exec_hi, 0")
        self.poll(e, vF1, f"s{sF1B}", f"v_cmp_ne_u32 vcc, 1, v{vF1s}", vF1s)
        self.stamp(e, "f1")
        for u in range(3):
            e(f"s_sub_u32 s{sT1}, s{sKB}, {(8 - 4 * u) * 28672}")
            if u < 2:
                e(f"s_cmp_ge_u32 s{sRB}, {2 - u}"); e(f"s_cselect_b32 s{sT1}, s{sT1}, 0x7f000000")
            e(f"s_add_u32 m0, s{sT5}, {u * 16384}")
            e("s_mov_b64 exec, -1")
            e.vmem(f"buffer_load_dwordx4 v{vL16}, {WS}, s{sT1} offen sc1 lds")
            e("s_mov_b32 exec_hi, 0xffff")
            e.vmem(f"buffer_load_dwordx4 v{vL16}, {WS}, s{sT1} offen offset:1024 sc1 lds", ("kt", u))
        e("s_mov_b64 exec, -1")
        self.mode_issue(e, 3, vRDY)
        e("s_barrier")
        self.tr(e, "Bk", 2)
        for n in range(4):
            e.lds(f"ds_read_b128 {vr(vRM + 4 * n, 4)}, v11 offset:{32 * n}")
        TORD = [0, 4, 8, 1, 2, 3, 5, 6, 7]
        def frag(o, n):
            kv, i = divmod(n, 18)
            tt, r = TORD[i >> 1], wf + 4 * (n % NR)
            if kv:
                o.lds(f"ds_read_b128 {vr(r, 4)}, v{vKV} offset:{tt * 4096 + 2048 + (i & 1) * 1024}", ("kv", n))
            elif n < self.p["kfast"]:
                for k in range(2):
                    o.lds(f"ds_read_b64 {vr(r + 2 * k, 2)}, v{vKA} offset:{tt * 4096 + (i & 1) * 1024 + 512 * k}", ("kv", n))
            else:
                k = 8 * tt + 2 * (i & 1)
                o.lds(f"ds_read2st64_b64 {vr(r, 4)}, v{vKA} offset0:{k} offset1:{k + 1}", ("kv", n))
        def blk(hb):
            return vS + 16 * TORD[hb >> 1] + 8 * (hb & 1)
        rd = [0, 0]
        def reads(o, upto):
            while rd[0] < min(upto, rd[1]):
                frag(o, rd[0]); rd[0] += 1
        def mm(o, n):
            assert n < rd[0]
            o.wait(ds=("kv", n))
            if n < 18:
                tt = TORD[n >> 1]
                cin = None if n & 1 or tt == 8 else (vr(vS + 112, 16) if tt == 0 else "0")
                self.mf(o, vS + 16 * tt, wf + 4 * (n % NR), vQ + 4 * (n & 1), cin)
            else:
                self.mf(o, aO, wf + 4 * (n % NR), blk(n - 18), "0" if n == 18 else None)
            reads(o, n + NR)
        def expblock(o, hb, slots):
            b = blk(hb)
            for i in range(8):
                o(f"v_exp_f32 v{b + i}, v{b + i}")
                if i in slots: slots[i]()
            for i in range(4):
                o(f"v_cvt_pk_bf16_f32 v{b + i}, v{b + 2 * i}, v{b + 2 * i + 1}")
        BA, BM = self.p["batt"], self.p["bmat"]
        e.wait(vm=("kt", 0))
        self.stamp(e, "Batt_")
        rd[1] = 2; reads(e, 2)
        e.wait(vm=("kt", 1))
        rd[1] = 4; reads(e, 4)
        mm(e, 0); mm(e, 1)
        e.wait(vm=("kt", 2))
        rd[1] = 6; reads(e, 6)
        mm(e, 2)
        nxt = 3
        for hb in range(18):
            if nxt < 18:
                k = min(2, rd[0] - nxt)
                assert (nxt >> 1) > (hb >> 1)
            else:
                k = min(-(-(35 - nxt) // (18 - hb)), hb + 18 - nxt) if hb > BM else 0
            pos = {0: [], 1: [2], 2: [1, 5], 3: [0, 3, 6]}[k]
            expblock(e, hb, {i: (lambda n=nxt + j: mm(e, n)) for j, i in enumerate(pos)})
            nxt += k
            if hb % 3 == 2: self.tr(e, f"e{hb}", 2)
            if hb == BA:
                e("s_barrier")
                self.stamp(e, "Batt")
                rd[1] = 18; reads(e, nxt + NR - 1)
            if hb == BM:
                assert nxt == 18
                self.stamp(e, "sub")
                e("s_barrier")
                self.stamp(e, "Bm")
                rd[1] = 36; reads(e, nxt + NR - 1)
            if hb == self.p["m2"]:
                e("s_barrier")
                self.tr(e, "Bm2", 2)
        assert nxt == 35
        mm(e, 35)
        exact, checked = self.lab("exact"), self.lab("checked")
        x = Stream(); x.role = 0
        x(f"{exact}:")
        masks(x)
        rd[:] = [0, 36]
        reads(x, NR - 1)
        for n in range(18):
            mm(x, n)
        x(f"v_max_f32 v{vM}, v{vS}, v{vS + 1}")
        for i in range(2, 144, 2):
            x(f"v_max3_f32 v{vM}, v{vS + i}, v{vS + i + 1}, v{vM}")
        x(f"v_mov_b32 v{vM + 1}, v{vM}")
        x(f"v_permlane32_swap_b32 v{vM}, v{vM + 1}")
        x(f"v_max_f32 v{vM + 1}, v{vM}, v{vM + 1}")
        for i in range(0, 144, 2):
            x(f"v_pk_add_f32 {vr(vS + i, 2)}, {vr(vS + i, 2)}, {vr(vM + 1, 2)} op_sel_hi:[1,0] neg_lo:[0,1] neg_hi:[0,1]")
        for hb in range(18):
            expblock(x, hb, {})
            mm(x, 18 + hb)
        x(f"v_mov_b32 v{t}, v{aO + 12}"); x(f"v_mov_b32 v{t + 1}, v{aO + 12}")
        x(f"v_permlane32_swap_b32 v{t}, v{t + 1}")
        x("s_nop 1")
        x(f"s_branch {checked}")
        self.tail += x.L
        e(f"s_lshl_b32 s{sT0}, s{sMT}, 4"); e(f"s_add_u32 s{sT0}, s{sT0}, s{sHEAD}"); e(f"s_lshl_b32 s{sT0}, s{sT0}, 11")
        e(f"s_add_u32 s{sT0}, s{sT0}, {WS_O}")
        e(f"s_and_b32 s{sT1}, s{sMT}, 7"); e(f"s_lshl_b32 s{sT1}, s{sT1}, 5"); e(f"s_add_u32 s{sT1}, s{sT1}, s{sHEAD}")
        e(f"s_lshl_b32 s{sT1}, s{sT1}, 2"); e(f"s_add_u32 s{sT1}, s{sT1}, s{sFX}")
        self.stamp(e, "pv")
        self.mode_check(e, 3, vRDY)
        lo, hi = f32(2.0 ** -30), f32(2.0 ** 60)
        e(f"v_mov_b32 v{t}, v{aO + 12}"); e(f"v_mov_b32 v{t + 1}, v{aO + 12}")
        e(f"v_permlane32_swap_b32 v{t}, v{t + 1}")
        e(f"v_subrev_u32 v{t}, {lo}, v{t + 1}")
        e(f"v_cmp_lt_u32 vcc, {0 if self.p['exact'] else hi - lo}, v{t}")
        e(f"s_cbranch_vccnz {exact}")
        e(f"{checked}:")
        e(f"v_rcp_f32 v{t + 1}, v{t + 1}")
        e(f"v_pk_mul_f32 {vr(t + 2, 2)}, {vr(aO, 2)}, {vr(vRM, 2)}")
        for i in range(2, 16, 2):
            e(f"v_pk_fma_f32 {vr(t + 2, 2)}, {vr(aO + i, 2)}, {vr(vRM + i, 2)}, {vr(t + 2, 2)}")
        def scale(r):
            for i in r:
                e(f"v_pk_mul_f32 {vr(aO + i, 2)}, {vr(aO + i, 2)}, {vr(t, 2)} op_sel:[0,1] op_sel_hi:[1,1]")
        ost = lambda i: [f"buffer_store_dwordx4 {vr(vQ + 4 * i, 4)}, v{vL16}, {WS}, s{sT0} offen offset:{1024 * i}"]
        e(f"v_add_f32 v{t + 2}, v{t + 2}, v{t + 3}")
        e(f"v_mov_b32 v{t + 3}, v{t + 2}")
        scale(range(8, 16, 2))
        e(f"v_permlane32_swap_b32 v{t + 2}, v{t + 3}")
        scale(range(0, 8, 2))
        e(f"v_add_f32 v{t + 2}, v{t + 2}, v{t + 3}")
        for i in range(4):
            e(f"v_cvt_pk_bf16_f32 v{vQ + i}, v{aO + 2 * i}, v{aO + 2 * i + 1}")
        e(f"v_fma_f32 v{t + 2}, v{t + 2}, v{t + 1}, v{vMU}")
        self.publish(e, ost(0), wt=self.p["ohwt"] & 1)
        self.split_hi_lo(e, vCP, t + 2)
        for i in range(4, 8):
            e(f"v_cvt_pk_bf16_f32 v{vQ + i}, v{aO + 2 * i}, v{aO + 2 * i + 1}")
        e(f"v_cndmask_b32 v{vQ + 6}, v{vQ + 6}, v{vCP}, {HI}")
        e(f"v_cndmask_b32 v{vQ + 7}, v{vQ + 7}, 0, {HI}")
        self.stamp(e, "att")
        self.publish(e, ost(1), wt=self.p["ohwt"] & 1)
        e(f"v_mov_b32 v{t}, 0"); e(f"v_mov_b32 v{t + 1}, 1")
        e.wait(vm="all")
        e("s_mov_b64 exec, 1")
        self.publish(e, [f"buffer_store_dword v{t + 1}, v{t}, {WS}, s{sT1} offen offset:{FX_F2}"])
        e("s_mov_b64 exec, -1")
        self.stamp(e, "opub")
        if self.stop > 2:
            e(f"s_cmp_ge_u32 s{sJ}, 28"); e("s_cbranch_scc1 L_Ldone")
            self.ffn_setup(e, 0)
            e("s_barrier")
            self.stamp(e, "Bp")
            for op in self.gu_ops(e, WU, L_UP, range(self.p["upe"]), "up"): op()
            for tile in range(self.p["ltouch"]):
                e(f"v_lshlrev_b32 v24, 7, v{vLANE}")
                e(f"s_lshl_b32 s{sT0}, s{sJ}, 4"); e(f"s_add_u32 s{sT0}, s{sT0}, s{sW}"); e(f"s_add_u32 s{sT0}, s{sT0}, {4 * tile}")
                e(f"s_mul_i32 s{sT0}, s{sT0}, {4 * 896}")
                self.touch(e, WD, f"s{sT0}", 28)
            e("s_barrier")
            self.stamp(e, "Bx")
        if self.stop > 3:
            self.ffn_L(e)
        e("L_Ldone:")
        self.finish(e, 0)
        return e

    def ffn_setup(self, e, role):
        self.rows128_src(e, vD, 896, 64, lambda i: 128 * i)
        self.tr_base(e, vP[0], 4, 128, 32)
        e(f"v_bfe_u32 v{t}, v{vLANE}, 3, 1"); e(f"v_lshlrev_b32 v{t}, 6, v{t}")
        e(f"v_xor_b32 v{t + 1}, 64, v{t}")
        e(f"s_mov_b32 s{sT0}, {L_GATE}"); e(f"s_mov_b32 s{sT1}, {L_UP}")
        e(f"v_add3_u32 v{vP[1]}, v{vP[0]}, v{t + 1}, s{sT0}")
        e(f"v_add3_u32 v{vP[2]}, v{vP[0]}, v{t}, s{sT1}")
        e(f"v_add3_u32 v{vP[3]}, v{vP[0]}, v{t + 1}, s{sT1}")
        e(f"v_add3_u32 v{vP[0]}, v{vP[0]}, v{t}, s{sT0}")
        if role == 0:
            self.rows128_src(e, vGA, 3584, 64, lambda i: 8 * i)
        else:
            e(f"v_lshrrev_b32 v{t}, 3, v{vLANE}"); e(f"v_mul_u32_u24 v{t}, {14336 - 1024}, v{t}"); e(f"v_add_u32 v24, v24, v{t}")
        self.w5_base(e)
        e(f"s_mul_i32 s{sT0}, s{sKH}, 14336")
        for k in range(2):
            e(f"v_add_u32 v{vW5[k]}, s{sT0}, v{vW5[k]}")
        e(f"s_xor_b32 s{sT1}, s{sMG}, {2 - 2 * role}"); e(f"s_lshl_b32 s{sT1}, s{sT1}, 1"); e(f"s_add_u32 s{sT1}, s{sT1}, s{sMI}")
        e(f"s_lshl_b32 s{sA5}, s{sG}, 3"); e(f"s_add_u32 s{sA5}, s{sA5}, s{sT1}")
        e(f"s_lshl_b32 s{sT1}, s{sT1}, 5"); e(f"s_mul_i32 s{sT0}, s{sKH}, 14"); e(f"s_add_u32 s{sT1}, s{sT1}, s{sT0}")
        e(f"s_sub_u32 s{sT1}, s{sT1}, s{sHF}"); e(f"s_add_u32 s{sT1}, s{sT1}, 1"); e(f"s_lshl_b32 s{sT1}, s{sT1}, 2")
        e(f"s_add_u32 s{sT1}, s{sT1}, s{sFX}"); e(f"s_add_u32 s{sF4C}, s{sT1}, {FX_F4}")
        e(f"s_mul_i32 s{sWD}, s{sKH}, {896 * 896}"); e(f"s_mul_i32 s{sT0}, s{sMI}, {8 * 896}")
        e(f"s_add_u32 s{sWD}, s{sWD}, s{sT0}"); e(f"s_lshl_b32 s{sT0}, s{sNG}, 7"); e(f"s_add_u32 s{sWD}, s{sWD}, s{sT0}")
        e(f"s_xor_b32 s{sT0}, s{sHF}, 1"); e(f"s_mul_i32 s{sT0}, s{sT0}, {64 * 896}"); e(f"s_add_u32 s{sWD}, s{sWD}, s{sT0}")
        e(f"s_mul_i32 s{sWL}, s{sW}, 7168")
        e(f"s_xor_b32 s{sML}, s{sPAR}, {role}"); e(f"s_lshl_b32 s{sML}, s{sML}, 2"); e(f"s_add_u32 s{sML}, s{sML}, s{sW}")
        e(f"s_lshl_b32 s{sMT}, s{sG}, 3"); e(f"s_add_u32 s{sMT}, s{sMT}, s{sML}")
        e(f"s_lshr_b32 s{sT1}, s{sJ}, 1"); e(f"s_lshl_b32 s{sT1}, s{sT1}, 10")
        for k, dst in enumerate((sACT, sAC2)):
            base, stride = ACTLOC[role][k]
            e(f"s_mul_i32 s{sT0}, s{sMT}, {stride}"); e(f"s_add_u32 s{sT0}, s{sT0}, s{sT1}"); e(f"s_add_u32 s{dst}, s{sT0}, {base}")
        e(f"s_lshl_b32 s{sT0}, s{sML}, 5"); e(f"s_add_u32 s{sT0}, s{sT0}, s{sJ}"); e(f"s_lshl_b32 s{sT0}, s{sT0}, 2")
        e(f"s_add_u32 s{sT0}, s{sT0}, s{sFX}"); e(f"s_add_u32 s{sF4P}, s{sT0}, {FX_F4}")
        e(f"v_lshlrev_b32 v{vPA}, 2, v{vLANE}"); e(f"v_lshlrev_b32 v{vPR}, 3, v{vLANE}")

    def w5_base(self, e, vW5=vW5):
        self.tr_base(e, vW5[0], 4, 128, 32)
        e(f"v_bfe_u32 v{t}, v{vLANE}, 3, 1"); e(f"v_xor_b32 v{t}, s{sKH}, v{t}"); e(f"v_lshlrev_b32 v{t}, 6, v{t}")
        e(f"v_xor_b32 v{t + 1}, 64, v{t}")
        e(f"v_add_u32 v{vW5[1]}, v{vW5[0]}, v{t + 1}")
        e(f"v_add_u32 v{vW5[0]}, v{vW5[0]}, v{t}")

    def gu_ops(self, e, srd, base, cs, tag):
        ops = []
        fake = self.p.get("fake", 0) & (1 if srd == WG else 2)
        if fake: srd = X_
        for c in cs:
            for i in range(2):
                def op(c=c, i=i):
                    if i == 0:
                        e(f"s_add_u32 s{sT2}, s{sG}, {c}"); e(f"s_cmp_ge_u32 s{sT2}, 7"); e(f"s_cselect_b32 s{sT3}, 7, 0")
                        e(f"s_sub_u32 s{sT2}, s{sT2}, s{sT3}"); e(f"s_lshl_b32 s{sT2}, s{sT2}, 2"); e(f"s_add_u32 s{sT2}, s{sT2}, s{sW}")
                        e(f"s_lshl_b32 s{sT3}, s{sT2}, 11"); e(f"s_add_u32 m0, s{sT3}, {base}")
                        e(f"s_mul_i32 s{sT2}, s{sT2}, {16 * 3584}"); e(f"s_lshl_b32 s{sT3}, s{sJ}, 7"); e(f"s_add_u32 s{sT2}, s{sT2}, s{sT3}")
                        if fake:
                            e(f"s_mul_i32 s{sT2}, s{sG}, {256 * 896}"); e(f"s_mul_i32 s{sT3}, s{sW}, {16 * 3584}")
                            e(f"s_add_u32 s{sT2}, s{sT2}, s{sT3}"); e(f"s_add_u32 s{sT2}, s{sT2}, {c * 128}")
                    e.vmem(f"buffer_load_dwordx4 v{vGA[i]}, {srd}, s{sT2} offen offset:{1024 * i} {'nt' if self.p['nt'] & (1 if srd == WG else 2) else ''} lds", tag)
                ops.append(op)
        return ops

    def paced(self, e, ops, depth):
        for i, op in enumerate(ops):
            if i > depth:
                e(f"s_waitcnt vmcnt({depth})")
            op()

    def wd_ops(self, e, qs):
        ops = []
        for q in qs:
            for grp in range(2):
                for i in range(4 - grp):
                    def op(q=q, grp=grp, i=i):
                        if i == 0:
                            e(f"s_add_u32 m0, s{sWL}, {SLOT[q] + 4096 * grp}")
                            e(f"s_add_u32 s{sT2}, s{sWD}, {(16 * q + 512 * grp) * 896}")
                        if self.p.get("fake", 0) & 4:
                            if i == 0:
                                e(f"s_mul_i32 s{sT2}, s{sG}, {8 * 28672}"); e(f"s_add_u32 s{sT2}, s{sT2}, s{sWL}")
                                e(f"s_add_u32 s{sT2}, s{sT2}, {WS_H + q * 28672 + 4096 * grp}")
                            e.vmem(f"buffer_load_dwordx4 v{vL16}, {WS}, s{sT2} offen offset:{1024 * i} sc1 lds", ("wd", q))
                            return
                        e.vmem(f"buffer_load_dwordx4 v{vD[i]}, {WD}, s{sT2} offen offset:{1024 * i} {'nt' if self.p['nt'] & 4 else ''} lds", ("wd", q))
                    ops.append(op)
        return ops

    def wd_dma(self, e, qs):
        for q in qs:
            for op in self.wd_ops(e, [q]):
                op()
            self.tr(e, f"q{q}", 1)

    def h_poll(self, e, between=None):
        e(f"s_lshl_b32 s{sT0}, s{sML}, 7"); e(f"s_add_u32 s{sT0}, s{sT0}, s{sFX}"); e(f"s_add_u32 s{sT0}, s{sT0}, {FX_F3}")
        e(f"s_mul_i32 s{sT4}, s{sMT}, 28672"); e(f"s_add_u32 s{sT4}, s{sT4}, {WS_H}")
        e(f"s_lshl_b32 s{sT5}, s{sMT}, 11"); e(f"s_add_u32 s{sT5}, s{sT5}, {WS_SS}")
        e("s_mov_b64 exec, 0x3fff")
        self.poll(e, vPA, f"s{sT0}", f"v_cmp_ne_u32 vcc, 1, v{vSM}", vSM)
        e("s_mov_b64 exec, -1")

    def h_load(self, e, s):
        e.vmem(f"buffer_load_dwordx4 {vr(vH + 4 * s, 4)}, v{vL16}, {WS}, s{sT4} offen offset:{1024 * (s & 3)} sc1", ("h", s))
        if s & 3 == 3:
            e(f"s_add_u32 s{sT4}, s{sT4}, 4096")

    def ss_load(self, e):
        if not self.p["ssb"]:
            for i in range(7):
                e.vmem(f"buffer_load_dword v{vSS + i}, v{vPA}, {WS}, s{sT5} offen offset:{256 * i} sc1", "ss")
            return
        e(f"s_lshl_b32 s{sT0}, s{sW}, 11"); e(f"s_add_u32 m0, s{sT0}, {SLOT[0] + 8192 * e.role}")
        e(f"v_add_u32 v{vSS + 7}, s{sT0}, v{vPA}")
        self.dma4(e, WS, [vL16] * 2, f"s{sT5}", n=2, tag="ss", fl="sc1")

    def ss_read(self, e):
        e.wait(vm="ss")
        if self.p["ssb"]:
            for i in range(7):
                e.lds(f"ds_read_b32 v{vSS + i}, v{vSS + 7} offset:{SLOT[0] + 8192 * e.role + 256 * i}", "ss")

    KMAJ = [(s, k) for s in range(28) for k in range(2)]
    TMAJ = [(s, k) for k in range(2) for s in range(28)]

    def gu_rd(self, e, mat, order, n):
        s, k = order[n]
        self.trd(e, vRING + 4 * (n % NR), vP[2 * mat + k], 16 * s * 128, 1024, ("g", n))

    def gu_pre(self, e, mat, order):
        for n in range(NR - 1):
            self.gu_rd(e, mat, order, n)

    def gu_pass(self, e, mat, order, accs, hook=None, wait_h=False):
        for n, (s, k) in enumerate(order):
            e.wait(vm=("h", s) if (wait_h and k == 0) else None, ds=("g", n))
            self.mf(e, accs[k], vRING + 4 * (n % NR), vH + 4 * s, "0" if s == 0 else None)
            if n % 8 == 7: self.tr(e, f"m{mat}.{n}", 1)
            if n + NR - 1 < 56:
                self.gu_rd(e, mat, order, n + NR - 1)
            if hook:
                hook(n)

    def gelu_consts(self, e):
        k1 = 2 * math.sqrt(2 / math.pi) * math.log2(math.e)
        e.wait(ds="ss")
        for i in range(3):
            e(f"v_add_f32 v{vSS + i}, v{vSS + i}, v{vSS + 3 + i}")
        e(f"v_add_f32 v{vSS}, v{vSS}, v{vSS + 6}")
        e(f"v_add_f32 v{vSS + 1}, v{vSS + 1}, v{vSS + 2}")
        e(f"v_add_f32 v{vSS}, v{vSS}, v{vSS + 1}")
        e(f"v_mov_b32 v{vSS + 1}, v{vSS}")
        e(f"v_permlane32_swap_b32 v{vSS}, v{vSS + 1}")
        e(f"v_add_f32 v{vSS}, v{vSS}, v{vSS + 1}")
        e(f"v_mul_f32 v{vSS}, {f32(1 / 448)}, v{vSS}")
        e(f"v_add_f32 v{vRI}, {f32(1e-5)}, v{vSS}")
        e(f"v_rsq_f32 v{vSS}, v{vRI}")
        e(f"v_mul_f32 v{vK1}, {f32(-k1)}, v{vSS}")
        e(f"v_mul_f32 v{vSS}, v{vSS}, v{vSS}")
        e(f"v_mul_f32 v{vSS}, {f32(0.044715)}, v{vSS}")
        e(f"v_mul_f32 v{vK2}, v{vSS}, v{vK1}")

    def gelu_gate(self, e, ops=()):
        T = vTMP
        ops = list(ops)
        per = max(-(-len(ops) // 12), self.p["uper"] if e.role == 0 else 1)
        def side():
            for i in range(per):
                if ops: ops.pop(0)()
        for a in range(vACC, vACC + 32, 8):
            self.tr(e, f"g{(a - vACC) // 8}", 1)
            side()
            for i in range(8): e(f"v_mul_f32 v{T + i}, v{a + i}, v{a + i}")
            for i in range(8): e(f"v_fma_f32 v{T + i}, v{T + i}, v{vK2}, v{vK1}")
            for i in range(8): e(f"v_mul_f32 v{T + i}, v{T + i}, v{a + i}")
            side()
            for i in range(8): e(f"v_exp_f32 v{T + i}, v{T + i}")
            for i in range(8): e(f"v_fma_f32 v{T + i}, v{T + i}, v{vRI}, v{vRI}")
            side()
            for i in range(8): e(f"v_rcp_f32 v{T + i}, v{T + i}")
            for i in range(8): e(f"v_mul_f32 v{a + i}, v{T + i}, v{a + i}")
        assert not ops

    def prod_ops(self, e, k):
        g, u = vACC + 16 * k, UACC[k]
        ops = []
        for hf in range(2):
            b = 8 * hf
            for i in range(0, 8, 2):
                ops.append(lambda b=b, i=i: [e(f"v_mul_f32 v{u + b + j}, v{g + b + j}, v{u + b + j}") for j in (i, i + 1)])
            for i in range(0, 4, 2):
                ops.append(lambda b=b, i=i: [e(f"v_cvt_pk_bf16_f32 v{u + b + j}, v{u + b + 2 * j}, v{u + b + 2 * j + 1}") for j in (i, i + 1)])
            def st(b=b, tile=2 * k + hf):
                e(f"s_add_u32 s{sT0}, s{(sACT, sAC2)[k]}, {(tile & 1) * 14336}")
                self.publish(e, [f"buffer_store_dwordx4 {vr(u + b, 4)}, v{vL16}, {WS}, s{sT0} offen"], ("act", tile), wt=e.role == 1 and self.p["swt"])
                self.last_act = ("act", tile)
            ops.append(st)
        return ops

    def up_pass(self, e, flag_at, extra=None):
        ops = self.prod_ops(e, 0)
        def hook(n):
            if n >= 30 and ops: ops.pop(0)()
            if n == flag_at: self.act_flag(e, 2)
            if extra: extra(n)
        self.gu_pass(e, 1, self.TMAJ, UACC, hook)
        assert not ops

    def act_flag(self, e, stage):
        e(f"v_mov_b32 v{vFL}, {stage}")
        self.tr(e, f"F{stage}<", 1)
        e.wait(vm=self.last_act if stage > 1 else "ss")
        self.tr(e, f"F{stage}>", 1)
        e("s_mov_b64 exec, 1")
        self.publish(e, [f"buffer_store_dword v{vFL}, v{vPA}, {WS}, s{sF4P} offen"], "flag")
        if e.role == 1 and stage > 1 and self.p["ptouch"] and self.p["swt"]:
            e("s_mov_b64 exec, 0xffff")
            e.vmem(f"buffer_load_dword v25, v24, {WS}, s{(sACT, sAC2)[stage - 2]} offen sc1")
        e("s_mov_b64 exec, -1")

    def act_sample(self, e):
        e("s_mov_b64 exec, 0x7f")
        e.vmem(f"buffer_load_dword v{vSM}, v{vPR}, {WS}, s{sF4C} offen sc1", "sample")
        e("s_mov_b64 exec, -1")

    def act_check(self, e, stage):
        e.wait(vm="sample")
        e("s_mov_b64 exec, 0x7f")
        self.check_or_poll(e, vPR, f"s{sF4C}", f"v_cmp_gt_u32 vcc, {stage}, v{vSM}", vSM)
        e("s_mov_b64 exec, -1")
        self.tr(e, f"C{stage}", 1)

    def act_ops(self, e, q):
        ops = []
        for s in range(7):
            def op(s=s):
                if s == 0:
                    base, stride = ACTLOC[e.role][q >> 1]
                    e(f"s_mul_i32 s{sT1}, s{sA5}, {stride}"); e(f"s_mul_i32 s{sT0}, s{sKH}, 7168")
                    e(f"s_add_u32 s{sT1}, s{sT1}, s{sT0}"); e(f"s_add_u32 s{sT1}, s{sT1}, {base + (q & 1) * 14336}")
                e.vmem(f"buffer_load_dwordx4 {vr(vH + 28 * q + 4 * s, 4)}, v{vL16}, {WS}, s{sT1} offen offset:{1024 * (s & 3)} sc1", ("a", q, s))
                if s == 3:
                    e(f"s_add_u32 s{sT1}, s{sT1}, 4096")
            ops.append(op)
        return ops

    def act_load(self, e, q):
        for op in self.act_ops(e, q):
            op()
        self.tr(e, f"a{q}", 1)

    def down_order(self):
        o = [(q, s, k) for q in range(4) for s in range(7) for k in range(2)]
        if self.p["dlast"]:
            o = o[:42] + [(3, s, k) for k in (1, 0) for s in range(7)]
        return o

    def down_rd(self, e, n):
        q, s, k = self.down_order()[n]
        if n == 39:
            e.lds(f"ds_read_b64 {vr(vTMP, 2)}, v{vTMP + 2}", "qf")
        if n == 42:
            ok, spin = self.lab("qok"), self.lab("qspin")
            e.wait(ds="qf")
            e(f"v_and_b32 v{vTMP}, v{vTMP}, v{vTMP + 1}"); e(f"v_cmp_ne_u32 vcc, 1, v{vTMP}")
            e(f"s_cbranch_vccz {ok}")
            e(f"{spin}:")
            e(f"ds_read_b64 {vr(vTMP, 2)}, v{vTMP + 2}")
            e(f"s_add_u32 s{sSPIN}, s{sSPIN}, 1")
            e("s_waitcnt lgkmcnt(0)")
            e(f"v_and_b32 v{vTMP}, v{vTMP}, v{vTMP + 1}"); e(f"v_cmp_ne_u32 vcc, 1, v{vTMP}")
            e(f"s_cmp_gt_u32 s{sSPIN}, {SPIN_LIMIT}"); e(f"s_cbranch_scc1 {ok}"); e(f"s_cbranch_vccnz {spin}")
            e(f"{ok}:")
            self.stamp(e, "X3")
        if n % 14 == 0:
            for kk in range(2):
                e(f"v_add_u32 v{vW5t[kk]}, {SLOT[q]}, v{vW5[kk]}")
        self.trd(e, vRING + 4 * (n % NR), vW5t[k], 1024 * s, 7168, ("d", n))

    def done_set(self, e):
        e(f"s_lshl_b32 s{sT0}, s{sW}, 2"); e(f"s_add_u32 s{sT0}, s{sT0}, {L_PF + 32 + 16 * e.role}")
        e(f"v_mov_b32 v{vTMP + 4}, s{sT0}"); e(f"v_mov_b32 v{vTMP + 5}, 1")
        e.lds(f"ds_write_b32 v{vTMP + 4}, v{vTMP + 5}")

    def done_wait(self, e):
        spin, ok = self.lab("dspin"), self.lab("dok")
        e("s_mov_b64 exec, 0xff")
        e(f"{spin}:")
        e(f"ds_read_b32 v{vTMP + 3}, v{vPA} offset:{L_PF + 32}")
        e(f"s_add_u32 s{sSPIN}, s{sSPIN}, 1")
        e("s_waitcnt lgkmcnt(0)")
        e(f"v_cmp_ne_u32 vcc, 1, v{vTMP + 3}")
        e(f"s_cmp_gt_u32 s{sSPIN}, {SPIN_LIMIT}"); e(f"s_cbranch_scc1 {ok}"); e(f"s_cbranch_vccnz {spin}")
        e(f"{ok}:")
        e("s_mov_b64 exec, -1")
        e.ds = []

    def down_pre(self, e):
        e(f"s_lshl_b32 s{sT0}, s{sKH}, 3"); e(f"s_add_u32 s{sT0}, s{sT0}, {L_PF + 16}"); e(f"v_mov_b32 v{vTMP + 2}, s{sT0}")
        for n in range(NR - 1):
            self.down_rd(e, n)

    def down_half(self, e, cinit, hook, va, off):
        def put(i):
            e.lds(f"ds_write_b128 v{va}, {vr(vACC + 16 + 4 * i, 4)} offset:{off + 1024 * i}")
        for n, (q, s, k) in enumerate(self.down_order()):
            e.wait(vm=("a", q, s), ds=("d", n))
            self.mf(e, vACC + 16 * k, vRING + 4 * (n % NR), vH + 28 * q + 4 * s, cinit[k] if n < 2 else None)
            if n % 7 == 6: self.tr(e, f"d{n}", 1)
            if n + NR - 1 < 56:
                self.down_rd(e, n + NR - 1)
            hook(n)
            if self.p["dlast"] and n >= 52: put(n - 52)
        if not self.p["dlast"]:
            for i in range(4): put(i)

    def out_addr(self, e):
        e(f"v_and_b32 v{vXO}, 31, v{vLANE}"); e(f"v_mul_u32_u24 v{vXO}, 896, v{vXO}")
        e(f"v_lshrrev_b32 v{t + 1}, 5, v{vLANE}")
        e(f"v_lshl_add_u32 v{vXO}, v{t + 1}, 4, v{vXO}")
        e(f"s_lshl_b32 s{sT0}, s{sG}, 2"); e(f"s_add_u32 s{sT0}, s{sT0}, s{sMG}"); e(f"s_lshl_b32 s{sT0}, s{sT0}, 1")
        e(f"s_add_u32 s{sT0}, s{sT0}, s{sMI}")
        e(f"s_mul_i32 s{sXO}, s{sT0}, {32 * 896}"); e(f"s_lshl_b32 s{sT1}, s{sNG}, 1"); e(f"s_add_u32 s{sT1}, s{sT1}, s{sKH}")
        e(f"s_lshl_b32 s{sT1}, s{sT1}, 6"); e(f"s_add_u32 s{sXO}, s{sXO}, s{sT1}")

    def first_pass(self, e, pre, extra):
        for s in range(pre):
            self.h_load(e, s)
        self.stamp(e, "hpre")
        ops = [lambda s=s: self.h_load(e, s) for s in range(pre, 28)]
        ops += [lambda: self.ss_load(e)] + extra
        def hook(n):
            if n & 1 == 0 and ops: ops.pop(0)()
        self.gu_pass(e, 0, self.KMAJ, [vACC, vACC + 16], hook, wait_h=True)
        assert not ops

    def ffn_L(self, e):
        A0, A1 = vACC, vACC + 16
        p = self.p
        full = self.stop > 4
        self.gu_pre(e, 0, self.KMAJ)
        self.h_poll(e)
        self.tr(e, "hpoll", 2)
        self.stamp(e, "hpoll")
        e("s_setprio 2")
        self.first_pass(e, p["pre"], [lambda: e("s_barrier")] if p["bh"] else [])
        self.stamp(e, "seg1")
        self.ss_read(e)
        self.act_flag(e, 1)
        vPF = vMU2
        e(f"s_lshl_b32 s{sT0}, s{sW}, 2"); e(f"s_add_u32 s{sT0}, s{sT0}, {L_PF}")
        e(f"v_mov_b32 v{vPF}, s{sT0}"); e(f"v_mov_b32 v{t}, 0")
        e.lds(f"ds_write2_b32 v{vPF}, v{t}, v{t} offset0:0 offset1:4", "pf")
        e.lds(f"ds_write2_b32 v{vPF}, v{t}, v{t} offset0:8 offset1:12", "pf")
        self.gelu_consts(e)
        self.gelu_gate(e, self.gu_ops(e, WU, L_UP, range(p["upe"] + p["ups"], 7), "up"))
        e.wait(vm="up", ds="all")
        self.stamp(e, "gelu1")
        e("s_barrier")
        self.stamp(e, "Bb")
        self.gu_pre(e, 1, self.TMAJ)
        e(f"s_lshl_b32 s{sT4}, s{sJ}, 2"); e(f"s_sub_u32 s{sT4}, s{sF4P}, s{sT4}")
        qops = self.wd_ops(e, [0, 1, 2][p["q0e"]:3 - p["q2s"]]) if full else []
        def extra(n):
            if qops and (n & 1 == 0 and n < 28 or n >= 44): qops.pop(0)()
            if n == 29:
                e("s_mov_b64 exec, 0xfffffff")
                e.vmem(f"buffer_load_dword v{vSM}, v{vPA}, {WS}, s{sT4} offen sc1", "sample")
                e("s_mov_b64 exec, -1")
        self.up_pass(e, p["fl1"], extra)
        assert not qops
        e("s_setprio 0")
        self.stamp(e, "seg3")
        e.wait(vm="sample")
        e("s_mov_b64 exec, 0xfffffff")
        self.check_or_poll(e, vPA, f"s{sT4}", f"v_cmp_eq_u32 vcc, 0, v{vSM}", vSM)
        e("s_mov_b64 exec, -1")
        ops = self.prod_ops(e, 1)
        if full and p["lord"]:
            ops.insert(6, lambda: self.act_sample(e))
        for op in ops: op()
        if not full:
            self.act_flag(e, 3)
            return
        late = self.act_ops(e, 2) + self.act_ops(e, 3)
        if p["lord"]:
            self.act_check(e, 2)
            self.stamp(e, "chk1")
            ops = self.act_ops(e, 0)
            for op in ops[:3]: op()
            self.act_flag(e, 3)
            if not p["bd"]: self.done_set(e)
            for op in ops[3:]: op()
            ops = self.act_ops(e, 1)
            for op in ops[:p["lord"]]: op()
            self.act_sample(e)
            for op in ops[p["lord"]:]: op()
        else:
            self.act_sample(e)
            self.act_flag(e, 3)
            if not p["bd"]: self.done_set(e)
            self.act_check(e, 2)
            self.stamp(e, "chk1")
            self.act_load(e, 0)
            self.act_load(e, 1)
            self.act_sample(e)
        if p["c3at"] < 0:
            self.act_check(e, 3)
            for i in range(-7 * p["c3at"]): late.pop(0)()
        e(f"s_lshl_b32 s{sT0}, s{sW}, 12"); e(f"v_add_u32 v{t}, s{sT0}, v{vL16}"); e(f"v_xor_b32 v{t + 1}, 8192, v{t}")
        e(f"v_add_u32 v{t}, {L_XCH5}, v{t}"); e(f"v_add_u32 v{t + 1}, {L_XCH5}, v{t + 1}")
        e(f"v_add_u32 v{t + 3}, {14336 - 1024}, v{vL16}"); e(f"v_mov_b32 v{vFL}, 1")
        e(f"s_add_u32 s{sT4}, s{sJ}, 14"); e(f"s_cmp_ge_u32 s{sT4}, 28"); e(f"s_cselect_b32 s{sT5}, 28, 0")
        e(f"s_sub_u32 s{sT4}, s{sT4}, s{sT5}"); e(f"s_mul_i32 s{sT3}, s{sMG}, 7")
        e(f"s_lshl_b32 s{sT0}, s{sW}, 2"); e(f"s_add_u32 s{sT0}, s{sT0}, s{sFX}"); e(f"s_add_u32 s{sT0}, s{sT0}, {FX_F6}")
        for dst, j in ((sT5, sJ), (sT4, sT4), (sT3, sT3)):
            e(f"s_lshl_b32 s{dst}, s{j}, 4"); e(f"s_add_u32 s{dst}, s{dst}, s{sT0}")
        self.stamp(e, "Bd_")
        if p["bd"]: e("s_barrier")
        else: self.done_wait(e)
        e("s_setprio 2")
        self.stamp(e, "Bd")
        self.down_pre(e)
        k = max(len(late) - 7, 0)
        late[k:k] = self.wd_ops(e, [3])
        def hook(n):
            if n == p["c3at"]: self.act_check(e, 3)
            if n >= p["c3at"] and late: late.pop(0)()
            if n == p["qfat"]:
                e.wait(vm=("wd", 3))
                e.lds(f"ds_write_b32 v{vPF}, v{vFL} offset:16")
            if n == 27:
                e("s_mov_b64 exec, 1")
                self.publish(e, [f"buffer_store_dword v{vFL}, v{vPA}, {WS}, s{sT5} offen"])
                e("s_mov_b64 exec, -1")
            if n == 46:
                e("s_mov_b64 exec, 0x7f")
                e.vmem(f"buffer_load_dword v{t + 2}, v{vL16}, {WS}, s{sT3} offen sc1", "sample")
                e("s_mov_b64 exec, -1")
        self.down_half(e, ["0", "0"], hook, t, 0)
        e.lds(f"ds_write_b32 v{vPF}, v{vFL}")
        e("s_setprio 0")
        self.stamp(e, "dn")
        e(f"s_mul_i32 s{sT0}, s{sKH}, 7"); e(f"s_add_u32 s{sT0}, s{sT0}, s{sNG}"); e(f"s_lshl_b32 s{sT0}, s{sT0}, 10")
        e(f"s_add_u32 s{sT0}, s{sT0}, {WS_O}")
        e(f"s_lshl_b32 s{sT1}, s{sA5}, 15"); e(f"s_add_u32 s{sT1}, s{sT1}, s{sT0}")
        e(f"s_xor_b32 s{sT2}, s{sA5}, 4"); e(f"s_lshl_b32 s{sT2}, s{sT2}, 15"); e(f"s_add_u32 s{sT2}, s{sT2}, s{sT0}")
        e(f"v_xor_b32 v{vPF}, 8, v{vPF}")
        e.wait(vm="sample")
        e("s_mov_b64 exec, 0x7f")
        self.check_or_poll(e, vL16, f"s{sT3}", f"v_cmp_eq_u32 vcc, 0, v{t + 2}", t + 2)
        e("s_mov_b64 exec, -1")
        spin, got = self.lab("pair"), self.lab("paired")
        e(f"{spin}:")
        e(f"ds_read_b32 v{vSM}, v{vPF}")
        for i in range(4):
            e(f"ds_read_b128 {vr(vH + 4 * i, 4)}, v{t + 1} offset:{1024 * i}")
        e(f"s_add_u32 s{sSPIN}, s{sSPIN}, 1")
        e("s_waitcnt lgkmcnt(0)")
        e(f"v_cmp_ne_u32 vcc, 1, v{vSM}")
        e(f"s_cmp_gt_u32 s{sSPIN}, {SPIN_LIMIT}"); e(f"s_cbranch_scc1 {got}"); e(f"s_cbranch_vccnz {spin}")
        e(f"{got}:")
        e.ds = []
        self.tr(e, "pair", 1)
        for i in range(2):
            for r in range(8 * i, 8 * i + 8):
                e(f"v_add_f32 v{A0 + r}, v{A0 + r}, v{vH + r}")
            for r in range(4 * i, 4 * i + 4):
                e(f"v_cvt_pk_bf16_f32 v{A1 + r}, v{A0 + 2 * r}, v{A0 + 2 * r + 1}")
            self.publish(e, [f"buffer_store_dwordx4 {vr(A1 + 4 * i, 4)}, v{(vL16, t + 3)[i]}, {WS}, s{sT1} offen offset:{1024 * i}"])
        e(f"s_lshl_b32 s{sT0}, s{sW}, 11"); e(f"s_add_u32 m0, s{sT0}, {L_PART}")
        e(f"v_mov_b32 v{vFL}, 2")
        e.wait(vm="all")
        self.tr(e, "pack", 1)
        e("s_mov_b64 exec, 1")
        self.publish(e, [f"buffer_store_dword v{vFL}, v{vPA}, {WS}, s{sT5} offen"])
        self.poll(e, vPA, f"s{sT4}", f"v_cmp_ne_u32 vcc, 2, v{vSM}", vSM)
        e("s_mov_b64 exec, -1")
        self.tr(e, "ppoll", 1)
        self.dma4(e, WS, [vL16, t + 3], f"s{sT2}", n=2, fl="sc1")
        e.wait(vm="all")
        self.tr(e, "Br_", 1)
        e("s_barrier")

    SCHED = ["WX.WX|WWX|WX|WXWX|XQQ|QQQ|QQ|",
             "WX.WX|WWX|WXWX|WX|XQQ|QQQ|QQ|",
             "WXW.X|WWX|WXWX|WX|XQQ|QQQ|QQ|",
             "WXW.X|WWX|WXWX|WX|XQQQ|QQQQ||",
             "WXW.X|WX|WXWWX|WX|XQQQ|QQQQ||",
             "WXW.X|WX|WWX|WXWX|XQQQ|QQQQ||",
             "WXW.|XWX|WWX|WXWX|XQQQ|QQQQ||",
             "WXW.X|WX|WWX|WXWX|XQ|QQ|QQ|QQ",
             "WXW.X|WX|WWX|WXWX|XQQ|QQ|QQ|Q",
             "WXW.X|WWX|WXWX|WX|XQ|QQ|QQ|QQ"]

    def wvis(self):
        out, w = [], 0
        for ch in self.SCHED[self.p["sched"]]:
            if ch == "W": w += 1
            if ch == "X": out.append(w - 1)
        return out

    def role_S(self):
        e = Stream(); e.role = 1
        p = self.p
        vXA, vWA, vQA = [4, 5, 6, 7], [8, 9], 10
        sKX, sWB = sA5, sACT
        e(f"v_lshrrev_b32 v{t + 2}, 3, v{vLANE}"); e(f"v_bfe_u32 v{t}, v{vLANE}, 4, 1"); e(f"v_and_b32 v{t + 3}, 7, v{vLANE}")
        e(f"v_lshlrev_b32 v{t}, 2, v{t}"); e(f"v_xor_b32 v{t}, v{t}, v{t + 3}"); e(f"v_mul_u32_u24 v{t + 1}, 2688, v{t + 2}")
        e(f"v_lshl_add_u32 v{vWA[0]}, v{t}, 4, v{t + 1}"); e(f"v_add_u32 v{vWA[1]}, {8 * 2688 - 1024}, v{vWA[0]}")
        e(f"s_cmp_eq_u32 s{sG}, 7"); e(f"s_cselect_b32 s{sKC}, 0, s{sG}"); e(f"s_mov_b32 s{sKX}, s{sKC}")
        e(f"s_mul_i32 s{sT3}, s{sW}, {16 * 2688}"); e(f"s_add_u32 s{sT0}, s{sHEAD}, 7"); e(f"s_lshl_b32 s{sT0}, s{sT0}, 7")
        e(f"s_add_u32 s{sWB}, s{sT3}, s{sT0}"); e(f"s_cmp_lt_u32 s{sHEAD}, 14"); e(f"s_cselect_b32 s{sWB}, s{sWB}, 0x7f000000")
        e(f"s_lshl_b32 s{sT2}, s{sW}, 11")
        def x_setup():
            e(f"v_mul_u32_u24 v{t + 1}, 896, v{t + 2}")
            e(f"v_lshrrev_b32 v{t}, 1, v{t + 2}")
            e(f"v_xor_b32 v{t}, v{t}, v{t + 3}")
            e(f"v_lshl_add_u32 v{vXA[0]}, v{t}, 4, v{t + 1}")
            e(f"v_xor_b32 v{vXA[1]}, 64, v{vXA[0]}")
            e(f"v_add_u32 v{vXA[2]}, {16 * 896 - 2048}, v{vXA[0]}")
            e(f"v_add_u32 v{vXA[3]}, {24 * 896 - 3072}, v{vXA[1]}")
            e(f"v_add_u32 v{vXA[1]}, {8 * 896 - 1024}, v{vXA[1]}")
            self.ids(e, 0)
            e(f"s_mul_i32 s{sT4}, s{sMT}, {32 * 896}")
            self.srd(e, 8, 84, 2048 * 896)
        e("s_waitcnt lgkmcnt(0)")
        self.srd(e, 12, 86, 448 * 2688)
        def wkv(ic):
            e(f"s_add_u32 m0, s{sT2}, {LC + ic * 8192}")
            e(f"s_mul_i32 s{sT0}, s{sKC}, {64 * 2688}"); e(f"s_add_u32 s{sT0}, s{sT0}, s{sWB}")
            self.dma4(e, WQKV, vWA, f"s{sT0}", n=2)
            self.next_kc(e)
        def xch(ic):
            if ic == 0: x_setup()
            e(f"s_add_u32 m0, s{sT5}, {(ic % 4) * 16384}")
            e(f"s_lshl_b32 s{sT0}, s{sKX}, 7"); e(f"s_add_u32 s{sT0}, s{sT0}, s{sT4}")
            self.dma4(e, X_, vXA, f"s{sT0}", tag=("c", ic))
            self.next_kc(e, sKX)
        def wq(ic):
            e(f"s_lshr_b32 s{sT1}, s{sT2}, 1"); e(f"s_add_u32 m0, s{sT1}, {L_WQ + ic * 4096}")
            e(f"s_mul_i32 s{sT0}, s{sKC}, {64 * 2688}"); e(f"s_add_u32 s{sT0}, s{sT0}, s{sT3}")
            self.dma4(e, WQKV, [vQA], f"s{sT0}", n=1, tag="wq")
            self.next_kc(e)
        sNI = sM2
        def g_touch(c):
            e(f"s_add_u32 s{sT0}, s{sG}, {c}"); e(f"s_cmp_ge_u32 s{sT0}, 7"); e(f"s_cselect_b32 s{sT1}, 7, 0")
            e(f"s_sub_u32 s{sT0}, s{sT0}, s{sT1}"); e(f"s_mul_i32 s{sT0}, s{sT0}, {64 * 3584}"); e(f"s_add_u32 s{sT0}, s{sT0}, s{sNI}")
            self.touch(e, WG, f"s{sT0}", 28)
            e.vm.append(None)
        cnt = dict(W=0, X=0, Q=0, b=0, G=0)
        late = [False]
        def run(chars):
            for ch in chars:
                if ch == "W": wkv(cnt[ch])
                elif ch == "X":
                    assert cnt["X"] < 4 or cnt["b"] >= cnt["X"] - 2
                    xch(cnt[ch])
                elif ch == "Q":
                    assert cnt["W"] == 7
                    wq(cnt[ch])
                elif ch == "G": g_touch(cnt[ch])
                elif ch == "|":
                    ch = "b"
                    e.wait(vm=("c", cnt[ch]))
                    self.tr(e, f"got{cnt[ch]}", 4)
                    self.stamp(e, f"b{cnt[ch]}")
                    e("s_barrier")
                if ch in cnt:
                    if late[0]: self.tr(e, f"{ch}{cnt[ch]}", 4)
                    cnt[ch] += 1
        first, rest = self.SCHED[p["sched"]].split(".")
        run(first)
        self.ids(e, 1)
        self.late_setup(e)
        e(f"s_mul_i32 s{sT0}, s{sHEAD}, 56"); e(f"s_add_u32 s{sT3}, s{sT3}, s{sT0}")
        e(f"v_lshlrev_b32 v24, 7, v{vLANE}")
        self.stamp(e, "start")
        if p["pull"]:
            e(f"s_cmp_ge_u32 s{sJ}, 28"); e("s_cbranch_scc1 L_pull")
            e("L_pulled:")
            self.pull()
        self.rows64_src(e, [vQA], 2688, 0)
        vA, vRA, vRMr = [12, 13, 14, 15], 11, 160
        self.rows128_src(e, vA, 896, 64, lambda i: 8 * i)
        e(f"v_lshrrev_b32 v{vRA}, 3, v{vLANE}"); e(f"v_mul_u32_u24 v{vRA}, 896, v{vRA}")
        e(f"v_and_b32 v{t + 1}, 7, v{vLANE}"); e(f"v_lshl_add_u32 v{vRA}, v{t + 1}, 4, v{vRA}")
        def rm_load(r):
            e(f"s_lshl_b32 s{sT0}, s{sHEAD}, 2"); e(f"s_add_u32 s{sT0}, s{sT0}, s{sW}"); e(f"s_mul_i32 s{sT0}, s{sT0}, {7 * 896}")
            for i in r:
                e.vmem(f"buffer_load_dwordx4 {vr(vRMr + 4 * i, 4)}, v{vRA}, {WO}, s{sT0} offen offset:{128 * i}", "rm")
        def xr_load():
            e(f"s_lshl_b32 s{sT0}, s{sG}, 2"); e(f"s_add_u32 s{sT0}, s{sT0}, s{sMG}"); e(f"s_lshl_b32 s{sT0}, s{sT0}, 2")
            e(f"s_add_u32 s{sT0}, s{sT0}, s{sW}"); e(f"s_mul_i32 s{sT0}, s{sT0}, {16 * 896}")
            e(f"s_lshl_b32 s{sT1}, s{sNG}, 7"); e(f"s_add_u32 s{sT0}, s{sT0}, s{sT1}")
            e(f"s_cmp_lt_u32 s{sJ}, 28"); e(f"s_cselect_b32 s{sT0}, s{sT0}, 0x7f000000")
            e(f"s_add_u32 m0, s{sT2}, {L_XR}")
            self.dma4(e, X_, vA, f"s{sT0}", n=2, tag="rm")
        def o_touch():
            e(f"s_lshl_b32 s{sT0}, s{sG}, 5"); e(f"s_add_u32 s{sT0}, s{sT0}, s{sJ}"); e(f"s_lshl_b32 s{sT0}, s{sT0}, 2")
            e(f"s_add_u32 s{sT0}, s{sT0}, s{sW}"); e(f"s_lshl_b32 s{sT0}, s{sT0}, 11"); e(f"s_add_u32 s{sT0}, s{sT0}, {WS_O}")
            self.touch(e, WS, f"s{sT0}", 16)
        def h_touch():
            e(f"s_lshl_b32 s{sT1}, s{sG}, 5"); e(f"s_add_u32 s{sT1}, s{sT1}, s{sJ}"); e(f"s_lshl_b32 s{sT1}, s{sT1}, 2")
            e(f"s_add_u32 s{sT1}, s{sT1}, s{sW}"); e(f"s_mul_i32 s{sT0}, s{sT1}, {14 * 128}"); e(f"s_add_u32 s{sT0}, s{sT0}, {WS_H}")
            self.touch(e, WS, f"s{sT0}", 14)
            e(f"s_lshl_b32 s{sT0}, s{sT1}, 7"); e(f"s_add_u32 s{sT0}, s{sT0}, {WS_SS}")
            self.touch(e, WS, f"s{sT0}", 1)
        self.rows128_src(e, vGA, 3584, 64, lambda i: 8 * i)
        vV0, vV1, vXL = 16, 17, 21
        e(f"v_and_b32 v{t}, 31, v{vLANE}"); e(f"v_lshrrev_b32 v{t + 1}, 5, v{vLANE}")
        e(f"v_mul_u32_u24 v{vV0}, 7168, v{t + 1}"); e(f"v_lshl_add_u32 v{vV0}, v{t}, 4, v{vV0}")
        e(f"v_add_u32 v{vV1}, {WS_V + 14336 - 3072}, v{vV0}"); e(f"v_add_u32 v{vV0}, {WS_V - 2048}, v{vV0}")
        e(f"v_bfe_u32 v{vXL}, v{vLANE}, 1, 1"); e(f"v_xor_b32 v{vXL}, s{sKH}, v{vXL}"); e(f"v_lshlrev_b32 v{vXL}, 6, v{vXL}")
        e(f"v_lshl_add_u32 v{vXL}, v{t}, 7, v{vXL}"); e(f"v_lshl_add_u32 v{vXL}, v{t + 1}, 3, v{vXL}")
        e(f"s_lshl_b32 s{sT0}, s{sMI}, 12"); e(f"s_add_u32 s{sT0}, s{sT0}, {L_XR}"); e(f"v_add_u32 v{vXL}, s{sT0}, v{vXL}")
        self.w5_base(e, vW5t)
        e(f"s_mul_i32 s{sT0}, s{sKH}, {224 * 128}"); e(f"s_add_u32 s{sT0}, s{sT0}, {L_WO}")
        for k in range(2):
            e(f"v_add_u32 v{vW5t[k]}, s{sT0}, v{vW5t[k]}")
        near = [0, 1, 3, 5, 7, 8, 10, 12]
        tab = sum((near.index(h) if h in near else 15) << (4 * h) for h in range(16))
        e(f"s_mov_b32 s{sNI}, {tab & 0xffffffff}"); e(f"s_mov_b32 s{sNI + 1}, {tab >> 32}"); e(f"s_lshl_b32 s{sT0}, s{sHEAD}, 2")
        e(f"s_lshr_b64 s[{sNI}:{sNI + 1}], s[{sNI}:{sNI + 1}], s{sT0}"); e(f"s_and_b32 s{sT0}, s{sNI}, 15")
        e(f"s_and_b32 s{sNI}, s{sRB}, 1"); e(f"s_lshl_b32 s{sNI}, s{sNI}, 3"); e(f"s_add_u32 s{sNI}, s{sNI}, s{sT0}")
        e(f"s_lshl_b32 s{sNI}, s{sNI}, 2"); e(f"s_add_u32 s{sNI}, s{sNI}, s{sW}"); e(f"s_mul_i32 s{sNI}, s{sNI}, 3584")
        e(f"s_cmp_lt_u32 s{sT0}, 8"); e(f"s_cselect_b32 s{sNI}, s{sNI}, 0x7f000000")
        late[0] = True
        self.tr(e, "setup", 4)
        run(rest)
        e("s_branch L_pgS_skip")
        e("L_page0:")
        e("L_pgS_skip:")
        cnt.pop("G")
        assert cnt == dict(W=7, X=7, Q=7, b=7), cnt
        e(f"s_mul_i32 s{sT4}, s{sMT}, 28672"); e(f"s_mul_i32 s{sT0}, s{sHEAD}, 448"); e(f"s_add_u32 s{sT4}, s{sT4}, s{sT0}")
        aOwn, aOth, vWf, vO = vRES, 224, vH, 160
        e(f"s_lshl_b32 s{sML}, s{sMG}, 1"); e(f"s_add_u32 s{sML}, s{sML}, s{sMI}")
        e(f"s_lshl_b32 s{sMT}, s{sG}, 3"); e(f"s_add_u32 s{sMT}, s{sMT}, s{sML}")
        def wo_dma(grp):
            rows = 32 if grp < 3 else 16
            e(f"s_mul_i32 s{sT0}, s{sW}, {rows * 128}"); e(f"s_add_u32 m0, s{sT0}, {L_WO + grp * 16384}")
            e(f"s_mul_i32 s{sT0}, s{sW}, {rows * 896}"); e(f"s_lshl_b32 s{sT1}, s{sNG}, 7"); e(f"s_add_u32 s{sT0}, s{sT0}, s{sT1}")
            e(f"s_add_u32 s{sT0}, s{sT0}, {grp * 128 * 896}")
            self.dma4(e, WO, vA, f"s{sT0}", n=rows // 8, tag="wo")
        if p["otouch"] == 0:
            o_touch(); h_touch(); e.vm += [None] * 3
        self.visit(e, 1)
        e.wait(vm="wq")
        self.stamp(e, "wq")
        e("s_barrier")
        self.stamp(e, "Bkv")
        gate = self.gu_ops(e, WG, L_GATE, range(7), "gate")
        nogate = self.lab("nogate")
        rm_load(range(7)); xr_load()
        e(f"s_cmp_ge_u32 s{sJ}, 28"); e(f"s_cbranch_scc1 {nogate}")
        self.tr(e, "rmi", 2)
        self.paced(e, gate[:2 * p["g1"]], p["gdep"])
        self.tr(e, "g1i", 2)
        back = self.lab("gated")
        e(f"{back}:")
        tl = Stream(); tl(f"{nogate}:")
        if p["ctouch"] & 1: self.code_touch(tl)
        tl("s_waitcnt vmcnt(0)")
        if p["hoh"] & 1: self.group_touch(tl, WS_O, 128, 2)
        tl(f"s_branch {back}")
        self.pull_code += tl.L
        e("s_waitcnt vmcnt(%d)" % min(p["gdep"] + 1, 2 * p["g1"]))
        for i in range(28):
            acc = t + (i & 1)
            e(f"v_lshlrev_b32 v{t + 2}, 16, v{vRMr + i}"); e(f"v_and_b32 v{t + 3}, 0xffff0000, v{vRMr + i}")
            if i < 2:
                e(f"v_add_f32 v{acc}, v{t + 2}, v{t + 3}")
            else:
                e(f"v_add_f32 v{acc}, v{acc}, v{t + 2}"); e(f"v_add_f32 v{acc}, v{acc}, v{t + 3}")
        e(f"v_add_f32 v{t}, v{t}, v{t + 1}")
        for d in ("quad_perm:[1,0,3,2]", "quad_perm:[2,3,0,1]", "row_half_mirror"):
            e(f"v_add_f32_dpp v{t}, v{t}, v{t} {d} row_mask:0xf bank_mask:0xf")
        e(f"v_mul_f32 v{t}, {f32(1 / 448)}, v{t}")
        e(f"s_mov_b32 s{sM1}, 0"); e(f"s_mov_b32 s{sM1 + 1}, 0xff000000")
        e(f"v_cndmask_b32 v{t}, v{t}, 0, s[{sM1}:{sM1 + 1}]")
        e(f"s_mul_i32 s{sT0}, s{sW}, 7"); e(f"s_add_u32 s{sT1}, s{sW}, 28")
        e(f"v_lshrrev_b32 v{t + 1}, 3, v{vLANE}"); e(f"v_add_u32 v{t + 1}, s{sT0}, v{t + 1}")
        e(f"v_mov_b32 v{t + 2}, s{sT1}")
        e(f"v_cndmask_b32 v{t + 1}, v{t + 1}, v{t + 2}, s[{sM1}:{sM1 + 1}]")
        e(f"v_lshlrev_b32 v{t + 1}, 2, v{t + 1}"); e(f"v_add_u32 v{t + 1}, {L_MISC}, v{t + 1}")
        e.lds(f"ds_write_b32 v{t + 1}, v{t}")
        e.wait(ds="all")
        self.stamp(e, "pre")
        e("s_barrier")
        self.tr(e, "Bk", 2)
        e("s_mov_b32 exec_lo, 0x0fffffff"); e("s_mov_b32 exec_hi, 0x0fffffff")
        for u in range(3):
            e(f"s_sub_u32 s{sT1}, s{sT4}, {(8 - 4 * u) * 28672}")
            if u < 2:
                e(f"s_cmp_ge_u32 s{sRB}, {2 - u}"); e(f"s_cselect_b32 s{sT1}, s{sT1}, 0x7f000000")
            e(f"s_add_u32 m0, s{sT5}, {u * 16384}")
            e.vmem(f"buffer_load_dwordx4 v{vV0}, {WS}, s{sT1} offen offset:2048 sc1 lds", "vt")
            e.vmem(f"buffer_load_dwordx4 v{vV1}, {WS}, s{sT1} offen offset:3072 sc1 lds", "vt")
        e("s_mov_b64 exec, -1")
        def oh_touch():
            if not (p["ohwt"] | p["hoh"]) & 1:
                o_touch(); e.vm += [None]
            if not (p["ohwt"] | p["hoh"]) & 2:
                h_touch(); e.vm += [None] * 2
        self.oh_touch = oh_touch
        e(f"s_cmp_ge_u32 s{sJ}, 28"); e("s_cbranch_scc1 L_helper")
        self.tr(e, "vi", 2)
        for a in range(4):
            e.lds(f"ds_read_b64 {vr(aOth + 2 * a, 2)}, v{vXL} offset:{16 * a}")
        wo_dma(0)
        e.wait(ds="all")
        for i in range(8):
            e(f"v_lshlrev_b32 v{aOwn + 2 * i}, 16, v{aOth + i}")
            e(f"v_and_b32 v{aOwn + 2 * i + 1}, 0xffff0000, v{aOth + i}")
        e(f"v_mov_b32 v{t}, 0xbf80bf80")
        self.tr(e, "Batt_", 2)
        e("s_barrier")
        self.stamp(e, "Batt")
        wo_dma(1); wo_dma(2); wo_dma(3)
        self.tr(e, "wo", 2)
        rest = gate[2 * p["g1"]:]
        if p["otouch"] == 2: self.oh_touch()
        for op in rest[:2 * p["gpre"]]: op()
        e.wait(vm="vt" if p["m2"] >= 0 else "wo")
        self.tr(e, "Bm_", 2)
        e("s_barrier")
        self.stamp(e, "Bm")
        if p["otouch"] == 3: self.oh_touch()
        for op in rest[2 * p["gpre"]:]: op()
        for c in range(p["upa"]):
            e(f"s_add_u32 s{sT0}, s{sG}, {c}"); e(f"s_cmp_ge_u32 s{sT0}, 7"); e(f"s_cselect_b32 s{sT1}, 7, 0")
            e(f"s_sub_u32 s{sT0}, s{sT0}, s{sT1}"); e(f"s_mul_i32 s{sT0}, s{sT0}, 112"); e(f"s_lshl_b32 s{sT1}, s{sJ}, 2")
            e(f"s_add_u32 s{sT0}, s{sT0}, s{sT1}"); e(f"s_add_u32 s{sT0}, s{sT0}, s{sW}"); e(f"s_lshl_b32 s{sT0}, s{sT0}, 11")
            self.touch(e, WU, f"s{sT0}", 16)
            e.vm.append(None)
        self.tr(e, "gi", 2)
        if p["m2"] >= 0:
            e.wait(vm="wo")
            e("s_barrier")
            self.tr(e, "Bm2", 2)
        for st in range(16):
            for k in range(2):
                self.trd(e, vWf + 8 * st + 4 * k, vW5t[k], (28 * (st >> 1) + 16 * (st & 1)) * 128, 1024, None)
        if p["sprio"]: e("s_setprio 1")
        self.mode_issue(e, 3, 22)
        e.wait(ds="all")
        self.tr(e, "wfr", 2)
        for st in range(1, 16, 2):
            for k in range(2):
                r = vWf + 8 * st + 4 * k
                e(f"v_cndmask_b32 v{r + 2}, v{r + 2}, v{t}, {HI}")
                e(f"v_cndmask_b32 v{r + 3}, v{r + 3}, 0, {HI}")
        self.tr(e, "fix", 2)
        self.mode_check(e, 3, 22)
        self.stamp(e, "gu")
        if self.stop > 2:
            self.out_proj(e, aOwn, aOth, vWf, vO)
        if self.stop > 3:
            self.ffn_S(e)
        self.finish(e, 1)
        self.helper(e)
        return e

    def pull(self):
        e = Stream(); e.role = 1
        e("L_pull:")
        e(f"s_lshl_b32 s{sT1}, s{sG}, 2"); e(f"s_add_u32 s{sT1}, s{sT1}, s{sJ}"); e(f"s_sub_u32 s{sT1}, s{sT1}, 28")
        e(f"s_lshl_b32 s{sT1}, s{sT1}, 2"); e(f"s_add_u32 s{sT1}, s{sT1}, s{sW}")
        for u in range(self.p["pull"]):
            srd, half = ((WG, 0), (WG, 1), (WU, 0), (WU, 1), (WD, 0), (WD, 1))[u]
            e(f"s_mul_i32 s{sT0}, s{sT1}, {98 * 128}")
            if half: e(f"s_add_u32 s{sT0}, s{sT0}, {49 * 128}")
            self.touch(e, srd, f"s{sT0}", 49)
        e("s_branch L_pulled")
        self.pull_code = e.L

    def code_touch(self, e):
        lb = self.lab("pc")
        e("s_getpc_b64 s[100:101]")
        e(f"{lb}:")
        e(f"s_sub_u32 s100, s100, {lb}-{NAME}"); e("s_subb_u32 s101, s101, 0")
        e(f"s_sub_u32 s{sT0}, s{sJ}, 28"); e(f"s_lshl_b32 s{sT0}, s{sT0}, 2"); e(f"s_add_u32 s{sT0}, s{sT0}, s{sW}")
        e(f"s_mul_i32 s{sT0}, s{sT0}, 3328")
        e(f"v_add_u32 v25, s{sT0}, v24"); e(f"v_min_u32 v25, L_end-{NAME}-4, v25")
        e("s_mov_b64 exec, 0x3ffffff")
        e("global_load_dword v25, v25, s[100:101] sc1")
        e("s_mov_b64 exec, -1")

    def group_touch(self, e, base, lines, n):
        e(f"s_lshl_b32 s{sT0}, s{sG}, 2"); e(f"s_add_u32 s{sT0}, s{sT0}, s{sJ}"); e(f"s_sub_u32 s{sT0}, s{sT0}, 28")
        e(f"s_lshl_b32 s{sT0}, s{sT0}, 2"); e(f"s_add_u32 s{sT0}, s{sT0}, s{sW}"); e(f"s_mul_i32 s{sT0}, s{sT0}, {lines * 128}")
        e(f"s_add_u32 s{sT0}, s{sT0}, {base}")
        for i in range(n):
            if i: e(f"s_add_u32 s{sT0}, s{sT0}, {lines // n * 128}")
            self.touch(e, WS, f"s{sT0}", lines // n)

    def cold_pull(self, e, srd):
        e(f"s_lshl_b32 s{sT0}, s{sG}, 2"); e(f"s_add_u32 s{sT0}, s{sT0}, s{sJ}"); e(f"s_sub_u32 s{sT0}, s{sT0}, 28")
        e(f"s_lshl_b32 s{sT0}, s{sT0}, 2"); e(f"s_add_u32 s{sT0}, s{sT0}, s{sW}"); e(f"s_mul_i32 s{sT0}, s{sT0}, {98 * 128}")
        self.touch(e, srd, f"s{sT0}", 49); e(f"s_add_u32 s{sT0}, s{sT0}, {49 * 128}"); self.touch(e, srd, f"s{sT0}", 49)

    def helper(self, e):
        e("L_helper:")
        e.vm, e.ds = [], []
        p = self.p
        e("s_barrier")
        if p["otouch"]: self.oh_touch()
        if p["hoh"] & 2:
            self.group_touch(e, WS_H, 112, 2); self.group_touch(e, WS_SS, 8, 1)
            e.vm += [None] * 3
        self.touch(e, WS, f"s{sFX}", 28)
        e(f"s_waitcnt vmcnt({len(e.vm) + 1})")
        e("s_barrier")
        if p["hp2"]: self.cold_pull(e, WD)
        if p["m2"] >= 0: e("s_barrier")
        sHI_ = sKC
        e(f"s_sub_u32 s{sHI_}, s{sJ}, 28"); e(f"s_lshl_b32 s{sHI_}, s{sHI_}, 2"); e(f"s_add_u32 s{sHI_}, s{sHI_}, s{sW}")
        e("s_barrier")
        if p["ctouch"] & 2:
            e("s_waitcnt vmcnt(0)")
            self.code_touch(e)
        if p["hcp"] & 1: self.cold_pull(e, WU)
        if p["hcp"] & 2: self.cold_pull(e, WD)
        for c in range(p["upa"], p["hup"]):
            e(f"s_add_u32 s{sT2}, s{sG}, {c}"); e(f"s_cmp_ge_u32 s{sT2}, 7"); e(f"s_cselect_b32 s{sT3}, 7, 0")
            e(f"s_sub_u32 s{sT2}, s{sT2}, s{sT3}"); e(f"s_lshl_b32 s{sT2}, s{sT2}, 4"); e(f"s_add_u32 s{sT2}, s{sT2}, s{sHI_}")
            e(f"s_mul_i32 s{sT0}, s{sT2}, {4 * 3584}")
            self.touch(e, WU, f"s{sT0}", 56); e(f"s_add_u32 s{sT0}, s{sT0}, {56 * 128}"); self.touch(e, WU, f"s{sT0}", 56)
        if p["hcp"] & 4: self.cold_pull(e, WD)
        def wd_touch(tile):
            for u in range(4):
                e(f"s_add_u32 s{sT2}, s{sHI_}, {16 * u}"); e(f"s_lshl_b32 s{sT0}, s{sG}, 3"); e(f"s_add_u32 s{sT2}, s{sT2}, s{sT0}")
                e(f"s_and_b32 s{sT2}, s{sT2}, 63")
                e(f"s_lshr_b32 s{sT0}, s{sT2}, 1"); e(f"s_mul_i32 s{sT0}, s{sT0}, {64 * 896}")
                e(f"s_and_b32 s{sT2}, s{sT2}, 1"); e(f"s_mul_i32 s{sT2}, s{sT2}, {8 * 896}")
                e(f"s_add_u32 s{sT0}, s{sT0}, s{sT2}"); e(f"s_add_u32 s{sT0}, s{sT0}, {16 * tile * 896}")
                self.touch(e, WD, f"s{sT0}", 56)
        for tile in f"{p['word']:04d}"[:p["hwd"]]:
            wd_touch(int(tile))
        if not p["swt"]:
            e(f"s_lshl_b32 s{sT0}, s{sG}, 4"); e(f"s_add_u32 s{sT0}, s{sT0}, s{sHI_}"); e(f"s_mul_i32 s{sT0}, s{sT0}, 28672")
            e(f"s_add_u32 s{sT0}, s{sT0}, {WS_ACT}")
            for i in range(4):
                self.touch(e, WS, f"s{sT0}", 56); e(f"s_add_u32 s{sT0}, s{sT0}, {56 * 128}")
        if p["ctouch"] & 4:
            e("s_waitcnt vmcnt(0)")
            self.code_touch(e)
        if p.get("trace"): e("s_endpgm")
        else: self.finish(e, 1)

    def out_proj(self, e, aOwn, aOth, vWf, vO):
        e(f"v_lshlrev_b32 v{t}, 2, v{vLANE}")
        e(f"s_lshl_b32 s{sT0}, s{sML}, 2"); e(f"s_add_u32 s{sT0}, s{sT0}, s{sKH}"); e(f"s_lshl_b32 s{sT0}, s{sT0}, 5")
        e(f"s_add_u32 s{sT0}, s{sT0}, s{sFX}")
        e(f"s_lshl_b32 s{sT2}, s{sMT}, 1"); e(f"s_add_u32 s{sT2}, s{sT2}, s{sKH}"); e(f"s_lshl_b32 s{sT2}, s{sT2}, 14")
        e(f"s_add_u32 s{sT2}, s{sT2}, {WS_O}")
        e(f"s_lshl_b32 s{sT1}, s{sNG}, 1"); e(f"s_add_u32 s{sT1}, s{sT1}, s{sKH}")
        e(f"s_mul_i32 s{sT4}, s{sMT}, 14"); e(f"s_add_u32 s{sT4}, s{sT4}, s{sT1}"); e(f"s_lshl_b32 s{sT4}, s{sT4}, 11")
        e(f"s_add_u32 s{sT4}, s{sT4}, {WS_H}")
        e(f"s_lshl_b32 s{sT5}, s{sMT}, 4"); e(f"s_add_u32 s{sT5}, s{sT5}, s{sT1}"); e(f"s_lshl_b32 s{sT5}, s{sT5}, 7")
        e(f"s_add_u32 s{sT5}, s{sT5}, {WS_SS}")
        e(f"s_lshl_b32 s{sT3}, s{sML}, 5"); e(f"s_add_u32 s{sT3}, s{sT3}, s{sT1}"); e(f"s_lshl_b32 s{sT3}, s{sT3}, 2")
        e(f"s_add_u32 s{sT3}, s{sT3}, s{sFX}")
        e("s_mov_b64 exec, 0xff")
        self.poll(e, t, f"s{sT0}", f"v_cmp_ne_u32 vcc, 1, v{t + 1}", t + 1)
        e("s_mov_b64 exec, -1")
        self.stamp(e, "opoll")
        def oload(st):
            e.vmem(f"buffer_load_dwordx4 {vr(vO + 4 * st, 4)}, v{vL16}, {WS}, s{sT2} offen offset:{1024 * (st & 3)} sc1", ("o", st))
            if st & 3 == 3: e(f"s_add_u32 s{sT2}, s{sT2}, 4096")
            if st == 15: e("s_barrier")
        PRE = self.p["opre"]
        for st in range(PRE):
            oload(st)
        e(f"s_lshl_b32 s{sT0}, s{sW}, 12"); e(f"v_add_u32 v{t}, s{sT0}, v{vL16}"); e(f"v_xor_b32 v{t + 1}, 8192, v{t}")
        LAG = self.p["olag"]
        for st in range(16 + LAG):
            if st < 16:
                e.wait(vm=("o", st))
                self.mf(e, aOth, vWf + 8 * st + 4, vO + 4 * st, "0" if st == 0 else None)
                if st + PRE < 16: oload(st + PRE)
            if st >= LAG:
                self.mf(e, aOwn, vWf + 8 * (st - LAG), vO + 4 * (st - LAG))
            if st == 15 + LAG - 1 or LAG == 0 and st == 15:
                self.stamp(e, "omm")
                for i in range(4):
                    e.lds(f"ds_write_b128 v{t}, {vr(aOth + 4 * i, 4)} offset:{LA + 1024 * i}")
        e.wait(ds="all")
        e("s_barrier")
        self.stamp(e, "Bx")
        for i in range(4):
            e.lds(f"ds_read_b128 {vr(aOth + 4 * i, 4)}, v{t + 1} offset:{LA + 1024 * i}", ("x", i))
        PK = vH
        def sq(r):
            if r == 0: e(f"v_pk_mul_f32 {vr(t + 2, 2)}, {vr(aOwn, 2)}, {vr(aOwn, 2)}")
            else: e(f"v_pk_fma_f32 {vr(t + 2, 2)}, {vr(aOwn + r, 2)}, {vr(aOwn + r, 2)}, {vr(t + 2, 2)}")
        for i in range(4):
            e.wait(ds=("x", i))
            for k in (0, 2):
                r = 4 * i + k
                e(f"v_pk_add_f32 {vr(aOwn + r, 2)}, {vr(aOwn + r, 2)}, {vr(aOth + r, 2)}")
            for k in (0, 2):
                r = 4 * i + k
                e(f"v_cvt_pk_bf16_f32 v{PK + r // 2}, v{aOwn + r}, v{aOwn + r + 1}")
            if i & 1:
                self.publish(e, [f"buffer_store_dwordx4 {vr(PK + 2 * (i - 1), 4)}, v{vL16}, {WS}, s{sT4} offen offset:{512 * (i - 1)}"], wt=self.p["ohwt"] & 2)
            sq(4 * i); sq(4 * i + 2)
        self.stamp(e, "hst")
        e(f"v_add_f32 v{t + 2}, v{t + 2}, v{t + 3}")
        e(f"v_mov_b32 v{t + 3}, v{t + 2}")
        e(f"v_lshlrev_b32 v{t}, 2, v{vLANE}")
        e(f"v_permlane32_swap_b32 v{t + 2}, v{t + 3}")
        e(f"v_add_f32 v{t + 2}, v{t + 2}, v{t + 3}")
        e("s_mov_b32 exec_hi, 0")
        self.publish(e, [f"buffer_store_dword v{t + 2}, v{t}, {WS}, s{sT5} offen"], wt=self.p["ohwt"] & 2)
        e("s_mov_b64 exec, -1")
        e(f"v_mov_b32 v{t + 1}, 1"); e(f"v_mov_b32 v{t + 3}, {ONES}"); e(f"v_mov_b32 v{vMU2}, 0")
        for st in range(1, 16, 2):
            e(f"v_dot2c_f32_bf16 v{vMU2}, v{vO + 4 * st + 2}, v{t + 3}")
        e.wait(vm="all")
        e("s_mov_b64 exec, 1")
        self.publish(e, [f"buffer_store_dword v{t + 1}, v{t}, {WS}, s{sT3} offen offset:{FX_F3}"])
        e("s_mov_b64 exec, -1")
        self.stamp(e, "hpub")
        e(f"v_mov_b32 v{t + 3}, v{vMU2}")
        e(f"v_permlane32_swap_b32 v{t + 3}, v{vMU2}")
        for i in range(16):
            e(f"v_add_f32 v{aOwn + i}, v{vMU2}, v{aOwn + i}")
        e(f"s_xor_b32 s{sT0}, s{sW}, 2"); e(f"s_lshl_b32 s{sT0}, s{sT0}, 12"); e(f"v_add_u32 v{t + 1}, s{sT0}, v{vL16}")
        e(f"s_lshl_b32 s{sT0}, s{sW}, 8"); e(f"v_add_u32 v{t}, s{sT0}, v{t}")
        for i in range(4):
            e.lds(f"ds_write_b128 v{t + 1}, {vr(aOwn + 4 * i, 4)} offset:{L_RES + 1024 * i}")
        e.lds(f"ds_write_b32 v{t}, v{vMU2} offset:{L_MU}")

    def ffn_S(self, e):
        p = self.p
        full = self.stop > 4
        self.ffn_setup(e, 1)
        self.out_addr(e)
        self.gu_pre(e, 0, self.KMAJ)
        self.h_poll(e)
        self.paced(e, self.gu_ops(e, WU, L_UP, range(p["upe"], p["upe"] + p["ups"]), "up"), p["udep"])
        if p["q0e"] and full:
            assert not p["ssb"]
            self.wd_dma(e, [0])
        self.stamp(e, "Bh_")
        if p["bh"]: e("s_barrier")
        self.stamp(e, "Bh")
        e("s_setprio 1")
        def bb():
            e.wait(ds="all")
            self.stamp(e, "seg2")
            e("s_barrier")
        if p["cin"]:
            z = Stream(); self.gelu_consts(z)
            part = lambda a, b: (lambda: (e.wait(ds="ss"), [e(l) for l in z.L[a:b]]))
            extra = [lambda: self.ss_read(e), lambda: self.act_flag(e, 1), part(0, 6), lambda: (bb(), part(6, 11)()), part(11, 99)]
            self.first_pass(e, p["spre"], [lambda: None] * (p["spre"] - 6) + extra)
            self.stamp(e, "Bb")
        else:
            self.first_pass(e, p["spre"], [lambda: None] * (p["spre"] - 4) + [lambda: self.ss_read(e), bb])
            self.stamp(e, "Bb")
            self.act_flag(e, 1)
            self.gelu_consts(e)
        qops = self.wd_ops(e, [2]) if full and p["q2s"] else []
        while qops and p["q2at"] == -2: qops.pop(0)()
        if p["q2at"] == -3:
            self.gelu_gate(e, qops); qops = []
        else:
            self.gelu_gate(e)
        while qops and p["q2at"] < 0: qops.pop(0)()
        self.gu_pre(e, 1, self.TMAJ)
        self.stamp(e, "gelu2")
        def extra(n):
            if qops and n >= p["q2at"] and n & 1 == 0: qops.pop(0)()
            if n == 52 and full:
                e.wait(vm=("wd", 2), ds="all")
                self.stamp(e, "seg4")
                if p["bd"]: e("s_barrier")
                else: self.done_set(e)
        self.up_pass(e, -1, extra)
        self.stamp(e, "Bd")
        ops = self.prod_ops(e, 1)
        for op in ops[:6]: op()
        self.act_flag(e, 2)
        for op in ops[6:]: op()
        if not full:
            self.act_flag(e, 3)
            return
        A0, A1 = vACC, vACC + 16
        e(f"s_lshl_b32 s{sT0}, s{sW}, 12"); e(f"v_add_u32 v{t}, s{sT0}, v{vL16}"); e(f"v_xor_b32 v{t + 1}, 8192, v{t}")
        e(f"s_xor_b32 s{sT0}, s{sW}, 2"); e(f"s_lshl_b32 s{sT0}, s{sT0}, 8"); e(f"v_add_u32 v{t + 3}, s{sT0}, v{vPA}")
        for i in range(4):
            e.lds(f"ds_read_b128 {vr(A0 + 4 * i, 4)}, v{t + 1} offset:{L_RES + 1024 * i}")
        e.lds(f"ds_read_b32 v{vMU2}, v{t + 3} offset:{L_MU}")
        e(f"s_lshl_b32 s{sT0}, s{sW}, 11"); e(f"s_add_u32 s{sT0}, s{sT0}, {L_PART}"); e(f"v_add_u32 v{t + 2}, s{sT0}, v{vL16}")
        self.act_sample(e)
        e.wait(ds="all")
        for i in range(16):
            e(f"v_add_f32 v{A0 + i}, v{vMU2}, v{A0 + i}")
        self.act_flag(e, 3)
        self.act_check(e, 2)
        self.act_load(e, 0)
        self.act_sample(e)
        self.act_load(e, 1)
        if not p["bd"]: self.done_wait(e)
        self.down_pre(e)
        late = self.act_ops(e, 2) + self.act_ops(e, 3)
        def hook(n):
            if n == 0: self.act_check(e, 3)
            if n & 1 == 0 and late: late.pop(0)()
        self.down_half(e, [None, "0"], hook, t + 1, L_RES)
        self.stamp(e, "dn")
        e.wait(ds="all")
        e("s_barrier")
        self.tr(e, "Br", 1)
        P1, P2 = UACC[0], UACC[1]
        for i in range(4):
            if i & 1 == 0:
                e.lds(f"ds_read_b128 {vr(P2 + 2 * i, 4)}, v{t + 2} offset:{512 * i}", ("p", i))
            e.lds(f"ds_read_b128 {vr(A1 + 4 * i, 4)}, v{t} offset:{L_RES + 1024 * i}", ("x", i))
        PK = vH
        for i in range(4):
            e.wait(ds=("p", i))
            for k in (0, 2):
                r = 4 * i + k
                e(f"v_lshlrev_b32 v{P1 + r}, 16, v{P2 + r // 2}"); e(f"v_and_b32 v{P1 + r + 1}, 0xffff0000, v{P2 + r // 2}")
            e.wait(ds=("x", i))
            for src in (A1, P1):
                for k in (0, 2):
                    r = 4 * i + k
                    e(f"v_pk_add_f32 {vr(A0 + r, 2)}, {vr(A0 + r, 2)}, {vr(src + r, 2)}")
            for k in (0, 2):
                r = 4 * i + k
                e(f"v_cvt_pk_bf16_f32 v{PK + r // 2}, v{A0 + r}, v{A0 + r + 1}")
            if i & 1:
                b = PK + 2 * (i - 1)
                e(f"v_permlane32_swap_b32 v{b}, v{b + 2}")
                e(f"v_permlane32_swap_b32 v{b + 1}, v{b + 3}")
                e.vmem(f"buffer_store_dwordx4 {vr(b, 4)}, v{vXO}, {OUT}, s{sXO} offen offset:{16 * (i - 1)}")

    def build(self):
        e = Stream()
        self.prologue(e)
        S = self.role_S()
        L = self.role_L()
        cs, cl = S.L.index("L_page0:"), L.L.index("L_setup_end:")
        body = (e.L + S.L[:cs] + ["L_roleL:"] + L.L[:cl] + S.L[cs:] + L.L[cl:] + ["L_tail:"] + self.tail
                + ["L_exit:", "s_endpgm", "L_end:"])
        at = body.index("L_pgS_skip:")
        body[at:at] = self.pull_code
        body, nops = pad_hazards(body)
        vis = [f"L_visit{g}_{w}:" for g in range(2) for w in range(4)]
        body, n = paginate(body + vis, NAME, "L_page0", "L_tail", self.p["align"])
        body = body[:len(body) - len(vis)]
        pos = {k: body.index(f"L_pg{k}:") for k in range(n)}
        l0, l1 = body.index("L_setup_end:"), body.index("L_qdone:")
        groups = [[f"L_pg{k}" for k in range(n) if l0 < pos[k] < l1], [f"L_pg{k}" for k in range(n) if not l0 < pos[k] < l1]]
        alias = {}
        for g, pg in enumerate(groups):
            for w in range(4):
                chain = pg[w::4] + [f"L_visit{g}_back"]
                alias[f"L_visit{g}_{w}"] = chain[0]
                for x, y in zip(chain, chain[1:]):
                    alias[x + "_next"] = y
        def fix(l):
            parts = l.split()
            return f"{parts[0]} {alias[parts[1]]}" if len(parts) == 2 and parts[1] in alias else l
        body = [fix(l) for l in body]
        head = open("sequential_preLN__sliding_block__geglu_ffn__prompt.s.ref").read().splitlines()
        cm = [l for l in head if l.startswith(";") and "@launch" not in l]
        out = cm + ["; @launch grid=(256,1,1) block=(512,1,1) lds=163840",
                    '.amdgcn_target "amdgcn-amd-amdhsa--gfx950"', ".text", f".globl {NAME}", ".p2align 12", ".p2align 8",
                    f".type {NAME},@function", f"{NAME}:"]
        out += [("" if l.endswith(":") else "    ") + l for l in body]
        out += ['.section .rodata,"a"', ".p2align 6", f".amdhsa_kernel {NAME}",
                "  .amdhsa_next_free_vgpr 256", "  .amdhsa_next_free_sgpr 102", "  .amdhsa_accum_offset 256",
                "  .amdhsa_group_segment_fixed_size 0", "  .amdhsa_kernarg_size 80", "  .amdhsa_user_sgpr_count 2",
                "  .amdhsa_user_sgpr_kernarg_segment_ptr 1", "  .amdhsa_system_sgpr_workgroup_id_x 1",
                ".end_amdhsa_kernel", ""]
        self.nops = nops
        return "\n".join(out)

if __name__ == "__main__":
    import argparse
    ap = argparse.ArgumentParser()
    ap.add_argument("-o", default="sequential_preLN__sliding_block__geglu_ffn__prompt.s")
    ap.add_argument("--stop", type=int, default=99)
    ap.add_argument("--stamps", action="store_true")
    ap.add_argument("--slow", action="store_true")
    ap.add_argument("-p", action="append", default=[])
    a = ap.parse_args()
    kw = {k: int(v) for k, v in (x.split("=") for x in a.p)}
    g = Gen(a.stop, a.stamps, a.slow, **kw)
    s = g.build()
    open(a.o, "w").write(s)
    print("lines", s.count("\n"), "nops", g.nops)
```

```python
import math, struct, sys
from asmlib import Stream, vr, sr, pad_hazards, paginate

NAME = "sequential_preLN__sliding_block__geglu_ffn__prompt_kernel"
MB = 1 << 20
WS_K, WS_V, WS_O, WS_H, WS_SS, WS_ACT = 0, 2 * MB, 4 * MB, 6 * MB, 6 * MB + 1792 * 1024, 8 * MB
WS_F1, WS_FX, WS_STAMP, WS_SIZE = 16 * MB, 16 * MB + 131072, 17 * MB, 18 * MB
FX_F2, FX_F3, FX_F4, FX_F6, FX_F0 = 0, 1024, 2048, 3072, 3584
LA, LB, LC = 0, 49152, 106496
L_WQ, L_MISC = LB + 16384, LB + 45056
L_GATE, L_UP, L_WO = LC, LB, LB
SLOT = [LA + 20480, LC, LC + 28672, LB]
L_RES, L_MU, L_PF, L_XCH5, L_PART = LA, LA + 16384, LA + 17408, LB + 28672, LB + 28672 + 16384
L_CS, L_XR = L_MISC + 1024, L_MISC + 4096
ACTLOC = [[(WS_O, 32768), (WS_H, 28672)], [(WS_ACT, 57344), (WS_ACT + 28672, 57344)]]
X_, WQKV, WO, WG, WU, WD, OUT, DBG, WS = (sr(b, 4) for b in (8, 12, 16, 20, 24, 28, 32, 36, 40))
sXO = 3
sG, sJ, sW, sHEAD, sRB, sXCC, sMODE, sSPIN = 44, 45, 46, 48, 49, 50, 51, 52
sT0, sT1, sT2, sT3, sT4, sT5, sA5 = 53, 54, 55, 56, 57, 58, 59
sHI, sM1, sM2, sM3 = 60, 62, 64, 66
sMT, sKC, sPAR, sML, sMG, sNG, sKH, sMI, sHF, sFX, sACT, sWD = range(68, 80)
sF4P, sF4C, sAC2 = sHEAD, sRB, sKC
sWL = sM1
sST = 80
vLANE, vL16 = 1, 2
vH, vACC, vRING, vTMP, vSS, vRES = 32, 144, 192, 220, 228, 240
vD, vP, vW5 = [4, 5, 6, 7], [8, 9, 10, 11], [12, 13]
vK1, vK2, vRI, vMU2, vW5t, vXO = 14, 15, 16, 17, [18, 19], 20
vPA, vPR, vSM, vFL, vGA = 21, 22, 23, 3, [30, 31]
UACC = [vACC + 32, vRES]
t = 26
NR = 7
BIG = 0xF149F2CA
ONES = 0x3F803F80
SPIN_LIMIT = 0x400000
HI = f"s[{sHI}:{sHI + 1}]"

def f32(x):
    return struct.unpack("<I", struct.pack("<f", x))[0]

class Gen:
    def __init__(self, stop=99, stamps=False, force_slow=False, **kw):
        self.stop, self.stamps, self.force_slow = stop, stamps, force_slow
        self.p = dict(f1_at=16, rot=0, sched=0, pull=0, act_wt=1, pre=12, spre=14, opre=5, hwd=0,
                      g1=4, gdep=3, m2at=17, otouch=3, upe=0, ups=2, udep=3, s2at=-14, hp1=0, hp2=0, hup=7, fl1=53, align=1, tlb=0, ksplit=1, ctouch=0, ohwt=0, outfl=0, wb=0, ssb=1, ptouch=0, swt=1, c3at=2, uper=1, word=3210, q2s=1, x3at=42, hcp=4, upa=0, ltouch=0, bmat=10, exact=0, qk0=3, sprio=1, gpre=2, bh=1, lord=0, sord=1, q2at=8, q0e=0, pages=2, ft=0, nt=0, hoh=2, olag=3, dlast=1, batt=2, m2=14, kfast=10, qfat=28, cin=1, bd=1, bq=10, hg0=0, hg1=0, hg2=0, glate=0, rmat=1, gs=1, gb=3, dot=1, dgrp=2)
        self.p.update(kw)
        self.tail = []
        self.trn = ([], [])
        self.pull_code = []
        self.nlab = 0

    def lab(self, n):
        self.nlab += 1
        return f"L_{n}_{self.nlab}"

    PROF = {
        0: (["start", "b0", "kv", "Bkv", "q", "f1", "Batt", "att", "opub", "hpoll", "seg1", "Bb", "Bd", "X3"],
            ["start", "Bkv", "pre", "Bm", "gu", "opoll", "Bx", "hpub", "Bh", "Bb", "Bd"]),
        1: (["start", "hpoll", "seg1", "gelu1", "Bb", "seg3", "chk1", "Bd_", "Bd", "X3", "dn"],
            ["Bh_", "Bh", "hpre", "seg2", "Bb", "gelu2", "seg4", "Bd", "X3_", "dn"]),
        2: (["start", "f1", "Batt_", "Batt", "sub", "Bm", "pv", "att", "opub", "Bp", "Bx", "hpoll"],
            ["Bkv", "pre", "Batt", "Bm", "gu", "opoll", "omm", "Bx", "hst", "hpub", "Bh"]),
        3: (["start", "b0", "b1", "b2", "b3", "b4", "b5", "b6", "kv", "kvst", "Bkv", "fl1", "f1", "Batt", "entry"],
            ["start", "b0", "b1", "b2", "b3", "b4", "b5", "b6", "wq", "Bkv", "pre", "Batt", "-", "-", "entry"]),
    }

    LEAK = [None, "end", "start", "b0", "Bkv", "Batt", "opub", "hpoll", "Bb", "Bd", "f1", "kv"]

    def tr(self, e, name, zone):
        if not self.stamps or self.p.get("trace") != zone:
            return
        names = self.trn[e.role]
        k = len(names)
        if k >= 63: return
        names.append(name)
        e(f"s_memtime s[{82 + 2 * (k % 4)}:{83 + 2 * (k % 4)}]")
        if k >= 2:
            e(f"v_writelane_b32 v0, s{82 + 2 * ((k - 2) % 4)}, {k - 2}")

    ZONE = dict(hpoll=1, hpre=1, seg1=1, gelu1=1, Bb=1, seg3=1, chk1=1, Bd_=1, Bd=1, X3=1, X5=1, X6=1, X7=1, dn=1, Bh_=1, Bh=1,
                seg2=1, gelu2=1, seg4=1, fl2=1, X3_=1, X5_=1, X6_=1, X7_=1,
                start=3, b0=3, b1=3, b2=3, b3=3, b4=3, b5=3, b6=3, kv=3, wq=3)

    def stamp(self, e, name):
        if self.p.get("trace"):
            self.tr(e, name, self.ZONE.get(name, 2))
            return
        if e.role == 0 and name == self.LEAK[self.p.get("leak", 0)]:
            e("s_memrealtime s[82:83]")
        names = self.PROF[self.p.get("prof", 0)][e.role]
        if self.stamps and (name == "end" or name in names):
            i = 15 if name == "end" else names.index(name)
            e(f"{'s_memtime' if self.p.get('cyc') else 's_memrealtime'} s[{sST + 18}:{sST + 19}]")
            e("s_waitcnt lgkmcnt(0)")
            e(f"s_mov_b32 s{sST + i}, s{sST + 18}")
            e.ds = []

    def finish(self, e, role):
        if self.p.get("leak") and role == 0 and False:
            self.stamp(e, "end")
            lp, sk = self.lab("leak"), self.lab("noleak")
            e(f"s_cmp_ge_u32 s{sJ}, 28"); e(f"s_cbranch_scc1 {sk}")
            e("s_memrealtime s[84:85]"); e("s_waitcnt lgkmcnt(0)")
            e("s_sub_u32 s82, s82, s80")
            e(f"{lp}:")
            e("s_memrealtime s[86:87]"); e("s_waitcnt lgkmcnt(0)")
            e("s_sub_u32 s86, s86, s84"); e("s_cmp_lt_u32 s86, s82"); e(f"s_cbranch_scc1 {lp}")
            e(f"{sk}:")
        if self.stamps and self.p.get("trace"):
            self.tr(e, "end", self.p["trace"])
            k = len(self.trn[role])
            e("s_waitcnt lgkmcnt(0)")
            for i in (k - 2, k - 1):
                e(f"v_writelane_b32 v0, s{82 + 2 * (i % 4)}, {i}")
            e("s_mov_b64 exec, -1")
            e(f"s_lshl_b32 s{sT0}, s2, 3"); e(f"s_add_u32 s{sT0}, s{sT0}, s{sW}"); e(f"s_add_u32 s{sT0}, s{sT0}, {4 * role}")
            e(f"s_lshl_b32 s{sT0}, s{sT0}, 8"); e(f"s_add_u32 s{sT0}, s{sT0}, {WS_STAMP}")
            e(f"v_lshlrev_b32 v3, 2, v{vLANE}")
            e(f"buffer_store_dword v0, v3, {WS}, s{sT0} offen")
        elif self.stamps:
            self.stamp(e, "end")
            e("s_mov_b64 exec, -1")
            e(f"s_lshl_b32 s{sT0}, s2, 3"); e(f"s_add_u32 s{sT0}, s{sT0}, s{sW}"); e(f"s_add_u32 s{sT0}, s{sT0}, {4 * role}")
            e(f"s_lshl_b32 s{sT0}, s{sT0}, 6"); e(f"s_add_u32 s{sT0}, s{sT0}, {WS_STAMP}")
            e("s_waitcnt vmcnt(0)")
            for i in range(16):
                e(f"v_mov_b32 v{32 + i}, s{sST + i}")
            e("v_mov_b32 v3, 0"); e("s_mov_b64 exec, 1")
            for i in range(4):
                e(f"buffer_store_dwordx4 {vr(32 + 4 * i, 4)}, v3, {WS}, s{sT0} offen offset:{16 * i}")
        e("s_endpgm")

    def poll(self, e, vaddr, soff, cmp, vt, srd=WS):
        a, b = self.lab("poll"), self.lab("polled")
        e(f"{a}:")
        e(f"buffer_load_dword v{vt}, v{vaddr}, {srd}, {soff} offen sc1")
        e(f"s_add_u32 s{sSPIN}, s{sSPIN}, 1")
        e("s_waitcnt vmcnt(0)")
        e(cmp)
        e(f"s_cmp_gt_u32 s{sSPIN}, {SPIN_LIMIT}")
        e(f"s_cbranch_scc1 {b}")
        e(f"s_cbranch_vccnz {a}")
        e(f"{b}:")
        e.vm = []

    def check_or_poll(self, e, vaddr, soff, cmp, vt, srd=WS, rare=False):
        late, ok = self.lab("late"), self.lab("ok")
        e(cmp)
        tl = Stream()
        self.poll(tl, vaddr, soff, cmp, vt, srd)
        if rare:
            e(f"s_cbranch_vccnz {late}")
            self.tail += [f"{late}:"] + tl.L + [f"s_branch {ok}"]
        else:
            e(f"s_cbranch_vccz {ok}")
            e.L += tl.L
        e(f"{ok}:")

    def publish(self, e, stores, tag="pub", wt=False):
        if wt:
            for s in stores:
                e.vmem(s + " sc1", tag)
            return
        slow, done = self.lab("slow"), self.lab("pubd")
        e(f"s_cmp_eq_u32 s{sMODE}, 0")
        e(f"s_cbranch_scc1 {slow}")
        for s in stores:
            e.vmem(s, tag)
        e(f"{done}:")
        self.tail += [f"{slow}:"] + [s + " sc1" for s in stores] + [f"s_branch {done}"]

    def mode_issue(self, e, va, vt):
        e(f"v_lshlrev_b32 v{va}, 2, v{vLANE}"); e(f"v_add_u32 v{va}, {FX_F0}, v{va}")
        e("s_mov_b32 exec_hi, 0")
        e.vmem(f"buffer_load_dword v{vt}, v{va}, {WS}, s{sFX} offen sc1", "mode")
        e("s_mov_b64 exec, -1")

    def mode_check(self, e, va, vt):
        e.wait(vm="mode")
        e("s_mov_b32 exec_hi, 0")
        self.check_or_poll(e, va, f"s{sFX}", f"v_cmp_eq_u32 vcc, 0, v{vt}", vt)
        e(f"v_cmp_ne_u32 vcc, s{sXCC}, v{vt}")
        e("s_mov_b64 exec, -1")
        e("s_cmp_eq_u64 vcc, 0"); e(f"s_cselect_b32 s{sMODE}, {0 if self.force_slow else 1}, 0")

    def touch(self, e, srd, soff, nl, va=24, vt=25):
        if nl < 64:
            m = (1 << nl) - 1
            e(f"s_mov_b32 exec_lo, {m & 0xffffffff}"); e(f"s_mov_b32 exec_hi, {m >> 32}")
        e(f"buffer_load_dword v{vt}, v{va}, {srd}, {soff} offen sc1")
        if nl < 64:
            e("s_mov_b64 exec, -1")

    def dma4(self, e, srd, vas, soff, n=4, tag=None, fl=""):
        for i in range(n):
            e.vmem(f"buffer_load_dwordx4 v{vas[i]}, {srd}, {soff} offen offset:{1024 * i} {fl} lds", tag)

    def next_kc(self, e, r=sKC):
        e(f"s_add_u32 s{r}, s{r}, 1"); e(f"s_cmp_eq_u32 s{r}, 7"); e(f"s_cselect_b32 s{r}, 0, s{r}")

    def tr_base(self, e, vd, hmul, stride, nhmul):
        e(f"v_lshrrev_b32 v{vd}, 5, v{vLANE}")
        e(f"v_mul_u32_u24 v{vd}, {hmul}, v{vd}")
        e(f"v_bfe_u32 v{t}, v{vLANE}, 2, 2")
        e(f"v_add_u32 v{vd}, v{vd}, v{t}")
        e(f"v_mul_u32_u24 v{vd}, {stride}, v{vd}")
        e(f"v_bfe_u32 v{t}, v{vLANE}, 4, 1")
        e(f"v_mul_u32_u24 v{t}, {nhmul}, v{t}")
        e(f"v_add_u32 v{vd}, v{vd}, v{t}")
        e(f"v_and_b32 v{t}, 3, v{vLANE}")
        e(f"v_lshl_add_u32 v{vd}, v{t}, 3, v{vd}")

    def rows128_src(self, e, vas, rowstride, partmul, rowof):
        v = vas[0]
        e(f"v_lshrrev_b32 v{v}, 3, v{vLANE}")
        e(f"v_mul_u32_u24 v{v}, {rowstride}, v{v}")
        e(f"v_lshrrev_b32 v{t}, 2, v{vLANE}")
        e(f"v_lshrrev_b32 v{t + 1}, 4, v{vLANE}")
        e(f"v_xor_b32 v{t}, v{t}, v{t + 1}")
        e(f"v_and_b32 v{t}, 1, v{t}")
        e(f"v_mul_u32_u24 v{t}, {partmul}, v{t}")
        e(f"v_add_u32 v{v}, v{v}, v{t}")
        e(f"v_and_b32 v{t}, 3, v{vLANE}")
        e(f"v_lshl_add_u32 v{v}, v{t}, 4, v{v}")
        for i in range(1, len(vas)):
            e(f"v_add_u32 v{vas[i]}, {rowof(i) * rowstride - 1024 * i}, v{v}")

    def rows64_src(self, e, vas, rowstride, gx):
        v = vas[0]
        e(f"v_lshrrev_b32 v{v}, 2, v{vLANE}")
        e(f"v_mul_u32_u24 v{v}, {rowstride}, v{v}")
        e(f"v_and_b32 v{t}, 3, v{vLANE}")
        if gx:
            e(f"v_xor_b32 v{t}, {gx}, v{t}")
        e(f"v_lshl_add_u32 v{v}, v{t}, 4, v{v}")
        for i in range(1, len(vas)):
            e(f"v_add_u32 v{vas[i]}, {16 * i * rowstride - 1024 * i}, v{v}")

    @staticmethod
    def trd(e, dst, vaddr, off0, step, tag):
        e.lds(f"ds_read_b64_tr_b16 {vr(dst, 2)}, v{vaddr} offset:{off0}", tag)
        e.lds(f"ds_read_b64_tr_b16 {vr(dst + 2, 2)}, v{vaddr} offset:{off0 + step}", tag)

    @staticmethod
    def mf(e, d, a, b, c=None):
        e(f"v_mfma_f32_32x32x16_bf16 {vr(d, 16)}, {vr(a, 4)}, {vr(b, 4)}, {vr(d, 16) if c is None else c}")

    @staticmethod
    def mf8(e, d, a, b, c=None):
        e(f"v_mfma_f32_32x32x8_bf16 {vr(d, 16)}, {vr(a, 2)}, {vr(b, 2)}, {vr(d, 16) if c is None else c}")

    @staticmethod
    def mf4(e, d, a, b, first):
        e(f"v_mfma_f32_4x4x4_16b_bf16 {vr(d, 4)}, {vr(a, 2)}, {vr(b, 2)}, {'0' if first else vr(d, 4)}")

    def psum(self, e, d, a, b, first, dot):
        if not dot:
            return self.mf4(e, d, a, b, first)
        if first: e(f"v_mov_b32 v{d}, 0")
        for i in range(2):
            e(f"v_dot2c_f32_bf16 v{d}, v{a + i}, v{b + i}")

    @staticmethod
    def split_hi_lo(e, dst, c):
        e(f"v_cvt_pk_bf16_f32 v{dst + 1}, v{c}, v{c}")
        e(f"v_and_b32 v{t}, 0xffff0000, v{dst + 1}")
        e(f"v_sub_f32 v{t}, v{c}, v{t}")
        e(f"v_cvt_pk_bf16_f32 v{dst}, v{c}, v{t}")

    def visit(self, e, grp):
        for w in range(4):
            if self.p["pages"] >> grp & 1:
                e(f"s_cmp_eq_u32 s{sW}, {w}"); e(f"s_cbranch_scc1 L_visit{grp}_{w}")
        e(f"L_visit{grp}_back:")

    def prologue(self, e):
        e(f"s_cmp_ge_u32 s2, {0 if self.stop == 0 else 256}")
        e("s_cbranch_scc1 L_exit")
        if self.stamps and not self.p.get("trace"):
            e(f"{'s_memtime' if self.p.get('cyc') else 's_memrealtime'} s[80:81]")
        e("s_load_dwordx16 s[84:99], s[0:1], 0")
        e("s_load_dwordx4 s[4:7], s[0:1], 64")
        e("v_lshrrev_b32 v3, 6, v0")
        e(f"v_and_b32 v{vLANE}, 63, v0")
        e(f"v_readfirstlane_b32 s47, v3")
        e(f"s_and_b32 s{sG}, s2, 7"); e(f"s_bfe_u32 s{sHEAD}, s2, 0x40003")
        e(f"s_and_b32 s{sW}, s47, 3")
        e("s_cmp_lt_u32 s47, 4")
        e("s_cbranch_scc1 L_roleL")

    def first_touch(self, e):
        e(f"s_lshl_b32 s{sT0}, s{sG}, 5"); e(f"s_lshr_b32 s{sT1}, s2, 3"); e(f"s_add_u32 s{sT0}, s{sT0}, s{sT1}")
        e(f"s_lshl_b32 s{sT2}, s{sW}, 3"); e(f"s_lshr_b32 s{sT2}, {56 | 13 << 8 | 13 << 16 | 13 << 24}, s{sT2}"); e(f"s_and_b32 s{sT2}, s{sT2}, 63")
        e(f"s_cmp_eq_u32 s{sW}, 3"); e(f"s_cselect_b32 s{sT0}, s{sT1}, s{sT0}")
        e(f"s_mul_i32 s{sT0}, s{sT0}, s{sT2}")
        e(f"v_add_u32 v3, s{sT0}, v{vLANE}")
        e("v_mul_u32_u24 v15, 9363, v3"); e("v_lshrrev_b32 v15, 16, v15")
        e(f"s_cmp_eq_u32 s{sW}, 1"); e(f"s_cselect_b32 s{sT0}, 14, 0")
        e(f"v_mad_u32_u24 v3, v15, s{sT0}, v3"); e("v_lshlrev_b32 v3, 7, v3")
        e(f"s_bfm_b64 exec, s{sT2}, 0")
        e("s_getpc_b64 s[100:101]")
        e("L_pc:")
        e(f"s_mov_b32 s{sT3}, L_tail-L_pc")
        for w, src, n in ((0, 84, 2048 * 896), (1, 86, 448 * 2688), (2, 88, 448 * 896)):
            e(f"s_cmp_eq_u32 s{sW}, {w}"); e(f"s_cselect_b64 s[100:101], s[{src}:{src + 1}], s[100:101]")
            e(f"s_cselect_b32 s{sT3}, {n - 4}, s{sT3}")
        e(f"v_min_u32 v3, s{sT3}, v3")
        e("global_load_dword v15, v3, s[100:101]")
        e("s_mov_b64 exec, -1")

    def ids(self, e, part):
        if part == 0:
            e(f"s_lshr_b32 s{sT1}, s2, 7"); e(f"s_lshl_b32 s{sRB}, s{sG}, 1"); e(f"s_add_u32 s{sRB}, s{sRB}, s{sT1}")
            e(f"s_lshl_b32 s{sMT}, s{sRB}, 2"); e(f"s_add_u32 s{sMT}, s{sMT}, s{sW}")
            e(f"s_lshl_b32 s{sT5}, s{sW}, 12")
            return
        e(f"s_lshr_b32 s{sT1}, s2, 7")
        e(f"s_cmp_lt_u32 s{sHEAD}, 14"); e(f"s_cselect_b32 s{sT0}, 14, 2"); e(f"s_cselect_b32 s{sJ}, 0, 14")
        e(f"s_mul_i32 s{sT0}, s{sT0}, s{sT1}"); e(f"s_add_u32 s{sJ}, s{sJ}, s{sT0}"); e(f"s_add_u32 s{sJ}, s{sJ}, s{sHEAD}")
        e(f"s_lshl_b32 s{sFX}, s{sG}, 12"); e(f"s_add_u32 s{sFX}, s{sFX}, {WS_FX}")
        e(f"v_lshlrev_b32 v{vL16}, 4, v{vLANE}")
        self.srd(e, 40, 6, WS_SIZE); self.srd(e, 36, 4, 256)

    @staticmethod
    def srd(e, b, src, n):
        e(f"s_mov_b64 s[{b}:{b + 1}], s[{src}:{src + 1}]")
        e(f"s_mov_b32 s{b + 2}, {n}"); e(f"s_mov_b32 s{b + 3}, 0x20000")

    def late_setup(self, e, last=True):
        for b, src, n in ((16, 88, 448 * 896), (20, 92, 448 * 3584), (24, 94, 448 * 3584), (28, 96, 1792 * 896), (32, 98, 2048 * 896)):
            e(f"s_mov_b64 s[{b}:{b + 1}], s[{src}:{src + 1}]")
            e(f"s_mov_b32 s{b + 2}, {n}"); e(f"s_mov_b32 s{b + 3}, 0x20000")
        e(f"s_mul_i32 s{sMG}, s{sJ}, 37"); e(f"s_lshr_b32 s{sMG}, s{sMG}, 8")
        e(f"s_mul_i32 s{sT0}, s{sMG}, 7"); e(f"s_sub_u32 s{sNG}, s{sJ}, s{sT0}")
        e(f"s_and_b32 s{sPAR}, s{sJ}, 1")
        e(f"s_and_b32 s{sMI}, s{sW}, 1"); e(f"s_lshr_b32 s{sKH}, s{sW}, 1"); e(f"s_lshr_b32 s{sHF}, s{sMG}, 1")
        e(f"s_mov_b32 s{sSPIN}, 0")
        e(f"s_mov_b32 s{sHI}, 0"); e(f"s_mov_b32 s{sHI + 1}, -1")
        e(f"s_getreg_b32 s{sXCC}, hwreg(HW_REG_XCC_ID, 0, 4)"); e(f"s_or_b32 s{sXCC}, s{sXCC}, 0x100")
        if self.stamps and last:
            e(f"s_mov_b32 s{sST + 14}, s80")
            for i in range(14):
                e(f"s_mov_b32 s{sST + i}, 0")

    def kv_pass(self, e, kind, R):
        wf, cf = vRING, R["PK"]
        a0, a1 = vACC, vACC + 16
        XS, XQ, C0, C1 = R["XS"], R["XQ"], R["C0"], R["C1"]
        vW0, vW1, vC0, vC1, vXR, vONE = R["vW0"], R["vW1"], R["vC0"], R["vC1"], R["vXR"], R["vONE"]
        vMU, vRS, vNM, vCP, vOH, PK = R["vMU"], R["vRS"], R["vNM"], R["vCP"], R["vOH"], R["PK"]
        aR = PK
        z = Stream()
        if kind:
            for k in range(2):
                z(f"v_add_f32 v{cf + 4 * k}, v{cf + 4 * k}, v{cf + 4 * k + 1}")
                z(f"v_add_f32 v{cf + 4 * k + 2}, v{cf + 4 * k + 2}, v{cf + 4 * k + 3}")
            z(f"v_add_f32 v{C0}, v{cf}, v{cf + 2}"); z(f"v_add_f32 v{C1}, v{cf + 4}, v{cf + 6}")
        z(f"v_add_f32 v{XS}, v{XS}, v{XS + 8}")
        dot = self.p["dot"] & 1
        for i in range(1 if dot else 4):
            z(f"v_add_f32 v{XQ + i}, v{XQ + i}, v{XQ + 8 + i}")
        if not dot:
            z(f"v_cndmask_b32 v{XQ}, v{XQ}, v{XQ + 1}, s[{sM1}:{sM1 + 1}]")
            z(f"v_cndmask_b32 v{XQ}, v{XQ}, v{XQ + 2}, s[{sM2}:{sM2 + 1}]")
            z(f"v_cndmask_b32 v{XQ}, v{XQ}, v{XQ + 3}, s[{sM3}:{sM3 + 1}]")
        if kind: self.split_hi_lo(z, C0 + 2, C0)
        z(f"v_permlane32_swap_b32 v{XS}, v{XQ}")
        z(f"v_add_f32 v{XS}, v{XS}, v{XQ}")
        z(f"v_mov_b32 v{XQ}, v{XS}")
        if kind: self.split_hi_lo(z, C1 + 2, C1)
        z(f"v_permlane32_swap_b32 v{XS}, v{XQ}")
        z(f"v_mul_f32 v{vMU}, {f32(1 / 448)}, v{XS}")
        z(f"v_mul_f32 v{XQ}, {f32(1 / 448)}, v{XQ}")
        z(f"v_cvt_pk_bf16_f32 v{vNM}, -v{vMU}, -v{vMU}")
        z(f"v_fma_f32 v{XQ}, -v{vMU}, v{vMU}, v{XQ}")
        z(f"v_and_b32 v{t}, 0xffff0000, v{vNM}")
        z(f"v_max_f32 v{XQ}, 0, v{XQ}")
        z(f"v_add_f32 v{t}, v{vMU}, v{t}")
        z(f"v_add_f32 v{XQ}, {f32(1e-5)}, v{XQ}")
        z(f"v_cvt_pk_bf16_f32 v{vNM + 1}, -v{t}, 0")
        z(f"v_rsq_f32 v{vRS}, v{XQ}")
        chain = list(z.L)
        vis = self.wvis()
        grp = self.p["dgrp"]
        queue, st = [], dict(w=0, c=0, m=0, b=-1, done=-1)
        def rd(tag, text):
            queue.append((tag, text))
        def refill():
            while kind and st["w"] <= min(st["done"] + 4, 27) and st["w"] >> 2 <= vis[st["b"]]:
                n = st["w"]; st["w"] += 1
                for k, va in enumerate((vW0, vW1)):
                    for i in range(2):
                        rd(("w", n, k), f"ds_read_b64_tr_b16 {vr(wf + 8 * (n % 4) + 4 * k + 2 * i, 2)}, v{va} offset:{16 * n * 128 + 512 * i}")
        def issue(k):
            for i in range(k):
                if queue:
                    tag, text = queue.pop(0); e.lds(text, tag)
                elif st["b"] == 6 and st["chain"] and chain:
                    e(chain.pop(0))
        def need(*tags):
            while any(q[0] in tags for q in queue): issue(1)
            last = [x for x in e.ds if x in tags]
            if last: e.wait(ds=last[-1])
        def barrier(c):
            if kind == "K": self.tr(e, f"a{c}", 4)
            e("s_barrier")
            if kind == "K": self.tr(e, f"b{c}", 4)
            self.stamp(e, f"b{c}")
            st["b"] = c
            xs = [(("x", 4 * c + s), f"ds_read_b128 {vr(vH + 16 * c + 4 * s, 4)}, v{vXR[s]} offset:{(c % 4) * 16384}") for s in range(4)]
            queue.extend(xs if c == 6 else xs[:2])
            refill()
            if c < 6: queue.extend(xs[2:])
            if kind and c == 6:
                for k in range(2):
                    rd("cs", f"ds_read_b128 {vr(cf + 4 * k, 4)}, v{R['vCR']} offset:{1024 * k}")
            while kind and st["c"] <= vis[c] and st["c"] < st["m"] + 2:
                cc = st["c"]; st["c"] += 1
                for k, va in enumerate((vC0, vC1)):
                    for i in range(2):
                        rd(("c", cc), f"ds_read_b64_tr_b16 {vr(cf + 8 * (cc & 1) + 4 * k + 2 * i, 2)}, v{va} offset:{64 * cc * 128 + 512 * i}")
        st["chain"] = False
        barrier(0)
        issue(10)
        for n in range(28):
            c, s = divmod(n, 4)
            if n == 21:
                e("s_mov_b64 exec, 3")
                e.vmem(f"buffer_load_dword v{R['vRDY']}, v{R['vRA']}, {DBG}, 0 offen sc1")
                e("s_mov_b64 exec, -1")
            nst = (4 if s == 0 else 0) if c == 6 or (grp == 4 and c > 0) else (2 if s & 1 == 0 else 0)
            if nst == 0 and s == 2 and c < 6:
                if kind and c == 5: need("csw")
                barrier(c + 1)
            if nst:
                small = []
                for i in range(2 * nst):
                    x = vH + 4 * n + 2 * i
                    small += [(XS + 8 * (i & 1), vONE, x, n == 0 and i < 2), (XQ + 8 * (i & 1), x, x, n == 0 and i < 2)]
                tags = [("x", n + i) for i in range(nst)]
                if kind and s == (2 if c == 0 else 0):
                    i = 0
                    while st["m"] < st["c"]:
                        cc = st["m"]; st["m"] += 1
                        tags.append(("c", cc))
                        b = cf + 8 * (cc & 1)
                        for m in ((C0, vONE, b, cc == 0), (C1, vONE, b + 4, cc == 0), (C0, vONE, b + 2, False), (C1, vONE, b + 6, False)):
                            small.insert(min(2 * i, len(small)), m); i += 1
                first = small[:]
                need(*tags)
                if s == 2 and c < 6 and c > 0:
                    if kind and c == 5:
                        assert st["m"] == 7
                        need("csw")
                    barrier(c + 1)
                for m in small:
                    if self.p.get("fk", 0) & 1 and n >= 4 and m[0] not in (C0, C1): continue
                    self.psum(e, *m, dot)
                    if not dot: issue(self.p["gs"])
                if n == 2: barrier(1)
            if n == 24:
                need("cs"); st["chain"] = True
            if kind:
                x, w0 = vH + 4 * n, wf + 8 * (n % 4)
                for k, acc in enumerate((a0, a1)):
                    need(("w", n, k))
                    A, B = (w0 + 4 * k, x) if kind == "K" else (x, w0 + 4 * k)
                    fk = self.p.get("fk", 0)
                    if fk & 2 and n >= 4: e("s_nop 3")
                    elif fk & 16 and n >= 4:
                        for i in range(2):
                            e(f"v_mfma_f32_16x16x32_bf16 {vr(acc + 4 * i + 8 * (n & 1), 4)}, {vr(A, 4)}, {vr(B, 4)}, {vr(acc + 4 * i + 8 * (n & 1), 4)}")
                    else: self.mf(e, acc, A, B, "0" if n == 0 else None)
                    if fk & 8: e("s_nop 7")
                    if k == 0 and st["m"] == 7 and st.get("wrote") is None:
                        e.lds(f"ds_write2st64_b32 v{R['vCS']}, v{C0}, v{C1} offset0:0 offset1:4", "csw")
                        st["wrote"] = True
                    if k == 0:
                        st["done"] = n - 1; refill()
                    issue(self.p["gb"] if queue else 5)
        assert not queue
        self.stamp(e, "kv")
        if kind == "K": self.tr(e, "kv", 4)
        for l in chain: e(l)
        if kind == "K":
            self.mf8(e, a0, C0 + 2, vNM); self.mf8(e, a1, C1 + 2, vNM)
            e(f"s_mul_i32 s{sT0}, s{sMT}, 28672"); e(f"s_lshl_b32 s{sT1}, s{sHEAD}, 12"); e(f"s_add_u32 s{sT0}, s{sT0}, s{sT1}")
            e(f"v_and_b32 v{t}, 15, v{vLANE}"); e(f"v_bfe_u32 v{t + 1}, v{vLANE}, 4, 1"); e(f"v_lshlrev_b32 v{t + 1}, 9, v{t + 1}")
            e(f"v_lshl_add_u32 v{t + 1}, v{t}, 4, v{t + 1}"); e(f"v_lshrrev_b32 v{t}, 5, v{vLANE}")
            e(f"v_lshl_add_u32 v{t + 1}, v{t}, 8, v{t + 1}")
        if kind == "V":
            self.mf8(e, a0, vNM, C0 + 2)
            self.split_hi_lo(e, vCP, vRS)
            self.mf8(e, aR, vCP, vOH, "0")
            self.mf8(e, a1, vNM, C1 + 2)
            e(f"s_mul_i32 s{sT0}, s{sMT}, 28672"); e(f"s_lshl_b32 s{sT1}, s{sHEAD}, 10"); e(f"s_add_u32 s{sT0}, s{sT0}, s{sT1}")
            e(f"s_add_u32 s{sT0}, s{sT0}, {WS_V - 7 * 1024}"); e(f"s_add_u32 s{sT1}, s{sT0}, 14336")
        if kind:
            out = wf
            for k, acc in enumerate((a0, a1)):
                for hf in range(2):
                    b, o = acc + 8 * hf, out + 8 * k + 4 * hf
                    for i in range(0, 8, 2):
                        if kind == "K":
                            e(f"v_pk_mul_f32 {vr(b + i, 2)}, {vr(b + i, 2)}, {vr(vMU, 2)} op_sel:[0,1] op_sel_hi:[1,1]")
                        else:
                            e(f"v_pk_mul_f32 {vr(b + i, 2)}, {vr(b + i, 2)}, {vr(aR + 8 * hf + i, 2)}")
                    for i in range(4):
                        e(f"v_cvt_pk_bf16_f32 v{o + i}, v{b + 2 * i}, v{b + 2 * i + 1}")
                    if kind == "K":
                        e(f"v_permlane16_swap_b32 v{o}, v{o + 2}"); e(f"v_permlane16_swap_b32 v{o + 1}, v{o + 3}")
                        e.vmem(f"buffer_store_dwordx4 {vr(o, 4)}, v{t + 1}, {WS}, s{sT0} offen offset:{(8 * k + 4 * hf) * 256} sc1")
                    else:
                        e.vmem(f"buffer_store_dwordx4 {vr(o, 4)}, v{R['vVA']}, {WS}, s{(sT0, sT1)[hf]} offen offset:{512 * k} sc1")

    def role_L(self):
        e = Stream(); e.role = 0
        vCS, vRA, vC0, vC1, vCR, vXR, vW0, vW1, vWQ, vRDY = 3, 4, 5, 6, 7, [8, 9, 10, 11], 12, 13, 14, 15
        vONE, vOH, vMU, vRS, vNM, vCP, vVA = 16, 18, 20, 21, 22, 24, 30
        aQ = vACC + 32
        wf = vRING
        XS, XQ, C0, C1, PK = aQ, aQ + 4, 232, 236, 240
        R = dict(locals())
        e("s_waitcnt lgkmcnt(0)")
        if self.p["ft"] == 0: self.first_touch(e)
        self.ids(e, 1)
        for i in range(4): e(f"v_mov_b32 v{32 + i}, 0")
        nolead = self.lab("nolead")
        e(f"s_lshl_b32 s{sT0}, s{sJ}, 2"); e(f"s_add_u32 s{sT0}, s{sT0}, s{sW}")
        e(f"s_cmp_lg_u32 s{sT0}, {28 * 4}"); e(f"s_cbranch_scc1 {nolead}")
        e(f"v_lshlrev_b32 v{t}, 7, v{vLANE}")
        e(f"s_lshl_b32 s{sT0}, s{sG}, 14"); e(f"s_add_u32 s{sT0}, s{sT0}, {WS_F1}"); e(f"s_add_u32 s{sT1}, s{sT0}, 8192")
        for base in (sT0, sT1):
            e(f"buffer_store_dword v32, v{t}, {WS}, s{base} offen sc1")
        for i in range(4):
            e(f"buffer_store_dwordx4 v[32:35], v{vL16}, {WS}, s{sFX} offen offset:{1024 * i} sc1")
        e(f"s_lshl_b32 s{sT0}, s{sG}, 2"); e("v_mov_b32 v36, 1")
        e("s_waitcnt vmcnt(0)")
        e("s_mov_b64 exec, 1")
        e(f"buffer_store_dword v36, v32, {DBG}, s{sT0} offen sc1")
        e("s_mov_b64 exec, -1")
        e(f"{nolead}:")
        self.ids(e, 0)
        if self.p.get("fake"): self.srd(e, 8, 84, 2048 * 896)
        if self.p["ft"] == 1: self.first_touch(e)
        self.late_setup(e)
        self.stamp(e, "start")
        e(f"v_and_b32 v{t}, 31, v{vLANE}")
        e(f"v_lshlrev_b32 v{vVA}, 4, v{t}")
        e(f"v_lshlrev_b32 v{t + 1}, 7, v{t}")
        e(f"v_add_u32 v{t + 1}, s{sT5}, v{t + 1}")
        e(f"v_bfe_u32 v{t}, v{vLANE}, 1, 3")
        e(f"v_lshrrev_b32 v{t + 2}, 5, v{vLANE}")
        e(f"v_mul_u32_u24 v{t + 3}, 7168, v{t + 2}"); e(f"v_add_u32 v{vVA}, v{vVA}, v{t + 3}")
        e(f"v_xor_b32 v{t}, v{t}, v{t + 2}")
        for s in range(4):
            e(f"v_xor_b32 v{t + 2}, {2 * s}, v{t}")
            e(f"v_lshl_add_u32 v{vXR[s]}, v{t + 2}, 4, v{t + 1}")
        self.tr_base(e, vW0, 8, 128, 32)
        e(f"v_bfe_u32 v{t}, v{vLANE}, 3, 1")
        e(f"v_lshlrev_b32 v{t}, 6, v{t}")
        e(f"v_add_u32 v{vW0}, {LC}, v{vW0}")
        e(f"v_xor_b32 v{t + 1}, 64, v{t}")
        e(f"v_add_u32 v{vW1}, v{vW0}, v{t + 1}")
        e(f"v_add_u32 v{vW0}, v{vW0}, v{t}")
        e(f"s_lshl_b32 s{sT0}, s{sW}, 11")
        e(f"v_add_u32 v{vC0}, s{sT0}, v{vW0}"); e(f"v_add_u32 v{vC1}, s{sT0}, v{vW1}")
        e(f"v_add_u32 v{vCR}, {L_CS}, v{vL16}")
        e(f"s_lshl_b32 s{sT0}, s{sW}, 2"); e(f"v_add_u32 v{vCS}, s{sT0}, v{vCR}")
        self.tr_base(e, vWQ, 8, 64, 32)
        e(f"v_add_u32 v{vWQ}, {L_WQ}, v{vWQ}")
        e(f"v_mov_b32 v{vONE}, {ONES}"); e(f"v_mov_b32 v{vONE + 1}, {ONES}")
        e(f"v_cndmask_b32 v{vOH}, v{vONE}, 0, {HI}"); e(f"v_mov_b32 v{vOH + 1}, 0")
        for m, val in ((sM1, 0x22222222), (sM2, 0x44444444), (sM3, 0x88888888)):
            e(f"s_mov_b32 s{m}, {val}"); e(f"s_mov_b32 s{m + 1}, {val}")
        e(f"v_and_b32 v{vRA}, 1, v{vLANE}"); e(f"v_min_u32 v{vRA}, s{sG}, v{vRA}")
        e(f"v_sub_u32 v{vRA}, s{sG}, v{vRA}"); e(f"v_lshlrev_b32 v{vRA}, 2, v{vRA}")
        self.tr(e, "setup", 4)
        self.visit(e, 0)
        lv, ln, lj = self.lab("formV"), self.lab("formN"), self.lab("kvjoin")
        e(f"s_cmp_ge_u32 s{sHEAD}, 14"); e(f"s_cbranch_scc1 {ln}")
        e(f"s_cmp_ge_u32 s{sHEAD}, 7"); e(f"s_cbranch_scc1 {lv}")
        e("s_branch L_formK")
        e("L_setup_end:")
        for kind, lb in (("K", "L_formK"), ("V", lv), (None, ln)):
            e(".newpage")
            e(f"{lb}:")
            e.vm, e.ds = [], []
            self.kv_pass(e, kind, R)
            if kind: e(f"s_branch {lj}")
        e(f"{lj}:")
        e.ds = []
        self.stamp(e, "kvst")
        self.tr(e, "kvst", 4)
        e(f"s_lshl_b32 s{sT4}, s{sMT}, 4"); e(f"s_add_u32 s{sT0}, s{sT4}, s{sHEAD}"); e(f"s_lshl_b32 s{sT0}, s{sT0}, 7")
        e(f"s_add_u32 s{sT2}, s{sT0}, {WS_F1}")
        e(f"v_mov_b32 v{t + 2}, 0"); e(f"v_mov_b32 v{t + 3}, 1")
        def kv_flag():
            e.wait(vm="all")
            nof0 = self.lab("nof0")
            e("s_mov_b64 exec, 3")
            self.check_or_poll(e, vRA, "0", f"v_cmp_ne_u32 vcc, 1, v{vRDY}", vRDY, srd=DBG, rare=True)
            e("s_mov_b64 exec, 1")
            e.vmem(f"buffer_store_dword v{t + 3}, v{t + 2}, {WS}, s{sT2} offen sc1")
            e(f"s_cmp_lg_u32 s{sW}, 0"); e(f"s_cbranch_scc1 {nof0}")
            e(f"v_mov_b32 v{vRDY}, s{sXCC}")
            e(f"s_lshl_b32 s{sT0}, s{sJ}, 2"); e(f"s_add_u32 s{sT0}, s{sT0}, s{sFX}")
            e(f"buffer_store_dword v{vRDY}, v{t + 2}, {WS}, s{sT0} offen offset:{FX_F0} sc1")
            e(f"{nof0}:")
            e("s_mov_b64 exec, -1")
            self.stamp(e, "fl1")
        if self.p["f1_at"] < 0:
            kv_flag()
        e("s_barrier")
        self.stamp(e, "Bkv")
        vS, aO, vRM, vM = vH, vACC + 32, vRES, 5
        vKA, vKV, vV0, vV1, vPO, vPZ = 7, 8, 9, 10, 224, 228
        side = Stream()
        side(f"v_add_u32 v{vKV}, s{sT5}, v{vL16}")
        side(f"v_and_b32 v{vKA}, 15, v{vLANE}"); side(f"v_lshlrev_b32 v{vKA}, 4, v{vKA}")
        side(f"v_bfe_u32 v9, v{vLANE}, 4, 1"); side(f"v_lshl_add_u32 v{vKA}, v9, 3, v{vKA}")
        side(f"v_lshrrev_b32 v9, 5, v{vLANE}"); side(f"v_lshl_add_u32 v{vKA}, v9, 8, v{vKA}"); side(f"v_add_u32 v{vKA}, s{sT5}, v{vKA}")
        side(f"v_lshrrev_b32 v11, 5, v{vLANE}"); side("v_lshlrev_b32 v11, 4, v11"); side(f"v_add_u32 v11, {L_MISC}, v11")
        for i in range(4):
            side(f"v_mov_b32 v{vPO + i}, v{vONE}"); side(f"v_mov_b32 v{vPZ + i}, 0")
        def masks(o):
            o(f"v_and_b32 v{t}, 31, v{vLANE}"); o(f"v_lshrrev_b32 v{t + 1}, 5, v{vLANE}")
            o(f"v_lshlrev_b32 v{t + 1}, 2, v{t + 1}"); o(f"v_sub_u32 v{t}, v{t}, v{t + 1}")
            o(f"v_mov_b32 v{t + 1}, {BIG}")
            for r in range(17):
                if r < 16:
                    m = (sM1, sM2, sM3)[r % 3]
                    o(f"v_cmp_le_i32 s[{m}:{m + 1}], {8 * (r >> 2) + (r & 3)}, v{t}")
                if r:
                    q, m = r - 1, (sM1, sM2, sM3)[(r - 1) % 3]
                    o(f"v_cndmask_b32 v{vS + 128 + q}, v{t + 1}, 0, s[{m}:{m + 1}]")
                    o(f"v_cndmask_b32 v{vS + 112 + q}, 0, v{t + 1}, s[{m}:{m + 1}]")
        masks(side)
        fill = list(side.L)
        nq = self.SCHED[self.p["sched"]].count("Q")
        QR = [PK, PK + 4, PK + 8, PK + 12, wf + 16, wf + 20, wf + 24]
        def qread(s):
            self.trd(e, QR[s % NR], vWQ, 16 * s * 64, 256, ("q", s))
        for s in range(NR - 2):
            qread(s)
        vF1, vF1s, sF1B, sF1M, sKB = 31, 10, sA5, sACT, sWD
        e(f"s_mul_i32 s{sT0}, s{sHEAD}, 28"); e(f"s_add_u32 s{sT1}, s{sT0}, 27")
        e(f"s_lshr_b32 s{sT0}, s{sT0}, 6"); e(f"s_lshr_b32 s{sT1}, s{sT1}, 6"); e(f"s_sub_u32 s{sT1}, s{sT1}, s{sT0}")
        e(f"v_and_b32 v{vF1}, s{sT1}, v{vLANE}")
        e(f"v_bfe_u32 v{t + 1}, v{vLANE}, 1, 1"); e(f"v_mad_u32_u24 v{vF1}, v{t + 1}, 7, v{vF1}")
        e(f"v_lshrrev_b32 v{t + 1}, 2, v{vLANE}"); e(f"v_lshl_add_u32 v{vF1}, v{t + 1}, 6, v{vF1}")
        e(f"v_lshlrev_b32 v{vF1}, 7, v{vF1}")
        e(f"s_add_u32 s{sT0}, s{sT0}, s{sT4}"); e(f"s_lshl_b32 s{sT0}, s{sT0}, 7"); e(f"s_add_u32 s{sF1B}, s{sT0}, {WS_F1 - 16384}")
        e(f"s_min_u32 s{sT1}, s{sRB}, 2"); e(f"s_lshl_b32 s{sT1}, s{sT1}, 2")
        e(f"s_lshr_b32 s{sT1}, 0xfff00, s{sT1}"); e(f"s_and_b32 s{sF1M}, s{sT1}, 0xfff")
        e(f"s_mul_i32 s{sKB}, s{sMT}, 28672")
        e(f"s_mul_i32 s{sT1}, s{sHEAD}, 1792"); e(f"s_add_u32 s{sKB}, s{sKB}, s{sT1}")
        for s in range(0, 28, 2):
            if s == self.p["f1_at"] & ~1:
                kv_flag()
            if s == self.p["bq"] and nq < 7:
                assert s + NR - 3 < 4 * nq
                e("s_barrier")
                self.tr(e, "Bq", 2)
            e.wait(ds=("q", s + 1))
            for k in range(2):
                q = QR[(s + k) % NR]
                self.psum(e, C0, vONE, q, s + k == 0, self.p["dot"] & 2); self.psum(e, C1, vONE, q + 2, s + k == 0, self.p["dot"] & 2)
                if k == 0 and fill: e(fill.pop(0))
            for k in range(2):
                if self.p.get("fk", 0) & 4 and s >= 4: e("s_nop 6")
                else: self.mf(e, aQ, QR[(s + k) % NR], vH + 4 * (s + k), "0" if s + k == 0 else None)
                if s + k + NR - 2 < 28:
                    qread(s + k + NR - 2)
                for i in range(2 + k):
                    if fill: e(fill.pop(0))
        assert not fill
        e(f"v_add_f32 v{C0}, v{C0}, v{C1}")
        self.split_hi_lo(e, C0 + 2, C0)
        self.mf8(e, aQ, C0 + 2, vNM)
        e("s_mov_b32 exec_lo, 0xf0000000"); e("s_mov_b32 exec_hi, 0xf0000000")
        for u in range(3):
            for s in range(2):
                e.lds(f"ds_write_b128 v{vKV}, {vr(vPO, 4)} offset:{u * 16384 + 2048 + 1024 * s}")
        e("s_mov_b32 exec_lo, 0"); e("s_mov_b32 exec_hi, 0xffff0000")
        for u in (2, 1, 0):
            if u < 2:
                e(f"s_cmp_ge_u32 s{sRB}, {2 - u}"); e(f"s_cselect_b32 s{sT0}, 0, {BIG >> 16}")
                e(f"v_mov_b32 v{vPZ}, s{sT0}"); e(f"v_mov_b32 v{vPZ + 2}, s{sT0}")
            e.lds(f"ds_write_b128 v{vKV}, {vr(vPZ, 4)} offset:{u * 16384 + 1024}")
        e("s_mov_b64 exec, -1")
        e(f"v_mov_b32 v{t + 2}, 0x3f80")
        vQ = vTMP
        e(f"v_mul_f32 v{vRS}, {f32(28 ** -0.5 * math.log2(math.e))}, v{vRS}")
        e(f"v_mul_f32 v{vMU}, {f32(1 / 16)}, v{vMU}")
        for i in range(16):
            e(f"v_mul_f32 v{aQ + i}, v{vRS}, v{aQ + i}")
        e.wait(ds="all")
        for i in range(8):
            e(f"v_cvt_pk_bf16_f32 v{vQ + i}, v{aQ + 2 * i}, v{aQ + 2 * i + 1}")
        e(f"v_cndmask_b32 v{vQ + 6}, v{vQ + 6}, v{t + 2}, {HI}")
        e(f"v_cndmask_b32 v{vQ + 7}, v{vQ + 7}, 0, {HI}")
        e("L_qdone:")
        self.stamp(e, "q")
        e(f"s_mov_b32 exec_lo, s{sF1M}"); e("s_mov_b32 exec_hi, 0")
        self.poll(e, vF1, f"s{sF1B}", f"v_cmp_ne_u32 vcc, 1, v{vF1s}", vF1s)
        self.stamp(e, "f1")
        for u in range(3):
            e(f"s_sub_u32 s{sT1}, s{sKB}, {(8 - 4 * u) * 28672}")
            if u < 2:
                e(f"s_cmp_ge_u32 s{sRB}, {2 - u}"); e(f"s_cselect_b32 s{sT1}, s{sT1}, 0x7f000000")
            e(f"s_add_u32 m0, s{sT5}, {u * 16384}")
            e("s_mov_b64 exec, -1")
            e.vmem(f"buffer_load_dwordx4 v{vL16}, {WS}, s{sT1} offen sc1 lds")
            e("s_mov_b32 exec_hi, 0xffff")
            e.vmem(f"buffer_load_dwordx4 v{vL16}, {WS}, s{sT1} offen offset:1024 sc1 lds", ("kt", u))
        e("s_mov_b64 exec, -1")
        self.mode_issue(e, 3, vRDY)
        e("s_barrier")
        self.tr(e, "Bk", 2)
        for n in range(4):
            e.lds(f"ds_read_b128 {vr(vRM + 4 * n, 4)}, v11 offset:{32 * n}")
        TORD = [0, 4, 8, 1, 2, 3, 5, 6, 7]
        def frag(o, n):
            kv, i = divmod(n, 18)
            tt, r = TORD[i >> 1], wf + 4 * (n % NR)
            if kv:
                o.lds(f"ds_read_b128 {vr(r, 4)}, v{vKV} offset:{tt * 4096 + 2048 + (i & 1) * 1024}", ("kv", n))
            elif n < self.p["kfast"]:
                for k in range(2):
                    o.lds(f"ds_read_b64 {vr(r + 2 * k, 2)}, v{vKA} offset:{tt * 4096 + (i & 1) * 1024 + 512 * k}", ("kv", n))
            else:
                k = 8 * tt + 2 * (i & 1)
                o.lds(f"ds_read2st64_b64 {vr(r, 4)}, v{vKA} offset0:{k} offset1:{k + 1}", ("kv", n))
        def blk(hb):
            return vS + 16 * TORD[hb >> 1] + 8 * (hb & 1)
        rd = [0, 0]
        def reads(o, upto):
            while rd[0] < min(upto, rd[1]):
                frag(o, rd[0]); rd[0] += 1
        def mm(o, n):
            assert n < rd[0]
            o.wait(ds=("kv", n))
            if n < 18:
                tt = TORD[n >> 1]
                cin = None if n & 1 or tt == 8 else (vr(vS + 112, 16) if tt == 0 else "0")
                self.mf(o, vS + 16 * tt, wf + 4 * (n % NR), vQ + 4 * (n & 1), cin)
            else:
                self.mf(o, aO, wf + 4 * (n % NR), blk(n - 18), "0" if n == 18 else None)
            reads(o, n + NR)
        def expblock(o, hb, slots):
            b = blk(hb)
            for i in range(8):
                o(f"v_exp_f32 v{b + i}, v{b + i}")
                if i in slots: slots[i]()
            for i in range(4):
                o(f"v_cvt_pk_bf16_f32 v{b + i}, v{b + 2 * i}, v{b + 2 * i + 1}")
        BA, BM = self.p["batt"], self.p["bmat"]
        e.wait(vm=("kt", 0))
        self.stamp(e, "Batt_")
        rd[1] = 2; reads(e, 2)
        mm(e, 0); mm(e, 1)
        e.wait(vm=("kt", 1))
        rd[1] = 4; reads(e, 4)
        nxt = 2
        for hb in range(18):
            if hb == 1:
                e.wait(vm=("kt", 2))
                rd[1] = 6; reads(e, 6)
            if nxt < 18:
                k = min(2, rd[0] - nxt)
                assert (nxt >> 1) > (hb >> 1)
            else:
                k = min(-(-(35 - nxt) // (18 - hb)), hb + 18 - nxt) if hb > BM else 0
            pos = {0: [], 1: [2], 2: [1, 5], 3: [0, 3, 6]}[k]
            if hb in (0, 1, BA + 1, BM + 1): pos = {0: [], 1: [7], 2: [5, 7], 3: [4, 6, 7]}[k]
            expblock(e, hb, {i: (lambda n=nxt + j: mm(e, n)) for j, i in enumerate(pos)})
            nxt += k
            if hb % 3 == 2: self.tr(e, f"e{hb}", 2)
            if hb == BA:
                e("s_barrier")
                self.stamp(e, "Batt")
                rd[1] = 18; reads(e, nxt + NR - 1)
            if hb == BM:
                assert nxt == 18
                self.stamp(e, "sub")
                e("s_barrier")
                self.stamp(e, "Bm")
                rd[1] = 36; reads(e, nxt + NR - 1)
            if hb == self.p["m2"]:
                e("s_barrier")
                self.tr(e, "Bm2", 2)
        assert nxt == 35
        mm(e, 35)
        exact, checked = self.lab("exact"), self.lab("checked")
        x = Stream(); x.role = 0
        x(f"{exact}:")
        masks(x)
        rd[:] = [0, 36]
        reads(x, NR - 1)
        for n in range(18):
            mm(x, n)
        x(f"v_max_f32 v{vM}, v{vS}, v{vS + 1}")
        for i in range(2, 144, 2):
            x(f"v_max3_f32 v{vM}, v{vS + i}, v{vS + i + 1}, v{vM}")
        x(f"v_mov_b32 v{vM + 1}, v{vM}")
        x(f"v_permlane32_swap_b32 v{vM}, v{vM + 1}")
        x(f"v_max_f32 v{vM + 1}, v{vM}, v{vM + 1}")
        for i in range(0, 144, 2):
            x(f"v_pk_add_f32 {vr(vS + i, 2)}, {vr(vS + i, 2)}, {vr(vM + 1, 2)} op_sel_hi:[1,0] neg_lo:[0,1] neg_hi:[0,1]")
        for hb in range(18):
            expblock(x, hb, {})
            mm(x, 18 + hb)
        x(f"v_mov_b32 v{t}, v{aO + 12}"); x(f"v_mov_b32 v{t + 1}, v{aO + 12}")
        x(f"v_permlane32_swap_b32 v{t}, v{t + 1}")
        x("s_nop 1")
        x(f"s_branch {checked}")
        self.tail += x.L
        e(f"s_lshl_b32 s{sT0}, s{sMT}, 4"); e(f"s_add_u32 s{sT0}, s{sT0}, s{sHEAD}"); e(f"s_lshl_b32 s{sT0}, s{sT0}, 11")
        e(f"s_add_u32 s{sT0}, s{sT0}, {WS_O}")
        e(f"s_and_b32 s{sT1}, s{sMT}, 7"); e(f"s_lshl_b32 s{sT1}, s{sT1}, 5"); e(f"s_add_u32 s{sT1}, s{sT1}, s{sHEAD}")
        e(f"s_lshl_b32 s{sT1}, s{sT1}, 2"); e(f"s_add_u32 s{sT1}, s{sT1}, s{sFX}")
        self.stamp(e, "pv")
        self.mode_check(e, 3, vRDY)
        lo, hi = f32(2.0 ** -30), f32(2.0 ** 60)
        e(f"v_mov_b32 v{t}, v{aO + 12}"); e(f"v_mov_b32 v{t + 1}, v{aO + 12}")
        e(f"v_permlane32_swap_b32 v{t}, v{t + 1}")
        e(f"v_subrev_u32 v{t}, {lo}, v{t + 1}")
        e(f"v_cmp_lt_u32 vcc, {0 if self.p['exact'] else hi - lo}, v{t}")
        if not self.p.get("fk"): e(f"s_cbranch_vccnz {exact}")
        e(f"{checked}:")
        e(f"v_rcp_f32 v{t + 1}, v{t + 1}")
        e(f"v_pk_mul_f32 {vr(t + 2, 2)}, {vr(aO, 2)}, {vr(vRM, 2)}")
        for i in range(2, 16, 2):
            e(f"v_pk_fma_f32 {vr(t + 2, 2)}, {vr(aO + i, 2)}, {vr(vRM + i, 2)}, {vr(t + 2, 2)}")
        def scale(r):
            for i in r:
                e(f"v_pk_mul_f32 {vr(aO + i, 2)}, {vr(aO + i, 2)}, {vr(t, 2)} op_sel:[0,1] op_sel_hi:[1,1]")
        ost = lambda i: [f"buffer_store_dwordx4 {vr(vQ + 4 * i, 4)}, v{vL16}, {WS}, s{sT0} offen offset:{1024 * i}"]
        e(f"v_add_f32 v{t + 2}, v{t + 2}, v{t + 3}")
        e(f"v_mov_b32 v{t + 3}, v{t + 2}")
        scale(range(8, 16, 2))
        e(f"v_permlane32_swap_b32 v{t + 2}, v{t + 3}")
        scale(range(0, 8, 2))
        e(f"v_add_f32 v{t + 2}, v{t + 2}, v{t + 3}")
        for i in range(4):
            e(f"v_cvt_pk_bf16_f32 v{vQ + i}, v{aO + 2 * i}, v{aO + 2 * i + 1}")
        e(f"v_fma_f32 v{t + 2}, v{t + 2}, v{t + 1}, v{vMU}")
        self.publish(e, ost(0), wt=self.p["ohwt"] & 1)
        self.split_hi_lo(e, vCP, t + 2)
        for i in range(4, 8):
            e(f"v_cvt_pk_bf16_f32 v{vQ + i}, v{aO + 2 * i}, v{aO + 2 * i + 1}")
        e(f"v_cndmask_b32 v{vQ + 6}, v{vQ + 6}, v{vCP}, {HI}")
        e(f"v_cndmask_b32 v{vQ + 7}, v{vQ + 7}, 0, {HI}")
        self.stamp(e, "att")
        self.publish(e, ost(1), wt=self.p["ohwt"] & 1)
        e(f"v_mov_b32 v{t}, 0"); e(f"v_mov_b32 v{t + 1}, 1")
        e.wait(vm="all")
        e("s_mov_b64 exec, 1")
        self.publish(e, [f"buffer_store_dword v{t + 1}, v{t}, {WS}, s{sT1} offen offset:{FX_F2}"])
        e("s_mov_b64 exec, -1")
        self.stamp(e, "opub")
        if self.stop > 2:
            e(f"s_cmp_ge_u32 s{sJ}, 28"); e("s_cbranch_scc1 L_Ldone")
            self.ffn_setup(e, 0)
            e("s_barrier")
            self.stamp(e, "Bp")
            for op in self.gu_ops(e, WG, L_GATE, range(7 - self.p["glate"], 7), "gl"): op()
            for op in self.gu_ops(e, WU, L_UP, range(self.p["upe"]), "up"): op()
            for tile in range(self.p["ltouch"]):
                e(f"v_lshlrev_b32 v24, 7, v{vLANE}")
                e(f"s_lshl_b32 s{sT0}, s{sJ}, 4"); e(f"s_add_u32 s{sT0}, s{sT0}, s{sW}"); e(f"s_add_u32 s{sT0}, s{sT0}, {4 * tile}")
                e(f"s_mul_i32 s{sT0}, s{sT0}, {4 * 896}")
                self.touch(e, WD, f"s{sT0}", 28)
            e.wait(vm="gl")
            e("s_barrier")
            self.stamp(e, "Bx")
        if self.stop > 3:
            self.ffn_L(e)
        e("L_Ldone:")
        self.finish(e, 0)
        return e

    def ffn_setup(self, e, role):
        self.rows128_src(e, vD, 896, 64, lambda i: 128 * i)
        self.tr_base(e, vP[0], 4, 128, 32)
        e(f"v_bfe_u32 v{t}, v{vLANE}, 3, 1"); e(f"v_lshlrev_b32 v{t}, 6, v{t}")
        e(f"v_xor_b32 v{t + 1}, 64, v{t}")
        e(f"s_mov_b32 s{sT0}, {L_GATE}"); e(f"s_mov_b32 s{sT1}, {L_UP}")
        e(f"v_add3_u32 v{vP[1]}, v{vP[0]}, v{t + 1}, s{sT0}")
        e(f"v_add3_u32 v{vP[2]}, v{vP[0]}, v{t}, s{sT1}")
        e(f"v_add3_u32 v{vP[3]}, v{vP[0]}, v{t + 1}, s{sT1}")
        e(f"v_add3_u32 v{vP[0]}, v{vP[0]}, v{t}, s{sT0}")
        if role == 0:
            self.rows128_src(e, vGA, 3584, 64, lambda i: 8 * i)
        else:
            e(f"v_lshrrev_b32 v{t}, 3, v{vLANE}"); e(f"v_mul_u32_u24 v{t}, {14336 - 1024}, v{t}"); e(f"v_add_u32 v24, v24, v{t}")
        self.w5_base(e)
        e(f"s_mul_i32 s{sT0}, s{sKH}, 14336")
        for k in range(2):
            e(f"v_add_u32 v{vW5[k]}, s{sT0}, v{vW5[k]}")
        e(f"s_xor_b32 s{sT1}, s{sMG}, {2 - 2 * role}"); e(f"s_lshl_b32 s{sT1}, s{sT1}, 1"); e(f"s_add_u32 s{sT1}, s{sT1}, s{sMI}")
        e(f"s_lshl_b32 s{sA5}, s{sG}, 3"); e(f"s_add_u32 s{sA5}, s{sA5}, s{sT1}")
        e(f"s_lshl_b32 s{sT1}, s{sT1}, 5"); e(f"s_mul_i32 s{sT0}, s{sKH}, 14"); e(f"s_add_u32 s{sT1}, s{sT1}, s{sT0}")
        e(f"s_sub_u32 s{sT1}, s{sT1}, s{sHF}"); e(f"s_add_u32 s{sT1}, s{sT1}, 1"); e(f"s_lshl_b32 s{sT1}, s{sT1}, 2")
        e(f"s_add_u32 s{sT1}, s{sT1}, s{sFX}"); e(f"s_add_u32 s{sF4C}, s{sT1}, {FX_F4}")
        e(f"s_mul_i32 s{sWD}, s{sKH}, {896 * 896}"); e(f"s_mul_i32 s{sT0}, s{sMI}, {8 * 896}")
        e(f"s_add_u32 s{sWD}, s{sWD}, s{sT0}"); e(f"s_lshl_b32 s{sT0}, s{sNG}, 7"); e(f"s_add_u32 s{sWD}, s{sWD}, s{sT0}")
        e(f"s_xor_b32 s{sT0}, s{sHF}, 1"); e(f"s_mul_i32 s{sT0}, s{sT0}, {64 * 896}"); e(f"s_add_u32 s{sWD}, s{sWD}, s{sT0}")
        e(f"s_mul_i32 s{sWL}, s{sW}, 7168")
        e(f"s_xor_b32 s{sML}, s{sPAR}, {role}"); e(f"s_lshl_b32 s{sML}, s{sML}, 2"); e(f"s_add_u32 s{sML}, s{sML}, s{sW}")
        e(f"s_lshl_b32 s{sMT}, s{sG}, 3"); e(f"s_add_u32 s{sMT}, s{sMT}, s{sML}")
        e(f"s_lshr_b32 s{sT1}, s{sJ}, 1"); e(f"s_lshl_b32 s{sT1}, s{sT1}, 10")
        for k, dst in enumerate((sACT, sAC2)):
            base, stride = ACTLOC[role][k]
            e(f"s_mul_i32 s{sT0}, s{sMT}, {stride}"); e(f"s_add_u32 s{sT0}, s{sT0}, s{sT1}"); e(f"s_add_u32 s{dst}, s{sT0}, {base}")
        e(f"s_lshl_b32 s{sT0}, s{sML}, 5"); e(f"s_add_u32 s{sT0}, s{sT0}, s{sJ}"); e(f"s_lshl_b32 s{sT0}, s{sT0}, 2")
        e(f"s_add_u32 s{sT0}, s{sT0}, s{sFX}"); e(f"s_add_u32 s{sF4P}, s{sT0}, {FX_F4}")
        e(f"v_lshlrev_b32 v{vPA}, 2, v{vLANE}"); e(f"v_lshlrev_b32 v{vPR}, 3, v{vLANE}")

    def w5_base(self, e, vW5=vW5):
        self.tr_base(e, vW5[0], 4, 128, 32)
        e(f"v_bfe_u32 v{t}, v{vLANE}, 3, 1"); e(f"v_xor_b32 v{t}, s{sKH}, v{t}"); e(f"v_lshlrev_b32 v{t}, 6, v{t}")
        e(f"v_xor_b32 v{t + 1}, 64, v{t}")
        e(f"v_add_u32 v{vW5[1]}, v{vW5[0]}, v{t + 1}")
        e(f"v_add_u32 v{vW5[0]}, v{vW5[0]}, v{t}")

    def gu_ops(self, e, srd, base, cs, tag):
        ops = []
        fake = self.p.get("fake", 0) & (1 if srd == WG else 2)
        if fake: srd = X_
        for c in cs:
            for i in range(2):
                def op(c=c, i=i):
                    if i == 0:
                        e(f"s_add_u32 s{sT2}, s{sG}, {c}"); e(f"s_cmp_ge_u32 s{sT2}, 7"); e(f"s_cselect_b32 s{sT3}, 7, 0")
                        e(f"s_sub_u32 s{sT2}, s{sT2}, s{sT3}"); e(f"s_lshl_b32 s{sT2}, s{sT2}, 2"); e(f"s_add_u32 s{sT2}, s{sT2}, s{sW}")
                        e(f"s_lshl_b32 s{sT3}, s{sT2}, 11"); e(f"s_add_u32 m0, s{sT3}, {base}")
                        e(f"s_mul_i32 s{sT2}, s{sT2}, {16 * 3584}"); e(f"s_lshl_b32 s{sT3}, s{sJ}, 7"); e(f"s_add_u32 s{sT2}, s{sT2}, s{sT3}")
                        if fake:
                            e(f"s_mul_i32 s{sT2}, s{sG}, {256 * 896}"); e(f"s_mul_i32 s{sT3}, s{sW}, {16 * 3584}")
                            e(f"s_add_u32 s{sT2}, s{sT2}, s{sT3}"); e(f"s_add_u32 s{sT2}, s{sT2}, {c * 128}")
                    e.vmem(f"buffer_load_dwordx4 v{vGA[i]}, {srd}, s{sT2} offen offset:{1024 * i} {'nt' if self.p['nt'] & (1 if srd == WG else 2) else ''} lds", tag)
                ops.append(op)
        return ops

    def paced(self, e, ops, depth):
        for i, op in enumerate(ops):
            if i > depth:
                e(f"s_waitcnt vmcnt({depth})")
            op()

    def wd_ops(self, e, qs):
        ops = []
        for q in qs:
            for grp in range(2):
                for i in range(4 - grp):
                    def op(q=q, grp=grp, i=i):
                        if i == 0:
                            e(f"s_add_u32 m0, s{sWL}, {SLOT[q] + 4096 * grp}")
                            e(f"s_add_u32 s{sT2}, s{sWD}, {(16 * q + 512 * grp) * 896}")
                        if self.p.get("fake", 0) & 4:
                            if i == 0:
                                e(f"s_mul_i32 s{sT2}, s{sG}, {8 * 28672}"); e(f"s_add_u32 s{sT2}, s{sT2}, s{sWL}")
                                e(f"s_add_u32 s{sT2}, s{sT2}, {WS_H + q * 28672 + 4096 * grp}")
                            e.vmem(f"buffer_load_dwordx4 v{vL16}, {WS}, s{sT2} offen offset:{1024 * i} sc1 lds", ("wd", q))
                            return
                        e.vmem(f"buffer_load_dwordx4 v{vD[i]}, {WD}, s{sT2} offen offset:{1024 * i} {'nt' if self.p['nt'] & 4 else ''} lds", ("wd", q))
                    ops.append(op)
        return ops

    def wd_dma(self, e, qs):
        for q in qs:
            for op in self.wd_ops(e, [q]):
                op()
            self.tr(e, f"q{q}", 1)

    def h_poll(self, e, between=None):
        e(f"s_lshl_b32 s{sT0}, s{sML}, 7"); e(f"s_add_u32 s{sT0}, s{sT0}, s{sFX}"); e(f"s_add_u32 s{sT0}, s{sT0}, {FX_F3}")
        e(f"s_mul_i32 s{sT4}, s{sMT}, 28672"); e(f"s_add_u32 s{sT4}, s{sT4}, {WS_H}")
        e(f"s_lshl_b32 s{sT5}, s{sMT}, 11"); e(f"s_add_u32 s{sT5}, s{sT5}, {WS_SS}")
        e("s_mov_b64 exec, 0x3fff")
        self.poll(e, vPA, f"s{sT0}", f"v_cmp_ne_u32 vcc, 1, v{vSM}", vSM)
        e("s_mov_b64 exec, -1")

    def h_load(self, e, s):
        e.vmem(f"buffer_load_dwordx4 {vr(vH + 4 * s, 4)}, v{vL16}, {WS}, s{sT4} offen offset:{1024 * (s & 3)} sc1", ("h", s))
        if s & 3 == 3:
            e(f"s_add_u32 s{sT4}, s{sT4}, 4096")

    def ss_load(self, e):
        if not self.p["ssb"]:
            for i in range(7):
                e.vmem(f"buffer_load_dword v{vSS + i}, v{vPA}, {WS}, s{sT5} offen offset:{256 * i} sc1", "ss")
            return
        e(f"s_lshl_b32 s{sT0}, s{sW}, 11"); e(f"s_add_u32 m0, s{sT0}, {SLOT[0] + 8192 * e.role}")
        e(f"v_add_u32 v{vSS + 7}, s{sT0}, v{vPA}")
        self.dma4(e, WS, [vL16] * 2, f"s{sT5}", n=2, tag="ss", fl="sc1")

    def ss_read(self, e):
        e.wait(vm="ss")
        if self.p["ssb"]:
            for i in range(7):
                e.lds(f"ds_read_b32 v{vSS + i}, v{vSS + 7} offset:{SLOT[0] + 8192 * e.role + 256 * i}", "ss")

    KMAJ = [(s, k) for s in range(28) for k in range(2)]
    TMAJ = [(s, k) for k in range(2) for s in range(28)]

    def gu_rd(self, e, mat, order, n):
        s, k = order[n]
        self.trd(e, vRING + 4 * (n % NR), vP[2 * mat + k], 16 * s * 128, 1024, ("g", n))

    def gu_pre(self, e, mat, order):
        for n in range(NR - 1):
            self.gu_rd(e, mat, order, n)

    def gu_pass(self, e, mat, order, accs, hook=None, wait_h=False):
        for n, (s, k) in enumerate(order):
            e.wait(vm=("h", s) if (wait_h and k == 0) else None, ds=("g", n))
            self.mf(e, accs[k], vRING + 4 * (n % NR), vH + 4 * s, "0" if s == 0 else None)
            if n % 8 == 7: self.tr(e, f"m{mat}.{n}", 1)
            if n + NR - 1 < 56:
                self.gu_rd(e, mat, order, n + NR - 1)
            if hook:
                hook(n)

    def gelu_consts(self, e):
        k1 = 2 * math.sqrt(2 / math.pi) * math.log2(math.e)
        e.wait(ds="ss")
        for i in range(3):
            e(f"v_add_f32 v{vSS + i}, v{vSS + i}, v{vSS + 3 + i}")
        e(f"v_add_f32 v{vSS}, v{vSS}, v{vSS + 6}")
        e(f"v_add_f32 v{vSS + 1}, v{vSS + 1}, v{vSS + 2}")
        e(f"v_add_f32 v{vSS}, v{vSS}, v{vSS + 1}")
        e(f"v_mov_b32 v{vSS + 1}, v{vSS}")
        e(f"v_permlane32_swap_b32 v{vSS}, v{vSS + 1}")
        e(f"v_add_f32 v{vSS}, v{vSS}, v{vSS + 1}")
        e(f"v_mul_f32 v{vSS}, {f32(1 / 448)}, v{vSS}")
        e(f"v_add_f32 v{vRI}, {f32(1e-5)}, v{vSS}")
        e(f"v_rsq_f32 v{vSS}, v{vRI}")
        e(f"v_mul_f32 v{vK1}, {f32(-k1)}, v{vSS}")
        e(f"v_mul_f32 v{vSS}, v{vSS}, v{vSS}")
        e(f"v_mul_f32 v{vSS}, {f32(0.044715)}, v{vSS}")
        e(f"v_mul_f32 v{vK2}, v{vSS}, v{vK1}")

    def gelu_gate(self, e, ops=()):
        T = vTMP
        ops = list(ops)
        per = max(-(-len(ops) // 12), self.p["uper"] if e.role == 0 else 1)
        def side():
            for i in range(per):
                if ops: ops.pop(0)()
        for a in range(vACC, vACC + 32, 8):
            self.tr(e, f"g{(a - vACC) // 8}", 1)
            side()
            for i in range(8): e(f"v_mul_f32 v{T + i}, v{a + i}, v{a + i}")
            for i in range(8): e(f"v_fma_f32 v{T + i}, v{T + i}, v{vK2}, v{vK1}")
            for i in range(8): e(f"v_mul_f32 v{T + i}, v{T + i}, v{a + i}")
            side()
            for i in range(8): e(f"v_exp_f32 v{T + i}, v{T + i}")
            for i in range(8): e(f"v_fma_f32 v{T + i}, v{T + i}, v{vRI}, v{vRI}")
            side()
            for i in range(8): e(f"v_rcp_f32 v{T + i}, v{T + i}")
            for i in range(8): e(f"v_mul_f32 v{a + i}, v{T + i}, v{a + i}")
        assert not ops

    def prod_ops(self, e, k):
        g, u = vACC + 16 * k, UACC[k]
        ops = []
        for hf in range(2):
            b = 8 * hf
            for i in range(0, 8, 2):
                ops.append(lambda b=b, i=i: [e(f"v_mul_f32 v{u + b + j}, v{g + b + j}, v{u + b + j}") for j in (i, i + 1)])
            for i in range(0, 4, 2):
                ops.append(lambda b=b, i=i: [e(f"v_cvt_pk_bf16_f32 v{u + b + j}, v{u + b + 2 * j}, v{u + b + 2 * j + 1}") for j in (i, i + 1)])
            def st(b=b, tile=2 * k + hf):
                e(f"s_add_u32 s{sT0}, s{(sACT, sAC2)[k]}, {(tile & 1) * 14336}")
                self.publish(e, [f"buffer_store_dwordx4 {vr(u + b, 4)}, v{vL16}, {WS}, s{sT0} offen"], ("act", tile), wt=e.role == 1 and self.p["swt"])
                self.last_act = ("act", tile)
            ops.append(st)
        return ops

    def up_pass(self, e, flag_at, extra=None):
        ops = self.prod_ops(e, 0)
        def hook(n):
            if n >= 30 and ops: ops.pop(0)()
            if n == flag_at: self.act_flag(e, 2)
            if extra: extra(n)
        self.gu_pass(e, 1, self.TMAJ, UACC, hook)
        assert not ops

    def act_flag(self, e, stage):
        e(f"v_mov_b32 v{vFL}, {stage}")
        self.tr(e, f"F{stage}<", 1)
        e.wait(vm=self.last_act if stage > 1 else "ss")
        self.tr(e, f"F{stage}>", 1)
        e("s_mov_b64 exec, 1")
        self.publish(e, [f"buffer_store_dword v{vFL}, v{vPA}, {WS}, s{sF4P} offen"], "flag")
        if e.role == 1 and stage > 1 and self.p["ptouch"] and self.p["swt"]:
            e("s_mov_b64 exec, 0xffff")
            e.vmem(f"buffer_load_dword v25, v24, {WS}, s{(sACT, sAC2)[stage - 2]} offen sc1")
        e("s_mov_b64 exec, -1")

    def act_sample(self, e):
        e("s_mov_b64 exec, 0x7f")
        e.vmem(f"buffer_load_dword v{vSM}, v{vPR}, {WS}, s{sF4C} offen sc1", "sample")
        e("s_mov_b64 exec, -1")

    def act_check(self, e, stage):
        e.wait(vm="sample")
        e("s_mov_b64 exec, 0x7f")
        self.check_or_poll(e, vPR, f"s{sF4C}", f"v_cmp_gt_u32 vcc, {stage}, v{vSM}", vSM)
        e("s_mov_b64 exec, -1")
        self.tr(e, f"C{stage}", 1)

    def act_ops(self, e, q):
        ops = []
        for s in range(7):
            def op(s=s):
                if s == 0:
                    base, stride = ACTLOC[e.role][q >> 1]
                    e(f"s_mul_i32 s{sT1}, s{sA5}, {stride}"); e(f"s_mul_i32 s{sT0}, s{sKH}, 7168")
                    e(f"s_add_u32 s{sT1}, s{sT1}, s{sT0}"); e(f"s_add_u32 s{sT1}, s{sT1}, {base + (q & 1) * 14336}")
                e.vmem(f"buffer_load_dwordx4 {vr(vH + 28 * q + 4 * s, 4)}, v{vL16}, {WS}, s{sT1} offen offset:{1024 * (s & 3)} sc1", ("a", q, s))
                if s == 3:
                    e(f"s_add_u32 s{sT1}, s{sT1}, 4096")
            ops.append(op)
        return ops

    def act_load(self, e, q):
        for op in self.act_ops(e, q):
            op()
        self.tr(e, f"a{q}", 1)

    def down_order(self):
        o = [(q, s, k) for q in range(4) for s in range(7) for k in range(2)]
        if self.p["dlast"]:
            o = o[:42] + [(3, s, k) for k in (1, 0) for s in range(7)]
        return o

    def down_rd(self, e, n):
        q, s, k = self.down_order()[n]
        if n == 39:
            e.lds(f"ds_read_b64 {vr(vTMP, 2)}, v{vTMP + 2}", "qf")
        if n == 42:
            ok, spin = self.lab("qok"), self.lab("qspin")
            e.wait(ds="qf")
            e(f"v_and_b32 v{vTMP}, v{vTMP}, v{vTMP + 1}"); e(f"v_cmp_ne_u32 vcc, 1, v{vTMP}")
            e(f"s_cbranch_vccz {ok}")
            e(f"{spin}:")
            e(f"ds_read_b64 {vr(vTMP, 2)}, v{vTMP + 2}")
            e(f"s_add_u32 s{sSPIN}, s{sSPIN}, 1")
            e("s_waitcnt lgkmcnt(0)")
            e(f"v_and_b32 v{vTMP}, v{vTMP}, v{vTMP + 1}"); e(f"v_cmp_ne_u32 vcc, 1, v{vTMP}")
            e(f"s_cmp_gt_u32 s{sSPIN}, {SPIN_LIMIT}"); e(f"s_cbranch_scc1 {ok}"); e(f"s_cbranch_vccnz {spin}")
            e(f"{ok}:")
            self.stamp(e, "X3")
        if n % 14 == 0:
            for kk in range(2):
                e(f"v_add_u32 v{vW5t[kk]}, {SLOT[q]}, v{vW5[kk]}")
        self.trd(e, vRING + 4 * (n % NR), vW5t[k], 1024 * s, 7168, ("d", n))

    def done_set(self, e):
        e(f"s_lshl_b32 s{sT0}, s{sW}, 2"); e(f"s_add_u32 s{sT0}, s{sT0}, {L_PF + 32 + 16 * e.role}")
        e(f"v_mov_b32 v{vTMP + 4}, s{sT0}"); e(f"v_mov_b32 v{vTMP + 5}, 1")
        e.lds(f"ds_write_b32 v{vTMP + 4}, v{vTMP + 5}")

    def done_wait(self, e):
        spin, ok = self.lab("dspin"), self.lab("dok")
        e("s_mov_b64 exec, 0xff")
        e(f"{spin}:")
        e(f"ds_read_b32 v{vTMP + 3}, v{vPA} offset:{L_PF + 32}")
        e(f"s_add_u32 s{sSPIN}, s{sSPIN}, 1")
        e("s_waitcnt lgkmcnt(0)")
        e(f"v_cmp_ne_u32 vcc, 1, v{vTMP + 3}")
        e(f"s_cmp_gt_u32 s{sSPIN}, {SPIN_LIMIT}"); e(f"s_cbranch_scc1 {ok}"); e(f"s_cbranch_vccnz {spin}")
        e(f"{ok}:")
        e("s_mov_b64 exec, -1")
        e.ds = []

    def down_pre(self, e):
        e(f"s_lshl_b32 s{sT0}, s{sKH}, 3"); e(f"s_add_u32 s{sT0}, s{sT0}, {L_PF + 16}"); e(f"v_mov_b32 v{vTMP + 2}, s{sT0}")
        for n in range(NR - 1):
            self.down_rd(e, n)

    def down_half(self, e, cinit, hook, va, off):
        def put(i):
            e.lds(f"ds_write_b128 v{va}, {vr(vACC + 16 + 4 * i, 4)} offset:{off + 1024 * i}")
        for n, (q, s, k) in enumerate(self.down_order()):
            e.wait(vm=("a", q, s), ds=("d", n))
            self.mf(e, vACC + 16 * k, vRING + 4 * (n % NR), vH + 28 * q + 4 * s, cinit[k] if n < 2 else None)
            if n % 7 == 6: self.tr(e, f"d{n}", 1)
            if n + NR - 1 < 56:
                self.down_rd(e, n + NR - 1)
            hook(n)
            if self.p["dlast"] and n >= 52: put(n - 52)
        if not self.p["dlast"]:
            for i in range(4): put(i)

    def out_addr(self, e):
        e(f"v_and_b32 v{vXO}, 31, v{vLANE}"); e(f"v_mul_u32_u24 v{vXO}, 896, v{vXO}")
        e(f"v_lshrrev_b32 v{t + 1}, 5, v{vLANE}")
        e(f"v_lshl_add_u32 v{vXO}, v{t + 1}, 4, v{vXO}")
        e(f"s_lshl_b32 s{sT0}, s{sG}, 2"); e(f"s_add_u32 s{sT0}, s{sT0}, s{sMG}"); e(f"s_lshl_b32 s{sT0}, s{sT0}, 1")
        e(f"s_add_u32 s{sT0}, s{sT0}, s{sMI}")
        e(f"s_mul_i32 s{sXO}, s{sT0}, {32 * 896}"); e(f"s_lshl_b32 s{sT1}, s{sNG}, 1"); e(f"s_add_u32 s{sT1}, s{sT1}, s{sKH}")
        e(f"s_lshl_b32 s{sT1}, s{sT1}, 6"); e(f"s_add_u32 s{sXO}, s{sXO}, s{sT1}")

    def first_pass(self, e, pre, extra):
        for s in range(pre):
            self.h_load(e, s)
        self.stamp(e, "hpre")
        ops = [lambda s=s: self.h_load(e, s) for s in range(pre, 28)]
        ops += [lambda: self.ss_load(e)] + extra
        def hook(n):
            if n & 1 == 0 and ops: ops.pop(0)()
        self.gu_pass(e, 0, self.KMAJ, [vACC, vACC + 16], hook, wait_h=True)
        assert not ops

    def ffn_L(self, e):
        A0, A1 = vACC, vACC + 16
        p = self.p
        full = self.stop > 4
        self.gu_pre(e, 0, self.KMAJ)
        self.h_poll(e)
        self.tr(e, "hpoll", 2)
        self.stamp(e, "hpoll")
        e("s_setprio 2")
        self.first_pass(e, p["pre"], [lambda: e("s_barrier")] if p["bh"] else [])
        self.stamp(e, "seg1")
        self.ss_read(e)
        self.act_flag(e, 1)
        vPF = vMU2
        e(f"s_lshl_b32 s{sT0}, s{sW}, 2"); e(f"s_add_u32 s{sT0}, s{sT0}, {L_PF}")
        e(f"v_mov_b32 v{vPF}, s{sT0}"); e(f"v_mov_b32 v{t}, 0")
        e.lds(f"ds_write2_b32 v{vPF}, v{t}, v{t} offset0:0 offset1:4", "pf")
        e.lds(f"ds_write2_b32 v{vPF}, v{t}, v{t} offset0:8 offset1:12", "pf")
        self.gelu_consts(e)
        self.gelu_gate(e, self.gu_ops(e, WU, L_UP, range(p["upe"] + p["ups"], 7), "up"))
        e.wait(vm="up", ds="all")
        self.stamp(e, "gelu1")
        e("s_barrier")
        self.stamp(e, "Bb")
        self.gu_pre(e, 1, self.TMAJ)
        e(f"s_lshl_b32 s{sT4}, s{sJ}, 2"); e(f"s_sub_u32 s{sT4}, s{sF4P}, s{sT4}")
        qops = self.wd_ops(e, [0, 1, 2][p["q0e"]:3 - p["q2s"]]) if full else []
        def extra(n):
            if qops and (n & 1 == 0 and n < 28 or n >= 44): qops.pop(0)()
            if n == 29:
                e("s_mov_b64 exec, 0xfffffff")
                e.vmem(f"buffer_load_dword v{vSM}, v{vPA}, {WS}, s{sT4} offen sc1", "sample")
                e("s_mov_b64 exec, -1")
        self.up_pass(e, p["fl1"], extra)
        assert not qops
        e("s_setprio 0")
        self.stamp(e, "seg3")
        e.wait(vm="sample")
        e("s_mov_b64 exec, 0xfffffff")
        self.check_or_poll(e, vPA, f"s{sT4}", f"v_cmp_eq_u32 vcc, 0, v{vSM}", vSM)
        e("s_mov_b64 exec, -1")
        ops = self.prod_ops(e, 1)
        if full and p["lord"]:
            ops.insert(6, lambda: self.act_sample(e))
        for op in ops: op()
        if not full:
            self.act_flag(e, 3)
            return
        late = self.act_ops(e, 2) + self.act_ops(e, 3)
        if p["lord"]:
            self.act_check(e, 2)
            self.stamp(e, "chk1")
            ops = self.act_ops(e, 0)
            for op in ops[:3]: op()
            self.act_flag(e, 3)
            if not p["bd"]: self.done_set(e)
            for op in ops[3:]: op()
            ops = self.act_ops(e, 1)
            for op in ops[:p["lord"]]: op()
            self.act_sample(e)
            for op in ops[p["lord"]:]: op()
        else:
            self.act_sample(e)
            self.act_flag(e, 3)
            if not p["bd"]: self.done_set(e)
            self.act_check(e, 2)
            self.stamp(e, "chk1")
            self.act_load(e, 0)
            self.act_load(e, 1)
            self.act_sample(e)
        if p["c3at"] < 0:
            self.act_check(e, 3)
            for i in range(-7 * p["c3at"]): late.pop(0)()
        e(f"s_lshl_b32 s{sT0}, s{sW}, 12"); e(f"v_add_u32 v{t}, s{sT0}, v{vL16}"); e(f"v_xor_b32 v{t + 1}, 8192, v{t}")
        e(f"v_add_u32 v{t}, {L_XCH5}, v{t}"); e(f"v_add_u32 v{t + 1}, {L_XCH5}, v{t + 1}")
        e(f"v_add_u32 v{t + 3}, {14336 - 1024}, v{vL16}"); e(f"v_mov_b32 v{vFL}, 1")
        e(f"s_add_u32 s{sT4}, s{sJ}, 14"); e(f"s_cmp_ge_u32 s{sT4}, 28"); e(f"s_cselect_b32 s{sT5}, 28, 0")
        e(f"s_sub_u32 s{sT4}, s{sT4}, s{sT5}"); e(f"s_mul_i32 s{sT3}, s{sMG}, 7")
        e(f"s_lshl_b32 s{sT0}, s{sW}, 2"); e(f"s_add_u32 s{sT0}, s{sT0}, s{sFX}"); e(f"s_add_u32 s{sT0}, s{sT0}, {FX_F6}")
        for dst, j in ((sT5, sJ), (sT4, sT4), (sT3, sT3)):
            e(f"s_lshl_b32 s{dst}, s{j}, 4"); e(f"s_add_u32 s{dst}, s{dst}, s{sT0}")
        self.stamp(e, "Bd_")
        if p["bd"]: e("s_barrier")
        else: self.done_wait(e)
        e("s_setprio 2")
        self.stamp(e, "Bd")
        self.down_pre(e)
        k = max(len(late) - 7, 0)
        late[k:k] = self.wd_ops(e, [3])
        def hook(n):
            if n == p["c3at"]: self.act_check(e, 3)
            if n >= p["c3at"] and late: late.pop(0)()
            if n == p["qfat"]:
                e.wait(vm=("wd", 3))
                e.lds(f"ds_write_b32 v{vPF}, v{vFL} offset:16")
            if n == 27:
                e("s_mov_b64 exec, 1")
                self.publish(e, [f"buffer_store_dword v{vFL}, v{vPA}, {WS}, s{sT5} offen"])
                e("s_mov_b64 exec, -1")
            if n == 46:
                e("s_mov_b64 exec, 0x7f")
                e.vmem(f"buffer_load_dword v{t + 2}, v{vL16}, {WS}, s{sT3} offen sc1", "sample")
                e("s_mov_b64 exec, -1")
        self.down_half(e, ["0", "0"], hook, t, 0)
        e.lds(f"ds_write_b32 v{vPF}, v{vFL}")
        e("s_setprio 0")
        self.stamp(e, "dn")
        e(f"s_mul_i32 s{sT0}, s{sKH}, 7"); e(f"s_add_u32 s{sT0}, s{sT0}, s{sNG}"); e(f"s_lshl_b32 s{sT0}, s{sT0}, 10")
        e(f"s_add_u32 s{sT0}, s{sT0}, {WS_O}")
        e(f"s_lshl_b32 s{sT1}, s{sA5}, 15"); e(f"s_add_u32 s{sT1}, s{sT1}, s{sT0}")
        e(f"s_xor_b32 s{sT2}, s{sA5}, 4"); e(f"s_lshl_b32 s{sT2}, s{sT2}, 15"); e(f"s_add_u32 s{sT2}, s{sT2}, s{sT0}")
        e(f"v_xor_b32 v{vPF}, 8, v{vPF}")
        e.wait(vm="sample")
        e("s_mov_b64 exec, 0x7f")
        self.check_or_poll(e, vL16, f"s{sT3}", f"v_cmp_eq_u32 vcc, 0, v{t + 2}", t + 2)
        e("s_mov_b64 exec, -1")
        spin, got = self.lab("pair"), self.lab("paired")
        e(f"{spin}:")
        e(f"ds_read_b32 v{vSM}, v{vPF}")
        for i in range(4):
            e(f"ds_read_b128 {vr(vH + 4 * i, 4)}, v{t + 1} offset:{1024 * i}")
        e(f"s_add_u32 s{sSPIN}, s{sSPIN}, 1")
        e("s_waitcnt lgkmcnt(0)")
        e(f"v_cmp_ne_u32 vcc, 1, v{vSM}")
        e(f"s_cmp_gt_u32 s{sSPIN}, {SPIN_LIMIT}"); e(f"s_cbranch_scc1 {got}"); e(f"s_cbranch_vccnz {spin}")
        e(f"{got}:")
        e.ds = []
        self.tr(e, "pair", 1)
        for i in range(2):
            for r in range(8 * i, 8 * i + 8):
                e(f"v_add_f32 v{A0 + r}, v{A0 + r}, v{vH + r}")
            for r in range(4 * i, 4 * i + 4):
                e(f"v_cvt_pk_bf16_f32 v{A1 + r}, v{A0 + 2 * r}, v{A0 + 2 * r + 1}")
            self.publish(e, [f"buffer_store_dwordx4 {vr(A1 + 4 * i, 4)}, v{(vL16, t + 3)[i]}, {WS}, s{sT1} offen offset:{1024 * i}"])
        e(f"s_lshl_b32 s{sT0}, s{sW}, 11"); e(f"s_add_u32 m0, s{sT0}, {L_PART}")
        e(f"v_mov_b32 v{vFL}, 2")
        e.wait(vm="all")
        self.tr(e, "pack", 1)
        e("s_mov_b64 exec, 1")
        self.publish(e, [f"buffer_store_dword v{vFL}, v{vPA}, {WS}, s{sT5} offen"])
        self.poll(e, vPA, f"s{sT4}", f"v_cmp_ne_u32 vcc, 2, v{vSM}", vSM)
        e("s_mov_b64 exec, -1")
        self.tr(e, "ppoll", 1)
        self.dma4(e, WS, [vL16, t + 3], f"s{sT2}", n=2, fl="sc1")
        e.wait(vm="all")
        self.tr(e, "Br_", 1)
        e("s_barrier")

    SCHED = ["WXW.XWX|WX|WWX|WX|XQ|QQ|QQ|QQ",
             "WXW.X|WWX|WXQ|WXQ|WXQ|XQ|QQ|Q",
             "WXW.X|WWXQ|WXQ|WXQ|WXQ|XQ|QQ|",
             "WXW.X|WWQX|WQX|WQX|WQX|QQX|Q|",
             "WXW.X|WWQX|WQGX|WQX|WQGX|QQX|Q|",
             "WXW.X|WWQX|WQRX|WQRX|WQRX|QQX|Q|R",
             "WXW.X|WWX|WXWX|WX|XQ|QQ|QQ|QQ",
             "WXW.X|WW|XWQ|XWQ|XWQ|XQQ|XQQ|",
             "WXW.X|WWQX|WQGX|WQGX|WQGX|QQX|Q|"]

    def wvis(self):
        out, w = [], 0
        for ch in self.SCHED[self.p["sched"]]:
            if ch == "W": w += 1
            if ch == "X": out.append(w - 1)
        return out

    def role_S(self):
        e = Stream(); e.role = 1
        p = self.p
        vXA, vWA, vQA = [4, 5, 6, 7], [8, 9], 10
        sKX, sWB = sA5, sACT
        e(f"v_lshrrev_b32 v{t + 2}, 3, v{vLANE}"); e(f"v_bfe_u32 v{t}, v{vLANE}, 4, 1"); e(f"v_and_b32 v{t + 3}, 7, v{vLANE}")
        e(f"v_lshlrev_b32 v{t}, 2, v{t}"); e(f"v_xor_b32 v{t}, v{t}, v{t + 3}"); e(f"v_mul_u32_u24 v{t + 1}, 2688, v{t + 2}")
        e(f"v_lshl_add_u32 v{vWA[0]}, v{t}, 4, v{t + 1}"); e(f"v_add_u32 v{vWA[1]}, {8 * 2688 - 1024}, v{vWA[0]}")
        e(f"s_cmp_eq_u32 s{sG}, 7"); e(f"s_cselect_b32 s{sKC}, 0, s{sG}"); e(f"s_mov_b32 s{sKX}, s{sKC}")
        e(f"s_mul_i32 s{sT3}, s{sW}, {16 * 2688}"); e(f"s_add_u32 s{sT0}, s{sHEAD}, 7"); e(f"s_lshl_b32 s{sT0}, s{sT0}, 7")
        e(f"s_add_u32 s{sWB}, s{sT3}, s{sT0}"); e(f"s_cmp_lt_u32 s{sHEAD}, 14"); e(f"s_cselect_b32 s{sWB}, s{sWB}, 0x7f000000")
        e(f"s_lshl_b32 s{sT2}, s{sW}, 11")
        def x_setup():
            e(f"v_mul_u32_u24 v{t + 1}, 896, v{t + 2}")
            e(f"v_lshrrev_b32 v{t}, 1, v{t + 2}")
            e(f"v_xor_b32 v{t}, v{t}, v{t + 3}")
            e(f"v_lshl_add_u32 v{vXA[0]}, v{t}, 4, v{t + 1}")
            e(f"v_xor_b32 v{vXA[1]}, 64, v{vXA[0]}")
            e(f"v_add_u32 v{vXA[2]}, {16 * 896 - 2048}, v{vXA[0]}")
            e(f"v_add_u32 v{vXA[3]}, {24 * 896 - 3072}, v{vXA[1]}")
            e(f"v_add_u32 v{vXA[1]}, {8 * 896 - 1024}, v{vXA[1]}")
            self.ids(e, 0)
            e(f"s_mul_i32 s{sT4}, s{sMT}, {32 * 896}")
            self.srd(e, 8, 84, 2048 * 896)
        e("s_waitcnt lgkmcnt(0)")
        self.srd(e, 12, 86, 448 * 2688)
        def wkv(ic):
            e(f"s_add_u32 m0, s{sT2}, {LC + ic * 8192}")
            e(f"s_mul_i32 s{sT0}, s{sKC}, {64 * 2688}"); e(f"s_add_u32 s{sT0}, s{sT0}, s{sWB}")
            self.dma4(e, WQKV, vWA, f"s{sT0}", n=2)
            self.next_kc(e)
        def xch(ic):
            if ic == 0: x_setup()
            e(f"s_add_u32 m0, s{sT5}, {(ic % 4) * 16384}")
            e(f"s_lshl_b32 s{sT0}, s{sKX}, 7"); e(f"s_add_u32 s{sT0}, s{sT0}, s{sT4}")
            self.dma4(e, X_, vXA, f"s{sT0}", tag=("c", ic))
            self.next_kc(e, sKX)
        def wq(ic):
            e(f"s_lshr_b32 s{sT1}, s{sT2}, 1"); e(f"s_add_u32 m0, s{sT1}, {L_WQ + ic * 4096}")
            if ic == 0:
                e(f"s_cmp_eq_u32 s{sG}, 7"); e(f"s_cselect_b32 s{sWD}, 0, s{sG}")
            e(f"s_mul_i32 s{sT0}, s{sWD}, {64 * 2688}"); e(f"s_add_u32 s{sT0}, s{sT0}, s{sT3}")
            self.dma4(e, WQKV, [vQA], f"s{sT0}", n=1, tag="wq")
            self.next_kc(e, sWD)
        sNI = sM2
        def g_touch(c):
            e(f"s_add_u32 s{sT0}, s{sG}, {c}"); e(f"s_cmp_ge_u32 s{sT0}, 7"); e(f"s_cselect_b32 s{sT1}, 7, 0")
            e(f"s_sub_u32 s{sT0}, s{sT0}, s{sT1}"); e(f"s_mul_i32 s{sT0}, s{sT0}, {64 * 3584}"); e(f"s_add_u32 s{sT0}, s{sT0}, s{sNI}")
            self.touch(e, WG, f"s{sT0}", 28)
            e.vm.append(None)
        cnt = dict(W=0, X=0, Q=0, b=0, G=0, R=0)
        late = [False]
        def run(chars):
            for ch in chars:
                if ch == "W": wkv(cnt[ch])
                elif ch == "X":
                    assert cnt["X"] < 4 or cnt["b"] >= cnt["X"] - 2
                    xch(cnt[ch])
                elif ch == "Q":
                    wq(cnt[ch])
                elif ch == "G": g_touch(cnt[ch])
                elif ch == "R": rm_load(range(2 * cnt[ch], min(2 * cnt[ch] + 2, 7)))
                elif ch == "|":
                    ch = "b"
                    e.wait(vm=("c", cnt[ch]))
                    self.tr(e, f"got{cnt[ch]}", 4)
                    self.stamp(e, f"b{cnt[ch]}")
                    e("s_barrier")
                if ch in cnt:
                    if late[0]: self.tr(e, f"{ch}{cnt[ch]}", 4)
                    cnt[ch] += 1
        first, rest = self.SCHED[p["sched"]].split(".")
        run(first)
        self.ids(e, 1)
        self.late_setup(e)
        e(f"s_mul_i32 s{sT0}, s{sHEAD}, 56"); e(f"s_add_u32 s{sT3}, s{sT3}, s{sT0}")
        e(f"v_lshlrev_b32 v24, 7, v{vLANE}")
        self.stamp(e, "start")
        if p["pull"] or p["hg0"]:
            e(f"s_cmp_ge_u32 s{sJ}, 28"); e("s_cbranch_scc1 L_pull")
            e("L_pulled:")
            self.pull()
        self.rows64_src(e, [vQA], 2688, 0)
        vA, vRA, vRMr = [12, 13, 14, 15], 11, 160
        self.rows128_src(e, vA, 896, 64, lambda i: 8 * i)
        e(f"v_lshrrev_b32 v{vRA}, 3, v{vLANE}"); e(f"v_mul_u32_u24 v{vRA}, 896, v{vRA}")
        e(f"v_and_b32 v{t + 1}, 7, v{vLANE}"); e(f"v_lshl_add_u32 v{vRA}, v{t + 1}, 4, v{vRA}")
        def rm_load(r):
            e(f"s_lshl_b32 s{sT0}, s{sHEAD}, 2"); e(f"s_add_u32 s{sT0}, s{sT0}, s{sW}"); e(f"s_mul_i32 s{sT0}, s{sT0}, {7 * 896}")
            for i in r:
                e.vmem(f"buffer_load_dwordx4 {vr(vRMr + 4 * i, 4)}, v{vRA}, {WO}, s{sT0} offen offset:{128 * i}", "rm")
        def xr_load():
            e(f"s_lshl_b32 s{sT0}, s{sG}, 2"); e(f"s_add_u32 s{sT0}, s{sT0}, s{sMG}"); e(f"s_lshl_b32 s{sT0}, s{sT0}, 2")
            e(f"s_add_u32 s{sT0}, s{sT0}, s{sW}"); e(f"s_mul_i32 s{sT0}, s{sT0}, {16 * 896}")
            e(f"s_lshl_b32 s{sT1}, s{sNG}, 7"); e(f"s_add_u32 s{sT0}, s{sT0}, s{sT1}")
            e(f"s_cmp_lt_u32 s{sJ}, 28"); e(f"s_cselect_b32 s{sT0}, s{sT0}, 0x7f000000")
            e(f"s_add_u32 m0, s{sT2}, {L_XR}")
            self.dma4(e, X_, vA, f"s{sT0}", n=2, tag="rm")
        def o_touch():
            e(f"s_lshl_b32 s{sT0}, s{sG}, 5"); e(f"s_add_u32 s{sT0}, s{sT0}, s{sJ}"); e(f"s_lshl_b32 s{sT0}, s{sT0}, 2")
            e(f"s_add_u32 s{sT0}, s{sT0}, s{sW}"); e(f"s_lshl_b32 s{sT0}, s{sT0}, 11"); e(f"s_add_u32 s{sT0}, s{sT0}, {WS_O}")
            self.touch(e, WS, f"s{sT0}", 16)
        def h_touch():
            e(f"s_lshl_b32 s{sT1}, s{sG}, 5"); e(f"s_add_u32 s{sT1}, s{sT1}, s{sJ}"); e(f"s_lshl_b32 s{sT1}, s{sT1}, 2")
            e(f"s_add_u32 s{sT1}, s{sT1}, s{sW}"); e(f"s_mul_i32 s{sT0}, s{sT1}, {14 * 128}"); e(f"s_add_u32 s{sT0}, s{sT0}, {WS_H}")
            self.touch(e, WS, f"s{sT0}", 14)
            e(f"s_lshl_b32 s{sT0}, s{sT1}, 7"); e(f"s_add_u32 s{sT0}, s{sT0}, {WS_SS}")
            self.touch(e, WS, f"s{sT0}", 1)
        self.rows128_src(e, vGA, 3584, 64, lambda i: 8 * i)
        vV0, vV1, vXL = 16, 17, 21
        e(f"v_and_b32 v{t}, 31, v{vLANE}"); e(f"v_lshrrev_b32 v{t + 1}, 5, v{vLANE}")
        e(f"v_mul_u32_u24 v{vV0}, 7168, v{t + 1}"); e(f"v_lshl_add_u32 v{vV0}, v{t}, 4, v{vV0}")
        e(f"v_add_u32 v{vV1}, {WS_V + 14336 - 3072}, v{vV0}"); e(f"v_add_u32 v{vV0}, {WS_V - 2048}, v{vV0}")
        e(f"v_bfe_u32 v{vXL}, v{vLANE}, 1, 1"); e(f"v_xor_b32 v{vXL}, s{sKH}, v{vXL}"); e(f"v_lshlrev_b32 v{vXL}, 6, v{vXL}")
        e(f"v_lshl_add_u32 v{vXL}, v{t}, 7, v{vXL}"); e(f"v_lshl_add_u32 v{vXL}, v{t + 1}, 3, v{vXL}")
        e(f"s_lshl_b32 s{sT0}, s{sMI}, 12"); e(f"s_add_u32 s{sT0}, s{sT0}, {L_XR}"); e(f"v_add_u32 v{vXL}, s{sT0}, v{vXL}")
        self.w5_base(e, vW5t)
        e(f"s_mul_i32 s{sT0}, s{sKH}, {224 * 128}"); e(f"s_add_u32 s{sT0}, s{sT0}, {L_WO}")
        for k in range(2):
            e(f"v_add_u32 v{vW5t[k]}, s{sT0}, v{vW5t[k]}")
        near = [0, 1, 3, 5, 7, 8, 10, 12]
        tab = sum((near.index(h) if h in near else 15) << (4 * h) for h in range(16))
        e(f"s_mov_b32 s{sNI}, {tab & 0xffffffff}"); e(f"s_mov_b32 s{sNI + 1}, {tab >> 32}"); e(f"s_lshl_b32 s{sT0}, s{sHEAD}, 2")
        e(f"s_lshr_b64 s[{sNI}:{sNI + 1}], s[{sNI}:{sNI + 1}], s{sT0}"); e(f"s_and_b32 s{sT0}, s{sNI}, 15")
        e(f"s_and_b32 s{sNI}, s{sRB}, 1"); e(f"s_lshl_b32 s{sNI}, s{sNI}, 3"); e(f"s_add_u32 s{sNI}, s{sNI}, s{sT0}")
        e(f"s_lshl_b32 s{sNI}, s{sNI}, 2"); e(f"s_add_u32 s{sNI}, s{sNI}, s{sW}"); e(f"s_mul_i32 s{sNI}, s{sNI}, 3584")
        e(f"s_cmp_lt_u32 s{sT0}, 8"); e(f"s_cselect_b32 s{sNI}, s{sNI}, 0x7f000000")
        late[0] = True
        self.tr(e, "setup", 4)
        run(rest)
        e("s_branch L_pgS_skip")
        e("L_page0:")
        e("L_pgS_skip:")
        cnt.pop("G")
        assert cnt["W"] == 7 and cnt["X"] == 7 and cnt["b"] == 7, cnt
        e(f"s_mul_i32 s{sT4}, s{sMT}, 28672"); e(f"s_mul_i32 s{sT0}, s{sHEAD}, 448"); e(f"s_add_u32 s{sT4}, s{sT4}, s{sT0}")
        aOwn, aOth, vWf, vO = vRES, 224, vH, 160
        e(f"s_lshl_b32 s{sML}, s{sMG}, 1"); e(f"s_add_u32 s{sML}, s{sML}, s{sMI}")
        e(f"s_lshl_b32 s{sMT}, s{sG}, 3"); e(f"s_add_u32 s{sMT}, s{sMT}, s{sML}")
        def wo_dma(grp):
            rows = 32 if grp < 3 else 16
            e(f"s_mul_i32 s{sT0}, s{sW}, {rows * 128}"); e(f"s_add_u32 m0, s{sT0}, {L_WO + grp * 16384}")
            e(f"s_mul_i32 s{sT0}, s{sW}, {rows * 896}"); e(f"s_lshl_b32 s{sT1}, s{sNG}, 7"); e(f"s_add_u32 s{sT0}, s{sT0}, s{sT1}")
            e(f"s_add_u32 s{sT0}, s{sT0}, {grp * 128 * 896}")
            self.dma4(e, WO, vA, f"s{sT0}", n=rows // 8, tag="wo")
        if p["otouch"] == 0:
            o_touch(); h_touch(); e.vm += [None] * 3
        if p["hg1"]:
            nohg = self.lab("nohg")
            e(f"s_cmp_lt_u32 s{sJ}, 28"); e(f"s_cbranch_scc1 {nohg}")
            e("s_waitcnt vmcnt(0)")
            self.chunk_touch(e, WG, range(p["hg0"], p["hg0"] + p["hg1"]))
            e(f"s_branch {nohg}_done")
            e(f"{nohg}:")
        self.visit(e, 1)
        e.wait(vm="wq")
        if p["hg1"]: e(f"{nohg}_done:")
        self.stamp(e, "wq")
        e("s_barrier")
        self.stamp(e, "Bkv")
        gate = self.gu_ops(e, WG, L_GATE, range(7 - p["glate"]), "gate")
        nogate = self.lab("nogate")
        qlate = 7 - cnt["Q"]
        run("Q" * qlate)
        rm_load(range(min(2 * cnt["R"], 7), 7)); xr_load()
        if qlate:
            e.wait(vm="wq")
            e("s_barrier")
        e(f"s_cmp_ge_u32 s{sJ}, 28"); e(f"s_cbranch_scc1 {nogate}")
        self.tr(e, "rmi", 2)
        n0 = min(p["gdep"] + 1, 2 * p["g1"]) if p["rmat"] else 2 * p["g1"]
        self.paced(e, gate[:n0], p["gdep"])
        back = self.lab("gated")
        e(f"{back}:")
        tl = Stream(); tl(f"{nogate}:")
        if p["ctouch"] & 1: self.code_touch(tl)
        tl("s_waitcnt vmcnt(0)")
        self.chunk_touch(tl, WG, range(p["hg0"] + p["hg1"], p["hg0"] + p["hg1"] + p["hg2"]))
        if p["hoh"] & 1: self.group_touch(tl, WS_O, 128, 2)
        tl(f"s_branch {back}")
        self.pull_code += tl.L
        e("s_waitcnt vmcnt(%d)" % min(p["gdep"] + 1, 2 * p["g1"]))
        for i in range(28):
            acc = t + (i & 1)
            e(f"v_lshlrev_b32 v{t + 2}, 16, v{vRMr + i}"); e(f"v_and_b32 v{t + 3}, 0xffff0000, v{vRMr + i}")
            if i < 2:
                e(f"v_add_f32 v{acc}, v{t + 2}, v{t + 3}")
            else:
                e(f"v_add_f32 v{acc}, v{acc}, v{t + 2}"); e(f"v_add_f32 v{acc}, v{acc}, v{t + 3}")
        e(f"v_add_f32 v{t}, v{t}, v{t + 1}")
        for d in ("quad_perm:[1,0,3,2]", "quad_perm:[2,3,0,1]", "row_half_mirror"):
            e(f"v_add_f32_dpp v{t}, v{t}, v{t} {d} row_mask:0xf bank_mask:0xf")
        e(f"v_mul_f32 v{t}, {f32(1 / 448)}, v{t}")
        e(f"s_mov_b32 s{sM1}, 0"); e(f"s_mov_b32 s{sM1 + 1}, 0xff000000")
        e(f"v_cndmask_b32 v{t}, v{t}, 0, s[{sM1}:{sM1 + 1}]")
        e(f"s_mul_i32 s{sT0}, s{sW}, 7"); e(f"s_add_u32 s{sT1}, s{sW}, 28")
        e(f"v_lshrrev_b32 v{t + 1}, 3, v{vLANE}"); e(f"v_add_u32 v{t + 1}, s{sT0}, v{t + 1}")
        e(f"v_mov_b32 v{t + 2}, s{sT1}")
        e(f"v_cndmask_b32 v{t + 1}, v{t + 1}, v{t + 2}, s[{sM1}:{sM1 + 1}]")
        e(f"v_lshlrev_b32 v{t + 1}, 2, v{t + 1}"); e(f"v_add_u32 v{t + 1}, {L_MISC}, v{t + 1}")
        e.lds(f"ds_write_b32 v{t + 1}, v{t}")
        self.tr(e, "rm", 2)
        if n0 < 2 * p["g1"]:
            sk = self.lab("nogate")
            e(f"s_cmp_ge_u32 s{sJ}, 28"); e(f"s_cbranch_scc1 {sk}")
            for op in gate[n0:2 * p["g1"]]:
                e(f"s_waitcnt vmcnt({p['gdep']})")
                op()
            e(f"{sk}:")
        e.wait(ds="all")
        self.stamp(e, "pre")
        e("s_barrier")
        self.tr(e, "Bk", 2)
        e("s_mov_b32 exec_lo, 0x0fffffff"); e("s_mov_b32 exec_hi, 0x0fffffff")
        for u in range(3):
            e(f"s_sub_u32 s{sT1}, s{sT4}, {(8 - 4 * u) * 28672}")
            if u < 2:
                e(f"s_cmp_ge_u32 s{sRB}, {2 - u}"); e(f"s_cselect_b32 s{sT1}, s{sT1}, 0x7f000000")
            e(f"s_add_u32 m0, s{sT5}, {u * 16384}")
            e.vmem(f"buffer_load_dwordx4 v{vV0}, {WS}, s{sT1} offen offset:2048 sc1 lds", "vt")
            e.vmem(f"buffer_load_dwordx4 v{vV1}, {WS}, s{sT1} offen offset:3072 sc1 lds", "vt")
        e("s_mov_b64 exec, -1")
        def oh_touch():
            if not (p["ohwt"] | p["hoh"]) & 1:
                o_touch(); e.vm += [None]
            if not (p["ohwt"] | p["hoh"]) & 2:
                h_touch(); e.vm += [None] * 2
        self.oh_touch = oh_touch
        e(f"s_cmp_ge_u32 s{sJ}, 28"); e("s_cbranch_scc1 L_helper")
        self.tr(e, "vi", 2)
        for a in range(4):
            e.lds(f"ds_read_b64 {vr(aOth + 2 * a, 2)}, v{vXL} offset:{16 * a}")
        wo_dma(0)
        e.wait(ds="all")
        for i in range(8):
            e(f"v_lshlrev_b32 v{aOwn + 2 * i}, 16, v{aOth + i}")
            e(f"v_and_b32 v{aOwn + 2 * i + 1}, 0xffff0000, v{aOth + i}")
        e(f"v_mov_b32 v{t}, 0xbf80bf80")
        self.tr(e, "Batt_", 2)
        e("s_barrier")
        self.stamp(e, "Batt")
        wo_dma(1); wo_dma(2); wo_dma(3)
        self.tr(e, "wo", 2)
        rest = gate[2 * p["g1"]:]
        if p["otouch"] == 2: self.oh_touch()
        for op in rest[:2 * p["gpre"]]: op()
        e.wait(vm="vt" if p["m2"] >= 0 else "wo")
        self.tr(e, "Bm_", 2)
        e("s_barrier")
        self.stamp(e, "Bm")
        if p["otouch"] == 3: self.oh_touch()
        for op in rest[2 * p["gpre"]:]: op()
        for c in range(p["upa"]):
            e(f"s_add_u32 s{sT0}, s{sG}, {c}"); e(f"s_cmp_ge_u32 s{sT0}, 7"); e(f"s_cselect_b32 s{sT1}, 7, 0")
            e(f"s_sub_u32 s{sT0}, s{sT0}, s{sT1}"); e(f"s_mul_i32 s{sT0}, s{sT0}, 112"); e(f"s_lshl_b32 s{sT1}, s{sJ}, 2")
            e(f"s_add_u32 s{sT0}, s{sT0}, s{sT1}"); e(f"s_add_u32 s{sT0}, s{sT0}, s{sW}"); e(f"s_lshl_b32 s{sT0}, s{sT0}, 11")
            self.touch(e, WU, f"s{sT0}", 16)
            e.vm.append(None)
        self.tr(e, "gi", 2)
        if p["m2"] >= 0:
            e.wait(vm="wo")
            e("s_barrier")
            self.tr(e, "Bm2", 2)
        for st in range(16):
            for k in range(2):
                self.trd(e, vWf + 8 * st + 4 * k, vW5t[k], (28 * (st >> 1) + 16 * (st & 1)) * 128, 1024, None)
        if p["sprio"]: e("s_setprio 1")
        self.mode_issue(e, 3, 22)
        e.wait(ds="all")
        self.tr(e, "wfr", 2)
        for st in range(1, 16, 2):
            for k in range(2):
                r = vWf + 8 * st + 4 * k
                e(f"v_cndmask_b32 v{r + 2}, v{r + 2}, v{t}, {HI}")
                e(f"v_cndmask_b32 v{r + 3}, v{r + 3}, 0, {HI}")
        self.tr(e, "fix", 2)
        self.mode_check(e, 3, 22)
        self.stamp(e, "gu")
        if self.stop > 2:
            self.out_proj(e, aOwn, aOth, vWf, vO)
        if self.stop > 3:
            self.ffn_S(e)
        self.finish(e, 1)
        self.helper(e)
        return e

    def pull(self):
        e = Stream(); e.role = 1
        e("L_pull:")
        e(f"s_lshl_b32 s{sT1}, s{sG}, 2"); e(f"s_add_u32 s{sT1}, s{sT1}, s{sJ}"); e(f"s_sub_u32 s{sT1}, s{sT1}, 28")
        e(f"s_lshl_b32 s{sT1}, s{sT1}, 2"); e(f"s_add_u32 s{sT1}, s{sT1}, s{sW}")
        for u in range(self.p["pull"]):
            srd, half = ((WG, 0), (WG, 1), (WU, 0), (WU, 1), (WD, 0), (WD, 1))[u]
            e(f"s_mul_i32 s{sT0}, s{sT1}, {98 * 128}")
            if half: e(f"s_add_u32 s{sT0}, s{sT0}, {49 * 128}")
            self.touch(e, srd, f"s{sT0}", 49)
        self.chunk_touch(e, WG, range(self.p["hg0"]))
        e("s_branch L_pulled")
        self.pull_code = e.L

    def code_touch(self, e):
        lb = self.lab("pc")
        e("s_getpc_b64 s[100:101]")
        e(f"{lb}:")
        e(f"s_sub_u32 s100, s100, {lb}-{NAME}"); e("s_subb_u32 s101, s101, 0")
        e(f"s_sub_u32 s{sT0}, s{sJ}, 28"); e(f"s_lshl_b32 s{sT0}, s{sT0}, 2"); e(f"s_add_u32 s{sT0}, s{sT0}, s{sW}")
        e(f"s_mul_i32 s{sT0}, s{sT0}, 3328")
        e(f"v_add_u32 v25, s{sT0}, v24"); e(f"v_min_u32 v25, L_end-{NAME}-4, v25")
        e("s_mov_b64 exec, 0x3ffffff")
        e("global_load_dword v25, v25, s[100:101] sc1")
        e("s_mov_b64 exec, -1")

    def group_touch(self, e, base, lines, n):
        e(f"s_lshl_b32 s{sT0}, s{sG}, 2"); e(f"s_add_u32 s{sT0}, s{sT0}, s{sJ}"); e(f"s_sub_u32 s{sT0}, s{sT0}, 28")
        e(f"s_lshl_b32 s{sT0}, s{sT0}, 2"); e(f"s_add_u32 s{sT0}, s{sT0}, s{sW}"); e(f"s_mul_i32 s{sT0}, s{sT0}, {lines * 128}")
        e(f"s_add_u32 s{sT0}, s{sT0}, {base}")
        for i in range(n):
            if i: e(f"s_add_u32 s{sT0}, s{sT0}, {lines // n * 128}")
            self.touch(e, WS, f"s{sT0}", lines // n)

    def chunk_touch(self, e, srd, cs):
        for c in cs:
            e(f"s_add_u32 s{sT0}, s{sG}, {c}"); e(f"s_cmp_ge_u32 s{sT0}, 7"); e(f"s_cselect_b32 s{sT1}, 14, 7")
            e(f"s_sub_u32 s{sT0}, s{sT0}, s{sT1}"); e(f"s_lshl_b32 s{sT0}, s{sT0}, 2"); e(f"s_add_u32 s{sT0}, s{sT0}, s{sJ}")
            e(f"s_lshl_b32 s{sT0}, s{sT0}, 2"); e(f"s_add_u32 s{sT0}, s{sT0}, s{sW}"); e(f"s_mul_i32 s{sT0}, s{sT0}, {4 * 3584}")
            self.touch(e, srd, f"s{sT0}", 56); e(f"s_add_u32 s{sT0}, s{sT0}, {56 * 128}"); self.touch(e, srd, f"s{sT0}", 56)

    def cold_pull(self, e, srd):
        e(f"s_lshl_b32 s{sT0}, s{sG}, 2"); e(f"s_add_u32 s{sT0}, s{sT0}, s{sJ}"); e(f"s_sub_u32 s{sT0}, s{sT0}, 28")
        e(f"s_lshl_b32 s{sT0}, s{sT0}, 2"); e(f"s_add_u32 s{sT0}, s{sT0}, s{sW}"); e(f"s_mul_i32 s{sT0}, s{sT0}, {98 * 128}")
        self.touch(e, srd, f"s{sT0}", 49); e(f"s_add_u32 s{sT0}, s{sT0}, {49 * 128}"); self.touch(e, srd, f"s{sT0}", 49)

    def helper(self, e):
        e("L_helper:")
        e.vm, e.ds = [], []
        p = self.p
        e("s_barrier")
        if p["otouch"]: self.oh_touch()
        if p["hoh"] & 2:
            self.group_touch(e, WS_H, 112, 2); self.group_touch(e, WS_SS, 8, 1)
            e.vm += [None] * 3
        self.touch(e, WS, f"s{sFX}", 28)
        e(f"s_waitcnt vmcnt({len(e.vm) + 1})")
        e("s_barrier")
        if p["hp2"]: self.cold_pull(e, WD)
        if p["m2"] >= 0: e("s_barrier")
        sHI_ = sKC
        e(f"s_sub_u32 s{sHI_}, s{sJ}, 28"); e(f"s_lshl_b32 s{sHI_}, s{sHI_}, 2"); e(f"s_add_u32 s{sHI_}, s{sHI_}, s{sW}")
        e("s_barrier")
        if p["ctouch"] & 2:
            e("s_waitcnt vmcnt(0)")
            self.code_touch(e)
        if p["hcp"] & 1: self.cold_pull(e, WU)
        if p["hcp"] & 2: self.cold_pull(e, WD)
        self.chunk_touch(e, WG, range(7 - p["glate"], 7))
        self.chunk_touch(e, WU, range(p["upa"], p["hup"]))
        if p["hcp"] & 4: self.cold_pull(e, WD)
        def wd_touch(tile):
            for u in range(4):
                e(f"s_add_u32 s{sT2}, s{sHI_}, {16 * u}"); e(f"s_lshl_b32 s{sT0}, s{sG}, 3"); e(f"s_add_u32 s{sT2}, s{sT2}, s{sT0}")
                e(f"s_and_b32 s{sT2}, s{sT2}, 63")
                e(f"s_lshr_b32 s{sT0}, s{sT2}, 1"); e(f"s_mul_i32 s{sT0}, s{sT0}, {64 * 896}")
                e(f"s_and_b32 s{sT2}, s{sT2}, 1"); e(f"s_mul_i32 s{sT2}, s{sT2}, {8 * 896}")
                e(f"s_add_u32 s{sT0}, s{sT0}, s{sT2}"); e(f"s_add_u32 s{sT0}, s{sT0}, {16 * tile * 896}")
                self.touch(e, WD, f"s{sT0}", 56)
        for tile in f"{p['word']:04d}"[:p["hwd"]]:
            wd_touch(int(tile))
        if not p["swt"]:
            e(f"s_lshl_b32 s{sT0}, s{sG}, 4"); e(f"s_add_u32 s{sT0}, s{sT0}, s{sHI_}"); e(f"s_mul_i32 s{sT0}, s{sT0}, 28672")
            e(f"s_add_u32 s{sT0}, s{sT0}, {WS_ACT}")
            for i in range(4):
                self.touch(e, WS, f"s{sT0}", 56); e(f"s_add_u32 s{sT0}, s{sT0}, {56 * 128}")
        if p["ctouch"] & 4:
            e("s_waitcnt vmcnt(0)")
            self.code_touch(e)
        if p.get("trace"): e("s_endpgm")
        else: self.finish(e, 1)

    def out_proj(self, e, aOwn, aOth, vWf, vO):
        e(f"v_lshlrev_b32 v{t}, 2, v{vLANE}")
        e(f"s_lshl_b32 s{sT0}, s{sML}, 2"); e(f"s_add_u32 s{sT0}, s{sT0}, s{sKH}"); e(f"s_lshl_b32 s{sT0}, s{sT0}, 5")
        e(f"s_add_u32 s{sT0}, s{sT0}, s{sFX}")
        e(f"s_lshl_b32 s{sT2}, s{sMT}, 1"); e(f"s_add_u32 s{sT2}, s{sT2}, s{sKH}"); e(f"s_lshl_b32 s{sT2}, s{sT2}, 14")
        e(f"s_add_u32 s{sT2}, s{sT2}, {WS_O}")
        e(f"s_lshl_b32 s{sT1}, s{sNG}, 1"); e(f"s_add_u32 s{sT1}, s{sT1}, s{sKH}")
        e(f"s_mul_i32 s{sT4}, s{sMT}, 14"); e(f"s_add_u32 s{sT4}, s{sT4}, s{sT1}"); e(f"s_lshl_b32 s{sT4}, s{sT4}, 11")
        e(f"s_add_u32 s{sT4}, s{sT4}, {WS_H}")
        e(f"s_lshl_b32 s{sT5}, s{sMT}, 4"); e(f"s_add_u32 s{sT5}, s{sT5}, s{sT1}"); e(f"s_lshl_b32 s{sT5}, s{sT5}, 7")
        e(f"s_add_u32 s{sT5}, s{sT5}, {WS_SS}")
        e(f"s_lshl_b32 s{sT3}, s{sML}, 5"); e(f"s_add_u32 s{sT3}, s{sT3}, s{sT1}"); e(f"s_lshl_b32 s{sT3}, s{sT3}, 2")
        e(f"s_add_u32 s{sT3}, s{sT3}, s{sFX}")
        e("s_mov_b64 exec, 0xff")
        self.poll(e, t, f"s{sT0}", f"v_cmp_ne_u32 vcc, 1, v{t + 1}", t + 1)
        e("s_mov_b64 exec, -1")
        self.stamp(e, "opoll")
        def oload(st):
            e.vmem(f"buffer_load_dwordx4 {vr(vO + 4 * st, 4)}, v{vL16}, {WS}, s{sT2} offen offset:{1024 * (st & 3)} sc1", ("o", st))
            if st & 3 == 3: e(f"s_add_u32 s{sT2}, s{sT2}, 4096")
            if st == 15: e("s_barrier")
        PRE = self.p["opre"]
        for st in range(PRE):
            oload(st)
        e(f"s_lshl_b32 s{sT0}, s{sW}, 12"); e(f"v_add_u32 v{t}, s{sT0}, v{vL16}"); e(f"v_xor_b32 v{t + 1}, 8192, v{t}")
        LAG = self.p["olag"]
        for st in range(16 + LAG):
            if st < 16:
                e.wait(vm=("o", st))
                self.mf(e, aOth, vWf + 8 * st + 4, vO + 4 * st, "0" if st == 0 else None)
                if st + PRE < 16: oload(st + PRE)
            if st >= LAG:
                self.mf(e, aOwn, vWf + 8 * (st - LAG), vO + 4 * (st - LAG))
            if st == 15 + LAG - 1 or LAG == 0 and st == 15:
                self.stamp(e, "omm")
                for i in range(4):
                    e.lds(f"ds_write_b128 v{t}, {vr(aOth + 4 * i, 4)} offset:{LA + 1024 * i}")
        e.wait(ds="all")
        e("s_barrier")
        self.stamp(e, "Bx")
        for i in range(4):
            e.lds(f"ds_read_b128 {vr(aOth + 4 * i, 4)}, v{t + 1} offset:{LA + 1024 * i}", ("x", i))
        PK = vH
        def sq(r):
            if r == 0: e(f"v_pk_mul_f32 {vr(t + 2, 2)}, {vr(aOwn, 2)}, {vr(aOwn, 2)}")
            else: e(f"v_pk_fma_f32 {vr(t + 2, 2)}, {vr(aOwn + r, 2)}, {vr(aOwn + r, 2)}, {vr(t + 2, 2)}")
        for i in range(4):
            e.wait(ds=("x", i))
            for k in (0, 2):
                r = 4 * i + k
                e(f"v_pk_add_f32 {vr(aOwn + r, 2)}, {vr(aOwn + r, 2)}, {vr(aOth + r, 2)}")
            for k in (0, 2):
                r = 4 * i + k
                e(f"v_cvt_pk_bf16_f32 v{PK + r // 2}, v{aOwn + r}, v{aOwn + r + 1}")
            if i & 1:
                self.publish(e, [f"buffer_store_dwordx4 {vr(PK + 2 * (i - 1), 4)}, v{vL16}, {WS}, s{sT4} offen offset:{512 * (i - 1)}"], wt=self.p["ohwt"] & 2)
            sq(4 * i); sq(4 * i + 2)
        self.stamp(e, "hst")
        e(f"v_add_f32 v{t + 2}, v{t + 2}, v{t + 3}")
        e(f"v_mov_b32 v{t + 3}, v{t + 2}")
        e(f"v_lshlrev_b32 v{t}, 2, v{vLANE}")
        e(f"v_permlane32_swap_b32 v{t + 2}, v{t + 3}")
        e(f"v_add_f32 v{t + 2}, v{t + 2}, v{t + 3}")
        e("s_mov_b32 exec_hi, 0")
        self.publish(e, [f"buffer_store_dword v{t + 2}, v{t}, {WS}, s{sT5} offen"], wt=self.p["ohwt"] & 2)
        e("s_mov_b64 exec, -1")
        e(f"v_mov_b32 v{t + 1}, 1"); e(f"v_mov_b32 v{t + 3}, {ONES}"); e(f"v_mov_b32 v{vMU2}, 0")
        for st in range(1, 16, 2):
            e(f"v_dot2c_f32_bf16 v{vMU2}, v{vO + 4 * st + 2}, v{t + 3}")
        e.wait(vm="all")
        e("s_mov_b64 exec, 1")
        self.publish(e, [f"buffer_store_dword v{t + 1}, v{t}, {WS}, s{sT3} offen offset:{FX_F3}"])
        e("s_mov_b64 exec, -1")
        self.stamp(e, "hpub")
        e(f"v_mov_b32 v{t + 3}, v{vMU2}")
        e(f"v_permlane32_swap_b32 v{t + 3}, v{vMU2}")
        for i in range(16):
            e(f"v_add_f32 v{aOwn + i}, v{vMU2}, v{aOwn + i}")
        e(f"s_xor_b32 s{sT0}, s{sW}, 2"); e(f"s_lshl_b32 s{sT0}, s{sT0}, 12"); e(f"v_add_u32 v{t + 1}, s{sT0}, v{vL16}")
        e(f"s_lshl_b32 s{sT0}, s{sW}, 8"); e(f"v_add_u32 v{t}, s{sT0}, v{t}")
        for i in range(4):
            e.lds(f"ds_write_b128 v{t + 1}, {vr(aOwn + 4 * i, 4)} offset:{L_RES + 1024 * i}")
        e.lds(f"ds_write_b32 v{t}, v{vMU2} offset:{L_MU}")

    def ffn_S(self, e):
        p = self.p
        full = self.stop > 4
        self.ffn_setup(e, 1)
        self.out_addr(e)
        self.gu_pre(e, 0, self.KMAJ)
        self.h_poll(e)
        self.paced(e, self.gu_ops(e, WU, L_UP, range(p["upe"], p["upe"] + p["ups"]), "up"), p["udep"])
        if p["q0e"] and full:
            assert not p["ssb"]
            self.wd_dma(e, [0])
        self.stamp(e, "Bh_")
        if p["bh"]: e("s_barrier")
        self.stamp(e, "Bh")
        e("s_setprio 1")
        def bb():
            e.wait(ds="all")
            self.stamp(e, "seg2")
            e("s_barrier")
        if p["cin"]:
            z = Stream(); self.gelu_consts(z)
            part = lambda a, b: (lambda: (e.wait(ds="ss"), [e(l) for l in z.L[a:b]]))
            extra = [lambda: self.ss_read(e), lambda: self.act_flag(e, 1), part(0, 6), lambda: (bb(), part(6, 11)()), part(11, 99)]
            self.first_pass(e, p["spre"], [lambda: None] * (p["spre"] - 6) + extra)
            self.stamp(e, "Bb")
        else:
            self.first_pass(e, p["spre"], [lambda: None] * (p["spre"] - 4) + [lambda: self.ss_read(e), bb])
            self.stamp(e, "Bb")
            self.act_flag(e, 1)
            self.gelu_consts(e)
        qops = self.wd_ops(e, [2]) if full and p["q2s"] else []
        while qops and p["q2at"] == -2: qops.pop(0)()
        if p["q2at"] == -3:
            self.gelu_gate(e, qops); qops = []
        else:
            self.gelu_gate(e)
        while qops and p["q2at"] < 0: qops.pop(0)()
        self.gu_pre(e, 1, self.TMAJ)
        self.stamp(e, "gelu2")
        def extra(n):
            if qops and n >= p["q2at"] and n & 1 == 0: qops.pop(0)()
            if n == 52 and full:
                e.wait(vm=("wd", 2), ds="all")
                self.stamp(e, "seg4")
                if p["bd"]: e("s_barrier")
                else: self.done_set(e)
        self.up_pass(e, -1, extra)
        self.stamp(e, "Bd")
        ops = self.prod_ops(e, 1)
        for op in ops[:6]: op()
        self.act_flag(e, 2)
        for op in ops[6:]: op()
        if not full:
            self.act_flag(e, 3)
            return
        A0, A1 = vACC, vACC + 16
        e(f"s_lshl_b32 s{sT0}, s{sW}, 12"); e(f"v_add_u32 v{t}, s{sT0}, v{vL16}"); e(f"v_xor_b32 v{t + 1}, 8192, v{t}")
        e(f"s_xor_b32 s{sT0}, s{sW}, 2"); e(f"s_lshl_b32 s{sT0}, s{sT0}, 8"); e(f"v_add_u32 v{t + 3}, s{sT0}, v{vPA}")
        for i in range(4):
            e.lds(f"ds_read_b128 {vr(A0 + 4 * i, 4)}, v{t + 1} offset:{L_RES + 1024 * i}")
        e.lds(f"ds_read_b32 v{vMU2}, v{t + 3} offset:{L_MU}")
        e(f"s_lshl_b32 s{sT0}, s{sW}, 11"); e(f"s_add_u32 s{sT0}, s{sT0}, {L_PART}"); e(f"v_add_u32 v{t + 2}, s{sT0}, v{vL16}")
        self.act_sample(e)
        e.wait(ds="all")
        for i in range(16):
            e(f"v_add_f32 v{A0 + i}, v{vMU2}, v{A0 + i}")
        self.act_flag(e, 3)
        self.act_check(e, 2)
        self.act_load(e, 0)
        self.act_sample(e)
        self.act_load(e, 1)
        if not p["bd"]: self.done_wait(e)
        self.down_pre(e)
        late = self.act_ops(e, 2) + self.act_ops(e, 3)
        def hook(n):
            if n == 0: self.act_check(e, 3)
            if n & 1 == 0 and late: late.pop(0)()
        self.down_half(e, [None, "0"], hook, t + 1, L_RES)
        self.stamp(e, "dn")
        e.wait(ds="all")
        e("s_barrier")
        self.tr(e, "Br", 1)
        P1, P2 = UACC[0], UACC[1]
        for i in range(4):
            if i & 1 == 0:
                e.lds(f"ds_read_b128 {vr(P2 + 2 * i, 4)}, v{t + 2} offset:{512 * i}", ("p", i))
            e.lds(f"ds_read_b128 {vr(A1 + 4 * i, 4)}, v{t} offset:{L_RES + 1024 * i}", ("x", i))
        PK = vH
        for i in range(4):
            e.wait(ds=("p", i))
            for k in (0, 2):
                r = 4 * i + k
                e(f"v_lshlrev_b32 v{P1 + r}, 16, v{P2 + r // 2}"); e(f"v_and_b32 v{P1 + r + 1}, 0xffff0000, v{P2 + r // 2}")
            e.wait(ds=("x", i))
            for src in (A1, P1):
                for k in (0, 2):
                    r = 4 * i + k
                    e(f"v_pk_add_f32 {vr(A0 + r, 2)}, {vr(A0 + r, 2)}, {vr(src + r, 2)}")
            for k in (0, 2):
                r = 4 * i + k
                e(f"v_cvt_pk_bf16_f32 v{PK + r // 2}, v{A0 + r}, v{A0 + r + 1}")
            if i & 1:
                b = PK + 2 * (i - 1)
                e(f"v_permlane32_swap_b32 v{b}, v{b + 2}")
                e(f"v_permlane32_swap_b32 v{b + 1}, v{b + 3}")
                e.vmem(f"buffer_store_dwordx4 {vr(b, 4)}, v{vXO}, {OUT}, s{sXO} offen offset:{16 * (i - 1)}")

    def build(self):
        e = Stream()
        self.prologue(e)
        S = self.role_S()
        L = self.role_L()
        cs, cl = S.L.index("L_page0:"), L.L.index("L_setup_end:")
        body = (e.L + S.L[:cs] + ["L_roleL:"] + L.L[:cl] + S.L[cs:] + L.L[cl:] + ["L_tail:"] + self.tail
                + ["L_exit:", "s_endpgm", "L_end:"])
        at = body.index("L_pgS_skip:")
        body[at:at] = self.pull_code
        body, nops = pad_hazards(body)
        vis = [f"L_visit{g}_{w}:" for g in range(2) for w in range(4)]
        body, n = paginate(body + vis, NAME, "L_page0", "L_tail", self.p["align"])
        body = body[:len(body) - len(vis)]
        pos = {k: body.index(f"L_pg{k}:") for k in range(n)}
        l0, l1 = body.index("L_setup_end:"), body.index("L_qdone:")
        groups = [[f"L_pg{k}" for k in range(n) if l0 < pos[k] < l1], [f"L_pg{k}" for k in range(n) if not l0 < pos[k] < l1]]
        alias = {}
        for g, pg in enumerate(groups):
            for w in range(4):
                chain = pg[w::4] + [f"L_visit{g}_back"]
                alias[f"L_visit{g}_{w}"] = chain[0]
                for x, y in zip(chain, chain[1:]):
                    alias[x + "_next"] = y
        def fix(l):
            parts = l.split()
            return f"{parts[0]} {alias[parts[1]]}" if len(parts) == 2 and parts[1] in alias else l
        body = [fix(l) for l in body]
        head = open("sequential_preLN__sliding_block__geglu_ffn__prompt.s.ref").read().splitlines()
        cm = [l for l in head if l.startswith(";") and "@launch" not in l]
        out = cm + ["; @launch grid=(256,1,1) block=(512,1,1) lds=163840",
                    '.amdgcn_target "amdgcn-amd-amdhsa--gfx950"', ".text", f".globl {NAME}", ".p2align 12", ".p2align 8",
                    f".type {NAME},@function", f"{NAME}:"]
        out += [("" if l.endswith(":") else "    ") + l for l in body]
        out += ['.section .rodata,"a"', ".p2align 6", f".amdhsa_kernel {NAME}",
                "  .amdhsa_next_free_vgpr 256", "  .amdhsa_next_free_sgpr 102", "  .amdhsa_accum_offset 256",
                "  .amdhsa_group_segment_fixed_size 0", "  .amdhsa_kernarg_size 80", "  .amdhsa_user_sgpr_count 2",
                "  .amdhsa_user_sgpr_kernarg_segment_ptr 1", "  .amdhsa_system_sgpr_workgroup_id_x 1",
                ".end_amdhsa_kernel", ""]
        self.nops = nops
        return "\n".join(out)

if __name__ == "__main__":
    import argparse
    ap = argparse.ArgumentParser()
    ap.add_argument("-o", default="sequential_preLN__sliding_block__geglu_ffn__prompt.s")
    ap.add_argument("--stop", type=int, default=99)
    ap.add_argument("--stamps", action="store_true")
    ap.add_argument("--slow", action="store_true")
    ap.add_argument("-p", action="append", default=[])
    a = ap.parse_args()
    kw = {k: int(v) for k, v in (x.split("=") for x in a.p)}
    g = Gen(a.stop, a.stamps, a.slow, **kw)
    s = g.build()
    open(a.o, "w").write(s)
    print("lines", s.count("\n"), "nops", g.nops)
```

```python
import math, struct, sys
from asmlib import Stream, vr, sr, pad_hazards, paginate

NAME = "sequential_preLN__sliding_block__geglu_ffn__prompt_kernel"
MB = 1 << 20
WS_K, WS_V, WS_O, WS_H, WS_SS, WS_ACT = 0, 2 * MB, 4 * MB, 6 * MB, 6 * MB + 1792 * 1024, 8 * MB
WS_F1, WS_FX, WS_STAMP, WS_SIZE = 16 * MB, 16 * MB + 131072, 17 * MB, 18 * MB
FX_F2, FX_F3, FX_F4, FX_F6, FX_F0 = 0, 1024, 2048, 3072, 3584
LA, LB, LC = 0, 49152, 106496
L_WQ, L_MISC = LB + 16384, LB + 45056
L_GATE, L_UP, L_WO = LC, LB, LB
SLOT = [LA + 20480, LC, LC + 28672, LB]
L_RES, L_MU, L_PF, L_XCH5, L_PART = LA, LA + 16384, LA + 17408, LB + 28672, LB + 28672 + 16384
L_CS, L_XR = L_MISC + 1024, L_MISC + 4096
ACTLOC = [[(WS_O, 32768), (WS_H, 28672)], [(WS_ACT, 57344), (WS_ACT + 28672, 57344)]]
X_, WQKV, WO, WG, WU, WD, OUT, DBG, WS = (sr(b, 4) for b in (8, 12, 16, 20, 24, 28, 32, 36, 40))
sXO = 3
sG, sJ, sW, sHEAD, sRB, sXCC, sMODE, sSPIN = 44, 45, 46, 48, 49, 50, 51, 52
sT0, sT1, sT2, sT3, sT4, sT5, sA5 = 53, 54, 55, 56, 57, 58, 59
sHI, sM1, sM2, sM3 = 60, 62, 64, 66
sMT, sKC, sPAR, sML, sMG, sNG, sKH, sMI, sHF, sFX, sACT, sWD = range(68, 80)
sF4P, sF4C, sAC2 = sHEAD, sRB, sKC
sWL = sM1
sST = 80
vLANE, vL16 = 1, 2
vH, vACC, vRING, vTMP, vSS, vRES = 32, 144, 192, 220, 228, 240
vD, vP, vW5 = [4, 5, 6, 7], [8, 9, 10, 11], [12, 13]
vK1, vK2, vRI, vMU2, vW5t, vXO = 14, 15, 16, 17, [18, 19], 20
vPA, vPR, vSM, vFL, vGA = 21, 22, 23, 3, [30, 31]
UACC = [vACC + 32, vRES]
t = 26
NR = 7
BIG = 0xF149F2CA
ONES = 0x3F803F80
SPIN_LIMIT = 0x400000
HI = f"s[{sHI}:{sHI + 1}]"

def f32(x):
    return struct.unpack("<I", struct.pack("<f", x))[0]

class Gen:
    def __init__(self, stop=99, stamps=False, force_slow=False, **kw):
        self.stop, self.stamps, self.force_slow = stop, stamps, force_slow
        self.p = dict(f1_at=8, rot=0, sched=1, pull=0, act_wt=1, pre=12, spre=14, opre=5, hwd=0,
                      g1=4, gdep=3, m2at=17, otouch=3, upe=2, ups=2, udep=3, s2at=-14, hp1=0, hp2=0, hup=7, fl1=53, align=1, tlb=0, ksplit=1, ctouch=0, ohwt=0, outfl=0, wb=0, ssb=1, ptouch=0, swt=1, c3at=2, uper=1, word=3210, q2s=1, x3at=42, hcp=4, upa=0, ltouch=0, bmat=10, exact=0, qk0=3, sprio=1, gpre=2, bh=1, lord=0, sord=1, q2at=8, q0e=0, pages=2, ft=0, nt=0, hoh=2, olag=3, dlast=1, batt=2, m2=14, kfast=10, qfat=28, cin=1, bd=1, bq=10, hg0=0, hg1=0, hg2=0, glate=0, rmat=1, gs=1, gb=3, dot=1, dgrp=2)
        self.p.update(kw)
        self.tail = []
        self.trn = ([], [])
        self.pull_code = []
        self.nlab = 0

    def lab(self, n):
        self.nlab += 1
        return f"L_{n}_{self.nlab}"

    PROF = {
        0: (["start", "b0", "kv", "Bkv", "q", "f1", "Batt", "att", "opub", "hpoll", "seg1", "Bb", "Bd", "X3"],
            ["start", "Bkv", "pre", "Bm", "gu", "opoll", "Bx", "hpub", "Bh", "Bb", "Bd"]),
        1: (["start", "hpoll", "seg1", "gelu1", "Bb", "seg3", "chk1", "Bd_", "Bd", "X3", "dn"],
            ["Bh_", "Bh", "hpre", "seg2", "Bb", "gelu2", "seg4", "Bd", "X3_", "dn"]),
        2: (["start", "f1", "Batt_", "Batt", "sub", "Bm", "pv", "att", "opub", "Bp", "Bx", "hpoll"],
            ["Bkv", "pre", "Batt", "Bm", "gu", "opoll", "omm", "Bx", "hst", "hpub", "Bh"]),
        3: (["start", "b0", "b1", "b2", "b3", "b4", "b5", "b6", "kv", "kvst", "Bkv", "fl1", "f1", "Batt", "entry"],
            ["start", "b0", "b1", "b2", "b3", "b4", "b5", "b6", "wq", "Bkv", "pre", "Batt", "-", "-", "entry"]),
    }

    LEAK = [None, "end", "start", "b0", "Bkv", "Batt", "opub", "hpoll", "Bb", "Bd", "f1", "kv"]

    def tr(self, e, name, zone):
        if not self.stamps or self.p.get("trace") != zone:
            return
        names = self.trn[e.role]
        k = len(names)
        if k >= 63: return
        names.append(name)
        e(f"s_memtime s[{82 + 2 * (k % 4)}:{83 + 2 * (k % 4)}]")
        if k >= 2:
            e(f"v_writelane_b32 v0, s{82 + 2 * ((k - 2) % 4)}, {k - 2}")

    ZONE = dict(hpoll=1, hpre=1, seg1=1, gelu1=1, Bb=1, seg3=1, chk1=1, Bd_=1, Bd=1, X3=1, X5=1, X6=1, X7=1, dn=1, Bh_=1, Bh=1,
                seg2=1, gelu2=1, seg4=1, fl2=1, X3_=1, X5_=1, X6_=1, X7_=1,
                start=3, b0=3, b1=3, b2=3, b3=3, b4=3, b5=3, b6=3, kv=3, wq=3)

    def stamp(self, e, name):
        if self.p.get("trace"):
            self.tr(e, name, self.ZONE.get(name, 2))
            return
        if e.role == 0 and name == self.LEAK[self.p.get("leak", 0)]:
            e("s_memrealtime s[82:83]")
        names = self.PROF[self.p.get("prof", 0)][e.role]
        if self.stamps and (name == "end" or name in names):
            i = 15 if name == "end" else names.index(name)
            e(f"{'s_memtime' if self.p.get('cyc') else 's_memrealtime'} s[{sST + 18}:{sST + 19}]")
            e("s_waitcnt lgkmcnt(0)")
            e(f"s_mov_b32 s{sST + i}, s{sST + 18}")
            e.ds = []

    def finish(self, e, role):
        if self.p.get("leak") and role == 0 and False:
            self.stamp(e, "end")
            lp, sk = self.lab("leak"), self.lab("noleak")
            e(f"s_cmp_ge_u32 s{sJ}, 28"); e(f"s_cbranch_scc1 {sk}")
            e("s_memrealtime s[84:85]"); e("s_waitcnt lgkmcnt(0)")
            e("s_sub_u32 s82, s82, s80")
            e(f"{lp}:")
            e("s_memrealtime s[86:87]"); e("s_waitcnt lgkmcnt(0)")
            e("s_sub_u32 s86, s86, s84"); e("s_cmp_lt_u32 s86, s82"); e(f"s_cbranch_scc1 {lp}")
            e(f"{sk}:")
        if self.stamps and self.p.get("trace"):
            self.tr(e, "end", self.p["trace"])
            k = len(self.trn[role])
            e("s_waitcnt lgkmcnt(0)")
            for i in (k - 2, k - 1):
                e(f"v_writelane_b32 v0, s{82 + 2 * (i % 4)}, {i}")
            e("s_mov_b64 exec, -1")
            e(f"s_lshl_b32 s{sT0}, s2, 3"); e(f"s_add_u32 s{sT0}, s{sT0}, s{sW}"); e(f"s_add_u32 s{sT0}, s{sT0}, {4 * role}")
            e(f"s_lshl_b32 s{sT0}, s{sT0}, 8"); e(f"s_add_u32 s{sT0}, s{sT0}, {WS_STAMP}")
            e(f"v_lshlrev_b32 v3, 2, v{vLANE}")
            e(f"buffer_store_dword v0, v3, {WS}, s{sT0} offen")
        elif self.stamps:
            self.stamp(e, "end")
            e("s_mov_b64 exec, -1")
            e(f"s_lshl_b32 s{sT0}, s2, 3"); e(f"s_add_u32 s{sT0}, s{sT0}, s{sW}"); e(f"s_add_u32 s{sT0}, s{sT0}, {4 * role}")
            e(f"s_lshl_b32 s{sT0}, s{sT0}, 6"); e(f"s_add_u32 s{sT0}, s{sT0}, {WS_STAMP}")
            e("s_waitcnt vmcnt(0)")
            for i in range(16):
                e(f"v_mov_b32 v{32 + i}, s{sST + i}")
            e("v_mov_b32 v3, 0"); e("s_mov_b64 exec, 1")
            for i in range(4):
                e(f"buffer_store_dwordx4 {vr(32 + 4 * i, 4)}, v3, {WS}, s{sT0} offen offset:{16 * i}")
        e("s_endpgm")

    def poll(self, e, vaddr, soff, cmp, vt, srd=WS):
        a, b = self.lab("poll"), self.lab("polled")
        e(f"{a}:")
        e(f"buffer_load_dword v{vt}, v{vaddr}, {srd}, {soff} offen sc1")
        e(f"s_add_u32 s{sSPIN}, s{sSPIN}, 1")
        e("s_waitcnt vmcnt(0)")
        e(cmp)
        e(f"s_cmp_gt_u32 s{sSPIN}, {SPIN_LIMIT}")
        e(f"s_cbranch_scc1 {b}")
        e(f"s_cbranch_vccnz {a}")
        e(f"{b}:")
        e.vm = []

    def check_or_poll(self, e, vaddr, soff, cmp, vt, srd=WS, rare=False):
        late, ok = self.lab("late"), self.lab("ok")
        e(cmp)
        tl = Stream()
        self.poll(tl, vaddr, soff, cmp, vt, srd)
        if rare:
            e(f"s_cbranch_vccnz {late}")
            self.tail += [f"{late}:"] + tl.L + [f"s_branch {ok}"]
        else:
            e(f"s_cbranch_vccz {ok}")
            e.L += tl.L
        e(f"{ok}:")

    def publish(self, e, stores, tag="pub", wt=False):
        if wt:
            for s in stores:
                e.vmem(s + " sc1", tag)
            return
        slow, done = self.lab("slow"), self.lab("pubd")
        e(f"s_cmp_eq_u32 s{sMODE}, 0")
        e(f"s_cbranch_scc1 {slow}")
        for s in stores:
            e.vmem(s, tag)
        e(f"{done}:")
        self.tail += [f"{slow}:"] + [s + " sc1" for s in stores] + [f"s_branch {done}"]

    def mode_issue(self, e, va, vt):
        e(f"v_lshlrev_b32 v{va}, 2, v{vLANE}"); e(f"v_add_u32 v{va}, {FX_F0}, v{va}")
        e("s_mov_b32 exec_hi, 0")
        e.vmem(f"buffer_load_dword v{vt}, v{va}, {WS}, s{sFX} offen sc1", "mode")
        e("s_mov_b64 exec, -1")

    def mode_check(self, e, va, vt):
        e.wait(vm="mode")
        e("s_mov_b32 exec_hi, 0")
        self.check_or_poll(e, va, f"s{sFX}", f"v_cmp_eq_u32 vcc, 0, v{vt}", vt)
        e(f"v_cmp_ne_u32 vcc, s{sXCC}, v{vt}")
        e("s_mov_b64 exec, -1")
        e("s_cmp_eq_u64 vcc, 0"); e(f"s_cselect_b32 s{sMODE}, {0 if self.force_slow else 1}, 0")

    def touch(self, e, srd, soff, nl, va=24, vt=25):
        if nl < 64:
            m = (1 << nl) - 1
            e(f"s_mov_b32 exec_lo, {m & 0xffffffff}"); e(f"s_mov_b32 exec_hi, {m >> 32}")
        e(f"buffer_load_dword v{vt}, v{va}, {srd}, {soff} offen sc1")
        if nl < 64:
            e("s_mov_b64 exec, -1")

    def dma4(self, e, srd, vas, soff, n=4, tag=None, fl=""):
        for i in range(n):
            e.vmem(f"buffer_load_dwordx4 v{vas[i]}, {srd}, {soff} offen offset:{1024 * i} {fl} lds", tag)

    def next_kc(self, e, r=sKC):
        e(f"s_add_u32 s{r}, s{r}, 1"); e(f"s_cmp_eq_u32 s{r}, 7"); e(f"s_cselect_b32 s{r}, 0, s{r}")

    def tr_base(self, e, vd, hmul, stride, nhmul):
        e(f"v_lshrrev_b32 v{vd}, 5, v{vLANE}")
        e(f"v_mul_u32_u24 v{vd}, {hmul}, v{vd}")
        e(f"v_bfe_u32 v{t}, v{vLANE}, 2, 2")
        e(f"v_add_u32 v{vd}, v{vd}, v{t}")
        e(f"v_mul_u32_u24 v{vd}, {stride}, v{vd}")
        e(f"v_bfe_u32 v{t}, v{vLANE}, 4, 1")
        e(f"v_mul_u32_u24 v{t}, {nhmul}, v{t}")
        e(f"v_add_u32 v{vd}, v{vd}, v{t}")
        e(f"v_and_b32 v{t}, 3, v{vLANE}")
        e(f"v_lshl_add_u32 v{vd}, v{t}, 3, v{vd}")

    def rows128_src(self, e, vas, rowstride, partmul, rowof):
        v = vas[0]
        e(f"v_lshrrev_b32 v{v}, 3, v{vLANE}")
        e(f"v_mul_u32_u24 v{v}, {rowstride}, v{v}")
        e(f"v_lshrrev_b32 v{t}, 2, v{vLANE}")
        e(f"v_lshrrev_b32 v{t + 1}, 4, v{vLANE}")
        e(f"v_xor_b32 v{t}, v{t}, v{t + 1}")
        e(f"v_and_b32 v{t}, 1, v{t}")
        e(f"v_mul_u32_u24 v{t}, {partmul}, v{t}")
        e(f"v_add_u32 v{v}, v{v}, v{t}")
        e(f"v_and_b32 v{t}, 3, v{vLANE}")
        e(f"v_lshl_add_u32 v{v}, v{t}, 4, v{v}")
        for i in range(1, len(vas)):
            e(f"v_add_u32 v{vas[i]}, {rowof(i) * rowstride - 1024 * i}, v{v}")

    def rows64_src(self, e, vas, rowstride, gx):
        v = vas[0]
        e(f"v_lshrrev_b32 v{v}, 2, v{vLANE}")
        e(f"v_mul_u32_u24 v{v}, {rowstride}, v{v}")
        e(f"v_and_b32 v{t}, 3, v{vLANE}")
        if gx:
            e(f"v_xor_b32 v{t}, {gx}, v{t}")
        e(f"v_lshl_add_u32 v{v}, v{t}, 4, v{v}")
        for i in range(1, len(vas)):
            e(f"v_add_u32 v{vas[i]}, {16 * i * rowstride - 1024 * i}, v{v}")

    @staticmethod
    def trd(e, dst, vaddr, off0, step, tag):
        e.lds(f"ds_read_b64_tr_b16 {vr(dst, 2)}, v{vaddr} offset:{off0}", tag)
        e.lds(f"ds_read_b64_tr_b16 {vr(dst + 2, 2)}, v{vaddr} offset:{off0 + step}", tag)

    @staticmethod
    def mf(e, d, a, b, c=None):
        e(f"v_mfma_f32_32x32x16_bf16 {vr(d, 16)}, {vr(a, 4)}, {vr(b, 4)}, {vr(d, 16) if c is None else c}")

    @staticmethod
    def mf8(e, d, a, b, c=None):
        e(f"v_mfma_f32_32x32x8_bf16 {vr(d, 16)}, {vr(a, 2)}, {vr(b, 2)}, {vr(d, 16) if c is None else c}")

    @staticmethod
    def mf4(e, d, a, b, first):
        e(f"v_mfma_f32_4x4x4_16b_bf16 {vr(d, 4)}, {vr(a, 2)}, {vr(b, 2)}, {'0' if first else vr(d, 4)}")

    def psum(self, e, d, a, b, first, dot):
        if not dot:
            return self.mf4(e, d, a, b, first)
        if first: e(f"v_mov_b32 v{d}, 0")
        for i in range(2):
            e(f"v_dot2c_f32_bf16 v{d}, v{a + i}, v{b + i}")

    @staticmethod
    def split_hi_lo(e, dst, c):
        e(f"v_cvt_pk_bf16_f32 v{dst + 1}, v{c}, v{c}")
        e(f"v_and_b32 v{t}, 0xffff0000, v{dst + 1}")
        e(f"v_sub_f32 v{t}, v{c}, v{t}")
        e(f"v_cvt_pk_bf16_f32 v{dst}, v{c}, v{t}")

    def visit(self, e, grp):
        for w in range(4):
            if self.p["pages"] >> grp & 1:
                e(f"s_cmp_eq_u32 s{sW}, {w}"); e(f"s_cbranch_scc1 L_visit{grp}_{w}")
        e(f"L_visit{grp}_back:")

    def prologue(self, e):
        e(f"s_cmp_ge_u32 s2, {0 if self.stop == 0 else 256}")
        e("s_cbranch_scc1 L_exit")
        if self.stamps and not self.p.get("trace"):
            e(f"{'s_memtime' if self.p.get('cyc') else 's_memrealtime'} s[80:81]")
        e("s_load_dwordx16 s[84:99], s[0:1], 0")
        e("s_load_dwordx4 s[4:7], s[0:1], 64")
        e("v_lshrrev_b32 v3, 6, v0")
        e(f"v_and_b32 v{vLANE}, 63, v0")
        e(f"v_readfirstlane_b32 s47, v3")
        e(f"s_and_b32 s{sG}, s2, 7"); e(f"s_bfe_u32 s{sHEAD}, s2, 0x40003")
        e(f"s_and_b32 s{sW}, s47, 3")
        e("s_cmp_lt_u32 s47, 4")
        e("s_cbranch_scc1 L_roleL")

    def first_touch(self, e):
        e(f"s_lshl_b32 s{sT0}, s{sG}, 5"); e(f"s_lshr_b32 s{sT1}, s2, 3"); e(f"s_add_u32 s{sT0}, s{sT0}, s{sT1}")
        e(f"s_lshl_b32 s{sT2}, s{sW}, 3"); e(f"s_lshr_b32 s{sT2}, {56 | 13 << 8 | 13 << 16 | 13 << 24}, s{sT2}"); e(f"s_and_b32 s{sT2}, s{sT2}, 63")
        e(f"s_cmp_eq_u32 s{sW}, 3"); e(f"s_cselect_b32 s{sT0}, s{sT1}, s{sT0}")
        e(f"s_mul_i32 s{sT0}, s{sT0}, s{sT2}")
        e(f"v_add_u32 v3, s{sT0}, v{vLANE}")
        e("v_mul_u32_u24 v15, 9363, v3"); e("v_lshrrev_b32 v15, 16, v15")
        e(f"s_cmp_eq_u32 s{sW}, 1"); e(f"s_cselect_b32 s{sT0}, 14, 0")
        e(f"v_mad_u32_u24 v3, v15, s{sT0}, v3"); e("v_lshlrev_b32 v3, 7, v3")
        e(f"s_bfm_b64 exec, s{sT2}, 0")
        e("s_getpc_b64 s[100:101]")
        e("L_pc:")
        e(f"s_mov_b32 s{sT3}, L_tail-L_pc")
        for w, src, n in ((0, 84, 2048 * 896), (1, 86, 448 * 2688), (2, 88, 448 * 896)):
            e(f"s_cmp_eq_u32 s{sW}, {w}"); e(f"s_cselect_b64 s[100:101], s[{src}:{src + 1}], s[100:101]")
            e(f"s_cselect_b32 s{sT3}, {n - 4}, s{sT3}")
        e(f"v_min_u32 v3, s{sT3}, v3")
        e("global_load_dword v15, v3, s[100:101]")
        e("s_mov_b64 exec, -1")

    def ids(self, e, part):
        if part == 0:
            e(f"s_lshr_b32 s{sT1}, s2, 7"); e(f"s_lshl_b32 s{sRB}, s{sG}, 1"); e(f"s_add_u32 s{sRB}, s{sRB}, s{sT1}")
            e(f"s_lshl_b32 s{sMT}, s{sRB}, 2"); e(f"s_add_u32 s{sMT}, s{sMT}, s{sW}")
            e(f"s_lshl_b32 s{sT5}, s{sW}, 12")
            return
        e(f"s_lshr_b32 s{sT1}, s2, 7")
        e(f"s_cmp_lt_u32 s{sHEAD}, 14"); e(f"s_cselect_b32 s{sT0}, 14, 2"); e(f"s_cselect_b32 s{sJ}, 0, 14")
        e(f"s_mul_i32 s{sT0}, s{sT0}, s{sT1}"); e(f"s_add_u32 s{sJ}, s{sJ}, s{sT0}"); e(f"s_add_u32 s{sJ}, s{sJ}, s{sHEAD}")
        e(f"s_lshl_b32 s{sFX}, s{sG}, 12"); e(f"s_add_u32 s{sFX}, s{sFX}, {WS_FX}")
        e(f"v_lshlrev_b32 v{vL16}, 4, v{vLANE}")
        self.srd(e, 40, 6, WS_SIZE); self.srd(e, 36, 4, 256)

    @staticmethod
    def srd(e, b, src, n):
        e(f"s_mov_b64 s[{b}:{b + 1}], s[{src}:{src + 1}]")
        e(f"s_mov_b32 s{b + 2}, {n}"); e(f"s_mov_b32 s{b + 3}, 0x20000")

    def late_setup(self, e, last=True):
        for b, src, n in ((16, 88, 448 * 896), (20, 92, 448 * 3584), (24, 94, 448 * 3584), (28, 96, 1792 * 896), (32, 98, 2048 * 896)):
            e(f"s_mov_b64 s[{b}:{b + 1}], s[{src}:{src + 1}]")
            e(f"s_mov_b32 s{b + 2}, {n}"); e(f"s_mov_b32 s{b + 3}, 0x20000")
        e(f"s_mul_i32 s{sMG}, s{sJ}, 37"); e(f"s_lshr_b32 s{sMG}, s{sMG}, 8")
        e(f"s_mul_i32 s{sT0}, s{sMG}, 7"); e(f"s_sub_u32 s{sNG}, s{sJ}, s{sT0}")
        e(f"s_and_b32 s{sPAR}, s{sJ}, 1")
        e(f"s_and_b32 s{sMI}, s{sW}, 1"); e(f"s_lshr_b32 s{sKH}, s{sW}, 1"); e(f"s_lshr_b32 s{sHF}, s{sMG}, 1")
        e(f"s_mov_b32 s{sSPIN}, 0")
        e(f"s_mov_b32 s{sHI}, 0"); e(f"s_mov_b32 s{sHI + 1}, -1")
        e(f"s_getreg_b32 s{sXCC}, hwreg(HW_REG_XCC_ID, 0, 4)"); e(f"s_or_b32 s{sXCC}, s{sXCC}, 0x100")
        if self.stamps and last:
            e(f"s_mov_b32 s{sST + 14}, s80")
            for i in range(14):
                e(f"s_mov_b32 s{sST + i}, 0")

    def kv_pass(self, e, kind, R):
        wf, cf = vRING, R["PK"]
        a0, a1 = vACC, vACC + 16
        XS, XQ, C0, C1 = R["XS"], R["XQ"], R["C0"], R["C1"]
        vW0, vW1, vC0, vC1, vXR, vONE = R["vW0"], R["vW1"], R["vC0"], R["vC1"], R["vXR"], R["vONE"]
        vMU, vRS, vNM, vCP, vOH, PK = R["vMU"], R["vRS"], R["vNM"], R["vCP"], R["vOH"], R["PK"]
        aR = PK
        z = Stream()
        if kind:
            for k in range(2):
                z(f"v_add_f32 v{cf + 4 * k}, v{cf + 4 * k}, v{cf + 4 * k + 1}")
                z(f"v_add_f32 v{cf + 4 * k + 2}, v{cf + 4 * k + 2}, v{cf + 4 * k + 3}")
            z(f"v_add_f32 v{C0}, v{cf}, v{cf + 2}"); z(f"v_add_f32 v{C1}, v{cf + 4}, v{cf + 6}")
        z(f"v_add_f32 v{XS}, v{XS}, v{XS + 8}")
        dot = self.p["dot"] & 1
        for i in range(1 if dot else 4):
            z(f"v_add_f32 v{XQ + i}, v{XQ + i}, v{XQ + 8 + i}")
        if not dot:
            z(f"v_cndmask_b32 v{XQ}, v{XQ}, v{XQ + 1}, s[{sM1}:{sM1 + 1}]")
            z(f"v_cndmask_b32 v{XQ}, v{XQ}, v{XQ + 2}, s[{sM2}:{sM2 + 1}]")
            z(f"v_cndmask_b32 v{XQ}, v{XQ}, v{XQ + 3}, s[{sM3}:{sM3 + 1}]")
        if kind: self.split_hi_lo(z, C0 + 2, C0)
        z(f"v_permlane32_swap_b32 v{XS}, v{XQ}")
        z(f"v_add_f32 v{XS}, v{XS}, v{XQ}")
        z(f"v_mov_b32 v{XQ}, v{XS}")
        if kind: self.split_hi_lo(z, C1 + 2, C1)
        z(f"v_permlane32_swap_b32 v{XS}, v{XQ}")
        z(f"v_mul_f32 v{vMU}, {f32(1 / 448)}, v{XS}")
        z(f"v_mul_f32 v{XQ}, {f32(1 / 448)}, v{XQ}")
        z(f"v_cvt_pk_bf16_f32 v{vNM}, -v{vMU}, -v{vMU}")
        z(f"v_fma_f32 v{XQ}, -v{vMU}, v{vMU}, v{XQ}")
        z(f"v_and_b32 v{t}, 0xffff0000, v{vNM}")
        z(f"v_max_f32 v{XQ}, 0, v{XQ}")
        z(f"v_add_f32 v{t}, v{vMU}, v{t}")
        z(f"v_add_f32 v{XQ}, {f32(1e-5)}, v{XQ}")
        z(f"v_cvt_pk_bf16_f32 v{vNM + 1}, -v{t}, 0")
        z(f"v_rsq_f32 v{vRS}, v{XQ}")
        chain = list(z.L)
        vis = self.wvis()
        grp = self.p["dgrp"]
        queue, st = [], dict(w=0, c=0, m=0, b=-1, done=-1)
        def rd(tag, text):
            queue.append((tag, text))
        def refill():
            while kind and st["w"] <= min(st["done"] + 4, 27) and st["w"] >> 2 <= vis[st["b"]]:
                n = st["w"]; st["w"] += 1
                for k, va in enumerate((vW0, vW1)):
                    for i in range(2):
                        rd(("w", n, k), f"ds_read_b64_tr_b16 {vr(wf + 8 * (n % 4) + 4 * k + 2 * i, 2)}, v{va} offset:{16 * n * 128 + 512 * i}")
        def issue(k):
            for i in range(k):
                if queue:
                    tag, text = queue.pop(0); e.lds(text, tag)
                elif st["b"] == 6 and st["chain"] and chain:
                    e(chain.pop(0))
        def need(*tags):
            while any(q[0] in tags for q in queue): issue(1)
            last = [x for x in e.ds if x in tags]
            if last: e.wait(ds=last[-1])
        def barrier(c):
            if kind == "K": self.tr(e, f"a{c}", 4)
            e("s_barrier")
            if kind == "K": self.tr(e, f"b{c}", 4)
            self.stamp(e, f"b{c}")
            st["b"] = c
            xs = [(("x", 4 * c + s), f"ds_read_b128 {vr(vH + 16 * c + 4 * s, 4)}, v{vXR[s]} offset:{(c % 4) * 16384}") for s in range(4)]
            queue.extend(xs if c == 6 else xs[:2])
            refill()
            if c < 6: queue.extend(xs[2:])
            if kind and c == 6:
                for k in range(2):
                    rd("cs", f"ds_read_b128 {vr(cf + 4 * k, 4)}, v{R['vCR']} offset:{1024 * k}")
            while kind and st["c"] <= vis[c] and st["c"] < st["m"] + 2:
                cc = st["c"]; st["c"] += 1
                for k, va in enumerate((vC0, vC1)):
                    for i in range(2):
                        rd(("c", cc), f"ds_read_b64_tr_b16 {vr(cf + 8 * (cc & 1) + 4 * k + 2 * i, 2)}, v{va} offset:{64 * cc * 128 + 512 * i}")
        st["chain"] = False
        barrier(0)
        issue(10)
        for n in range(28):
            c, s = divmod(n, 4)
            if n == 21:
                e("s_mov_b64 exec, 3")
                e.vmem(f"buffer_load_dword v{R['vRDY']}, v{R['vRA']}, {DBG}, 0 offen sc1")
                e("s_mov_b64 exec, -1")
            nst = (4 if s == 0 else 0) if c == 6 or (grp == 4 and c > 0) else (2 if s & 1 == 0 else 0)
            if nst == 0 and s == 2 and c < 6:
                if kind and c == 5: need("csw")
                barrier(c + 1)
            if nst:
                small = []
                for i in range(2 * nst):
                    x = vH + 4 * n + 2 * i
                    small += [(XS + 8 * (i & 1), vONE, x, n == 0 and i < 2), (XQ + 8 * (i & 1), x, x, n == 0 and i < 2)]
                tags = [("x", n + i) for i in range(nst)]
                if kind and s == (2 if c == 0 else 0):
                    i = 0
                    while st["m"] < st["c"]:
                        cc = st["m"]; st["m"] += 1
                        tags.append(("c", cc))
                        b = cf + 8 * (cc & 1)
                        for m in ((C0, vONE, b, cc == 0), (C1, vONE, b + 4, cc == 0), (C0, vONE, b + 2, False), (C1, vONE, b + 6, False)):
                            small.insert(min(2 * i, len(small)), m); i += 1
                first = small[:]
                need(*tags)
                if s == 2 and c < 6 and c > 0:
                    if kind and c == 5:
                        assert st["m"] == 7
                        need("csw")
                    barrier(c + 1)
                for m in small:
                    if self.p.get("fk", 0) & 1 and n >= 4 and m[0] not in (C0, C1): continue
                    self.psum(e, *m, dot)
                    if not dot: issue(self.p["gs"])
                if n == 2: barrier(1)
            if n == 24:
                need("cs"); st["chain"] = True
            if kind:
                x, w0 = vH + 4 * n, wf + 8 * (n % 4)
                for k, acc in enumerate((a0, a1)):
                    need(("w", n, k))
                    A, B = (w0 + 4 * k, x) if kind == "K" else (x, w0 + 4 * k)
                    fk = self.p.get("fk", 0)
                    if fk & 2 and n >= 4: e("s_nop 3")
                    elif fk & 16 and n >= 4:
                        for i in range(2):
                            e(f"v_mfma_f32_16x16x32_bf16 {vr(acc + 4 * i + 8 * (n & 1), 4)}, {vr(A, 4)}, {vr(B, 4)}, {vr(acc + 4 * i + 8 * (n & 1), 4)}")
                    else: self.mf(e, acc, A, B, "0" if n == 0 else None)
                    if fk & 8: e("s_nop 7")
                    if k == 0 and st["m"] == 7 and st.get("wrote") is None:
                        e.lds(f"ds_write2st64_b32 v{R['vCS']}, v{C0}, v{C1} offset0:0 offset1:4", "csw")
                        st["wrote"] = True
                    if k == 0:
                        st["done"] = n - 1; refill()
                    issue(self.p["gb"] if queue else 5)
        assert not queue
        self.stamp(e, "kv")
        if kind == "K": self.tr(e, "kv", 4)
        for l in chain: e(l)
        if kind == "K":
            self.mf8(e, a0, C0 + 2, vNM); self.mf8(e, a1, C1 + 2, vNM)
            e(f"s_mul_i32 s{sT0}, s{sMT}, 28672"); e(f"s_lshl_b32 s{sT1}, s{sHEAD}, 12"); e(f"s_add_u32 s{sT0}, s{sT0}, s{sT1}")
            e(f"v_and_b32 v{t}, 15, v{vLANE}"); e(f"v_bfe_u32 v{t + 1}, v{vLANE}, 4, 1"); e(f"v_lshlrev_b32 v{t + 1}, 9, v{t + 1}")
            e(f"v_lshl_add_u32 v{t + 1}, v{t}, 4, v{t + 1}"); e(f"v_lshrrev_b32 v{t}, 5, v{vLANE}")
            e(f"v_lshl_add_u32 v{t + 1}, v{t}, 8, v{t + 1}")
        if kind == "V":
            self.mf8(e, a0, vNM, C0 + 2)
            self.split_hi_lo(e, vCP, vRS)
            self.mf8(e, aR, vCP, vOH, "0")
            self.mf8(e, a1, vNM, C1 + 2)
            e(f"s_mul_i32 s{sT0}, s{sMT}, 28672"); e(f"s_lshl_b32 s{sT1}, s{sHEAD}, 10"); e(f"s_add_u32 s{sT0}, s{sT0}, s{sT1}")
            e(f"s_add_u32 s{sT0}, s{sT0}, {WS_V - 7 * 1024}"); e(f"s_add_u32 s{sT1}, s{sT0}, 14336")
        if kind:
            out = wf
            for k, acc in enumerate((a0, a1)):
                for hf in range(2):
                    b, o = acc + 8 * hf, out + 8 * k + 4 * hf
                    for i in range(0, 8, 2):
                        if kind == "K":
                            e(f"v_pk_mul_f32 {vr(b + i, 2)}, {vr(b + i, 2)}, {vr(vMU, 2)} op_sel:[0,1] op_sel_hi:[1,1]")
                        else:
                            e(f"v_pk_mul_f32 {vr(b + i, 2)}, {vr(b + i, 2)}, {vr(aR + 8 * hf + i, 2)}")
                    for i in range(4):
                        e(f"v_cvt_pk_bf16_f32 v{o + i}, v{b + 2 * i}, v{b + 2 * i + 1}")
                    if kind == "K":
                        e(f"v_permlane16_swap_b32 v{o}, v{o + 2}"); e(f"v_permlane16_swap_b32 v{o + 1}, v{o + 3}")
                        e.vmem(f"buffer_store_dwordx4 {vr(o, 4)}, v{t + 1}, {WS}, s{sT0} offen offset:{(8 * k + 4 * hf) * 256} sc1")
                    else:
                        e.vmem(f"buffer_store_dwordx4 {vr(o, 4)}, v{R['vVA']}, {WS}, s{(sT0, sT1)[hf]} offen offset:{512 * k} sc1")

    def role_L(self):
        e = Stream(); e.role = 0
        vCS, vRA, vC0, vC1, vCR, vXR, vW0, vW1, vWQ, vRDY = 3, 4, 5, 6, 7, [8, 9, 10, 11], 12, 13, 14, 15
        vONE, vOH, vMU, vRS, vNM, vCP, vVA = 16, 18, 20, 21, 22, 24, 30
        aQ = vACC + 32
        wf = vRING
        XS, XQ, C0, C1, PK = aQ, aQ + 4, 232, 236, 240
        R = dict(locals())
        e("s_waitcnt lgkmcnt(0)")
        if self.p["ft"] == 0: self.first_touch(e)
        self.ids(e, 1)
        for i in range(4): e(f"v_mov_b32 v{32 + i}, 0")
        nolead = self.lab("nolead")
        e(f"s_lshl_b32 s{sT0}, s{sJ}, 2"); e(f"s_add_u32 s{sT0}, s{sT0}, s{sW}")
        e(f"s_cmp_lg_u32 s{sT0}, {28 * 4}"); e(f"s_cbranch_scc1 {nolead}")
        e(f"v_lshlrev_b32 v{t}, 7, v{vLANE}")
        e(f"s_lshl_b32 s{sT0}, s{sG}, 14"); e(f"s_add_u32 s{sT0}, s{sT0}, {WS_F1}"); e(f"s_add_u32 s{sT1}, s{sT0}, 8192")
        for base in (sT0, sT1):
            e(f"buffer_store_dword v32, v{t}, {WS}, s{base} offen sc1")
        for i in range(4):
            e(f"buffer_store_dwordx4 v[32:35], v{vL16}, {WS}, s{sFX} offen offset:{1024 * i} sc1")
        e(f"s_lshl_b32 s{sT0}, s{sG}, 2"); e("v_mov_b32 v36, 1")
        e("s_waitcnt vmcnt(0)")
        e("s_mov_b64 exec, 1")
        e(f"buffer_store_dword v36, v32, {DBG}, s{sT0} offen sc1")
        e("s_mov_b64 exec, -1")
        e(f"{nolead}:")
        self.ids(e, 0)
        if self.p.get("fake"): self.srd(e, 8, 84, 2048 * 896)
        if self.p["ft"] == 1: self.first_touch(e)
        self.late_setup(e)
        self.stamp(e, "start")
        e(f"v_and_b32 v{t}, 31, v{vLANE}")
        e(f"v_lshlrev_b32 v{vVA}, 4, v{t}")
        e(f"v_lshlrev_b32 v{t + 1}, 7, v{t}")
        e(f"v_add_u32 v{t + 1}, s{sT5}, v{t + 1}")
        e(f"v_bfe_u32 v{t}, v{vLANE}, 1, 3")
        e(f"v_lshrrev_b32 v{t + 2}, 5, v{vLANE}")
        e(f"v_mul_u32_u24 v{t + 3}, 7168, v{t + 2}"); e(f"v_add_u32 v{vVA}, v{vVA}, v{t + 3}")
        e(f"v_xor_b32 v{t}, v{t}, v{t + 2}")
        for s in range(4):
            e(f"v_xor_b32 v{t + 2}, {2 * s}, v{t}")
            e(f"v_lshl_add_u32 v{vXR[s]}, v{t + 2}, 4, v{t + 1}")
        self.tr_base(e, vW0, 8, 128, 32)
        e(f"v_bfe_u32 v{t}, v{vLANE}, 3, 1")
        e(f"v_lshlrev_b32 v{t}, 6, v{t}")
        e(f"v_add_u32 v{vW0}, {LC}, v{vW0}")
        e(f"v_xor_b32 v{t + 1}, 64, v{t}")
        e(f"v_add_u32 v{vW1}, v{vW0}, v{t + 1}")
        e(f"v_add_u32 v{vW0}, v{vW0}, v{t}")
        e(f"s_lshl_b32 s{sT0}, s{sW}, 11")
        e(f"v_add_u32 v{vC0}, s{sT0}, v{vW0}"); e(f"v_add_u32 v{vC1}, s{sT0}, v{vW1}")
        e(f"v_add_u32 v{vCR}, {L_CS}, v{vL16}")
        e(f"s_lshl_b32 s{sT0}, s{sW}, 2"); e(f"v_add_u32 v{vCS}, s{sT0}, v{vCR}")
        self.tr_base(e, vWQ, 8, 64, 32)
        e(f"v_add_u32 v{vWQ}, {L_WQ}, v{vWQ}")
        e(f"v_mov_b32 v{vONE}, {ONES}"); e(f"v_mov_b32 v{vONE + 1}, {ONES}")
        e(f"v_cndmask_b32 v{vOH}, v{vONE}, 0, {HI}"); e(f"v_mov_b32 v{vOH + 1}, 0")
        for m, val in ((sM1, 0x22222222), (sM2, 0x44444444), (sM3, 0x88888888)):
            e(f"s_mov_b32 s{m}, {val}"); e(f"s_mov_b32 s{m + 1}, {val}")
        e(f"v_and_b32 v{vRA}, 1, v{vLANE}"); e(f"v_min_u32 v{vRA}, s{sG}, v{vRA}")
        e(f"v_sub_u32 v{vRA}, s{sG}, v{vRA}"); e(f"v_lshlrev_b32 v{vRA}, 2, v{vRA}")
        self.tr(e, "setup", 4)
        self.visit(e, 0)
        lv, ln, lj = self.lab("formV"), self.lab("formN"), self.lab("kvjoin")
        e(f"s_cmp_ge_u32 s{sHEAD}, 14"); e(f"s_cbranch_scc1 {ln}")
        e(f"s_cmp_ge_u32 s{sHEAD}, 7"); e(f"s_cbranch_scc1 {lv}")
        e("s_branch L_formK")
        e("L_setup_end:")
        for kind, lb in (("K", "L_formK"), ("V", lv), (None, ln)):
            e(".newpage")
            e(f"{lb}:")
            e.vm, e.ds = [], []
            self.kv_pass(e, kind, R)
            if kind: e(f"s_branch {lj}")
        e(f"{lj}:")
        e.ds = []
        self.stamp(e, "kvst")
        self.tr(e, "kvst", 4)
        e(f"s_lshl_b32 s{sT4}, s{sMT}, 4"); e(f"s_add_u32 s{sT0}, s{sT4}, s{sHEAD}"); e(f"s_lshl_b32 s{sT0}, s{sT0}, 7")
        e(f"s_add_u32 s{sT2}, s{sT0}, {WS_F1}")
        e(f"v_mov_b32 v{t + 2}, 0"); e(f"v_mov_b32 v{t + 3}, 1")
        def kv_flag():
            e.wait(vm="all")
            nof0 = self.lab("nof0")
            e("s_mov_b64 exec, 3")
            self.check_or_poll(e, vRA, "0", f"v_cmp_ne_u32 vcc, 1, v{vRDY}", vRDY, srd=DBG, rare=True)
            e("s_mov_b64 exec, 1")
            e.vmem(f"buffer_store_dword v{t + 3}, v{t + 2}, {WS}, s{sT2} offen sc1")
            e(f"s_cmp_lg_u32 s{sW}, 0"); e(f"s_cbranch_scc1 {nof0}")
            e(f"v_mov_b32 v{vRDY}, s{sXCC}")
            e(f"s_lshl_b32 s{sT0}, s{sJ}, 2"); e(f"s_add_u32 s{sT0}, s{sT0}, s{sFX}")
            e(f"buffer_store_dword v{vRDY}, v{t + 2}, {WS}, s{sT0} offen offset:{FX_F0} sc1")
            e(f"{nof0}:")
            e("s_mov_b64 exec, -1")
            self.stamp(e, "fl1")
        if self.p["f1_at"] < 0:
            kv_flag()
        e("s_barrier")
        self.stamp(e, "Bkv")
        vS, aO, vRM, vM = vH, vACC + 32, vRES, 5
        vKA, vKV, vV0, vV1, vPO, vPZ = 7, 8, 9, 10, 224, 228
        side = Stream()
        side(f"v_add_u32 v{vKV}, s{sT5}, v{vL16}")
        side(f"v_and_b32 v{vKA}, 15, v{vLANE}"); side(f"v_lshlrev_b32 v{vKA}, 4, v{vKA}")
        side(f"v_bfe_u32 v9, v{vLANE}, 4, 1"); side(f"v_lshl_add_u32 v{vKA}, v9, 3, v{vKA}")
        side(f"v_lshrrev_b32 v9, 5, v{vLANE}"); side(f"v_lshl_add_u32 v{vKA}, v9, 8, v{vKA}"); side(f"v_add_u32 v{vKA}, s{sT5}, v{vKA}")
        side(f"v_lshrrev_b32 v11, 5, v{vLANE}"); side("v_lshlrev_b32 v11, 4, v11"); side(f"v_add_u32 v11, {L_MISC}, v11")
        for i in range(4):
            side(f"v_mov_b32 v{vPO + i}, v{vONE}"); side(f"v_mov_b32 v{vPZ + i}, 0")
        def masks(o):
            o(f"v_and_b32 v{t}, 31, v{vLANE}"); o(f"v_lshrrev_b32 v{t + 1}, 5, v{vLANE}")
            o(f"v_lshlrev_b32 v{t + 1}, 2, v{t + 1}"); o(f"v_sub_u32 v{t}, v{t}, v{t + 1}")
            o(f"v_mov_b32 v{t + 1}, {BIG}")
            for r in range(17):
                if r < 16:
                    m = (sM1, sM2, sM3)[r % 3]
                    o(f"v_cmp_le_i32 s[{m}:{m + 1}], {8 * (r >> 2) + (r & 3)}, v{t}")
                if r:
                    q, m = r - 1, (sM1, sM2, sM3)[(r - 1) % 3]
                    o(f"v_cndmask_b32 v{vS + 128 + q}, v{t + 1}, 0, s[{m}:{m + 1}]")
                    o(f"v_cndmask_b32 v{vS + 112 + q}, 0, v{t + 1}, s[{m}:{m + 1}]")
        masks(side)
        fill = list(side.L)
        nq = self.SCHED[self.p["sched"]].count("Q")
        QR = [PK, PK + 4, PK + 8, PK + 12, wf + 16, wf + 20, wf + 24]
        def qread(s):
            self.trd(e, QR[s % NR], vWQ, 16 * s * 64, 256, ("q", s))
        for s in range(NR - 2):
            qread(s)
        vF1, vF1s, sF1B, sF1M, sKB = 31, 10, sA5, sACT, sWD
        e(f"s_mul_i32 s{sT0}, s{sHEAD}, 28"); e(f"s_add_u32 s{sT1}, s{sT0}, 27")
        e(f"s_lshr_b32 s{sT0}, s{sT0}, 6"); e(f"s_lshr_b32 s{sT1}, s{sT1}, 6"); e(f"s_sub_u32 s{sT1}, s{sT1}, s{sT0}")
        e(f"v_and_b32 v{vF1}, s{sT1}, v{vLANE}")
        e(f"v_bfe_u32 v{t + 1}, v{vLANE}, 1, 1"); e(f"v_mad_u32_u24 v{vF1}, v{t + 1}, 7, v{vF1}")
        e(f"v_lshrrev_b32 v{t + 1}, 2, v{vLANE}"); e(f"v_lshl_add_u32 v{vF1}, v{t + 1}, 6, v{vF1}")
        e(f"v_lshlrev_b32 v{vF1}, 7, v{vF1}")
        e(f"s_add_u32 s{sT0}, s{sT0}, s{sT4}"); e(f"s_lshl_b32 s{sT0}, s{sT0}, 7"); e(f"s_add_u32 s{sF1B}, s{sT0}, {WS_F1 - 16384}")
        e(f"s_min_u32 s{sT1}, s{sRB}, 2"); e(f"s_lshl_b32 s{sT1}, s{sT1}, 2")
        e(f"s_lshr_b32 s{sT1}, 0xfff00, s{sT1}"); e(f"s_and_b32 s{sF1M}, s{sT1}, 0xfff")
        e(f"s_mul_i32 s{sKB}, s{sMT}, 28672")
        e(f"s_mul_i32 s{sT1}, s{sHEAD}, 1792"); e(f"s_add_u32 s{sKB}, s{sKB}, s{sT1}")
        for s in range(0, 28, 2):
            if s == self.p["f1_at"] & ~1:
                kv_flag()
            if s == self.p["bq"] and nq < 7:
                assert s + NR - 3 < 4 * nq
                e("s_barrier")
                self.tr(e, "Bq", 2)
            e.wait(ds=("q", s + 1))
            for k in range(2):
                q = QR[(s + k) % NR]
                self.psum(e, C0, vONE, q, s + k == 0, self.p["dot"] & 2); self.psum(e, C1, vONE, q + 2, s + k == 0, self.p["dot"] & 2)
                if k == 0 and fill: e(fill.pop(0))
            for k in range(2):
                if self.p.get("fk", 0) & 4 and s >= 4: e("s_nop 6")
                else: self.mf(e, aQ, QR[(s + k) % NR], vH + 4 * (s + k), "0" if s + k == 0 else None)
                if s + k + NR - 2 < 28:
                    qread(s + k + NR - 2)
                for i in range(2 + k):
                    if fill: e(fill.pop(0))
        assert not fill
        e(f"v_add_f32 v{C0}, v{C0}, v{C1}")
        self.split_hi_lo(e, C0 + 2, C0)
        self.mf8(e, aQ, C0 + 2, vNM)
        e("s_mov_b32 exec_lo, 0xf0000000"); e("s_mov_b32 exec_hi, 0xf0000000")
        for u in range(3):
            for s in range(2):
                e.lds(f"ds_write_b128 v{vKV}, {vr(vPO, 4)} offset:{u * 16384 + 2048 + 1024 * s}")
        e("s_mov_b32 exec_lo, 0"); e("s_mov_b32 exec_hi, 0xffff0000")
        for u in (2, 1, 0):
            if u < 2:
                e(f"s_cmp_ge_u32 s{sRB}, {2 - u}"); e(f"s_cselect_b32 s{sT0}, 0, {BIG >> 16}")
                e(f"v_mov_b32 v{vPZ}, s{sT0}"); e(f"v_mov_b32 v{vPZ + 2}, s{sT0}")
            e.lds(f"ds_write_b128 v{vKV}, {vr(vPZ, 4)} offset:{u * 16384 + 1024}")
        e("s_mov_b64 exec, -1")
        e(f"v_mov_b32 v{t + 2}, 0x3f80")
        vQ = vTMP
        e(f"v_mul_f32 v{vRS}, {f32(28 ** -0.5 * math.log2(math.e))}, v{vRS}")
        e(f"v_mul_f32 v{vMU}, {f32(1 / 16)}, v{vMU}")
        for i in range(16):
            e(f"v_mul_f32 v{aQ + i}, v{vRS}, v{aQ + i}")
        e.wait(ds="all")
        for i in range(8):
            e(f"v_cvt_pk_bf16_f32 v{vQ + i}, v{aQ + 2 * i}, v{aQ + 2 * i + 1}")
        e(f"v_cndmask_b32 v{vQ + 6}, v{vQ + 6}, v{t + 2}, {HI}")
        e(f"v_cndmask_b32 v{vQ + 7}, v{vQ + 7}, 0, {HI}")
        e("L_qdone:")
        self.stamp(e, "q")
        e(f"s_mov_b32 exec_lo, s{sF1M}"); e("s_mov_b32 exec_hi, 0")
        self.poll(e, vF1, f"s{sF1B}", f"v_cmp_ne_u32 vcc, 1, v{vF1s}", vF1s)
        self.stamp(e, "f1")
        for u in range(3):
            e(f"s_sub_u32 s{sT1}, s{sKB}, {(8 - 4 * u) * 28672}")
            if u < 2:
                e(f"s_cmp_ge_u32 s{sRB}, {2 - u}"); e(f"s_cselect_b32 s{sT1}, s{sT1}, 0x7f000000")
            e(f"s_add_u32 m0, s{sT5}, {u * 16384}")
            e("s_mov_b64 exec, -1")
            e.vmem(f"buffer_load_dwordx4 v{vL16}, {WS}, s{sT1} offen sc1 lds")
            e("s_mov_b32 exec_hi, 0xffff")
            e.vmem(f"buffer_load_dwordx4 v{vL16}, {WS}, s{sT1} offen offset:1024 sc1 lds", ("kt", u))
        e("s_mov_b64 exec, -1")
        self.mode_issue(e, 3, vRDY)
        e("s_barrier")
        self.tr(e, "Bk", 2)
        for n in range(4):
            e.lds(f"ds_read_b128 {vr(vRM + 4 * n, 4)}, v11 offset:{32 * n}")
        TORD = [0, 4, 8, 1, 2, 3, 5, 6, 7]
        def frag(o, n):
            kv, i = divmod(n, 18)
            tt, r = TORD[i >> 1], wf + 4 * (n % NR)
            if kv:
                o.lds(f"ds_read_b128 {vr(r, 4)}, v{vKV} offset:{tt * 4096 + 2048 + (i & 1) * 1024}", ("kv", n))
            elif n < self.p["kfast"]:
                for k in range(2):
                    o.lds(f"ds_read_b64 {vr(r + 2 * k, 2)}, v{vKA} offset:{tt * 4096 + (i & 1) * 1024 + 512 * k}", ("kv", n))
            else:
                k = 8 * tt + 2 * (i & 1)
                o.lds(f"ds_read2st64_b64 {vr(r, 4)}, v{vKA} offset0:{k} offset1:{k + 1}", ("kv", n))
        def blk(hb):
            return vS + 16 * TORD[hb >> 1] + 8 * (hb & 1)
        rd = [0, 0]
        def reads(o, upto):
            while rd[0] < min(upto, rd[1]):
                frag(o, rd[0]); rd[0] += 1
        def mm(o, n):
            assert n < rd[0]
            o.wait(ds=("kv", n))
            if n < 18:
                tt = TORD[n >> 1]
                cin = None if n & 1 or tt == 8 else (vr(vS + 112, 16) if tt == 0 else "0")
                self.mf(o, vS + 16 * tt, wf + 4 * (n % NR), vQ + 4 * (n & 1), cin)
            else:
                self.mf(o, aO, wf + 4 * (n % NR), blk(n - 18), "0" if n == 18 else None)
            reads(o, n + NR)
        def expblock(o, hb, slots):
            b = blk(hb)
            for i in range(8):
                o(f"v_exp_f32 v{b + i}, v{b + i}")
                if i in slots: slots[i]()
            for i in range(4):
                o(f"v_cvt_pk_bf16_f32 v{b + i}, v{b + 2 * i}, v{b + 2 * i + 1}")
        BA, BM = self.p["batt"], self.p["bmat"]
        e.wait(vm=("kt", 0))
        self.stamp(e, "Batt_")
        rd[1] = 2; reads(e, 2)
        mm(e, 0); mm(e, 1)
        e.wait(vm=("kt", 1))
        rd[1] = 4; reads(e, 4)
        nxt = 2
        for hb in range(18):
            if hb == 1:
                e.wait(vm=("kt", 2))
                rd[1] = 6; reads(e, 6)
            if nxt < 18:
                k = min(2, rd[0] - nxt)
                assert (nxt >> 1) > (hb >> 1)
            else:
                k = min(-(-(35 - nxt) // (18 - hb)), hb + 18 - nxt) if hb > BM else 0
            pos = {0: [], 1: [2], 2: [1, 5], 3: [0, 3, 6]}[k]
            if hb in (0, 1, BA + 1, BM + 1): pos = {0: [], 1: [7], 2: [5, 7], 3: [4, 6, 7]}[k]
            expblock(e, hb, {i: (lambda n=nxt + j: mm(e, n)) for j, i in enumerate(pos)})
            nxt += k
            if hb % 3 == 2: self.tr(e, f"e{hb}", 2)
            if hb == BA:
                e("s_barrier")
                self.stamp(e, "Batt")
                rd[1] = 18; reads(e, nxt + NR - 1)
            if hb == BM:
                assert nxt == 18
                self.stamp(e, "sub")
                e("s_barrier")
                self.stamp(e, "Bm")
                rd[1] = 36; reads(e, nxt + NR - 1)
            if hb == self.p["m2"]:
                e("s_barrier")
                self.tr(e, "Bm2", 2)
        assert nxt == 35
        mm(e, 35)
        exact, checked = self.lab("exact"), self.lab("checked")
        x = Stream(); x.role = 0
        x(f"{exact}:")
        masks(x)
        rd[:] = [0, 36]
        reads(x, NR - 1)
        for n in range(18):
            mm(x, n)
        x(f"v_max_f32 v{vM}, v{vS}, v{vS + 1}")
        for i in range(2, 144, 2):
            x(f"v_max3_f32 v{vM}, v{vS + i}, v{vS + i + 1}, v{vM}")
        x(f"v_mov_b32 v{vM + 1}, v{vM}")
        x(f"v_permlane32_swap_b32 v{vM}, v{vM + 1}")
        x(f"v_max_f32 v{vM + 1}, v{vM}, v{vM + 1}")
        for i in range(0, 144, 2):
            x(f"v_pk_add_f32 {vr(vS + i, 2)}, {vr(vS + i, 2)}, {vr(vM + 1, 2)} op_sel_hi:[1,0] neg_lo:[0,1] neg_hi:[0,1]")
        for hb in range(18):
            expblock(x, hb, {})
            mm(x, 18 + hb)
        x(f"v_mov_b32 v{t}, v{aO + 12}"); x(f"v_mov_b32 v{t + 1}, v{aO + 12}")
        x(f"v_permlane32_swap_b32 v{t}, v{t + 1}")
        x("s_nop 1")
        x(f"s_branch {checked}")
        self.tail += x.L
        e(f"s_lshl_b32 s{sT0}, s{sMT}, 4"); e(f"s_add_u32 s{sT0}, s{sT0}, s{sHEAD}"); e(f"s_lshl_b32 s{sT0}, s{sT0}, 11")
        e(f"s_add_u32 s{sT0}, s{sT0}, {WS_O}")
        e(f"s_and_b32 s{sT1}, s{sMT}, 7"); e(f"s_lshl_b32 s{sT1}, s{sT1}, 5"); e(f"s_add_u32 s{sT1}, s{sT1}, s{sHEAD}")
        e(f"s_lshl_b32 s{sT1}, s{sT1}, 2"); e(f"s_add_u32 s{sT1}, s{sT1}, s{sFX}")
        self.stamp(e, "pv")
        self.mode_check(e, 3, vRDY)
        lo, hi = f32(2.0 ** -30), f32(2.0 ** 60)
        e(f"v_mov_b32 v{t}, v{aO + 12}"); e(f"v_mov_b32 v{t + 1}, v{aO + 12}")
        e(f"v_permlane32_swap_b32 v{t}, v{t + 1}")
        e(f"v_subrev_u32 v{t}, {lo}, v{t + 1}")
        e(f"v_cmp_lt_u32 vcc, {0 if self.p['exact'] else hi - lo}, v{t}")
        if not self.p.get("fk"): e(f"s_cbranch_vccnz {exact}")
        e(f"{checked}:")
        e(f"v_rcp_f32 v{t + 1}, v{t + 1}")
        e(f"v_pk_mul_f32 {vr(t + 2, 2)}, {vr(aO, 2)}, {vr(vRM, 2)}")
        for i in range(2, 16, 2):
            e(f"v_pk_fma_f32 {vr(t + 2, 2)}, {vr(aO + i, 2)}, {vr(vRM + i, 2)}, {vr(t + 2, 2)}")
        def scale(r):
            for i in r:
                e(f"v_pk_mul_f32 {vr(aO + i, 2)}, {vr(aO + i, 2)}, {vr(t, 2)} op_sel:[0,1] op_sel_hi:[1,1]")
        ost = lambda i: [f"buffer_store_dwordx4 {vr(vQ + 4 * i, 4)}, v{vL16}, {WS}, s{sT0} offen offset:{1024 * i}"]
        e(f"v_add_f32 v{t + 2}, v{t + 2}, v{t + 3}")
        e(f"v_mov_b32 v{t + 3}, v{t + 2}")
        scale(range(8, 16, 2))
        e(f"v_permlane32_swap_b32 v{t + 2}, v{t + 3}")
        scale(range(0, 8, 2))
        e(f"v_add_f32 v{t + 2}, v{t + 2}, v{t + 3}")
        for i in range(4):
            e(f"v_cvt_pk_bf16_f32 v{vQ + i}, v{aO + 2 * i}, v{aO + 2 * i + 1}")
        e(f"v_fma_f32 v{t + 2}, v{t + 2}, v{t + 1}, v{vMU}")
        self.publish(e, ost(0), wt=self.p["ohwt"] & 1)
        self.split_hi_lo(e, vCP, t + 2)
        for i in range(4, 8):
            e(f"v_cvt_pk_bf16_f32 v{vQ + i}, v{aO + 2 * i}, v{aO + 2 * i + 1}")
        e(f"v_cndmask_b32 v{vQ + 6}, v{vQ + 6}, v{vCP}, {HI}")
        e(f"v_cndmask_b32 v{vQ + 7}, v{vQ + 7}, 0, {HI}")
        self.stamp(e, "att")
        self.publish(e, ost(1), wt=self.p["ohwt"] & 1)
        e(f"v_mov_b32 v{t}, 0"); e(f"v_mov_b32 v{t + 1}, 1")
        e.wait(vm="all")
        e("s_mov_b64 exec, 1")
        self.publish(e, [f"buffer_store_dword v{t + 1}, v{t}, {WS}, s{sT1} offen offset:{FX_F2}"])
        e("s_mov_b64 exec, -1")
        self.stamp(e, "opub")
        if self.stop > 2:
            e(f"s_cmp_ge_u32 s{sJ}, 28"); e("s_cbranch_scc1 L_Ldone")
            self.ffn_setup(e, 0)
            e("s_barrier")
            self.stamp(e, "Bp")
            for op in self.gu_ops(e, WG, L_GATE, range(7 - self.p["glate"], 7), "gl"): op()
            for op in self.gu_ops(e, WU, L_UP, range(self.p["upe"]), "up"): op()
            for tile in range(self.p["ltouch"]):
                e(f"v_lshlrev_b32 v24, 7, v{vLANE}")
                e(f"s_lshl_b32 s{sT0}, s{sJ}, 4"); e(f"s_add_u32 s{sT0}, s{sT0}, s{sW}"); e(f"s_add_u32 s{sT0}, s{sT0}, {4 * tile}")
                e(f"s_mul_i32 s{sT0}, s{sT0}, {4 * 896}")
                self.touch(e, WD, f"s{sT0}", 28)
            e.wait(vm="gl")
            e("s_barrier")
            self.stamp(e, "Bx")
        if self.stop > 3:
            self.ffn_L(e)
        e("L_Ldone:")
        self.finish(e, 0)
        return e

    def ffn_setup(self, e, role):
        self.rows128_src(e, vD, 896, 64, lambda i: 128 * i)
        self.tr_base(e, vP[0], 4, 128, 32)
        e(f"v_bfe_u32 v{t}, v{vLANE}, 3, 1"); e(f"v_lshlrev_b32 v{t}, 6, v{t}")
        e(f"v_xor_b32 v{t + 1}, 64, v{t}")
        e(f"s_mov_b32 s{sT0}, {L_GATE}"); e(f"s_mov_b32 s{sT1}, {L_UP}")
        e(f"v_add3_u32 v{vP[1]}, v{vP[0]}, v{t + 1}, s{sT0}")
        e(f"v_add3_u32 v{vP[2]}, v{vP[0]}, v{t}, s{sT1}")
        e(f"v_add3_u32 v{vP[3]}, v{vP[0]}, v{t + 1}, s{sT1}")
        e(f"v_add3_u32 v{vP[0]}, v{vP[0]}, v{t}, s{sT0}")
        if role == 0:
            self.rows128_src(e, vGA, 3584, 64, lambda i: 8 * i)
        else:
            e(f"v_lshrrev_b32 v{t}, 3, v{vLANE}"); e(f"v_mul_u32_u24 v{t}, {14336 - 1024}, v{t}"); e(f"v_add_u32 v24, v24, v{t}")
        self.w5_base(e)
        e(f"s_mul_i32 s{sT0}, s{sKH}, 14336")
        for k in range(2):
            e(f"v_add_u32 v{vW5[k]}, s{sT0}, v{vW5[k]}")
        e(f"s_xor_b32 s{sT1}, s{sMG}, {2 - 2 * role}"); e(f"s_lshl_b32 s{sT1}, s{sT1}, 1"); e(f"s_add_u32 s{sT1}, s{sT1}, s{sMI}")
        e(f"s_lshl_b32 s{sA5}, s{sG}, 3"); e(f"s_add_u32 s{sA5}, s{sA5}, s{sT1}")
        e(f"s_lshl_b32 s{sT1}, s{sT1}, 5"); e(f"s_mul_i32 s{sT0}, s{sKH}, 14"); e(f"s_add_u32 s{sT1}, s{sT1}, s{sT0}")
        e(f"s_sub_u32 s{sT1}, s{sT1}, s{sHF}"); e(f"s_add_u32 s{sT1}, s{sT1}, 1"); e(f"s_lshl_b32 s{sT1}, s{sT1}, 2")
        e(f"s_add_u32 s{sT1}, s{sT1}, s{sFX}"); e(f"s_add_u32 s{sF4C}, s{sT1}, {FX_F4}")
        e(f"s_mul_i32 s{sWD}, s{sKH}, {896 * 896}"); e(f"s_mul_i32 s{sT0}, s{sMI}, {8 * 896}")
        e(f"s_add_u32 s{sWD}, s{sWD}, s{sT0}"); e(f"s_lshl_b32 s{sT0}, s{sNG}, 7"); e(f"s_add_u32 s{sWD}, s{sWD}, s{sT0}")
        e(f"s_xor_b32 s{sT0}, s{sHF}, 1"); e(f"s_mul_i32 s{sT0}, s{sT0}, {64 * 896}"); e(f"s_add_u32 s{sWD}, s{sWD}, s{sT0}")
        e(f"s_mul_i32 s{sWL}, s{sW}, 7168")
        e(f"s_xor_b32 s{sML}, s{sPAR}, {role}"); e(f"s_lshl_b32 s{sML}, s{sML}, 2"); e(f"s_add_u32 s{sML}, s{sML}, s{sW}")
        e(f"s_lshl_b32 s{sMT}, s{sG}, 3"); e(f"s_add_u32 s{sMT}, s{sMT}, s{sML}")
        e(f"s_lshr_b32 s{sT1}, s{sJ}, 1"); e(f"s_lshl_b32 s{sT1}, s{sT1}, 10")
        for k, dst in enumerate((sACT, sAC2)):
            base, stride = ACTLOC[role][k]
            e(f"s_mul_i32 s{sT0}, s{sMT}, {stride}"); e(f"s_add_u32 s{sT0}, s{sT0}, s{sT1}"); e(f"s_add_u32 s{dst}, s{sT0}, {base}")
        e(f"s_lshl_b32 s{sT0}, s{sML}, 5"); e(f"s_add_u32 s{sT0}, s{sT0}, s{sJ}"); e(f"s_lshl_b32 s{sT0}, s{sT0}, 2")
        e(f"s_add_u32 s{sT0}, s{sT0}, s{sFX}"); e(f"s_add_u32 s{sF4P}, s{sT0}, {FX_F4}")
        e(f"v_lshlrev_b32 v{vPA}, 2, v{vLANE}"); e(f"v_lshlrev_b32 v{vPR}, 3, v{vLANE}")

    def w5_base(self, e, vW5=vW5):
        self.tr_base(e, vW5[0], 4, 128, 32)
        e(f"v_bfe_u32 v{t}, v{vLANE}, 3, 1"); e(f"v_xor_b32 v{t}, s{sKH}, v{t}"); e(f"v_lshlrev_b32 v{t}, 6, v{t}")
        e(f"v_xor_b32 v{t + 1}, 64, v{t}")
        e(f"v_add_u32 v{vW5[1]}, v{vW5[0]}, v{t + 1}")
        e(f"v_add_u32 v{vW5[0]}, v{vW5[0]}, v{t}")

    def gu_ops(self, e, srd, base, cs, tag):
        ops = []
        fake = self.p.get("fake", 0) & (1 if srd == WG else 2)
        if fake: srd = X_
        for c in cs:
            for i in range(2):
                def op(c=c, i=i):
                    if i == 0:
                        e(f"s_add_u32 s{sT2}, s{sG}, {c}"); e(f"s_cmp_ge_u32 s{sT2}, 7"); e(f"s_cselect_b32 s{sT3}, 7, 0")
                        e(f"s_sub_u32 s{sT2}, s{sT2}, s{sT3}"); e(f"s_lshl_b32 s{sT2}, s{sT2}, 2"); e(f"s_add_u32 s{sT2}, s{sT2}, s{sW}")
                        e(f"s_lshl_b32 s{sT3}, s{sT2}, 11"); e(f"s_add_u32 m0, s{sT3}, {base}")
                        e(f"s_mul_i32 s{sT2}, s{sT2}, {16 * 3584}"); e(f"s_lshl_b32 s{sT3}, s{sJ}, 7"); e(f"s_add_u32 s{sT2}, s{sT2}, s{sT3}")
                        if fake:
                            e(f"s_mul_i32 s{sT2}, s{sG}, {256 * 896}"); e(f"s_mul_i32 s{sT3}, s{sW}, {16 * 3584}")
                            e(f"s_add_u32 s{sT2}, s{sT2}, s{sT3}"); e(f"s_add_u32 s{sT2}, s{sT2}, {c * 128}")
                    e.vmem(f"buffer_load_dwordx4 v{vGA[i]}, {srd}, s{sT2} offen offset:{1024 * i} {'nt' if self.p['nt'] & (1 if srd == WG else 2) else ''} lds", tag)
                ops.append(op)
        return ops

    def paced(self, e, ops, depth):
        for i, op in enumerate(ops):
            if i > depth:
                e(f"s_waitcnt vmcnt({depth})")
            op()

    def wd_ops(self, e, qs):
        ops = []
        for q in qs:
            for grp in range(2):
                for i in range(4 - grp):
                    def op(q=q, grp=grp, i=i):
                        if i == 0:
                            e(f"s_add_u32 m0, s{sWL}, {SLOT[q] + 4096 * grp}")
                            e(f"s_add_u32 s{sT2}, s{sWD}, {(16 * q + 512 * grp) * 896}")
                        if self.p.get("fake", 0) & 4:
                            if i == 0:
                                e(f"s_mul_i32 s{sT2}, s{sG}, {8 * 28672}"); e(f"s_add_u32 s{sT2}, s{sT2}, s{sWL}")
                                e(f"s_add_u32 s{sT2}, s{sT2}, {WS_H + q * 28672 + 4096 * grp}")
                            e.vmem(f"buffer_load_dwordx4 v{vL16}, {WS}, s{sT2} offen offset:{1024 * i} sc1 lds", ("wd", q))
                            return
                        e.vmem(f"buffer_load_dwordx4 v{vD[i]}, {WD}, s{sT2} offen offset:{1024 * i} {'nt' if self.p['nt'] & 4 else ''} lds", ("wd", q))
                    ops.append(op)
        return ops

    def wd_dma(self, e, qs):
        for q in qs:
            for op in self.wd_ops(e, [q]):
                op()
            self.tr(e, f"q{q}", 1)

    def h_poll(self, e, between=None):
        e(f"s_lshl_b32 s{sT0}, s{sML}, 7"); e(f"s_add_u32 s{sT0}, s{sT0}, s{sFX}"); e(f"s_add_u32 s{sT0}, s{sT0}, {FX_F3}")
        e(f"s_mul_i32 s{sT4}, s{sMT}, 28672"); e(f"s_add_u32 s{sT4}, s{sT4}, {WS_H}")
        e(f"s_lshl_b32 s{sT5}, s{sMT}, 11"); e(f"s_add_u32 s{sT5}, s{sT5}, {WS_SS}")
        e("s_mov_b64 exec, 0x3fff")
        self.poll(e, vPA, f"s{sT0}", f"v_cmp_ne_u32 vcc, 1, v{vSM}", vSM)
        e("s_mov_b64 exec, -1")

    def h_load(self, e, s):
        e.vmem(f"buffer_load_dwordx4 {vr(vH + 4 * s, 4)}, v{vL16}, {WS}, s{sT4} offen offset:{1024 * (s & 3)} sc1", ("h", s))
        if s & 3 == 3:
            e(f"s_add_u32 s{sT4}, s{sT4}, 4096")

    def ss_load(self, e):
        if not self.p["ssb"]:
            for i in range(7):
                e.vmem(f"buffer_load_dword v{vSS + i}, v{vPA}, {WS}, s{sT5} offen offset:{256 * i} sc1", "ss")
            return
        e(f"s_lshl_b32 s{sT0}, s{sW}, 11"); e(f"s_add_u32 m0, s{sT0}, {SLOT[0] + 8192 * e.role}")
        e(f"v_add_u32 v{vSS + 7}, s{sT0}, v{vPA}")
        self.dma4(e, WS, [vL16] * 2, f"s{sT5}", n=2, tag="ss", fl="sc1")

    def ss_read(self, e):
        e.wait(vm="ss")
        if self.p["ssb"]:
            for i in range(7):
                e.lds(f"ds_read_b32 v{vSS + i}, v{vSS + 7} offset:{SLOT[0] + 8192 * e.role + 256 * i}", "ss")

    KMAJ = [(s, k) for s in range(28) for k in range(2)]
    TMAJ = [(s, k) for k in range(2) for s in range(28)]

    def gu_rd(self, e, mat, order, n):
        s, k = order[n]
        self.trd(e, vRING + 4 * (n % NR), vP[2 * mat + k], 16 * s * 128, 1024, ("g", n))

    def gu_pre(self, e, mat, order):
        for n in range(NR - 1):
            self.gu_rd(e, mat, order, n)

    def gu_pass(self, e, mat, order, accs, hook=None, wait_h=False):
        for n, (s, k) in enumerate(order):
            e.wait(vm=("h", s) if (wait_h and k == 0) else None, ds=("g", n))
            self.mf(e, accs[k], vRING + 4 * (n % NR), vH + 4 * s, "0" if s == 0 else None)
            if n % 8 == 7: self.tr(e, f"m{mat}.{n}", 1)
            if n + NR - 1 < 56:
                self.gu_rd(e, mat, order, n + NR - 1)
            if hook:
                hook(n)

    def gelu_consts(self, e):
        k1 = 2 * math.sqrt(2 / math.pi) * math.log2(math.e)
        e.wait(ds="ss")
        for i in range(3):
            e(f"v_add_f32 v{vSS + i}, v{vSS + i}, v{vSS + 3 + i}")
        e(f"v_add_f32 v{vSS}, v{vSS}, v{vSS + 6}")
        e(f"v_add_f32 v{vSS + 1}, v{vSS + 1}, v{vSS + 2}")
        e(f"v_add_f32 v{vSS}, v{vSS}, v{vSS + 1}")
        e(f"v_mov_b32 v{vSS + 1}, v{vSS}")
        e(f"v_permlane32_swap_b32 v{vSS}, v{vSS + 1}")
        e(f"v_add_f32 v{vSS}, v{vSS}, v{vSS + 1}")
        e(f"v_mul_f32 v{vSS}, {f32(1 / 448)}, v{vSS}")
        e(f"v_add_f32 v{vRI}, {f32(1e-5)}, v{vSS}")
        e(f"v_rsq_f32 v{vSS}, v{vRI}")
        e(f"v_mul_f32 v{vK1}, {f32(-k1)}, v{vSS}")
        e(f"v_mul_f32 v{vSS}, v{vSS}, v{vSS}")
        e(f"v_mul_f32 v{vSS}, {f32(0.044715)}, v{vSS}")
        e(f"v_mul_f32 v{vK2}, v{vSS}, v{vK1}")

    def gelu_gate(self, e, ops=()):
        T = vTMP
        ops = list(ops)
        per = max(-(-len(ops) // 12), self.p["uper"] if e.role == 0 else 1)
        def side():
            for i in range(per):
                if ops: ops.pop(0)()
        for a in range(vACC, vACC + 32, 8):
            self.tr(e, f"g{(a - vACC) // 8}", 1)
            side()
            for i in range(8): e(f"v_mul_f32 v{T + i}, v{a + i}, v{a + i}")
            for i in range(8): e(f"v_fma_f32 v{T + i}, v{T + i}, v{vK2}, v{vK1}")
            for i in range(8): e(f"v_mul_f32 v{T + i}, v{T + i}, v{a + i}")
            side()
            for i in range(8): e(f"v_exp_f32 v{T + i}, v{T + i}")
            for i in range(8): e(f"v_fma_f32 v{T + i}, v{T + i}, v{vRI}, v{vRI}")
            side()
            for i in range(8): e(f"v_rcp_f32 v{T + i}, v{T + i}")
            for i in range(8): e(f"v_mul_f32 v{a + i}, v{T + i}, v{a + i}")
        assert not ops

    def prod_ops(self, e, k):
        g, u = vACC + 16 * k, UACC[k]
        ops = []
        for hf in range(2):
            b = 8 * hf
            for i in range(0, 8, 2):
                ops.append(lambda b=b, i=i: [e(f"v_mul_f32 v{u + b + j}, v{g + b + j}, v{u + b + j}") for j in (i, i + 1)])
            for i in range(0, 4, 2):
                ops.append(lambda b=b, i=i: [e(f"v_cvt_pk_bf16_f32 v{u + b + j}, v{u + b + 2 * j}, v{u + b + 2 * j + 1}") for j in (i, i + 1)])
            def st(b=b, tile=2 * k + hf):
                e(f"s_add_u32 s{sT0}, s{(sACT, sAC2)[k]}, {(tile & 1) * 14336}")
                self.publish(e, [f"buffer_store_dwordx4 {vr(u + b, 4)}, v{vL16}, {WS}, s{sT0} offen"], ("act", tile), wt=e.role == 1 and self.p["swt"])
                self.last_act = ("act", tile)
            ops.append(st)
        return ops

    def up_pass(self, e, flag_at, extra=None):
        ops = self.prod_ops(e, 0)
        def hook(n):
            if n >= 30 and ops: ops.pop(0)()
            if n == flag_at: self.act_flag(e, 2)
            if extra: extra(n)
        self.gu_pass(e, 1, self.TMAJ, UACC, hook)
        assert not ops

    def act_flag(self, e, stage):
        e(f"v_mov_b32 v{vFL}, {stage}")
        self.tr(e, f"F{stage}<", 1)
        e.wait(vm=self.last_act if stage > 1 else "ss")
        self.tr(e, f"F{stage}>", 1)
        e("s_mov_b64 exec, 1")
        self.publish(e, [f"buffer_store_dword v{vFL}, v{vPA}, {WS}, s{sF4P} offen"], "flag")
        if e.role == 1 and stage > 1 and self.p["ptouch"] and self.p["swt"]:
            e("s_mov_b64 exec, 0xffff")
            e.vmem(f"buffer_load_dword v25, v24, {WS}, s{(sACT, sAC2)[stage - 2]} offen sc1")
        e("s_mov_b64 exec, -1")

    def act_sample(self, e):
        e("s_mov_b64 exec, 0x7f")
        e.vmem(f"buffer_load_dword v{vSM}, v{vPR}, {WS}, s{sF4C} offen sc1", "sample")
        e("s_mov_b64 exec, -1")

    def act_check(self, e, stage):
        e.wait(vm="sample")
        e("s_mov_b64 exec, 0x7f")
        self.check_or_poll(e, vPR, f"s{sF4C}", f"v_cmp_gt_u32 vcc, {stage}, v{vSM}", vSM)
        e("s_mov_b64 exec, -1")
        self.tr(e, f"C{stage}", 1)

    def act_ops(self, e, q):
        ops = []
        for s in range(7):
            def op(s=s):
                if s == 0:
                    base, stride = ACTLOC[e.role][q >> 1]
                    e(f"s_mul_i32 s{sT1}, s{sA5}, {stride}"); e(f"s_mul_i32 s{sT0}, s{sKH}, 7168")
                    e(f"s_add_u32 s{sT1}, s{sT1}, s{sT0}"); e(f"s_add_u32 s{sT1}, s{sT1}, {base + (q & 1) * 14336}")
                e.vmem(f"buffer_load_dwordx4 {vr(vH + 28 * q + 4 * s, 4)}, v{vL16}, {WS}, s{sT1} offen offset:{1024 * (s & 3)} sc1", ("a", q, s))
                if s == 3:
                    e(f"s_add_u32 s{sT1}, s{sT1}, 4096")
            ops.append(op)
        return ops

    def act_load(self, e, q):
        for op in self.act_ops(e, q):
            op()
        self.tr(e, f"a{q}", 1)

    def down_order(self):
        o = [(q, s, k) for q in range(4) for s in range(7) for k in range(2)]
        if self.p["dlast"]:
            o = o[:42] + [(3, s, k) for k in (1, 0) for s in range(7)]
        return o

    def down_rd(self, e, n):
        q, s, k = self.down_order()[n]
        if n == 39:
            e.lds(f"ds_read_b64 {vr(vTMP, 2)}, v{vTMP + 2}", "qf")
        if n == 42:
            ok, spin = self.lab("qok"), self.lab("qspin")
            e.wait(ds="qf")
            e(f"v_and_b32 v{vTMP}, v{vTMP}, v{vTMP + 1}"); e(f"v_cmp_ne_u32 vcc, 1, v{vTMP}")
            e(f"s_cbranch_vccz {ok}")
            e(f"{spin}:")
            e(f"ds_read_b64 {vr(vTMP, 2)}, v{vTMP + 2}")
            e(f"s_add_u32 s{sSPIN}, s{sSPIN}, 1")
            e("s_waitcnt lgkmcnt(0)")
            e(f"v_and_b32 v{vTMP}, v{vTMP}, v{vTMP + 1}"); e(f"v_cmp_ne_u32 vcc, 1, v{vTMP}")
            e(f"s_cmp_gt_u32 s{sSPIN}, {SPIN_LIMIT}"); e(f"s_cbranch_scc1 {ok}"); e(f"s_cbranch_vccnz {spin}")
            e(f"{ok}:")
            self.stamp(e, "X3")
        if n % 14 == 0:
            for kk in range(2):
                e(f"v_add_u32 v{vW5t[kk]}, {SLOT[q]}, v{vW5[kk]}")
        self.trd(e, vRING + 4 * (n % NR), vW5t[k], 1024 * s, 7168, ("d", n))

    def done_set(self, e):
        e(f"s_lshl_b32 s{sT0}, s{sW}, 2"); e(f"s_add_u32 s{sT0}, s{sT0}, {L_PF + 32 + 16 * e.role}")
        e(f"v_mov_b32 v{vTMP + 4}, s{sT0}"); e(f"v_mov_b32 v{vTMP + 5}, 1")
        e.lds(f"ds_write_b32 v{vTMP + 4}, v{vTMP + 5}")

    def done_wait(self, e):
        spin, ok = self.lab("dspin"), self.lab("dok")
        e("s_mov_b64 exec, 0xff")
        e(f"{spin}:")
        e(f"ds_read_b32 v{vTMP + 3}, v{vPA} offset:{L_PF + 32}")
        e(f"s_add_u32 s{sSPIN}, s{sSPIN}, 1")
        e("s_waitcnt lgkmcnt(0)")
        e(f"v_cmp_ne_u32 vcc, 1, v{vTMP + 3}")
        e(f"s_cmp_gt_u32 s{sSPIN}, {SPIN_LIMIT}"); e(f"s_cbranch_scc1 {ok}"); e(f"s_cbranch_vccnz {spin}")
        e(f"{ok}:")
        e("s_mov_b64 exec, -1")
        e.ds = []

    def down_pre(self, e):
        e(f"s_lshl_b32 s{sT0}, s{sKH}, 3"); e(f"s_add_u32 s{sT0}, s{sT0}, {L_PF + 16}"); e(f"v_mov_b32 v{vTMP + 2}, s{sT0}")
        for n in range(NR - 1):
            self.down_rd(e, n)

    def down_half(self, e, cinit, hook, va, off):
        def put(i):
            e.lds(f"ds_write_b128 v{va}, {vr(vACC + 16 + 4 * i, 4)} offset:{off + 1024 * i}")
        for n, (q, s, k) in enumerate(self.down_order()):
            e.wait(vm=("a", q, s), ds=("d", n))
            self.mf(e, vACC + 16 * k, vRING + 4 * (n % NR), vH + 28 * q + 4 * s, cinit[k] if n < 2 else None)
            if n % 7 == 6: self.tr(e, f"d{n}", 1)
            if n + NR - 1 < 56:
                self.down_rd(e, n + NR - 1)
            hook(n)
            if self.p["dlast"] and n >= 52: put(n - 52)
        if not self.p["dlast"]:
            for i in range(4): put(i)

    def out_addr(self, e):
        e(f"v_and_b32 v{vXO}, 31, v{vLANE}"); e(f"v_mul_u32_u24 v{vXO}, 896, v{vXO}")
        e(f"v_lshrrev_b32 v{t + 1}, 5, v{vLANE}")
        e(f"v_lshl_add_u32 v{vXO}, v{t + 1}, 4, v{vXO}")
        e(f"s_lshl_b32 s{sT0}, s{sG}, 2"); e(f"s_add_u32 s{sT0}, s{sT0}, s{sMG}"); e(f"s_lshl_b32 s{sT0}, s{sT0}, 1")
        e(f"s_add_u32 s{sT0}, s{sT0}, s{sMI}")
        e(f"s_mul_i32 s{sXO}, s{sT0}, {32 * 896}"); e(f"s_lshl_b32 s{sT1}, s{sNG}, 1"); e(f"s_add_u32 s{sT1}, s{sT1}, s{sKH}")
        e(f"s_lshl_b32 s{sT1}, s{sT1}, 6"); e(f"s_add_u32 s{sXO}, s{sXO}, s{sT1}")

    def first_pass(self, e, pre, extra):
        for s in range(pre):
            self.h_load(e, s)
        self.stamp(e, "hpre")
        ops = [lambda s=s: self.h_load(e, s) for s in range(pre, 28)]
        ops += [lambda: self.ss_load(e)] + extra
        def hook(n):
            if n & 1 == 0 and ops: ops.pop(0)()
        self.gu_pass(e, 0, self.KMAJ, [vACC, vACC + 16], hook, wait_h=True)
        assert not ops

    def ffn_L(self, e):
        A0, A1 = vACC, vACC + 16
        p = self.p
        full = self.stop > 4
        self.gu_pre(e, 0, self.KMAJ)
        self.h_poll(e)
        self.tr(e, "hpoll", 2)
        self.stamp(e, "hpoll")
        e("s_setprio 2")
        self.first_pass(e, p["pre"], [lambda: e("s_barrier")] if p["bh"] else [])
        self.stamp(e, "seg1")
        self.ss_read(e)
        self.act_flag(e, 1)
        vPF = vMU2
        e(f"s_lshl_b32 s{sT0}, s{sW}, 2"); e(f"s_add_u32 s{sT0}, s{sT0}, {L_PF}")
        e(f"v_mov_b32 v{vPF}, s{sT0}"); e(f"v_mov_b32 v{t}, 0")
        e.lds(f"ds_write2_b32 v{vPF}, v{t}, v{t} offset0:0 offset1:4", "pf")
        e.lds(f"ds_write2_b32 v{vPF}, v{t}, v{t} offset0:8 offset1:12", "pf")
        self.gelu_consts(e)
        self.gelu_gate(e, self.gu_ops(e, WU, L_UP, range(p["upe"] + p["ups"], 7), "up"))
        e.wait(vm="up", ds="all")
        self.stamp(e, "gelu1")
        e("s_barrier")
        self.stamp(e, "Bb")
        self.gu_pre(e, 1, self.TMAJ)
        e(f"s_lshl_b32 s{sT4}, s{sJ}, 2"); e(f"s_sub_u32 s{sT4}, s{sF4P}, s{sT4}")
        qops = self.wd_ops(e, [0, 1, 2][p["q0e"]:3 - p["q2s"]]) if full else []
        def extra(n):
            if qops and (n & 1 == 0 and n < 28 or n >= 44): qops.pop(0)()
            if n == 29:
                e("s_mov_b64 exec, 0xfffffff")
                e.vmem(f"buffer_load_dword v{vSM}, v{vPA}, {WS}, s{sT4} offen sc1", "sample")
                e("s_mov_b64 exec, -1")
        self.up_pass(e, p["fl1"], extra)
        assert not qops
        e("s_setprio 0")
        self.stamp(e, "seg3")
        e.wait(vm="sample")
        e("s_mov_b64 exec, 0xfffffff")
        self.check_or_poll(e, vPA, f"s{sT4}", f"v_cmp_eq_u32 vcc, 0, v{vSM}", vSM)
        e("s_mov_b64 exec, -1")
        ops = self.prod_ops(e, 1)
        if full and p["lord"]:
            ops.insert(6, lambda: self.act_sample(e))
        for op in ops: op()
        if not full:
            self.act_flag(e, 3)
            return
        late = self.act_ops(e, 2) + self.act_ops(e, 3)
        if p["lord"]:
            self.act_check(e, 2)
            self.stamp(e, "chk1")
            ops = self.act_ops(e, 0)
            for op in ops[:3]: op()
            self.act_flag(e, 3)
            if not p["bd"]: self.done_set(e)
            for op in ops[3:]: op()
            ops = self.act_ops(e, 1)
            for op in ops[:p["lord"]]: op()
            self.act_sample(e)
            for op in ops[p["lord"]:]: op()
        else:
            self.act_sample(e)
            self.act_flag(e, 3)
            if not p["bd"]: self.done_set(e)
            self.act_check(e, 2)
            self.stamp(e, "chk1")
            self.act_load(e, 0)
            self.act_load(e, 1)
            self.act_sample(e)
        if p["c3at"] < 0:
            self.act_check(e, 3)
            for i in range(-7 * p["c3at"]): late.pop(0)()
        e(f"s_lshl_b32 s{sT0}, s{sW}, 12"); e(f"v_add_u32 v{t}, s{sT0}, v{vL16}"); e(f"v_xor_b32 v{t + 1}, 8192, v{t}")
        e(f"v_add_u32 v{t}, {L_XCH5}, v{t}"); e(f"v_add_u32 v{t + 1}, {L_XCH5}, v{t + 1}")
        e(f"v_add_u32 v{t + 3}, {14336 - 1024}, v{vL16}"); e(f"v_mov_b32 v{vFL}, 1")
        e(f"s_add_u32 s{sT4}, s{sJ}, 14"); e(f"s_cmp_ge_u32 s{sT4}, 28"); e(f"s_cselect_b32 s{sT5}, 28, 0")
        e(f"s_sub_u32 s{sT4}, s{sT4}, s{sT5}"); e(f"s_mul_i32 s{sT3}, s{sMG}, 7")
        e(f"s_lshl_b32 s{sT0}, s{sW}, 2"); e(f"s_add_u32 s{sT0}, s{sT0}, s{sFX}"); e(f"s_add_u32 s{sT0}, s{sT0}, {FX_F6}")
        for dst, j in ((sT5, sJ), (sT4, sT4), (sT3, sT3)):
            e(f"s_lshl_b32 s{dst}, s{j}, 4"); e(f"s_add_u32 s{dst}, s{dst}, s{sT0}")
        self.stamp(e, "Bd_")
        if p["bd"]: e("s_barrier")
        else: self.done_wait(e)
        e("s_setprio 2")
        self.stamp(e, "Bd")
        self.down_pre(e)
        k = max(len(late) - 7, 0)
        late[k:k] = self.wd_ops(e, [3])
        def hook(n):
            if n == p["c3at"]: self.act_check(e, 3)
            if n >= p["c3at"] and late: late.pop(0)()
            if n == p["qfat"]:
                e.wait(vm=("wd", 3))
                e.lds(f"ds_write_b32 v{vPF}, v{vFL} offset:16")
            if n == 27:
                e("s_mov_b64 exec, 1")
                self.publish(e, [f"buffer_store_dword v{vFL}, v{vPA}, {WS}, s{sT5} offen"])
                e("s_mov_b64 exec, -1")
            if n == 46:
                e("s_mov_b64 exec, 0x7f")
                e.vmem(f"buffer_load_dword v{t + 2}, v{vL16}, {WS}, s{sT3} offen sc1", "sample")
                e("s_mov_b64 exec, -1")
        self.down_half(e, ["0", "0"], hook, t, 0)
        e.lds(f"ds_write_b32 v{vPF}, v{vFL}")
        e("s_setprio 0")
        self.stamp(e, "dn")
        e(f"s_mul_i32 s{sT0}, s{sKH}, 7"); e(f"s_add_u32 s{sT0}, s{sT0}, s{sNG}"); e(f"s_lshl_b32 s{sT0}, s{sT0}, 10")
        e(f"s_add_u32 s{sT0}, s{sT0}, {WS_O}")
        e(f"s_lshl_b32 s{sT1}, s{sA5}, 15"); e(f"s_add_u32 s{sT1}, s{sT1}, s{sT0}")
        e(f"s_xor_b32 s{sT2}, s{sA5}, 4"); e(f"s_lshl_b32 s{sT2}, s{sT2}, 15"); e(f"s_add_u32 s{sT2}, s{sT2}, s{sT0}")
        e(f"v_xor_b32 v{vPF}, 8, v{vPF}")
        e.wait(vm="sample")
        e("s_mov_b64 exec, 0x7f")
        self.check_or_poll(e, vL16, f"s{sT3}", f"v_cmp_eq_u32 vcc, 0, v{t + 2}", t + 2)
        e("s_mov_b64 exec, -1")
        spin, got = self.lab("pair"), self.lab("paired")
        e(f"{spin}:")
        e(f"ds_read_b32 v{vSM}, v{vPF}")
        for i in range(4):
            e(f"ds_read_b128 {vr(vH + 4 * i, 4)}, v{t + 1} offset:{1024 * i}")
        e(f"s_add_u32 s{sSPIN}, s{sSPIN}, 1")
        e("s_waitcnt lgkmcnt(0)")
        e(f"v_cmp_ne_u32 vcc, 1, v{vSM}")
        e(f"s_cmp_gt_u32 s{sSPIN}, {SPIN_LIMIT}"); e(f"s_cbranch_scc1 {got}"); e(f"s_cbranch_vccnz {spin}")
        e(f"{got}:")
        e.ds = []
        self.tr(e, "pair", 1)
        for i in range(2):
            for r in range(8 * i, 8 * i + 8):
                e(f"v_add_f32 v{A0 + r}, v{A0 + r}, v{vH + r}")
            for r in range(4 * i, 4 * i + 4):
                e(f"v_cvt_pk_bf16_f32 v{A1 + r}, v{A0 + 2 * r}, v{A0 + 2 * r + 1}")
            self.publish(e, [f"buffer_store_dwordx4 {vr(A1 + 4 * i, 4)}, v{(vL16, t + 3)[i]}, {WS}, s{sT1} offen offset:{1024 * i}"])
        e(f"s_lshl_b32 s{sT0}, s{sW}, 11"); e(f"s_add_u32 m0, s{sT0}, {L_PART}")
        e(f"v_mov_b32 v{vFL}, 2")
        e.wait(vm="all")
        self.tr(e, "pack", 1)
        e("s_mov_b64 exec, 1")
        self.publish(e, [f"buffer_store_dword v{vFL}, v{vPA}, {WS}, s{sT5} offen"])
        self.poll(e, vPA, f"s{sT4}", f"v_cmp_ne_u32 vcc, 2, v{vSM}", vSM)
        e("s_mov_b64 exec, -1")
        self.tr(e, "ppoll", 1)
        self.dma4(e, WS, [vL16, t + 3], f"s{sT2}", n=2, fl="sc1")
        e.wait(vm="all")
        self.tr(e, "Br_", 1)
        e("s_barrier")

    SCHED = ["WXW.XWX|WX|WWX|WX|XQ|QQ|QQ|QQ",
             "WXW.X|WWX|WXQ|WXQ|WXQ|XQ|QQ|Q",
             "WXW.X|WWXQ|WXQ|WXQ|WXQ|XQ|QQ|",
             "WXW.X|WWQX|WQX|WQX|WQX|QQX|Q|",
             "WXW.X|WWQX|WQGX|WQX|WQGX|QQX|Q|",
             "WXW.X|WWQX|WQRX|WQRX|WQRX|QQX|Q|R",
             "WXW.X|WWX|WXWX|WX|XQ|QQ|QQ|QQ",
             "WXW.X|WW|XWQ|XWQ|XWQ|XQQ|XQQ|",
             "WXW.X|WWQX|WQGX|WQGX|WQGX|QQX|Q|"]

    def wvis(self):
        out, w = [], 0
        for ch in self.SCHED[self.p["sched"]]:
            if ch == "W": w += 1
            if ch == "X": out.append(w - 1)
        return out

    def role_S(self):
        e = Stream(); e.role = 1
        p = self.p
        vXA, vWA, vQA = [4, 5, 6, 7], [8, 9], 10
        sKX, sWB = sA5, sACT
        e(f"v_lshrrev_b32 v{t + 2}, 3, v{vLANE}"); e(f"v_bfe_u32 v{t}, v{vLANE}, 4, 1"); e(f"v_and_b32 v{t + 3}, 7, v{vLANE}")
        e(f"v_lshlrev_b32 v{t}, 2, v{t}"); e(f"v_xor_b32 v{t}, v{t}, v{t + 3}"); e(f"v_mul_u32_u24 v{t + 1}, 2688, v{t + 2}")
        e(f"v_lshl_add_u32 v{vWA[0]}, v{t}, 4, v{t + 1}"); e(f"v_add_u32 v{vWA[1]}, {8 * 2688 - 1024}, v{vWA[0]}")
        e(f"s_cmp_eq_u32 s{sG}, 7"); e(f"s_cselect_b32 s{sKC}, 0, s{sG}"); e(f"s_mov_b32 s{sKX}, s{sKC}")
        e(f"s_mul_i32 s{sT3}, s{sW}, {16 * 2688}"); e(f"s_add_u32 s{sT0}, s{sHEAD}, 7"); e(f"s_lshl_b32 s{sT0}, s{sT0}, 7")
        e(f"s_add_u32 s{sWB}, s{sT3}, s{sT0}"); e(f"s_cmp_lt_u32 s{sHEAD}, 14"); e(f"s_cselect_b32 s{sWB}, s{sWB}, 0x7f000000")
        e(f"s_lshl_b32 s{sT2}, s{sW}, 11")
        def x_setup():
            e(f"v_mul_u32_u24 v{t + 1}, 896, v{t + 2}")
            e(f"v_lshrrev_b32 v{t}, 1, v{t + 2}")
            e(f"v_xor_b32 v{t}, v{t}, v{t + 3}")
            e(f"v_lshl_add_u32 v{vXA[0]}, v{t}, 4, v{t + 1}")
            e(f"v_xor_b32 v{vXA[1]}, 64, v{vXA[0]}")
            e(f"v_add_u32 v{vXA[2]}, {16 * 896 - 2048}, v{vXA[0]}")
            e(f"v_add_u32 v{vXA[3]}, {24 * 896 - 3072}, v{vXA[1]}")
            e(f"v_add_u32 v{vXA[1]}, {8 * 896 - 1024}, v{vXA[1]}")
            self.ids(e, 0)
            e(f"s_mul_i32 s{sT4}, s{sMT}, {32 * 896}")
            self.srd(e, 8, 84, 2048 * 896)
        e("s_waitcnt lgkmcnt(0)")
        self.srd(e, 12, 86, 448 * 2688)
        def wkv(ic):
            e(f"s_add_u32 m0, s{sT2}, {LC + ic * 8192}")
            e(f"s_mul_i32 s{sT0}, s{sKC}, {64 * 2688}"); e(f"s_add_u32 s{sT0}, s{sT0}, s{sWB}")
            self.dma4(e, WQKV, vWA, f"s{sT0}", n=2)
            self.next_kc(e)
        def xch(ic):
            if ic == 0: x_setup()
            e(f"s_add_u32 m0, s{sT5}, {(ic % 4) * 16384}")
            e(f"s_lshl_b32 s{sT0}, s{sKX}, 7"); e(f"s_add_u32 s{sT0}, s{sT0}, s{sT4}")
            self.dma4(e, X_, vXA, f"s{sT0}", tag=("c", ic))
            self.next_kc(e, sKX)
        def wq(ic):
            e(f"s_lshr_b32 s{sT1}, s{sT2}, 1"); e(f"s_add_u32 m0, s{sT1}, {L_WQ + ic * 4096}")
            if ic == 0:
                e(f"s_cmp_eq_u32 s{sG}, 7"); e(f"s_cselect_b32 s{sWD}, 0, s{sG}")
            e(f"s_mul_i32 s{sT0}, s{sWD}, {64 * 2688}"); e(f"s_add_u32 s{sT0}, s{sT0}, s{sT3}")
            self.dma4(e, WQKV, [vQA], f"s{sT0}", n=1, tag="wq")
            self.next_kc(e, sWD)
        sNI = sM2
        def g_touch(c):
            e(f"s_add_u32 s{sT0}, s{sG}, {c}"); e(f"s_cmp_ge_u32 s{sT0}, 7"); e(f"s_cselect_b32 s{sT1}, 7, 0")
            e(f"s_sub_u32 s{sT0}, s{sT0}, s{sT1}"); e(f"s_mul_i32 s{sT0}, s{sT0}, {64 * 3584}"); e(f"s_add_u32 s{sT0}, s{sT0}, s{sNI}")
            self.touch(e, WG, f"s{sT0}", 28)
            e.vm.append(None)
        cnt = dict(W=0, X=0, Q=0, b=0, G=0, R=0)
        late = [False]
        def run(chars):
            for ch in chars:
                if ch == "W": wkv(cnt[ch])
                elif ch == "X":
                    assert cnt["X"] < 4 or cnt["b"] >= cnt["X"] - 2
                    xch(cnt[ch])
                elif ch == "Q":
                    wq(cnt[ch])
                elif ch == "G": g_touch(cnt[ch])
                elif ch == "R": rm_load(range(2 * cnt[ch], min(2 * cnt[ch] + 2, 7)))
                elif ch == "|":
                    ch = "b"
                    e.wait(vm=("c", cnt[ch]))
                    self.tr(e, f"got{cnt[ch]}", 4)
                    self.stamp(e, f"b{cnt[ch]}")
                    e("s_barrier")
                if ch in cnt:
                    if late[0]: self.tr(e, f"{ch}{cnt[ch]}", 4)
                    cnt[ch] += 1
        first, rest = self.SCHED[p["sched"]].split(".")
        run(first)
        self.ids(e, 1)
        self.late_setup(e)
        e(f"s_mul_i32 s{sT0}, s{sHEAD}, 56"); e(f"s_add_u32 s{sT3}, s{sT3}, s{sT0}")
        e(f"v_lshlrev_b32 v24, 7, v{vLANE}")
        self.stamp(e, "start")
        if p["pull"] or p["hg0"]:
            e(f"s_cmp_ge_u32 s{sJ}, 28"); e("s_cbranch_scc1 L_pull")
            e("L_pulled:")
            self.pull()
        self.rows64_src(e, [vQA], 2688, 0)
        vA, vRA, vRMr = [12, 13, 14, 15], 11, 160
        self.rows128_src(e, vA, 896, 64, lambda i: 8 * i)
        e(f"v_lshrrev_b32 v{vRA}, 3, v{vLANE}"); e(f"v_mul_u32_u24 v{vRA}, 896, v{vRA}")
        e(f"v_and_b32 v{t + 1}, 7, v{vLANE}"); e(f"v_lshl_add_u32 v{vRA}, v{t + 1}, 4, v{vRA}")
        def rm_load(r):
            e(f"s_lshl_b32 s{sT0}, s{sHEAD}, 2"); e(f"s_add_u32 s{sT0}, s{sT0}, s{sW}"); e(f"s_mul_i32 s{sT0}, s{sT0}, {7 * 896}")
            for i in r:
                e.vmem(f"buffer_load_dwordx4 {vr(vRMr + 4 * i, 4)}, v{vRA}, {WO}, s{sT0} offen offset:{128 * i}", "rm")
        def xr_load():
            e(f"s_lshl_b32 s{sT0}, s{sG}, 2"); e(f"s_add_u32 s{sT0}, s{sT0}, s{sMG}"); e(f"s_lshl_b32 s{sT0}, s{sT0}, 2")
            e(f"s_add_u32 s{sT0}, s{sT0}, s{sW}"); e(f"s_mul_i32 s{sT0}, s{sT0}, {16 * 896}")
            e(f"s_lshl_b32 s{sT1}, s{sNG}, 7"); e(f"s_add_u32 s{sT0}, s{sT0}, s{sT1}")
            e(f"s_cmp_lt_u32 s{sJ}, 28"); e(f"s_cselect_b32 s{sT0}, s{sT0}, 0x7f000000")
            e(f"s_add_u32 m0, s{sT2}, {L_XR}")
            self.dma4(e, X_, vA, f"s{sT0}", n=2, tag="rm")
        def o_touch():
            e(f"s_lshl_b32 s{sT0}, s{sG}, 5"); e(f"s_add_u32 s{sT0}, s{sT0}, s{sJ}"); e(f"s_lshl_b32 s{sT0}, s{sT0}, 2")
            e(f"s_add_u32 s{sT0}, s{sT0}, s{sW}"); e(f"s_lshl_b32 s{sT0}, s{sT0}, 11"); e(f"s_add_u32 s{sT0}, s{sT0}, {WS_O}")
            self.touch(e, WS, f"s{sT0}", 16)
        def h_touch():
            e(f"s_lshl_b32 s{sT1}, s{sG}, 5"); e(f"s_add_u32 s{sT1}, s{sT1}, s{sJ}"); e(f"s_lshl_b32 s{sT1}, s{sT1}, 2")
            e(f"s_add_u32 s{sT1}, s{sT1}, s{sW}"); e(f"s_mul_i32 s{sT0}, s{sT1}, {14 * 128}"); e(f"s_add_u32 s{sT0}, s{sT0}, {WS_H}")
            self.touch(e, WS, f"s{sT0}", 14)
            e(f"s_lshl_b32 s{sT0}, s{sT1}, 7"); e(f"s_add_u32 s{sT0}, s{sT0}, {WS_SS}")
            self.touch(e, WS, f"s{sT0}", 1)
        self.rows128_src(e, vGA, 3584, 64, lambda i: 8 * i)
        vV0, vV1, vXL = 16, 17, 21
        e(f"v_and_b32 v{t}, 31, v{vLANE}"); e(f"v_lshrrev_b32 v{t + 1}, 5, v{vLANE}")
        e(f"v_mul_u32_u24 v{vV0}, 7168, v{t + 1}"); e(f"v_lshl_add_u32 v{vV0}, v{t}, 4, v{vV0}")
        e(f"v_add_u32 v{vV1}, {WS_V + 14336 - 3072}, v{vV0}"); e(f"v_add_u32 v{vV0}, {WS_V - 2048}, v{vV0}")
        e(f"v_bfe_u32 v{vXL}, v{vLANE}, 1, 1"); e(f"v_xor_b32 v{vXL}, s{sKH}, v{vXL}"); e(f"v_lshlrev_b32 v{vXL}, 6, v{vXL}")
        e(f"v_lshl_add_u32 v{vXL}, v{t}, 7, v{vXL}"); e(f"v_lshl_add_u32 v{vXL}, v{t + 1}, 3, v{vXL}")
        e(f"s_lshl_b32 s{sT0}, s{sMI}, 12"); e(f"s_add_u32 s{sT0}, s{sT0}, {L_XR}"); e(f"v_add_u32 v{vXL}, s{sT0}, v{vXL}")
        self.w5_base(e, vW5t)
        e(f"s_mul_i32 s{sT0}, s{sKH}, {224 * 128}"); e(f"s_add_u32 s{sT0}, s{sT0}, {L_WO}")
        for k in range(2):
            e(f"v_add_u32 v{vW5t[k]}, s{sT0}, v{vW5t[k]}")
        near = [0, 1, 3, 5, 7, 8, 10, 12]
        tab = sum((near.index(h) if h in near else 15) << (4 * h) for h in range(16))
        e(f"s_mov_b32 s{sNI}, {tab & 0xffffffff}"); e(f"s_mov_b32 s{sNI + 1}, {tab >> 32}"); e(f"s_lshl_b32 s{sT0}, s{sHEAD}, 2")
        e(f"s_lshr_b64 s[{sNI}:{sNI + 1}], s[{sNI}:{sNI + 1}], s{sT0}"); e(f"s_and_b32 s{sT0}, s{sNI}, 15")
        e(f"s_and_b32 s{sNI}, s{sRB}, 1"); e(f"s_lshl_b32 s{sNI}, s{sNI}, 3"); e(f"s_add_u32 s{sNI}, s{sNI}, s{sT0}")
        e(f"s_lshl_b32 s{sNI}, s{sNI}, 2"); e(f"s_add_u32 s{sNI}, s{sNI}, s{sW}"); e(f"s_mul_i32 s{sNI}, s{sNI}, 3584")
        e(f"s_cmp_lt_u32 s{sT0}, 8"); e(f"s_cselect_b32 s{sNI}, s{sNI}, 0x7f000000")
        late[0] = True
        self.tr(e, "setup", 4)
        run(rest)
        e("s_branch L_pgS_skip")
        e("L_page0:")
        e("L_pgS_skip:")
        cnt.pop("G")
        assert cnt["W"] == 7 and cnt["X"] == 7 and cnt["b"] == 7, cnt
        e(f"s_mul_i32 s{sT4}, s{sMT}, 28672"); e(f"s_mul_i32 s{sT0}, s{sHEAD}, 448"); e(f"s_add_u32 s{sT4}, s{sT4}, s{sT0}")
        aOwn, aOth, vWf, vO = vRES, 224, vH, 160
        e(f"s_lshl_b32 s{sML}, s{sMG}, 1"); e(f"s_add_u32 s{sML}, s{sML}, s{sMI}")
        e(f"s_lshl_b32 s{sMT}, s{sG}, 3"); e(f"s_add_u32 s{sMT}, s{sMT}, s{sML}")
        def wo_dma(grp):
            rows = 32 if grp < 3 else 16
            e(f"s_mul_i32 s{sT0}, s{sW}, {rows * 128}"); e(f"s_add_u32 m0, s{sT0}, {L_WO + grp * 16384}")
            e(f"s_mul_i32 s{sT0}, s{sW}, {rows * 896}"); e(f"s_lshl_b32 s{sT1}, s{sNG}, 7"); e(f"s_add_u32 s{sT0}, s{sT0}, s{sT1}")
            e(f"s_add_u32 s{sT0}, s{sT0}, {grp * 128 * 896}")
            self.dma4(e, WO, vA, f"s{sT0}", n=rows // 8, tag="wo")
        if p["otouch"] == 0:
            o_touch(); h_touch(); e.vm += [None] * 3
        if p["hg1"]:
            nohg = self.lab("nohg")
            e(f"s_cmp_lt_u32 s{sJ}, 28"); e(f"s_cbranch_scc1 {nohg}")
            e("s_waitcnt vmcnt(0)")
            self.chunk_touch(e, WG, range(p["hg0"], p["hg0"] + p["hg1"]))
            e(f"s_branch {nohg}_done")
            e(f"{nohg}:")
        self.visit(e, 1)
        e.wait(vm="wq")
        if p["hg1"]: e(f"{nohg}_done:")
        self.stamp(e, "wq")
        e("s_barrier")
        self.stamp(e, "Bkv")
        gate = self.gu_ops(e, WG, L_GATE, range(7 - p["glate"]), "gate")
        nogate = self.lab("nogate")
        qlate = 7 - cnt["Q"]
        run("Q" * qlate)
        rm_load(range(min(2 * cnt["R"], 7), 7)); xr_load()
        if qlate:
            e.wait(vm="wq")
            e("s_barrier")
        e(f"s_cmp_ge_u32 s{sJ}, 28"); e(f"s_cbranch_scc1 {nogate}")
        self.tr(e, "rmi", 2)
        n0 = min(p["gdep"] + 1, 2 * p["g1"]) if p["rmat"] else 2 * p["g1"]
        self.paced(e, gate[:n0], p["gdep"])
        back = self.lab("gated")
        e(f"{back}:")
        tl = Stream(); tl(f"{nogate}:")
        if p["ctouch"] & 1: self.code_touch(tl)
        tl("s_waitcnt vmcnt(0)")
        self.chunk_touch(tl, WG, range(p["hg0"] + p["hg1"], p["hg0"] + p["hg1"] + p["hg2"]))
        if p["hoh"] & 1: self.group_touch(tl, WS_O, 128, 2)
        tl(f"s_branch {back}")
        self.pull_code += tl.L
        e("s_waitcnt vmcnt(%d)" % min(p["gdep"] + 1, 2 * p["g1"]))
        for i in range(28):
            acc = t + (i & 1)
            e(f"v_lshlrev_b32 v{t + 2}, 16, v{vRMr + i}"); e(f"v_and_b32 v{t + 3}, 0xffff0000, v{vRMr + i}")
            if i < 2:
                e(f"v_add_f32 v{acc}, v{t + 2}, v{t + 3}")
            else:
                e(f"v_add_f32 v{acc}, v{acc}, v{t + 2}"); e(f"v_add_f32 v{acc}, v{acc}, v{t + 3}")
        e(f"v_add_f32 v{t}, v{t}, v{t + 1}")
        for d in ("quad_perm:[1,0,3,2]", "quad_perm:[2,3,0,1]", "row_half_mirror"):
            e(f"v_add_f32_dpp v{t}, v{t}, v{t} {d} row_mask:0xf bank_mask:0xf")
        e(f"v_mul_f32 v{t}, {f32(1 / 448)}, v{t}")
        e(f"s_mov_b32 s{sM1}, 0"); e(f"s_mov_b32 s{sM1 + 1}, 0xff000000")
        e(f"v_cndmask_b32 v{t}, v{t}, 0, s[{sM1}:{sM1 + 1}]")
        e(f"s_mul_i32 s{sT0}, s{sW}, 7"); e(f"s_add_u32 s{sT1}, s{sW}, 28")
        e(f"v_lshrrev_b32 v{t + 1}, 3, v{vLANE}"); e(f"v_add_u32 v{t + 1}, s{sT0}, v{t + 1}")
        e(f"v_mov_b32 v{t + 2}, s{sT1}")
        e(f"v_cndmask_b32 v{t + 1}, v{t + 1}, v{t + 2}, s[{sM1}:{sM1 + 1}]")
        e(f"v_lshlrev_b32 v{t + 1}, 2, v{t + 1}"); e(f"v_add_u32 v{t + 1}, {L_MISC}, v{t + 1}")
        e.lds(f"ds_write_b32 v{t + 1}, v{t}")
        self.tr(e, "rm", 2)
        if n0 < 2 * p["g1"]:
            sk = self.lab("nogate")
            e(f"s_cmp_ge_u32 s{sJ}, 28"); e(f"s_cbranch_scc1 {sk}")
            for op in gate[n0:2 * p["g1"]]:
                e(f"s_waitcnt vmcnt({p['gdep']})")
                op()
            e(f"{sk}:")
        e.wait(ds="all")
        self.stamp(e, "pre")
        e("s_barrier")
        self.tr(e, "Bk", 2)
        e("s_mov_b32 exec_lo, 0x0fffffff"); e("s_mov_b32 exec_hi, 0x0fffffff")
        for u in range(3):
            e(f"s_sub_u32 s{sT1}, s{sT4}, {(8 - 4 * u) * 28672}")
            if u < 2:
                e(f"s_cmp_ge_u32 s{sRB}, {2 - u}"); e(f"s_cselect_b32 s{sT1}, s{sT1}, 0x7f000000")
            e(f"s_add_u32 m0, s{sT5}, {u * 16384}")
            e.vmem(f"buffer_load_dwordx4 v{vV0}, {WS}, s{sT1} offen offset:2048 sc1 lds", "vt")
            e.vmem(f"buffer_load_dwordx4 v{vV1}, {WS}, s{sT1} offen offset:3072 sc1 lds", "vt")
        e("s_mov_b64 exec, -1")
        def oh_touch():
            if not (p["ohwt"] | p["hoh"]) & 1:
                o_touch(); e.vm += [None]
            if not (p["ohwt"] | p["hoh"]) & 2:
                h_touch(); e.vm += [None] * 2
        self.oh_touch = oh_touch
        e(f"s_cmp_ge_u32 s{sJ}, 28"); e("s_cbranch_scc1 L_helper")
        self.tr(e, "vi", 2)
        for a in range(4):
            e.lds(f"ds_read_b64 {vr(aOth + 2 * a, 2)}, v{vXL} offset:{16 * a}")
        wo_dma(0)
        e.wait(ds="all")
        for i in range(8):
            e(f"v_lshlrev_b32 v{aOwn + 2 * i}, 16, v{aOth + i}")
            e(f"v_and_b32 v{aOwn + 2 * i + 1}, 0xffff0000, v{aOth + i}")
        e(f"v_mov_b32 v{t}, 0xbf80bf80")
        self.tr(e, "Batt_", 2)
        e("s_barrier")
        self.stamp(e, "Batt")
        wo_dma(1); wo_dma(2); wo_dma(3)
        self.tr(e, "wo", 2)
        rest = gate[2 * p["g1"]:]
        if p["otouch"] == 2: self.oh_touch()
        for op in rest[:2 * p["gpre"]]: op()
        e.wait(vm="vt" if p["m2"] >= 0 else "wo")
        self.tr(e, "Bm_", 2)
        e("s_barrier")
        self.stamp(e, "Bm")
        if p["otouch"] == 3: self.oh_touch()
        for op in rest[2 * p["gpre"]:]: op()
        for c in range(p["upa"]):
            e(f"s_add_u32 s{sT0}, s{sG}, {c}"); e(f"s_cmp_ge_u32 s{sT0}, 7"); e(f"s_cselect_b32 s{sT1}, 7, 0")
            e(f"s_sub_u32 s{sT0}, s{sT0}, s{sT1}"); e(f"s_mul_i32 s{sT0}, s{sT0}, 112"); e(f"s_lshl_b32 s{sT1}, s{sJ}, 2")
            e(f"s_add_u32 s{sT0}, s{sT0}, s{sT1}"); e(f"s_add_u32 s{sT0}, s{sT0}, s{sW}"); e(f"s_lshl_b32 s{sT0}, s{sT0}, 11")
            self.touch(e, WU, f"s{sT0}", 16)
            e.vm.append(None)
        self.tr(e, "gi", 2)
        if p["m2"] >= 0:
            e.wait(vm="wo")
            e("s_barrier")
            self.tr(e, "Bm2", 2)
        for st in range(16):
            for k in range(2):
                self.trd(e, vWf + 8 * st + 4 * k, vW5t[k], (28 * (st >> 1) + 16 * (st & 1)) * 128, 1024, None)
        if p["sprio"]: e("s_setprio 1")
        self.mode_issue(e, 3, 22)
        e.wait(ds="all")
        self.tr(e, "wfr", 2)
        for st in range(1, 16, 2):
            for k in range(2):
                r = vWf + 8 * st + 4 * k
                e(f"v_cndmask_b32 v{r + 2}, v{r + 2}, v{t}, {HI}")
                e(f"v_cndmask_b32 v{r + 3}, v{r + 3}, 0, {HI}")
        self.tr(e, "fix", 2)
        self.mode_check(e, 3, 22)
        self.stamp(e, "gu")
        if self.stop > 2:
            self.out_proj(e, aOwn, aOth, vWf, vO)
        if self.stop > 3:
            self.ffn_S(e)
        self.finish(e, 1)
        self.helper(e)
        return e

    def pull(self):
        e = Stream(); e.role = 1
        e("L_pull:")
        e(f"s_lshl_b32 s{sT1}, s{sG}, 2"); e(f"s_add_u32 s{sT1}, s{sT1}, s{sJ}"); e(f"s_sub_u32 s{sT1}, s{sT1}, 28")
        e(f"s_lshl_b32 s{sT1}, s{sT1}, 2"); e(f"s_add_u32 s{sT1}, s{sT1}, s{sW}")
        for u in range(self.p["pull"]):
            srd, half = ((WG, 0), (WG, 1), (WU, 0), (WU, 1), (WD, 0), (WD, 1))[u]
            e(f"s_mul_i32 s{sT0}, s{sT1}, {98 * 128}")
            if half: e(f"s_add_u32 s{sT0}, s{sT0}, {49 * 128}")
            self.touch(e, srd, f"s{sT0}", 49)
        self.chunk_touch(e, WG, range(self.p["hg0"]))
        e("s_branch L_pulled")
        self.pull_code = e.L

    def code_touch(self, e):
        lb = self.lab("pc")
        e("s_getpc_b64 s[100:101]")
        e(f"{lb}:")
        e(f"s_sub_u32 s100, s100, {lb}-{NAME}"); e("s_subb_u32 s101, s101, 0")
        e(f"s_sub_u32 s{sT0}, s{sJ}, 28"); e(f"s_lshl_b32 s{sT0}, s{sT0}, 2"); e(f"s_add_u32 s{sT0}, s{sT0}, s{sW}")
        e(f"s_mul_i32 s{sT0}, s{sT0}, 3328")
        e(f"v_add_u32 v25, s{sT0}, v24"); e(f"v_min_u32 v25, L_end-{NAME}-4, v25")
        e("s_mov_b64 exec, 0x3ffffff")
        e("global_load_dword v25, v25, s[100:101] sc1")
        e("s_mov_b64 exec, -1")

    def group_touch(self, e, base, lines, n):
        e(f"s_lshl_b32 s{sT0}, s{sG}, 2"); e(f"s_add_u32 s{sT0}, s{sT0}, s{sJ}"); e(f"s_sub_u32 s{sT0}, s{sT0}, 28")
        e(f"s_lshl_b32 s{sT0}, s{sT0}, 2"); e(f"s_add_u32 s{sT0}, s{sT0}, s{sW}"); e(f"s_mul_i32 s{sT0}, s{sT0}, {lines * 128}")
        e(f"s_add_u32 s{sT0}, s{sT0}, {base}")
        for i in range(n):
            if i: e(f"s_add_u32 s{sT0}, s{sT0}, {lines // n * 128}")
            self.touch(e, WS, f"s{sT0}", lines // n)

    def chunk_touch(self, e, srd, cs):
        for c in cs:
            e(f"s_add_u32 s{sT0}, s{sG}, {c}"); e(f"s_cmp_ge_u32 s{sT0}, 7"); e(f"s_cselect_b32 s{sT1}, 14, 7")
            e(f"s_sub_u32 s{sT0}, s{sT0}, s{sT1}"); e(f"s_lshl_b32 s{sT0}, s{sT0}, 2"); e(f"s_add_u32 s{sT0}, s{sT0}, s{sJ}")
            e(f"s_lshl_b32 s{sT0}, s{sT0}, 2"); e(f"s_add_u32 s{sT0}, s{sT0}, s{sW}"); e(f"s_mul_i32 s{sT0}, s{sT0}, {4 * 3584}")
            self.touch(e, srd, f"s{sT0}", 56); e(f"s_add_u32 s{sT0}, s{sT0}, {56 * 128}"); self.touch(e, srd, f"s{sT0}", 56)

    def cold_pull(self, e, srd):
        e(f"s_lshl_b32 s{sT0}, s{sG}, 2"); e(f"s_add_u32 s{sT0}, s{sT0}, s{sJ}"); e(f"s_sub_u32 s{sT0}, s{sT0}, 28")
        e(f"s_lshl_b32 s{sT0}, s{sT0}, 2"); e(f"s_add_u32 s{sT0}, s{sT0}, s{sW}"); e(f"s_mul_i32 s{sT0}, s{sT0}, {98 * 128}")
        self.touch(e, srd, f"s{sT0}", 49); e(f"s_add_u32 s{sT0}, s{sT0}, {49 * 128}"); self.touch(e, srd, f"s{sT0}", 49)

    def helper(self, e):
        e("L_helper:")
        e.vm, e.ds = [], []
        p = self.p
        e("s_barrier")
        if p["otouch"]: self.oh_touch()
        if p["hoh"] & 2:
            self.group_touch(e, WS_H, 112, 2); self.group_touch(e, WS_SS, 8, 1)
            e.vm += [None] * 3
        self.touch(e, WS, f"s{sFX}", 28)
        e(f"s_waitcnt vmcnt({len(e.vm) + 1})")
        e("s_barrier")
        if p["hp2"]: self.cold_pull(e, WD)
        if p["m2"] >= 0: e("s_barrier")
        sHI_ = sKC
        e(f"s_sub_u32 s{sHI_}, s{sJ}, 28"); e(f"s_lshl_b32 s{sHI_}, s{sHI_}, 2"); e(f"s_add_u32 s{sHI_}, s{sHI_}, s{sW}")
        e("s_barrier")
        if p["ctouch"] & 2:
            e("s_waitcnt vmcnt(0)")
            self.code_touch(e)
        if p["hcp"] & 1: self.cold_pull(e, WU)
        if p["hcp"] & 2: self.cold_pull(e, WD)
        self.chunk_touch(e, WG, range(7 - p["glate"], 7))
        self.chunk_touch(e, WU, range(p["upa"], p["hup"]))
        if p["hcp"] & 4: self.cold_pull(e, WD)
        def wd_touch(tile):
            for u in range(4):
                e(f"s_add_u32 s{sT2}, s{sHI_}, {16 * u}"); e(f"s_lshl_b32 s{sT0}, s{sG}, 3"); e(f"s_add_u32 s{sT2}, s{sT2}, s{sT0}")
                e(f"s_and_b32 s{sT2}, s{sT2}, 63")
                e(f"s_lshr_b32 s{sT0}, s{sT2}, 1"); e(f"s_mul_i32 s{sT0}, s{sT0}, {64 * 896}")
                e(f"s_and_b32 s{sT2}, s{sT2}, 1"); e(f"s_mul_i32 s{sT2}, s{sT2}, {8 * 896}")
                e(f"s_add_u32 s{sT0}, s{sT0}, s{sT2}"); e(f"s_add_u32 s{sT0}, s{sT0}, {16 * tile * 896}")
                self.touch(e, WD, f"s{sT0}", 56)
        for tile in f"{p['word']:04d}"[:p["hwd"]]:
            wd_touch(int(tile))
        if not p["swt"]:
            e(f"s_lshl_b32 s{sT0}, s{sG}, 4"); e(f"s_add_u32 s{sT0}, s{sT0}, s{sHI_}"); e(f"s_mul_i32 s{sT0}, s{sT0}, 28672")
            e(f"s_add_u32 s{sT0}, s{sT0}, {WS_ACT}")
            for i in range(4):
                self.touch(e, WS, f"s{sT0}", 56); e(f"s_add_u32 s{sT0}, s{sT0}, {56 * 128}")
        if p["ctouch"] & 4:
            e("s_waitcnt vmcnt(0)")
            self.code_touch(e)
        if p["wb"]:
            off, stride, mask, stage = {1: (FX_F4, 3, 0x3fff, 3), 2: (FX_F6, 4, 0xfffffff, 1), 3: (FX_F6, 4, 0xfffffff, 2)}[p["wb"]]
            nw, a, b = self.lab("nowb"), self.lab("wbp"), self.lab("wbd")
            e(f"s_cmp_lg_u32 s{sHI_}, 0"); e(f"s_cbranch_scc1 {nw}")
            e(f"v_lshlrev_b32 v{t}, {stride}, v{vLANE}"); e(f"s_add_u32 s{sT0}, s{sFX}, {off}")
            e(f"s_mov_b64 exec, {mask}")
            self.poll(e, t, f"s{sT0}", f"v_cmp_gt_u32 vcc, {stage}, v{t + 1}", t + 1)
            e("s_mov_b64 exec, -1")
            e("buffer_wbl2 sc1")
            e("s_waitcnt vmcnt(0)")
            e(f"{nw}:")
        if p.get("trace"): e("s_endpgm")
        else: self.finish(e, 1)

    def out_proj(self, e, aOwn, aOth, vWf, vO):
        e(f"v_lshlrev_b32 v{t}, 2, v{vLANE}")
        e(f"s_lshl_b32 s{sT0}, s{sML}, 2"); e(f"s_add_u32 s{sT0}, s{sT0}, s{sKH}"); e(f"s_lshl_b32 s{sT0}, s{sT0}, 5")
        e(f"s_add_u32 s{sT0}, s{sT0}, s{sFX}")
        e(f"s_lshl_b32 s{sT2}, s{sMT}, 1"); e(f"s_add_u32 s{sT2}, s{sT2}, s{sKH}"); e(f"s_lshl_b32 s{sT2}, s{sT2}, 14")
        e(f"s_add_u32 s{sT2}, s{sT2}, {WS_O}")
        e(f"s_lshl_b32 s{sT1}, s{sNG}, 1"); e(f"s_add_u32 s{sT1}, s{sT1}, s{sKH}")
        e(f"s_mul_i32 s{sT4}, s{sMT}, 14"); e(f"s_add_u32 s{sT4}, s{sT4}, s{sT1}"); e(f"s_lshl_b32 s{sT4}, s{sT4}, 11")
        e(f"s_add_u32 s{sT4}, s{sT4}, {WS_H}")
        e(f"s_lshl_b32 s{sT5}, s{sMT}, 4"); e(f"s_add_u32 s{sT5}, s{sT5}, s{sT1}"); e(f"s_lshl_b32 s{sT5}, s{sT5}, 7")
        e(f"s_add_u32 s{sT5}, s{sT5}, {WS_SS}")
        e(f"s_lshl_b32 s{sT3}, s{sML}, 5"); e(f"s_add_u32 s{sT3}, s{sT3}, s{sT1}"); e(f"s_lshl_b32 s{sT3}, s{sT3}, 2")
        e(f"s_add_u32 s{sT3}, s{sT3}, s{sFX}")
        e("s_mov_b64 exec, 0xff")
        self.poll(e, t, f"s{sT0}", f"v_cmp_ne_u32 vcc, 1, v{t + 1}", t + 1)
        e("s_mov_b64 exec, -1")
        self.stamp(e, "opoll")
        def oload(st):
            e.vmem(f"buffer_load_dwordx4 {vr(vO + 4 * st, 4)}, v{vL16}, {WS}, s{sT2} offen offset:{1024 * (st & 3)} sc1", ("o", st))
            if st & 3 == 3: e(f"s_add_u32 s{sT2}, s{sT2}, 4096")
            if st == 15: e("s_barrier")
        PRE = self.p["opre"]
        for st in range(PRE):
            oload(st)
        e(f"s_lshl_b32 s{sT0}, s{sW}, 12"); e(f"v_add_u32 v{t}, s{sT0}, v{vL16}"); e(f"v_xor_b32 v{t + 1}, 8192, v{t}")
        LAG = self.p["olag"]
        for st in range(16 + LAG):
            if st < 16:
                e.wait(vm=("o", st))
                self.mf(e, aOth, vWf + 8 * st + 4, vO + 4 * st, "0" if st == 0 else None)
                if st + PRE < 16: oload(st + PRE)
            if st >= LAG:
                self.mf(e, aOwn, vWf + 8 * (st - LAG), vO + 4 * (st - LAG))
            if st == 15 + LAG - 1 or LAG == 0 and st == 15:
                self.stamp(e, "omm")
                for i in range(4):
                    e.lds(f"ds_write_b128 v{t}, {vr(aOth + 4 * i, 4)} offset:{LA + 1024 * i}")
        e.wait(ds="all")
        e("s_barrier")
        self.stamp(e, "Bx")
        for i in range(4):
            e.lds(f"ds_read_b128 {vr(aOth + 4 * i, 4)}, v{t + 1} offset:{LA + 1024 * i}", ("x", i))
        PK = vH
        def sq(r):
            if r == 0: e(f"v_pk_mul_f32 {vr(t + 2, 2)}, {vr(aOwn, 2)}, {vr(aOwn, 2)}")
            else: e(f"v_pk_fma_f32 {vr(t + 2, 2)}, {vr(aOwn + r, 2)}, {vr(aOwn + r, 2)}, {vr(t + 2, 2)}")
        for i in range(4):
            e.wait(ds=("x", i))
            for k in (0, 2):
                r = 4 * i + k
                e(f"v_pk_add_f32 {vr(aOwn + r, 2)}, {vr(aOwn + r, 2)}, {vr(aOth + r, 2)}")
            for k in (0, 2):
                r = 4 * i + k
                e(f"v_cvt_pk_bf16_f32 v{PK + r // 2}, v{aOwn + r}, v{aOwn + r + 1}")
            if i & 1:
                self.publish(e, [f"buffer_store_dwordx4 {vr(PK + 2 * (i - 1), 4)}, v{vL16}, {WS}, s{sT4} offen offset:{512 * (i - 1)}"], wt=self.p["ohwt"] & 2)
            sq(4 * i); sq(4 * i + 2)
        self.stamp(e, "hst")
        e(f"v_add_f32 v{t + 2}, v{t + 2}, v{t + 3}")
        e(f"v_mov_b32 v{t + 3}, v{t + 2}")
        e(f"v_lshlrev_b32 v{t}, 2, v{vLANE}")
        e(f"v_permlane32_swap_b32 v{t + 2}, v{t + 3}")
        e(f"v_add_f32 v{t + 2}, v{t + 2}, v{t + 3}")
        e("s_mov_b32 exec_hi, 0")
        self.publish(e, [f"buffer_store_dword v{t + 2}, v{t}, {WS}, s{sT5} offen"], wt=self.p["ohwt"] & 2)
        e("s_mov_b64 exec, -1")
        e(f"v_mov_b32 v{t + 1}, 1"); e(f"v_mov_b32 v{t + 3}, {ONES}"); e(f"v_mov_b32 v{vMU2}, 0")
        for st in range(1, 16, 2):
            e(f"v_dot2c_f32_bf16 v{vMU2}, v{vO + 4 * st + 2}, v{t + 3}")
        e.wait(vm="all")
        e("s_mov_b64 exec, 1")
        self.publish(e, [f"buffer_store_dword v{t + 1}, v{t}, {WS}, s{sT3} offen offset:{FX_F3}"])
        e("s_mov_b64 exec, -1")
        self.stamp(e, "hpub")
        e(f"v_mov_b32 v{t + 3}, v{vMU2}")
        e(f"v_permlane32_swap_b32 v{t + 3}, v{vMU2}")
        for i in range(16):
            e(f"v_add_f32 v{aOwn + i}, v{vMU2}, v{aOwn + i}")
        e(f"s_xor_b32 s{sT0}, s{sW}, 2"); e(f"s_lshl_b32 s{sT0}, s{sT0}, 12"); e(f"v_add_u32 v{t + 1}, s{sT0}, v{vL16}")
        e(f"s_lshl_b32 s{sT0}, s{sW}, 8"); e(f"v_add_u32 v{t}, s{sT0}, v{t}")
        for i in range(4):
            e.lds(f"ds_write_b128 v{t + 1}, {vr(aOwn + 4 * i, 4)} offset:{L_RES + 1024 * i}")
        e.lds(f"ds_write_b32 v{t}, v{vMU2} offset:{L_MU}")

    def ffn_S(self, e):
        p = self.p
        full = self.stop > 4
        self.ffn_setup(e, 1)
        self.out_addr(e)
        self.gu_pre(e, 0, self.KMAJ)
        self.h_poll(e)
        self.paced(e, self.gu_ops(e, WU, L_UP, range(p["upe"], p["upe"] + p["ups"]), "up"), p["udep"])
        if p["q0e"] and full:
            assert not p["ssb"]
            self.wd_dma(e, [0])
        self.stamp(e, "Bh_")
        if p["bh"]: e("s_barrier")
        self.stamp(e, "Bh")
        e("s_setprio 1")
        def bb():
            e.wait(ds="all")
            self.stamp(e, "seg2")
            e("s_barrier")
        if p["cin"]:
            z = Stream(); self.gelu_consts(z)
            part = lambda a, b: (lambda: (e.wait(ds="ss"), [e(l) for l in z.L[a:b]]))
            extra = [lambda: self.ss_read(e), lambda: self.act_flag(e, 1), part(0, 6), lambda: (bb(), part(6, 11)()), part(11, 99)]
            self.first_pass(e, p["spre"], [lambda: None] * (p["spre"] - 6) + extra)
            self.stamp(e, "Bb")
        else:
            self.first_pass(e, p["spre"], [lambda: None] * (p["spre"] - 4) + [lambda: self.ss_read(e), bb])
            self.stamp(e, "Bb")
            self.act_flag(e, 1)
            self.gelu_consts(e)
        qops = self.wd_ops(e, [2]) if full and p["q2s"] else []
        while qops and p["q2at"] == -2: qops.pop(0)()
        if p["q2at"] == -3:
            self.gelu_gate(e, qops); qops = []
        else:
            self.gelu_gate(e)
        while qops and p["q2at"] < 0: qops.pop(0)()
        self.gu_pre(e, 1, self.TMAJ)
        self.stamp(e, "gelu2")
        def extra(n):
            if qops and n >= p["q2at"] and n & 1 == 0: qops.pop(0)()
            if n == 52 and full:
                e.wait(vm=("wd", 2), ds="all")
                self.stamp(e, "seg4")
                if p["bd"]: e("s_barrier")
                else: self.done_set(e)
        self.up_pass(e, -1, extra)
        self.stamp(e, "Bd")
        ops = self.prod_ops(e, 1)
        for op in ops[:6]: op()
        self.act_flag(e, 2)
        for op in ops[6:]: op()
        if not full:
            self.act_flag(e, 3)
            return
        A0, A1 = vACC, vACC + 16
        e(f"s_lshl_b32 s{sT0}, s{sW}, 12"); e(f"v_add_u32 v{t}, s{sT0}, v{vL16}"); e(f"v_xor_b32 v{t + 1}, 8192, v{t}")
        e(f"s_xor_b32 s{sT0}, s{sW}, 2"); e(f"s_lshl_b32 s{sT0}, s{sT0}, 8"); e(f"v_add_u32 v{t + 3}, s{sT0}, v{vPA}")
        for i in range(4):
            e.lds(f"ds_read_b128 {vr(A0 + 4 * i, 4)}, v{t + 1} offset:{L_RES + 1024 * i}")
        e.lds(f"ds_read_b32 v{vMU2}, v{t + 3} offset:{L_MU}")
        e(f"s_lshl_b32 s{sT0}, s{sW}, 11"); e(f"s_add_u32 s{sT0}, s{sT0}, {L_PART}"); e(f"v_add_u32 v{t + 2}, s{sT0}, v{vL16}")
        self.act_sample(e)
        e.wait(ds="all")
        for i in range(16):
            e(f"v_add_f32 v{A0 + i}, v{vMU2}, v{A0 + i}")
        self.act_flag(e, 3)
        self.act_check(e, 2)
        self.act_load(e, 0)
        self.act_sample(e)
        self.act_load(e, 1)
        if not p["bd"]: self.done_wait(e)
        self.down_pre(e)
        late = self.act_ops(e, 2) + self.act_ops(e, 3)
        def hook(n):
            if n == 0: self.act_check(e, 3)
            if n & 1 == 0 and late: late.pop(0)()
        self.down_half(e, [None, "0"], hook, t + 1, L_RES)
        self.stamp(e, "dn")
        e.wait(ds="all")
        e("s_barrier")
        self.tr(e, "Br", 1)
        P1, P2 = UACC[0], UACC[1]
        for i in range(4):
            if i & 1 == 0:
                e.lds(f"ds_read_b128 {vr(P2 + 2 * i, 4)}, v{t + 2} offset:{512 * i}", ("p", i))
            e.lds(f"ds_read_b128 {vr(A1 + 4 * i, 4)}, v{t} offset:{L_RES + 1024 * i}", ("x", i))
        PK = vH
        for i in range(4):
            e.wait(ds=("p", i))
            for k in (0, 2):
                r = 4 * i + k
                e(f"v_lshlrev_b32 v{P1 + r}, 16, v{P2 + r // 2}"); e(f"v_and_b32 v{P1 + r + 1}, 0xffff0000, v{P2 + r // 2}")
            e.wait(ds=("x", i))
            for src in (A1, P1):
                for k in (0, 2):
                    r = 4 * i + k
                    e(f"v_pk_add_f32 {vr(A0 + r, 2)}, {vr(A0 + r, 2)}, {vr(src + r, 2)}")
            for k in (0, 2):
                r = 4 * i + k
                e(f"v_cvt_pk_bf16_f32 v{PK + r // 2}, v{A0 + r}, v{A0 + r + 1}")
            if i & 1:
                b = PK + 2 * (i - 1)
                e(f"v_permlane32_swap_b32 v{b}, v{b + 2}")
                e(f"v_permlane32_swap_b32 v{b + 1}, v{b + 3}")
                e.vmem(f"buffer_store_dwordx4 {vr(b, 4)}, v{vXO}, {OUT}, s{sXO} offen offset:{16 * (i - 1)}")

    def build(self):
        e = Stream()
        self.prologue(e)
        S = self.role_S()
        L = self.role_L()
        cs, cl = S.L.index("L_page0:"), L.L.index("L_setup_end:")
        body = (e.L + S.L[:cs] + ["L_roleL:"] + L.L[:cl] + S.L[cs:] + L.L[cl:] + ["L_tail:"] + self.tail
                + ["L_exit:", "s_endpgm", "L_end:"])
        at = body.index("L_pgS_skip:")
        body[at:at] = self.pull_code
        body, nops = pad_hazards(body)
        vis = [f"L_visit{g}_{w}:" for g in range(2) for w in range(4)]
        body, n = paginate(body + vis, NAME, "L_page0", "L_tail", self.p["align"])
        body = body[:len(body) - len(vis)]
        pos = {k: body.index(f"L_pg{k}:") for k in range(n)}
        l0, l1 = body.index("L_setup_end:"), body.index("L_qdone:")
        groups = [[f"L_pg{k}" for k in range(n) if l0 < pos[k] < l1], [f"L_pg{k}" for k in range(n) if not l0 < pos[k] < l1]]
        alias = {}
        for g, pg in enumerate(groups):
            for w in range(4):
                chain = pg[w::4] + [f"L_visit{g}_back"]
                alias[f"L_visit{g}_{w}"] = chain[0]
                for x, y in zip(chain, chain[1:]):
                    alias[x + "_next"] = y
        def fix(l):
            parts = l.split()
            return f"{parts[0]} {alias[parts[1]]}" if len(parts) == 2 and parts[1] in alias else l
        body = [fix(l) for l in body]
        head = open("sequential_preLN__sliding_block__geglu_ffn__prompt.s.ref").read().splitlines()
        cm = [l for l in head if l.startswith(";") and "@launch" not in l]
        out = cm + ["; @launch grid=(256,1,1) block=(512,1,1) lds=163840",
                    '.amdgcn_target "amdgcn-amd-amdhsa--gfx950"', ".text", f".globl {NAME}", ".p2align 12", ".p2align 8",
                    f".type {NAME},@function", f"{NAME}:"]
        out += [("" if l.endswith(":") else "    ") + l for l in body]
        out += ['.section .rodata,"a"', ".p2align 6", f".amdhsa_kernel {NAME}",
                "  .amdhsa_next_free_vgpr 256", "  .amdhsa_next_free_sgpr 102", "  .amdhsa_accum_offset 256",
                "  .amdhsa_group_segment_fixed_size 0", "  .amdhsa_kernarg_size 80", "  .amdhsa_user_sgpr_count 2",
                "  .amdhsa_user_sgpr_kernarg_segment_ptr 1", "  .amdhsa_system_sgpr_workgroup_id_x 1",
                ".end_amdhsa_kernel", ""]
        self.nops = nops
        return "\n".join(out)

if __name__ == "__main__":
    import argparse
    ap = argparse.ArgumentParser()
    ap.add_argument("-o", default="sequential_preLN__sliding_block__geglu_ffn__prompt.s")
    ap.add_argument("--stop", type=int, default=99)
    ap.add_argument("--stamps", action="store_true")
    ap.add_argument("--slow", action="store_true")
    ap.add_argument("-p", action="append", default=[])
    a = ap.parse_args()
    kw = {k: int(v) for k, v in (x.split("=") for x in a.p)}
    g = Gen(a.stop, a.stamps, a.slow, **kw)
    s = g.build()
    open(a.o, "w").write(s)
    print("lines", s.count("\n"), "nops", g.nops)
```
